```python
import torch

def _softmax(x, axis=-1):
    return torch.softmax(x, dim=axis)

def _gelu(x):
    return torch.nn.functional.gelu(x, approximate='tanh')

def _silu(x):
    return torch.nn.functional.silu(x)

def _sigmoid(x):
    return torch.sigmoid(x)

def _layernorm(x, axis=-1, eps=1e-05):
    m = x.mean(dim=axis, keepdim=True)
    v = x.var(dim=axis, keepdim=True, unbiased=False)
    return (x - m) / torch.sqrt(v + eps)

def _scatter_add(tgt, idx, src, axis=0):
    return tgt.clone().index_add_(axis, idx, src)

def _segment_sum(src, seg, n):
    out = torch.zeros((n,) + src.shape[1:], dtype=src.dtype)
    return out.index_add_(0, seg, src)

def _pad(x, pw):
    flat = tuple((v for pair in reversed(pw) for v in pair))
    return torch.nn.functional.pad(x, flat)
kernel_name = 'adaLN_cond__grouped_kv_mqa__glu_gated_swiglu__prompt'

def setup_inputs():

    _w = lambda a: (lambda t: t.to(torch.bfloat16) if t.is_floating_point() else t)(torch.as_tensor(a))

    def _A_setup():
        B, S, D, H = (1, 2048, 640, 32)
        Dh = D // H
        return {'x': _w((lambda *s: torch.randn(*s, dtype=torch.bfloat16) * 0.05)(B, S, D)), 'wq': _w((lambda *s: torch.randn(*s, dtype=torch.bfloat16) * 0.05)(D, H * Dh)), 'wk': _w((lambda *s: torch.randn(*s, dtype=torch.bfloat16) * 0.05)(D, Dh)), 'wv': _w((lambda *s: torch.randn(*s, dtype=torch.bfloat16) * 0.05)(D, Dh)), 'wo': _w((lambda *s: torch.randn(*s, dtype=torch.bfloat16) * 0.05)(H * Dh, D))}
    _A_in = _A_setup()

    def _B_setup():
        B, S, D, F = (1, 2048, 640, 1728)
        return {'x': _w((lambda *s: torch.randn(*s, dtype=torch.bfloat16) * 0.05)(B, S, D)), 'w1': _w((lambda *s: torch.randn(*s, dtype=torch.bfloat16) * 0.8)(D, F) * (2.0 / D) ** 0.5), 'w3': _w((lambda *s: torch.randn(*s, dtype=torch.bfloat16) * 0.8)(D, F) * (2.0 / D) ** 0.5), 'w2': _w((lambda *s: torch.randn(*s, dtype=torch.bfloat16) * 0.8)(F, D) * (2.0 / F) ** 0.5)}
    _B_in = _B_setup()
    return {'A_x': _A_in['x'], 'A_wq': _A_in['wq'], 'A_wk': _A_in['wk'], 'A_wv': _A_in['wv'], 'A_wo': _A_in['wo'], 'B_x': _B_in['x'], 'B_w1': _B_in['w1'], 'B_w3': _B_in['w3'], 'B_w2': _B_in['w2'], 'c': _w((lambda *s: torch.randn(*s, dtype=torch.bfloat16) * 0.2)(1, 640) * 8.0), 'w_mod': _w((lambda *s: torch.randn(*s, dtype=torch.bfloat16) * 0.2)(640, 6 * 640) * 640 ** (-0.5) * 8.0)}

def reference(A_x, A_wq, A_wk, A_wv, A_wo, B_x, B_w1, B_w3, B_w2, c, w_mod):

    def _A_ref(x, wq, wk, wv, wo):
        B, S, D = x.shape
        H = 32
        Dh = D // H
        q = (lambda x, *d: x.permute(*d))((x @ wq).reshape(B, S, H, Dh), 0, 2, 1, 3)
        k = x @ wk
        v = x @ wv
        scores = torch.einsum('bhqd,bkd->bhqk', q, k) * Dh ** (-0.5)
        p = _softmax(scores, axis=-1)
        o = torch.einsum('bhqk,bkd->bhqd', p, v)
        return (lambda x, *d: x.permute(*d))(o, 0, 2, 1, 3).reshape(B, S, H * Dh) @ wo

    def _B_ref(x, w1, w3, w2):
        gate = torch.einsum('bsd,df->bsf', x, w1)
        up = torch.einsum('bsd,df->bsf', x, w3)
        h = _silu(gate) * up
        out = torch.einsum('bsf,fd->bsd', h, w2)
        return out
    x = A_x
    mod = (_silu(c) @ w_mod).reshape(c.shape[0], 6, 1, -1)
    sa, ca, ga, sb, cb, gb = (mod[:, 0].clone(), mod[:, 1].clone(), mod[:, 2].clone(), mod[:, 3].clone(), mod[:, 4].clone(), mod[:, 5].clone())
    h = _layernorm(x, axis=-1) * (1 + ca) + sa
    x = x + ga * _A_ref(h, A_wq, A_wk, A_wv, A_wo)
    h = _layernorm(x, axis=-1) * (1 + cb) + sb
    x = x + gb * _B_ref(h, B_w1, B_w3, B_w2)
    return x
```

```python
import re

TRANS = ("v_exp_f32", "v_log_f32", "v_rcp_f32", "v_rsq_f32", "v_sqrt_f32", "v_sin_f32", "v_cos_f32",
         "v_exp_f16", "v_log_f16", "v_rcp_f16", "v_rsq_f16", "v_sqrt_f16", "v_rcp_iflag_f32")

def regs_of(tok):
    tok = tok.strip()
    tok = re.sub(r"^-", "", tok)
    m = re.match(r"^abs\((.*)\)$", tok)
    if m: tok = m.group(1)
    tok = tok.strip("|")
    m = re.match(r"^([vsa])(\d+)$", tok)
    if m: return [(m.group(1), int(m.group(2)))]
    m = re.match(r"^([vsa])\[(\d+):(\d+)\]$", tok)
    if m: return [(m.group(1), i) for i in range(int(m.group(2)), int(m.group(3)) + 1)]
    if tok in ("vcc", "vcc_lo", "vcc_hi"): return [("x", "vcc")]
    if tok in ("exec", "exec_lo", "exec_hi"): return [("x", "exec")]
    if tok == "m0": return [("x", "m0")]
    if tok == "scc": return [("x", "scc")]
    return []

class Ins:
    def __init__(self, text):
        self.text = text
        t = text.split(";")[0].strip()
        self.label = None
        self.op = None
        if t.endswith(":"):
            self.label = t[:-1]; return
        if not t or t.startswith("."):
            return
        parts = t.split(None, 1)
        self.op = parts[0]
        rest = parts[1] if len(parts) > 1 else ""
        ops, depth, cur = [], 0, ""
        for ch in rest:
            if ch in "[(": depth += 1
            if ch in "])": depth -= 1
            if ch == "," and depth == 0:
                ops.append(cur.strip()); cur = ""
            else:
                cur += ch
        if cur.strip(): ops.append(cur.strip())
        mods = ""
        if ops:
            sp = ops[-1].split(None, 1)
            if len(sp) > 1 and not sp[0].startswith("quad_perm"):
                ops[-1] = sp[0]; mods = sp[1]
        self.ops = ops; self.mods = mods
        self.analyze()

    def analyze(self):
        op = self.op; ops = self.ops
        base = re.sub(r"_(e32|e64|dpp|sdwa)$", "", op)
        self.base = base
        self.rd, self.wr = set(), set()
        self.cls = "other"
        self.passes = 0
        self.is_dpp = op.endswith("_dpp") or any(k in (self.mods + " " + " ".join(ops)) for k in ("row_shr", "row_shl", "row_ror", "row_bcast", "quad_perm", "row_mirror", "row_half_mirror", "wave_"))
        R = lambda i: regs_of(ops[i]) if i < len(ops) else []
        if op.startswith("v_mfma"):
            self.cls = "mfma"
            self.passes = 8 if "32x32" in op else 4
            if "32x32x4_2b" in op: self.passes = 16
            self.wr = set(R(0)); self.a = set(R(1)); self.b = set(R(2)); self.c = set(R(3))
            self.rd = self.a | self.b | self.c
        elif op.startswith("v_"):
            self.cls = "valu"
            self.trans = base in TRANS
            if base.startswith("v_cmp"):
                self.wr = set(R(0))
                for i in range(1, len(ops)): self.rd |= set(R(i))
                if base.startswith("v_cmpx"): self.wr.add(("x", "exec"))
            elif base in ("v_readfirstlane_b32", "v_readlane_b32"):
                self.cls = "valu"; self.sub = "readlane"
                self.wr = set(R(0))
                for i in range(1, len(ops)): self.rd |= set(R(i))
            elif base.startswith("v_permlane") and "swap" in base:
                self.sub = "permlane"
                self.wr = set(R(0)) | set(R(1)); self.rd = set(self.wr)
            elif base in ("v_add_co_u32", "v_sub_co_u32", "v_addc_co_u32", "v_subb_co_u32", "v_subrev_co_u32", "v_mad_u64_u32", "v_div_scale_f32"):
                self.wr = set(R(0)) | set(R(1))
                for i in range(2, len(ops)): self.rd |= set(R(i))
            else:
                self.wr = set(R(0))
                for i in range(1, len(ops)): self.rd |= set(R(i))
                if base in ("v_fmac_f32", "v_mac_f32", "v_dot2c_f32_bf16", "v_pk_fmac_f16", "v_writelane_b32", "v_fmaak_f32"[:0]) or base.startswith("v_fmac") or base.startswith("v_dot2c"):
                    self.rd |= set(R(0))
                if "dst_unused:UNUSED_PRESERVE" in self.mods or self.is_dpp:
                    self.rd |= set(R(0))
                if base == "v_cndmask_b32" and len(ops) == 3:
                    self.rd.add(("x", "vcc"))
        elif op.startswith("ds_"):
            self.cls = "ds"
            if op.startswith("ds_read") or op.startswith("ds_bpermute") or op.startswith("ds_permute") or op.startswith("ds_swizzle"):
                self.wr = set(R(0))
                for i in range(1, len(ops)): self.rd |= set(R(i))
            else:
                for i in range(len(ops)): self.rd |= set(R(i))
        elif op.startswith("buffer_") or op.startswith("global_") or op.startswith("flat_"):
            self.cls = "vmem"
            allm = self.mods + " " + " ".join(ops)
            self.lds = bool(re.search(r"\blds\b", allm)) or "load_lds" in op
            if "load" in op and not self.lds:
                self.wr = set(R(0))
                for i in range(1, len(ops)): self.rd |= set(R(i))
            elif "atomic" in op:
                for i in range(len(ops)): self.rd |= set(R(i))
                if re.search(r"\bsc0\b", allm): self.wr = set(R(0 if op.startswith("buffer") else 0))
            else:
                for i in range(len(ops)): self.rd |= set(R(i))
            if self.lds: self.rd.add(("x", "m0"))
            self.wide_store = ("store" in op and ("x3" in op or "x4" in op))
            if self.wide_store:
                self.sdata = set(R(0)) if op.startswith("buffer") else set(R(1))
        elif op.startswith("s_"):
            self.cls = "salu"
            if op in ("s_nop", "s_waitcnt", "s_barrier", "s_endpgm", "s_sleep", "s_setprio", "s_branch") or op.startswith("s_cbranch"):
                self.cls = "sctl"
                if op == "s_cbranch_vccnz" or op == "s_cbranch_vccz": self.rd.add(("x", "vcc"))
                if op == "s_cbranch_execz" or op == "s_cbranch_execnz": self.rd.add(("x", "exec"))
            elif op.startswith("s_cmp") or op.startswith("s_bitcmp"):
                for i in range(len(ops)): self.rd |= set(R(i))
            elif op.startswith("s_load") or op.startswith("s_buffer_load") or op.startswith("s_memtime") or op.startswith("s_memrealtime"):
                self.cls = "smem"
                self.wr = set(R(0))
                for i in range(1, len(ops)): self.rd |= set(R(i))
            else:
                self.wr = set(R(0))
                for i in range(1, len(ops)): self.rd |= set(R(i))
                if "saveexec" in op: self.wr.add(("x", "exec")); self.rd.add(("x", "exec"))

    def states(self):
        if self.op is None: return 0
        if self.op == "s_nop": return int(self.ops[0], 0) + 1
        return 1

def need(p, c):
    n = 0
    if p.op is None or c.op is None: return 0
    vw = {r for r in p.wr if r[0] in "va"}
    sw = {r for r in p.wr if r[0] == "s" or r == ("x", "vcc")}
    if p.cls == "valu":
        if c.cls == "mfma" and (vw & c.rd): n = max(n, 2)
        if c.cls == "valu":
            if getattr(p, "trans", False) and not getattr(c, "trans", False) and (vw & (c.rd | set())): n = max(n, 1)
            if c.is_dpp and (vw & c.rd): n = max(n, 2)
            if getattr(c, "sub", "") == "permlane" and (vw & c.rd): n = max(n, 2)
            if getattr(c, "sub", "") == "readlane":
                if vw & c.rd: n = max(n, 1)
                if sw & c.rd: n = max(n, 4)
            if sw & c.rd: n = max(n, 2)
            if ("x", "exec") in p.wr:
                if c.is_dpp: n = max(n, 5)
                if getattr(c, "sub", "") in ("readlane", "permlane"): n = max(n, 4)
            if ("dst_sel" in p.mods or "op_sel" in p.mods) and (vw & (c.rd | c.wr)): n = max(n, 1)
        if c.cls == "mfma" and ("x", "exec") in p.wr: n = max(n, 4)
        if c.cls == "vmem" and (sw & c.rd): n = max(n, 5)
        if c.cls in ("salu", "sctl", "smem") and (sw & c.rd): n = max(n, 4 if c.cls != "sctl" else 5)
    if p.cls == "mfma":
        P = p.passes
        raw = {4: 8, 8: 12, 16: 20}[P]
        ovl = {4: 6, 8: 10, 16: 18}[P]
        war = {4: 3, 8: 7, 16: 15}[P]
        if c.cls == "mfma":
            if p.wr & (c.a | c.b): n = max(n, raw)
            if p.wr & c.c:
                if not (p.wr == c.c and c.passes == P): n = max(n, ovl)
            if (p.wr & c.wr) and not (p.wr & c.c):
                n = max(n, ovl)
        elif c.cls in ("valu", "vmem", "ds"):
            if p.wr & (c.rd | c.wr): n = max(n, raw)
            if c.cls == "valu" and (p.c & c.wr): n = max(n, war)
    if p.cls == "salu" and ("x", "m0") in p.wr and c.cls == "vmem" and getattr(c, "lds", False): n = max(n, 1)
    if p.cls == "vmem" and getattr(p, "wide_store", False):
        if c.cls == "valu" and (p.sdata & c.wr): n = max(n, 2)
        elif (p.sdata & c.wr): n = max(n, 1)
    return n

MAXD = 21
def fix_hazards(lines, verbose=False):
    ins = [Ins(l) for l in lines]
    labels = {x.label: i for i, x in enumerate(ins) if x.label}
    preds = [[] for _ in ins]
    for i, x in enumerate(ins):
        fall = True
        if x.op in ("s_branch", "s_endpgm", "s_setpc_b64"): fall = False
        if x.op and (x.op == "s_branch" or x.op.startswith("s_cbranch")):
            t = labels.get(x.ops[0])
            if t is None: raise Exception("unknown label " + x.text)
            preds[t].append(i)
        if fall and i + 1 < len(ins): preds[i + 1].append(i)
    extra = [0] * len(ins)
    total = 0
    changed = True
    while changed:
        changed = False
        for i, c in enumerate(ins):
            if c.op is None or (c.cls == "sctl" and not c.rd): continue
            worst = 0
            stack = [(p, extra[i]) for p in preds[i]]
            seen = {}
            while stack:
                j, d = stack.pop()
                if j in seen and seen[j] <= d: continue
                seen[j] = d
                p = ins[j]
                if p.op is not None:
                    n = need(p, c)
                    if n > d: worst = max(worst, n - d)
                nd = d + p.states() + extra[j]
                if nd < MAXD:
                    for q in preds[j]: stack.append((q, nd))
            if worst > 0:
                extra[i] += worst; total += worst; changed = True
                if verbose: print(f"hazard: +{worst} before: {c.text.strip()}")
    out = []
    for i, x in enumerate(ins):
        k = extra[i]
        while k > 0:
            m = min(k, 16); out.append(f"    s_nop {m-1}"); k -= m
        out.append(x.text)
    return out, total

class Asm:
    def __init__(self):
        self.l = []
        self.uid = 0
    def __call__(self, s):
        for line in s.split("\n"):
            line = line.strip()
            if not line: continue
            if line.endswith(":"): self.l.append(line)
            else: self.l.append("    " + line)
    def label(self, s): self.l.append(s + ":")
    def new(self, p="L"):
        self.uid += 1; return f"{p}_{self.uid}"
    def c(self, s): self.l.append("    ; " + s)
```

```python
from gen import *
import gen as G

WS_MODB = 0xE800

vX1 = 216
vGB = 228

def modr_poll(g):
    a = g.a
    a(f"v_lshlrev_b32 v112, 4, v{vLANE}\nv_add_u32 v112, {F_MODR}, v112")
    g.poll(112, 116, n=4, tagpos=(0, 1, 2, 3), err=3)
    a(f"v_lshlrev_b32 v112, 2, v{vLANE}\nv_add_u32 v112, {F_MODR + 1024}, v112")
    g.poll(112, 116, n=1, err=4)

def ut_slab_dma(g, cS):
    a = g.a
    E = a.new("Lnout")
    a(f"s_cmp_lg_u32 s{cS}, 3\ns_cbranch_scc1 {E}")
    a(f"s_cmp_ge_u32 s{sL}, 216\ns_cbranch_scc1 {E}")
    a(f"s_cmp_lt_u32 s{sL}, 108\ns_cselect_b32 s{S_B}, s{P_W1}, s{P_W3}\ns_cselect_b32 s{S_B+1}, s{P_W1+1}, s{P_W3+1}")
    a(f"s_mov_b32 s{S_B+2}, {640*3456}\ns_mov_b32 s{S_B+3}, 0x20000")
    a(f"s_sub_u32 s{sT[3]}, s{sL}, 108\ns_cselect_b32 s{sT[3]}, s{sL}, s{sT[3]}")
    a(f"s_lshl_b32 s{sT[3]}, s{sT[3]}, 5")
    a(f"v_lshrrev_b32 v112, 1, v{vLANE}\nv_mul_u32_u24 v112, 3456, v112\nv_and_b32 v113, 1, v{vLANE}\nv_lshl_add_u32 v112, v113, 4, v112")
    L = a.new("Lutd")
    a(f"s_mov_b32 s{sT[2]}, s{sW}")
    a.label(L)
    a(f"s_mul_i32 s{sT[4]}, s{sT[2]}, {32*3456}\ns_add_u32 s{sT[4]}, s{sT[4]}, s{sT[3]}")
    a(f"s_lshl_b32 s{sT[5]}, s{sT[2]}, 10\ns_add_u32 m0, s{sT[5]}, {g.L2_UT}")
    a(f"buffer_load_dwordx4 v112, s[{S_B}:{S_B+3}], s{sT[4]} offen lds")
    a(f"s_add_u32 s{sT[2]}, s{sT[2]}, 8\ns_cmp_lt_u32 s{sT[2]}, 20\ns_cbranch_scc1 {L}")
    a.label(E)

def ut_bfrag_load(g, cS):
    a = g.a
    E = a.new("Lnob")
    a(f"s_cmp_lg_u32 s{cS}, 13\ns_cbranch_scc1 {E}\ns_cmp_lg_u32 s{sW}, 7\ns_cbranch_scc1 {E}")
    a(f"v_and_b32 v112, 1, v{vLANE}\nv_xor_b32 v112, 1, v112\nv_mul_u32_u24 v112, 1280, v112")
    a(f"v_lshrrev_b32 v113, 4, v{vLANE}\nv_lshl_add_u32 v112, v113, 4, v112\nv_add_u32 v112, {WS_MODB}, v112")
    for s in range(20):
        a(f"buffer_load_dwordx4 {vr(128+4*s,4)}, v112, s[{S_WS}:{S_WS+3}], 0 offen offset:{s*64} sc1")
    a.label(E)

def ut_job(g):
    a = g.a
    E = a.new("Lnoutj")
    a(f"s_cmp_lg_u32 s{sW}, 7\ns_cbranch_scc1 {E}\ns_cmp_ge_u32 s{sL}, 216\ns_cbranch_scc1 {E}")
    a(f"v_lshrrev_b32 v40, 4, v{vLANE}\nv_lshlrev_b32 v40, 3, v40\nv_bfe_u32 v41, v{vLANE}, 2, 2\nv_add_u32 v40, v40, v41\nv_lshlrev_b32 v40, 5, v40")
    a(f"v_and_b32 v41, 3, v{vLANE}\nv_lshl_add_u32 v40, v41, 3, v40\nv_add_u32 v40, {g.L2_UT}, v40")
    a("v_mov_b32 v44, 0\nv_mov_b32 v45, 0\nv_mov_b32 v46, 0\nv_mov_b32 v47, 0")
    for s0 in range(0, 20, 5):
        for s in range(s0, s0 + 5):
            d = 48 + 4 * (s - s0)
            a(f"ds_read_b64_tr_b16 {vr(d,2)}, v40 offset:{s*1024}\nds_read_b64_tr_b16 {vr(d+2,2)}, v40 offset:{s*1024+128}")
        a("s_waitcnt lgkmcnt(0)")
        for s in range(s0, s0 + 5):
            d = 48 + 4 * (s - s0)
            a(f"v_mfma_f32_16x16x32_bf16 v[44:47], {vr(d,4)}, {vr(128+4*s,4)}, v[44:47]")
    a(f"s_cmp_lt_u32 s{sL}, 108\ns_cselect_b32 s{sT[2]}, 0, {2*1728*4}")
    a(f"s_sub_u32 s{sT[3]}, s{sL}, 108\ns_cselect_b32 s{sT[3]}, s{sL}, s{sT[3]}\ns_lshl_b32 s{sT[3]}, s{sT[3]}, 6")
    a(f"s_add_u32 s{sT[2]}, s{sT[2]}, s{sT[3]}\ns_add_u32 s{sT[2]}, s{sT[2]}, {WS_UT}")
    a(f"v_and_b32 v40, 15, v{vLANE}\nv_mul_u32_u24 v41, {1728*4}, v40\nv_lshrrev_b32 v42, 4, v{vLANE}\nv_lshl_add_u32 v41, v42, 4, v41\nv_add_u32 v41, s{sT[2]}, v41")
    a("s_mov_b32 exec_lo, 0x00030003\ns_mov_b32 exec_hi, 0x00030003")
    a(f"buffer_store_dwordx4 v[44:47], v41, s[{S_WS}:{S_WS+3}], 0 offen sc1")
    a("s_mov_b64 exec, -1\ns_waitcnt vmcnt(0)")
    a(f"s_lshl_b32 s{sT[2]}, s{sL}, 2\ns_add_u32 s{sT[2]}, s{sT[2]}, {F_UT}")
    a(f"v_mov_b32 v40, s{sT[2]}\nv_mov_b32 v41, s{sNON}\ns_mov_b64 exec, 1")
    a(f"buffer_store_dword v41, v40, s[{S_WS}:{S_WS+3}], 0 offen sc1\ns_mov_b64 exec, -1")
    a.label(E)

def w160_addr(g, d, base):
    a = g.a
    a(f"v_lshrrev_b32 v{d}, 4, v{vLANE}\nv_lshlrev_b32 v{d}, 2, v{d}\nv_bfe_u32 v{d+1}, v{vLANE}, 2, 2\nv_add_u32 v{d}, v{d}, v{d+1}")
    a(f"v_mul_u32_u24 v{d}, 160, v{d}\nv_and_b32 v{d+1}, 3, v{vLANE}\nv_lshl_add_u32 v{d}, v{d+1}, 3, v{d}")
    if isinstance(base, int): a(f"v_add_u32 v{d}, {base}, v{d}")
    else: a(f"v_add_u32 v{d}, {base}, v{d}")

def ld_w5(g, dst, addr, off):
    a = g.a
    for cb in range(5):
        a(f"ds_read_b64_tr_b16 {vr(dst+4*cb,2)}, v{addr} offset:{off + cb*32}\nds_read_b64_tr_b16 {vr(dst+4*cb+2,2)}, v{addr} offset:{off + cb*32 + 2560}")

def exchange(g, acc, scratch):
    a = g.a
    a(f"s_and_b32 s{sT[0]}, s{sW}, 3\ns_mul_i32 s{sT[0]}, s{sT[0]}, 5120\ns_add_u32 s{sT[0]}, s{sT[0]}, {scratch}")
    a(f"v_lshlrev_b32 v40, 4, v{vLANE}\nv_add_u32 v40, s{sT[0]}, v40")
    a("s_barrier")
    L1, L2 = a.new("Lex"), a.new("Lex")
    a(f"s_cmp_ge_u32 s{sW}, 4\ns_cbranch_scc1 {L1}")
    for cb in (3, 4): a(f"ds_write_b128 v40, {vr(acc+4*cb,4)} offset:{cb*1024}")
    a(f"s_branch {L2}")
    a.label(L1)
    for cb in (0, 1, 2): a(f"ds_write_b128 v40, {vr(acc+4*cb,4)} offset:{cb*1024}")
    a.label(L2)
    a("s_waitcnt lgkmcnt(0)\ns_barrier")
    L1, L2 = a.new("Lex"), a.new("Lex")
    a(f"s_cmp_ge_u32 s{sW}, 4\ns_cbranch_scc1 {L1}")
    for cb in (0, 1, 2): a(f"ds_read_b128 {vr(44+4*cb,4)}, v40 offset:{cb*1024}")
    a("s_waitcnt lgkmcnt(0)")
    for cb in (0, 1, 2):
        for r in range(4): a(f"v_add_f32 v{acc+4*cb+r}, v{acc+4*cb+r}, v{44+4*cb+r}")
    a(f"s_branch {L2}")
    a.label(L1)
    for cb in (3, 4): a(f"ds_read_b128 {vr(44+4*cb,4)}, v40 offset:{cb*1024}")
    a("s_waitcnt lgkmcnt(0)")
    for cb in (3, 4):
        for r in range(4): a(f"v_add_f32 v{acc+4*cb+r}, v{acc+4*cb+r}, v{44+4*cb+r}")
    a.label(L2)

def p3(g):
    a = g.a
    a.c("---- P3: o @ wo, residual, y / stats ----")
    acc = 8
    vB = 128
    vA = [64, 84]
    vXr = 168
    vGA = 176; vG2 = 188
    ut_job(g)
    a(f"s_lshr_b32 s{sT[1]}, s{sW}, 2\ns_mul_i32 s{sT[1]}, s{sT[1]}, 48")
    a(f"s_mul_i32 s{sT[2]}, s{sHG}, 80\ns_add_u32 s{sT[1]}, s{sT[1]}, s{sT[2]}")
    a(f"v_lshrrev_b32 v28, 4, v{vLANE}\nv_lshlrev_b32 v28, 2, v28\nv_add_u32 v28, s{sT[1]}, v28")
    a(f"v_lshlrev_b32 v29, 2, v28\nv_add_u32 v29, {WS_MODR}, v29")
    for j in range(3):
        a(f"buffer_load_dwordx4 {vr(vGA+4*j,4)}, v29, s[{S_WS}:{S_WS+3}], 0 offen offset:{j*64} sc1")
        a(f"v_add_u32 v30, {1280*4}, v29\nbuffer_load_dwordx4 {vr(vG2+4*j,4)}, v30, s[{S_WS}:{S_WS+3}], 0 offen offset:{j*64} sc1")
        a(f"v_add_u32 v30, {1920*4}, v29\nbuffer_load_dwordx4 {vr(vGB+4*j,4)}, v30, s[{S_WS}:{S_WS+3}], 0 offen offset:{j*64} sc1")
    a(f"s_and_b32 s{sT[2]}, s{sW}, 3\ns_lshl_b32 s{sT[2]}, s{sT[2]}, 4\ns_lshl_b32 s{sT[3]}, s{sI}, 6\ns_add_u32 s{sT[2]}, s{sT[2]}, s{sT[3]}")
    a(f"v_and_b32 v31, 15, v{vLANE}\nv_add_u32 v31, s{sT[2]}, v31")
    a(f"v_mul_u32_u24 v32, 1280, v31\nv_lshl_add_u32 v32, v28, 1, v32")
    for j in range(3):
        a(f"buffer_load_dwordx2 {vr(vXr+2*j,2)}, v32, s[{S_X}:{S_X+3}], 0 offen offset:{j*32}")
    a(f"s_lshr_b32 s{sT[1]}, s{sW}, 2\ns_mul_i32 s{sT[1]}, s{sT[1]}, 51200\ns_add_u32 s{sT[1]}, s{sT[1]}, {g.L2_WO}")
    w160_addr(g, 33, f"s{sT[1]}")
    for j in range(20): a(f"v_mov_b32 v{acc+j}, 0")
    a(f"s_and_b32 s{sT[1]}, s{sL}, 0xf8\ns_lshl_b32 s{sT[1]}, s{sT[1]}, 5\ns_add_u32 s{sT[1]}, s{sT[1]}, {F_O}")
    a(f"v_lshlrev_b32 v35, 2, v{vLANE}\nv_add_u32 v35, s{sT[1]}, v35")
    g.poll(35, 36, n=1, err=5)
    a(f"s_lshl_b32 s{sT[1]}, s{sI}, 2\ns_and_b32 s{sT[2]}, s{sW}, 3\ns_add_u32 s{sT[1]}, s{sT[1]}, s{sT[2]}\ns_mul_i32 s{sT[1]}, s{sT[1]}, 20")
    a(f"s_lshr_b32 s{sT[2]}, s{sW}, 2\ns_mul_i32 s{sT[2]}, s{sT[2]}, 10\ns_add_u32 s{sT[1]}, s{sT[1]}, s{sT[2]}\ns_lshl_b32 s{sT[1]}, s{sT[1]}, 10\ns_add_u32 s{sT[1]}, s{sT[1]}, {WS_O}")
    a(f"v_lshlrev_b32 v35, 4, v{vLANE}")
    for s in range(10):
        a(f"buffer_load_dwordx4 {vr(vB+4*s,4)}, v35, s[{S_WS}:{S_WS+3}], s{sT[1]} offen sc1")
        if s < 9: a(f"s_add_u32 s{sT[1]}, s{sT[1]}, 1024")
    ld_w5(g, vA[0], 33, 0)
    for s in range(10):
        if s + 1 < 10:
            ld_w5(g, vA[(s+1) % 2], 33, (s + 1) * 5120)
            a(f"s_waitcnt vmcnt({9-s}) lgkmcnt(10)")
        else:
            a("s_waitcnt vmcnt(0) lgkmcnt(0)")
        for cb in range(5):
            a(f"v_mfma_f32_16x16x32_bf16 {vr(acc+4*cb,4)}, {vr(vA[s%2]+4*cb,4)}, {vr(vB+4*s,4)}, {vr(acc+4*cb,4)}")
    exchange(g, acc, g.L2_UT)
    p4_w_prefetch(g)
    L1, L2 = a.new("Lp3e"), a.new("Lp3e")
    a(f"s_cmp_ge_u32 s{sW}, 4\ns_cbranch_scc1 {L1}")
    p3_epi(g, (0, 1, 2), acc, vXr, vGA, vG2)
    a(f"s_branch {L2}")
    a.label(L1)
    p3_epi(g, (3, 4), acc, vXr, vGA, vG2)
    a.label(L2)
    g.wave_flag(F_Y)

def p3_epi(g, blocks, acc, vXr, vGA, vG2):
    a = g.a
    a(f"s_lshl_b32 s{sT[1]}, s{sI}, 2\ns_and_b32 s{sT[2]}, s{sW}, 3\ns_add_u32 s{sT[1]}, s{sT[1]}, s{sT[2]}\ns_mul_i32 s{sT[1]}, s{sT[1]}, 20480\ns_add_u32 s{sT[1]}, s{sT[1]}, {WS_Y}")
    a(f"v_lshlrev_b32 v35, 4, v{vLANE}")
    a("v_mov_b32 v36, 0\nv_mov_b32 v37, 0")
    for j, cb in enumerate(blocks):
        X = vX1 + 4 * j
        a(f"v_lshlrev_b32 v{X}, 16, v{vXr+2*j}\nv_and_b32 v{X+1}, 0xffff0000, v{vXr+2*j}\nv_lshlrev_b32 v{X+2}, 16, v{vXr+2*j+1}\nv_and_b32 v{X+3}, 0xffff0000, v{vXr+2*j+1}")
        for r in range(4):
            a(f"v_fmac_f32 v{X+r}, v{vGA+4*j+r}, v{acc+4*cb+r}")
        for r in range(4):
            a(f"v_add_f32 v36, v36, v{X+r}\nv_fmac_f32 v37, v{X+r}, v{X+r}")
        for r in range(4):
            a(f"v_mul_f32 v{40+r}, v{X+r}, v{vG2+4*j+r}")
        a(f"v_cvt_pk_bf16_f32 v{44+2*j}, v40, v41\nv_cvt_pk_bf16_f32 v{45+2*j}, v42, v43")
        a(f"s_mul_i32 s{sT[2]}, s{sHG}, 5\ns_add_u32 s{sT[2]}, s{sT[2]}, {cb}")
        a(f"s_lshr_b32 s{sT[3]}, s{sT[2]}, 1\ns_lshl_b32 s{sT[3]}, s{sT[3]}, 10\ns_and_b32 s{sT[2]}, s{sT[2]}, 1\ns_lshl_b32 s{sT[2]}, s{sT[2]}, 3")
        a(f"s_add_u32 s{sT[3]}, s{sT[3]}, s{sT[2]}\ns_add_u32 s{sT[3]}, s{sT[3]}, s{sT[1]}")
        a(f"buffer_store_dwordx2 {vr(44+2*j,2)}, v35, s[{S_WS}:{S_WS+3}], s{sT[3]} offen sc1")
    g.sum_groups(36, 38)
    g.sum_groups(37, 38)
    a(f"s_lshr_b32 s{sT[2]}, s{sW}, 2\ns_lshl_b32 s{sT[3]}, s{sHG}, 1\ns_add_u32 s{sT[2]}, s{sT[2]}, s{sT[3]}\ns_lshl_b32 s{sT[2]}, s{sT[2]}, 3\ns_add_u32 s{sT[2]}, s{sT[2]}, {WS_STAT}")
    a(f"v_lshlrev_b32 v38, 7, v31")
    a("s_mov_b32 exec_lo, 0xffff\ns_mov_b32 exec_hi, 0")
    a(f"buffer_store_dwordx2 v[36:37], v38, s[{S_WS}:{S_WS+3}], s{sT[2]} offen sc1")
    a("s_mov_b64 exec, -1")

L4_BUF = 45056
L4_STAT = 135168
sFB0 = 97
sWOFF = 98
vWD = 200
vYD = 201

def p4_w_dma(g, stage_s, buf_s):
    a = g.a
    E = a.new("Lw7")
    a(f"s_cmp_eq_u32 s{sW}, 7\ns_cbranch_scc1 {E}")
    a(f"s_mul_i32 s{sT[3]}, s{stage_s}, {64*3456}\ns_add_u32 s{sT[3]}, s{sT[3]}, s{sWOFF}")
    a(f"s_lshl_b32 s{sT[4]}, s{sW}, 10\ns_add_u32 s{sT[4]}, s{sT[4]}, s{buf_s}")
    for half in range(2):
        a(f"s_add_u32 s{sT[5]}, s{sT[3]}, {half*32*3456}")
        a(f"s_add_u32 m0, s{sT[4]}, {half*7168}")
        a(f"buffer_load_dwordx4 v{vWD}, s[{S_A}:{S_A+3}], s{sT[5]} offen lds")
        a(f"s_add_u32 m0, s{sT[4]}, {14336 + half*7168}")
        a(f"buffer_load_dwordx4 v{vWD}, s[{S_B}:{S_B+3}], s{sT[5]} offen lds")
    a.label(E)

def p4_y_dma(g, stage_s, buf_s):
    a = g.a
    a(f"s_lshl_b32 s{sT[3]}, s{sG}, 3\ns_add_u32 s{sT[3]}, s{sT[3]}, s{sW}\ns_mul_i32 s{sT[3]}, s{sT[3]}, 20")
    a(f"s_lshl_b32 s{sT[4]}, s{stage_s}, 1\ns_add_u32 s{sT[3]}, s{sT[3]}, s{sT[4]}\ns_lshl_b32 s{sT[3]}, s{sT[3]}, 10\ns_add_u32 s{sT[3]}, s{sT[3]}, {WS_Y}")
    a(f"s_lshl_b32 s{sT[4]}, s{sW}, 10\ns_add_u32 s{sT[4]}, s{sT[4]}, s{buf_s}\ns_add_u32 m0, s{sT[4]}, 28672")
    a(f"buffer_load_dwordx4 v{vYD}, s[{S_WS}:{S_WS+3}], s{sT[3]} offen sc1 lds")
    a(f"s_add_u32 s{sT[3]}, s{sT[3]}, 1024\ns_add_u32 m0, s{sT[4]}, {28672 + 8192}")
    a(f"buffer_load_dwordx4 v{vYD}, s[{S_WS}:{S_WS+3}], s{sT[3]} offen sc1 lds")

def p4_w_prefetch(g):
    a = g.a
    a.c("P4 weight prefetch (stages 0..2)")
    a(f"s_mul_i32 s{sFB0}, s{sM}, 7\ns_mul_i32 s{sT[2]}, s{sM}, 6\ns_add_u32 s{sT[2]}, s{sT[2]}, 12\ns_min_u32 s{sT[2]}, s{sT[2]}, 101")
    a(f"s_cmp_lt_u32 s{sM}, 12\ns_cselect_b32 s{sFB0}, s{sFB0}, s{sT[2]}\ns_lshl_b32 s{sWOFF}, s{sFB0}, 5")
    srd(a, S_A, P_W1, 640 * 3456)
    srd(a, S_B, P_W3, 640 * 3456)
    a(f"s_lshl_b32 s{sT[2]}, s{sW}, 6\nv_add_u32 v40, s{sT[2]}, v{vLANE}")
    a(f"s_mov_b32 s{sT[2]}, 0x12492493\nv_mul_hi_u32 v41, v40, s{sT[2]}")
    a(f"v_mul_u32_u24 v42, 14, v41\nv_sub_u32 v42, v40, v42\nv_mul_u32_u24 v41, 3456, v41\nv_lshl_add_u32 v{vWD}, v42, 4, v41")
    a(f"v_lshlrev_b32 v{vYD}, 4, v{vLANE}")
    for st in range(3):
        a(f"s_mov_b32 s{sT[6]}, {st}\ns_mov_b32 s{sT[7]}, {st*L4_BUF}")
        p4_w_dma(g, sT[6], sT[7])

def p4(g):
    a = g.a
    a.c("---- P4: gate/up GEMM ----")
    a(f"s_lshl_b32 s{sT[1]}, s{sG}, 9\ns_add_u32 s{sT[1]}, s{sT[1]}, {F_Y}")
    a(f"v_lshlrev_b32 v35, 3, v{vLANE}\nv_add_u32 v35, s{sT[1]}, v35")
    g.poll(35, 36, n=2, tagpos=(0, 1), err=6)
    for st in range(3):
        a(f"s_mov_b32 s{sT[6]}, {st}\ns_mov_b32 s{sT[7]}, {st*L4_BUF}")
        p4_y_dma(g, sT[6], sT[7])
    a(f"v_lshrrev_b32 v40, 2, v0\ns_lshl_b32 s{sT[1]}, s{sG}, 7\nv_add_u32 v41, s{sT[1]}, v40\nv_lshlrev_b32 v41, 7, v41")
    a(f"v_and_b32 v42, 3, v0\nv_lshl_add_u32 v41, v42, 5, v41\nv_add_u32 v41, {WS_STAT}, v41")
    a(f"buffer_load_dwordx4 v[44:47], v41, s[{S_WS}:{S_WS+3}], 0 offen sc1\nbuffer_load_dwordx4 v[48:51], v41, s[{S_WS}:{S_WS+3}], 0 offen offset:16 sc1")
    a("s_waitcnt vmcnt(0)")
    a("v_add_f32 v44, v44, v46\nv_add_f32 v45, v45, v47\nv_add_f32 v48, v48, v50\nv_add_f32 v49, v49, v51\nv_add_f32 v44, v44, v48\nv_add_f32 v45, v45, v49")
    for qp in ("[1,0,3,2]", "[2,3,0,1]"):
        a(f"v_add_f32_dpp v44, v44, v44 quad_perm:{qp} row_mask:0xf bank_mask:0xf\nv_add_f32_dpp v45, v45, v45 quad_perm:{qp} row_mask:0xf bank_mask:0xf")
    a(f"s_mov_b32 s{sT[1]}, 0x3acccccd")
    a(f"v_mul_f32 v44, s{sT[1]}, v44\nv_mul_f32 v45, s{sT[1]}, v45")
    a("v_fma_f32 v45, -v44, v44, v45\nv_max_f32 v45, 0, v45\nv_add_f32 v45, 0x3727c5ac, v45\nv_rsq_f32 v46, v45")
    a("v_mul_f32 v47, v46, v44")
    a(f"v_lshlrev_b32 v40, 3, v40\nv_add_u32 v40, {L4_STAT}, v40")
    a("s_mov_b32 exec_lo, 0x11111111\ns_mov_b32 exec_hi, 0x11111111")
    a("ds_write_b64 v40, v[46:47]")
    a("s_mov_b64 exec, -1")
    a("s_waitcnt lgkmcnt(0)\ns_barrier")
    LB, LE = a.new("Lp4b"), a.new("Lp4e")
    a(f"s_cmp_ge_u32 s{sW}, 4\ns_cbranch_scc1 {LB}")
    p4_role(g, True)
    a(f"s_branch {LE}")
    a.label(LB)
    p4_role(g, False)
    a.label(LE)
    g.wave_flag(F_ACT)

def p4_role(g, isA):
    a = g.a
    nrb = 4 if isA else 2
    npair = 2 if isA else 3
    acc = 8
    F = [72, 104]
    vYa, vWa = 136, 137
    vYc, vWc = 138, 139
    vUT = 144
    st, cur, nxt = sT[8], sT[9], sT[10]
    if isA:
        a(f"s_and_b32 s{sT[1]}, s{sW}, 1\ns_lshl_b32 s{sT[1]}, s{sT[1]}, 2")
        a(f"s_lshr_b32 s{sT[2]}, s{sW}, 1\ns_lshl_b32 s{sT[2]}, s{sT[2]}, 1")
    else:
        a(f"s_sub_u32 s{sT[1]}, s{sW}, 4\ns_lshl_b32 s{sT[1]}, s{sT[1]}, 1")
        a(f"s_mov_b32 s{sT[2]}, 4")
    rb0, p0 = sT[11], sT[12]
    a(f"s_mov_b32 s{rb0}, s{sT[1]}\ns_mov_b32 s{p0}, s{sT[2]}")
    a(f"s_lshl_b32 s{sT[1]}, s{rb0}, 10\ns_add_u32 s{sT[1]}, s{sT[1]}, 28672\nv_add_u32 v{vYa}, s{sT[1]}, v{vYD}")
    a(f"v_lshrrev_b32 v{vWa}, 4, v{vLANE}\nv_lshlrev_b32 v{vWa}, 2, v{vWa}\nv_bfe_u32 v140, v{vLANE}, 2, 2\nv_add_u32 v{vWa}, v{vWa}, v140")
    a(f"v_mul_u32_u24 v{vWa}, 224, v{vWa}\nv_and_b32 v140, 3, v{vLANE}\nv_lshl_add_u32 v{vWa}, v140, 3, v{vWa}")
    a(f"s_lshl_b32 s{sT[1]}, s{p0}, 5\nv_add_u32 v{vWa}, s{sT[1]}, v{vWa}")
    for j in range(nrb * npair * 8): a(f"v_mov_b32 v{acc+j}, 0")
    def loads(fs, ks):
        for r in range(nrb):
            a(f"ds_read_b128 {vr(F[fs]+4*r,4)}, v{vYc} offset:{ks*8192 + r*1024}")
        for p in range(npair):
            for u in range(2):
                d = F[fs] + 4 * nrb + (p * 2 + u) * 4
                o = u * 14336 + ks * 7168 + p * 32
                a(f"ds_read_b64_tr_b16 {vr(d,2)}, v{vWc} offset:{o}\nds_read_b64_tr_b16 {vr(d+2,2)}, v{vWc} offset:{o + 3584}")
    nld = nrb + npair * 4
    def mfmas(fs):
        for p in range(npair):
            for u in range(2):
                for r in range(nrb):
                    c = acc + ((r * npair + p) * 2 + u) * 4
                    a(f"v_mfma_f32_16x16x32_bf16 {vr(c,4)}, {vr(F[fs]+4*nrb+(p*2+u)*4,4)}, {vr(F[fs]+4*r,4)}, {vr(c,4)}")
    a(f"s_mov_b32 s{st}, 0\ns_mov_b32 s{cur}, 0\ns_mov_b32 s{nxt}, {L4_BUF}")
    a(f"v_mov_b32 v{vYc}, v{vYa}\nv_mov_b32 v{vWc}, v{vWa}")
    loads(0, 0)
    L = a.new("Lp4")
    a.label(L)
    loads(1, 1)
    a(f"s_waitcnt lgkmcnt({nld})")
    mfmas(0)
    a("s_waitcnt lgkmcnt(0)")
    Z, Y = a.new("Lv"), a.new("Lv")
    a(f"s_cmp_ge_u32 s{st}, 8\ns_cbranch_scc1 {Z}")
    if isA:
        a(f"s_waitcnt vmcnt(6)\ns_branch {Y}")
    else:
        X = a.new("Lv")
        a(f"s_cmp_eq_u32 s{sW}, 7\ns_cbranch_scc1 {X}\ns_waitcnt vmcnt(6)\ns_branch {Y}")
        a.label(X); a(f"s_waitcnt vmcnt(2)\ns_branch {Y}")
    a.label(Z); a("s_waitcnt vmcnt(0)"); a.label(Y)
    a("s_barrier")
    E = a.new("Lp4nd")
    a(f"s_add_u32 s{sT[6]}, s{st}, 3\ns_cmp_ge_u32 s{sT[6]}, 10\ns_cbranch_scc1 {E}")
    p4_w_dma(g, sT[6], cur)
    p4_y_dma(g, sT[6], cur)
    a.label(E)
    a(f"v_add_u32 v{vYc}, s{nxt}, v{vYa}\nv_add_u32 v{vWc}, s{nxt}, v{vWa}")
    loads(0, 0)
    a(f"s_waitcnt lgkmcnt({nld})")
    mfmas(1)
    a(f"s_mov_b32 s{cur}, s{nxt}\ns_add_u32 s{nxt}, s{nxt}, {L4_BUF}\ns_cmp_ge_u32 s{nxt}, {3*L4_BUF}\ns_cselect_b32 s{nxt}, 0, s{nxt}")
    a(f"s_add_u32 s{st}, s{st}, 1\ns_cmp_lt_u32 s{st}, 10\ns_cbranch_scc1 {L}")
    a("s_waitcnt lgkmcnt(0)\ns_barrier")
    p5_w_prefetch(g)
    a(f"v_mov_b32 v140, s{sFB0}\nv_add_u32 v140, v140, v{vLANE}\nv_cmp_lt_u32 vcc, 6, v{vLANE}\nv_add_u32 v141, 101, v140\nv_cndmask_b32 v140, v140, v141, vcc")
    a(f"v_lshlrev_b32 v140, 2, v140\nv_add_u32 v140, {F_UT}, v140")
    a("s_mov_b32 exec_lo, 0x3fff\ns_mov_b32 exec_hi, 0")
    g.poll(140, 141, n=1, err=7)
    a("s_mov_b64 exec, -1")
    a(f"s_add_u32 s{sT[1]}, s{sFB0}, s{p0}\ns_lshl_b32 s{sT[1]}, s{sT[1]}, 6\ns_add_u32 s{sT[1]}, s{sT[1]}, {WS_UT}")
    a(f"v_lshrrev_b32 v140, 4, v{vLANE}\nv_lshlrev_b32 v140, 4, v140\nv_add_u32 v140, s{sT[1]}, v140")
    for vv in range(4):
        a(f"v_add_u32 v141, {vv*1728*4}, v140")
        for p in range(npair):
            a(f"buffer_load_dwordx4 {vr(vUT+p*16+vv*4,4)}, v141, s[{S_WS}:{S_WS+3}], 0 offen offset:{p*64} sc1")
    a(f"v_and_b32 v142, 15, v{vLANE}\nv_lshlrev_b32 v142, 3, v142\ns_lshl_b32 s{sT[1]}, s{rb0}, 7\ns_add_u32 s{sT[1]}, s{sT[1]}, {L4_STAT}\nv_add_u32 v142, s{sT[1]}, v142")
    for r in range(nrb):
        a(f"ds_read_b64 {vr(72+2*r,2)}, v142 offset:{r*128}")
    a("s_waitcnt vmcnt(0) lgkmcnt(0)")
    a(f"s_lshl_b32 s{sT[1]}, s{sG}, 3\ns_add_u32 s{sT[1]}, s{sT[1]}, s{rb0}\ns_mul_i32 s{sT[1]}, s{sT[1]}, {54*1024}\ns_add_u32 s{sT[1]}, s{sT[1]}, {WS_ACT}")
    a(f"s_mov_b32 s{sT[5]}, 0xbfb8aa3b")
    for p in range(npair):
        a(f"s_add_u32 s{sT[2]}, s{sFB0}, s{p0}\ns_add_u32 s{sT[2]}, s{sT[2]}, {p}")
        a(f"s_lshr_b32 s{sT[3]}, s{sT[2]}, 1\ns_lshl_b32 s{sT[3]}, s{sT[3]}, 10\ns_and_b32 s{sT[2]}, s{sT[2]}, 1\ns_lshl_b32 s{sT[2]}, s{sT[2]}, 3\ns_add_u32 s{sT[3]}, s{sT[3]}, s{sT[2]}")
        a(f"s_add_u32 s{sT[3]}, s{sT[3]}, s{sT[1]}")
        U1, T1, U3, T3 = [vUT + p * 16 + vv * 4 for vv in range(4)]
        for r in range(nrb):
            cg = acc + ((r * npair + p) * 2) * 4; cu = cg + 4
            R, RM = 72 + 2 * r, 73 + 2 * r
            for e in range(4):
                a(f"v_fma_f32 v{84+e}, -v{RM}, v{U1+e}, v{T1+e}")
                a(f"v_fma_f32 v{88+e}, -v{RM}, v{U3+e}, v{T3+e}")
            for e in range(4):
                a(f"v_fma_f32 v{84+e}, v{cg+e}, v{R}, v{84+e}")
                a(f"v_fma_f32 v{88+e}, v{cu+e}, v{R}, v{88+e}")
            for e in range(4):
                a(f"v_mul_f32 v{92+e}, s{sT[5]}, v{84+e}")
            for e in range(4): a(f"v_exp_f32 v{92+e}, v{92+e}")
            for e in range(4): a(f"v_mul_f32 v{84+e}, v{84+e}, v{88+e}")
            for e in range(4): a(f"v_add_f32 v{92+e}, 1.0, v{92+e}")
            for e in range(4): a(f"v_rcp_f32 v{92+e}, v{92+e}")
            a("s_nop 0")
            for e in range(4): a(f"v_mul_f32 v{84+e}, v{84+e}, v{92+e}")
            a("v_cvt_pk_bf16_f32 v96, v84, v85\nv_cvt_pk_bf16_f32 v97, v86, v87")
            a(f"buffer_store_dwordx2 v[96:97], v{vYD}, s[{S_WS}:{S_WS+3}], s{sT[3]} offen sc1")
            if r + 1 < nrb: a(f"s_add_u32 s{sT[3]}, s{sT[3]}, {54*1024}")

L5_BUF = 40960
L5_SCR = 142336

def p5_w_dma(g, st):
    a = g.a
    a(f"s_lshr_b32 s{sT[3]}, s{sW}, 2\ns_mul_i32 s{sT[3]}, s{sT[3]}, 27\ns_and_b32 s{sT[4]}, s{sW}, 3\ns_add_u32 s{sT[3]}, s{sT[3]}, s{sT[4]}\ns_add_u32 s{sT[3]}, s{sT[3]}, {4*st}")
    a(f"s_mul_i32 s{sT[3]}, s{sT[3]}, 40960\ns_mul_i32 s{sT[4]}, s{sHG}, 160\ns_add_u32 s{sT[3]}, s{sT[3]}, s{sT[4]}")
    a(f"s_mul_i32 s{sT[4]}, s{sW}, 5120\ns_add_u32 s{sT[4]}, s{sT[4]}, {(st%3)*L5_BUF}")
    for ph in range(5):
        a(f"s_add_u32 m0, s{sT[4]}, {ph*1024}")
        a(f"buffer_load_dwordx4 v{vO160[ph]}, s[{S_C}:{S_C+3}], s{sT[3]} offen lds")

def p5_w_prefetch(g):
    a = g.a
    a.c("P5 weight prefetch")
    srd(a, S_C, P_W2, 1728 * 1280)
    for st in range(3): p5_w_dma(g, st)

def p5(g):
    a = g.a
    a.c("---- P5: act @ w2, residual ----")
    acc = 8
    vA = [64, 84]
    vB = 128
    a(f"s_lshl_b32 s{sT[1]}, s{sG}, 9\ns_add_u32 s{sT[1]}, s{sT[1]}, {F_ACT}")
    a(f"v_lshlrev_b32 v35, 3, v{vLANE}\nv_add_u32 v35, s{sT[1]}, v35")
    g.poll(35, 36, n=2, tagpos=(0, 1), err=8)
    srd(a, S_C, P_W2, 1728 * 1280)
    ab = sT[10]
    a(f"s_lshl_b32 s{sT[1]}, s{sI}, 2\ns_and_b32 s{sT[2]}, s{sW}, 3\ns_add_u32 s{sT[1]}, s{sT[1]}, s{sT[2]}\ns_mul_i32 s{sT[1]}, s{sT[1]}, 54")
    a(f"s_lshr_b32 s{sT[2]}, s{sW}, 2\ns_mul_i32 s{sT[2]}, s{sT[2]}, 27\ns_add_u32 s{sT[1]}, s{sT[1]}, s{sT[2]}\ns_lshl_b32 s{ab}, s{sT[1]}, 10\ns_add_u32 s{ab}, s{ab}, {WS_ACT}")
    a(f"v_lshlrev_b32 v35, 4, v{vLANE}")
    def lda(st):
        n = 4 if st < 6 else 3
        for j in range(n):
            ks = 4 * st + j
            a(f"s_add_u32 s{sT[1]}, s{ab}, {ks*1024}")
            a(f"buffer_load_dwordx4 {vr(vB+4*(ks%8),4)}, v35, s[{S_WS}:{S_WS+3}], s{sT[1]} offen sc1")
        return n
    lda(0); lda(1)
    a(f"s_lshr_b32 s{sT[1]}, s{sW}, 2\ns_mul_i32 s{sT[1]}, s{sT[1]}, {4*5120}")
    w160_addr(g, 33, f"s{sT[1]}")
    for j in range(20): a(f"v_mov_b32 v{acc+j}, 0")
    pend = [("A", 0, 4), ("A", 1, 4)]
    for st in range(7):
        idx = max(i for i, (k, s, n) in enumerate(pend) if s == st)
        after = sum(n for (k, s, n) in pend[idx + 1:])
        a(f"s_waitcnt vmcnt({after})")
        pend = pend[idx + 1:]
        a("s_barrier")
        if st >= 1 and st + 2 < 7:
            p5_w_dma(g, st + 2); pend.append(("D", st + 2, 5))
        nsteps = 4 if st < 6 else 3
        a(f"v_add_u32 v34, {(st%3)*L5_BUF}, v33")
        ld_w5(g, vA[0], 34, 0)
        for j in range(nsteps):
            if j + 1 < nsteps:
                ld_w5(g, vA[(j+1) % 2], 34, (j + 1) * 5120)
                a("s_waitcnt lgkmcnt(10)")
            else:
                a("s_waitcnt lgkmcnt(0)")
            ks = 4 * st + j
            for cb in range(5):
                a(f"v_mfma_f32_16x16x32_bf16 {vr(acc+4*cb,4)}, {vr(vA[j%2]+4*cb,4)}, {vr(vB+4*(ks%8),4)}, {vr(acc+4*cb,4)}")
        if st + 2 < 7:
            n = lda(st + 2); pend.append(("A", st + 2, n))
    exchange(g, acc, L5_SCR)
    a(f"s_lshr_b32 s{sT[1]}, s{sW}, 2\ns_mul_i32 s{sT[1]}, s{sT[1]}, 48\ns_mul_i32 s{sT[2]}, s{sHG}, 80\ns_add_u32 s{sT[1]}, s{sT[1]}, s{sT[2]}")
    a(f"v_lshrrev_b32 v28, 4, v{vLANE}\nv_lshlrev_b32 v28, 2, v28\nv_add_u32 v28, s{sT[1]}, v28")
    a(f"s_and_b32 s{sT[2]}, s{sW}, 3\ns_lshl_b32 s{sT[2]}, s{sT[2]}, 4\ns_lshl_b32 s{sT[3]}, s{sI}, 6\ns_add_u32 s{sT[2]}, s{sT[2]}, s{sT[3]}")
    a(f"v_and_b32 v31, 15, v{vLANE}\nv_add_u32 v31, s{sT[2]}, v31\nv_mul_u32_u24 v32, 1280, v31\nv_lshl_add_u32 v32, v28, 1, v32")
    L1, L2 = a.new("Lp5e"), a.new("Lp5e")
    a(f"s_cmp_ge_u32 s{sW}, 4\ns_cbranch_scc1 {L1}")
    for blocks, lab in (((0, 1, 2), None), ((3, 4), L1)):
        if lab: a.label(lab)
        for j, cb in enumerate(blocks):
            for r in range(4):
                a(f"v_fma_f32 v{40+r}, v{vGB+4*j+r}, v{acc+4*cb+r}, v{vX1+4*j+r}")
            a(f"v_cvt_pk_bf16_f32 v{44+2*j}, v40, v41\nv_cvt_pk_bf16_f32 v{45+2*j}, v42, v43")
            a(f"buffer_store_dwordx2 {vr(44+2*j,2)}, v32, s[{S_OUT}:{S_OUT+3}], 0 offen offset:{j*32}")
        if not lab: a(f"s_branch {L2}")
    a.label(L2)

def rest(g):
    p3(g)
    g.stamp(8)
    if g.stop >= 4:
        p4(g)
        g.stamp(9)
    if g.stop >= 5:
        p5(g)
        g.stamp(10)
```

```python
import sys, os
sys.path.insert(0, os.path.dirname(os.path.abspath(__file__)))
from asmlib import Asm, fix_hazards

NAME = "adaLN_cond__grouped_kv_mqa__glu_gated_swiglu__prompt_kernel"

WS_NONCE = 0x0
F_KV   = 0x1000
F_MODR = 0x2000
F_O    = 0x3000
F_Y    = 0x5000
F_ACT  = 0x7000
F_UT   = 0x9000
WS_MODG = 0xA000
WS_MODR = 0xC000
WS_UT   = 0x10000
WS_KV   = 0x20000
WS_STAT = 0x60000
WS_O    = 0x100000
WS_Y    = 0x400000
WS_ACT  = 0x700000
WS_TS   = 0xE00000
WS_USED = 0xF00000
KV_TILE = 3328

S_X, S_WS, S_A, S_B, S_C, S_OUT = 4, 8, 12, 16, 20, 24
P_X, P_WQ, P_WK, P_WV, P_WO, P_BX, P_W1, P_W3, P_W2, P_CC, P_WMOD, P_OUT, P_DBG, P_WS = [32 + 2 * i for i in range(14)]
sL, sG, sM, sI, sHG, sW, sNON, sXC, sJ = 60, 61, 62, 63, 64, 65, 66, 67, 68
sT = list(range(70, 94))
SPIN_LIMIT = 400000

vTID, vLANE = 0, 1
vO160 = [2, 3, 4, 5, 6]
vTMP = 7

def srd(a, d, p, size):
    a(f"s_mov_b32 s{d}, s{p}\ns_mov_b32 s{d+1}, s{p+1}\ns_mov_b32 s{d+2}, {size}\ns_mov_b32 s{d+3}, 0x20000")

def vr(b, n=1):
    return f"v{b}" if n == 1 else f"v[{b}:{b+n-1}]"
def sr(b, n=1):
    return f"s{b}" if n == 1 else f"s[{b}:{b+n-1}]"

class Gen:
    def __init__(self, stop=99, ts=False):
        self.a = Asm()
        self.stop = stop
        self.ts = ts
        self.nts = 0

    def stamp(self, idx):
        if not self.ts: return
        a = self.a
        a(f"s_memtime s[94:95]\ns_waitcnt lgkmcnt(0)")
        lab = a.new("Lts")
        a(f"s_cmp_lg_u32 s{sW}, 0\ns_cbranch_scc1 {lab}")
        a(f"s_lshl_b32 s96, s{sL}, 7\ns_add_u32 s96, s96, {WS_TS + idx*4}")
        a(f"v_mov_b32 v254, s94\nv_mov_b32 v255, s96")
        a(f"buffer_store_dword v254, v255, s[{S_WS}:{S_WS+3}], 0 offen")
        a.label(lab)

    def poll(self, vaddr, vdat, n=1, stride=1, tagpos=(0,), err=1, imm=0):
        a = self.a
        L, D = a.new("Lpoll"), a.new("Lpdone")
        cnt = sT[20]
        a(f"s_mov_b32 s{cnt}, 0")
        a.label(L)
        op = {1: "buffer_load_dword", 2: "buffer_load_dwordx2", 4: "buffer_load_dwordx4"}[n]
        a(f"{op} {vr(vdat, n)}, v{vaddr}, s[{S_WS}:{S_WS+3}], 0 offen offset:{imm} sc1")
        a("s_waitcnt vmcnt(0)")
        a(f"v_cmp_ne_u32 vcc, s{sNON}, v{vdat + tagpos[0]}")
        for t in tagpos[1:]:
            a(f"v_cmp_ne_u32 s[{sT[22]}:{sT[23]}], s{sNON}, v{vdat + t}")
            a(f"s_or_b64 vcc, vcc, s[{sT[22]}:{sT[23]}]")
        a(f"s_cbranch_vccz {D}")
        a(f"s_add_u32 s{cnt}, s{cnt}, 1")
        a(f"s_cmp_lt_u32 s{cnt}, {SPIN_LIMIT}")
        a("s_sleep 1")
        a(f"s_cbranch_scc1 {L}")
        a(f"v_mov_b32 v254, {err}\nv_mov_b32 v255, 0")
        srd(a, S_C, P_DBG, 256)
        a(f"buffer_store_dword v254, v255, s[{S_C}:{S_C+3}], 0 offen")
        a.label(D)

    def prologue(self):
        a = self.a
        a(f"s_cmp_ge_u32 s2, 256\ns_cbranch_scc1 L_END")
        a("s_load_dwordx16 s[32:47], s[0:1], 0\ns_load_dwordx8 s[48:55], s[0:1], 64\ns_load_dwordx4 s[56:59], s[0:1], 96")
        a(f"v_and_b32 v{vLANE}, 63, v0\nv_lshrrev_b32 v{vTMP}, 6, v0")
        a(f"s_and_b32 s{sXC}, s2, 7\ns_lshr_b32 s{sJ}, s2, 3")
        a(f"v_readfirstlane_b32 s{sW}, v{vTMP}")
        a(f"s_lshl_b32 s{sL}, s{sXC}, 5\ns_add_u32 s{sL}, s{sL}, s{sJ}")
        a(f"s_lshr_b32 s{sG}, s{sL}, 4\ns_and_b32 s{sM}, s{sL}, 15")
        a(f"s_lshr_b32 s{sI}, s{sL}, 3\ns_and_b32 s{sHG}, s{sL}, 7")
        a(f"s_mov_b32 s{sT[0]}, 0x1999999a\ns_movk_i32 s{sT[1]}, 1280")
        for ph in range(5):
            r = vO160[ph]
            a(f"v_add_u32 v8, {64*ph}, v{vLANE}")
            a(f"v_mul_hi_u32 v9, v8, s{sT[0]}")
            a(f"v_mul_u32_u24 v10, 10, v9")
            a(f"v_sub_u32 v10, v8, v10")
            a(f"v_mul_u32_u24 v9, s{sT[1]}, v9")
            a(f"v_lshl_add_u32 v{r}, v10, 4, v9")
        a("s_waitcnt lgkmcnt(0)")
        srd(a, S_X, P_X, 2048 * 1280)
        srd(a, S_WS, P_WS, WS_USED)
        srd(a, S_OUT, P_OUT, 2048 * 1280)

    L1_H = 0; L1_WQ2 = 81920; L1_WKV = 128000; L1_GS = 153600; L1_SCR = 158720
    NQ1 = 22
    vX = 8; vXN = 48; vWQ = 128
    vWA, vWB1, vWB2, vC1, vC2 = 216, 224, 232, 240, 241

    def dma160(self, srd_s, lds_base, q0, nq, colbytes_s, rowbase_bytes=0):
        a = self.a
        q, so, L, E = sT[2], sT[3], a.new("Ldma"), a.new("Ldmae")
        a(f"s_mov_b32 s{q}, s{sW}")
        a.label(L)
        a(f"s_cmp_ge_u32 s{q}, {nq}\ns_cbranch_scc1 {E}")
        a(f"s_add_u32 s{so}, s{q}, {q0}\ns_mul_i32 s{so}, s{so}, 40960\ns_add_u32 s{so}, s{so}, s{colbytes_s}")
        a(f"s_mul_i32 s{sT[4]}, s{q}, 5120\ns_add_u32 s{sT[4]}, s{sT[4]}, {lds_base}")
        for ph in range(5):
            a(f"s_add_u32 m0, s{sT[4]}, {ph*1024}")
            a(f"buffer_load_dwordx4 v{vO160[ph]}, s[{srd_s}:{srd_s+3}], s{so} offen lds")
        a(f"s_add_u32 s{q}, s{q}, 8\ns_branch {L}")
        a.label(E)

    def p0_issue(self):
        a = self.a
        a(f"v_mov_b32 v{vTMP}, {WS_NONCE}")
        a(f"buffer_load_dword v242, v{vTMP}, s[{S_WS}:{S_WS+3}], 0 offen sc1")
        Ldead = None
        srd(a, S_A, P_CC, 1280)
        srd(a, S_B, P_WMOD, 640 * 7680)
        a(f"v_lshlrev_b32 v243, 1, v0")
        a(f"buffer_load_ushort v{self.vC1}, v243, s[{S_A}:{S_A+3}], 0 offen")
        a(f"buffer_load_ushort v{self.vC2}, v243, s[{S_A}:{S_A+3}], 0 offen offset:1024")
        a(f"s_movk_i32 s{sT[0]}, 7680")
        a(f"v_mul_u32_u24 v243, s{sT[0]}, v0")
        a(f"v_add_u32 v244, {512*7680}, v243")
        BIG = 0x7000000
        a(f"s_mul_i32 s{sT[1]}, s{sXC}, 20\ns_add_u32 s{sT[1]}, s{sT[1]}, s{sJ}\ns_lshl_b32 s{sT[1]}, s{sT[1]}, 4")
        a(f"s_cmp_lt_u32 s{sJ}, 20\ns_cselect_b32 s{sT[5]}, s{sT[1]}, {BIG}")
        a(f"buffer_load_dwordx4 {vr(self.vWA,4)}, v243, s[{S_B}:{S_B+3}], s{sT[5]} offen")
        a(f"buffer_load_dwordx4 {vr(self.vWA+4,4)}, v244, s[{S_B}:{S_B+3}], s{sT[5]} offen")
        a(f"s_lshl_b32 s{sT[6]}, s{sL}, 4\ns_add_u32 s{sT[6]}, s{sT[6]}, 2560")
        a(f"buffer_load_dwordx4 {vr(self.vWB1,4)}, v243, s[{S_B}:{S_B+3}], s{sT[6]} offen")
        a(f"buffer_load_dwordx4 {vr(self.vWB1+4,4)}, v244, s[{S_B}:{S_B+3}], s{sT[6]} offen")
        a(f"s_add_u32 s{sT[7]}, s{sT[6]}, 4096\ns_cmp_lt_u32 s{sL}, 64\ns_cselect_b32 s{sT[7]}, s{sT[7]}, {BIG}")
        a(f"buffer_load_dwordx4 {vr(self.vWB2,4)}, v243, s[{S_B}:{S_B+3}], s{sT[7]} offen")
        a(f"buffer_load_dwordx4 {vr(self.vWB2+4,4)}, v244, s[{S_B}:{S_B+3}], s{sT[7]} offen")
        a(f"v_lshrrev_b32 v245, 4, v{vLANE}\nv_and_b32 v246, 15, v{vLANE}")
        a(f"s_lshl_b32 s{sT[8]}, s{sI}, 6\ns_lshl_b32 s{sT[9]}, s{sW}, 3\ns_add_u32 s{sT[8]}, s{sT[8]}, s{sT[9]}")
        a(f"v_add_u32 v245, s{sT[8]}, v245")
        a(f"s_movk_i32 s{sT[9]}, 1280")
        a(f"v_mul_u32_u24 v245, s{sT[9]}, v245")
        a(f"v_lshl_add_u32 v245, v246, 4, v245")
        a(f"v_add_u32 v246, {4*1280}, v245")
        for it in range(2):
            for c in range(5):
                a(f"buffer_load_dwordx4 {vr(self.vX + (it*5+c)*4, 4)}, v{245+it}, s[{S_X}:{S_X+3}], 0 offen offset:{c*256}")
        srd(a, S_A, P_WQ, 640 * 1280)
        a(f"s_mul_i32 s{sT[10]}, s{sHG}, 160")
        self.dma160(S_A, self.L1_H, 0, 11, sT[10])
        self.dma160(S_A, self.L1_WQ2, 11, 9, sT[10])
        a(f"s_cmp_lt_u32 s{sHG}, 4\ns_cselect_b32 s{S_C}, s{P_WK}, s{P_WV}\ns_cselect_b32 s{S_C+1}, s{P_WK+1}, s{P_WV+1}")
        a(f"s_mov_b32 s{S_C+2}, 25600\ns_mov_b32 s{S_C+3}, 0x20000")
        a(f"v_lshlrev_b32 v247, 4, v{vLANE}")
        L, E = a.new("Lkv"), a.new("Lkve")
        a(f"s_mov_b32 s{sT[2]}, s{sW}")
        a.label(L)
        a(f"s_cmp_ge_u32 s{sT[2]}, 25\ns_cbranch_scc1 {E}")
        a(f"s_lshl_b32 s{sT[3]}, s{sT[2]}, 10\ns_add_u32 m0, s{sT[3]}, {self.L1_WKV}")
        a(f"buffer_load_dwordx4 v247, s[{S_C}:{S_C+3}], s{sT[3]} offen lds")
        a(f"s_add_u32 s{sT[2]}, s{sT[2]}, 8\ns_branch {L}")
        a.label(E)
        self.dma_min = 13

    def reduce8(self, acc):
        a = self.a
        for sh in (1, 2, 4, 8):
            for j in range(8):
                a(f"v_add_f32_dpp v{acc+j}, v{acc+j}, v{acc+j} row_shr:{sh} row_mask:0xf bank_mask:0xf bound_ctrl:0")
        for j in range(8):
            a(f"v_add_f32_dpp v{acc+j}, v{acc+j}, v{acc+j} row_bcast:15 row_mask:0xa bank_mask:0xf")
        for j in range(8):
            a(f"v_add_f32_dpp v{acc+j}, v{acc+j}, v{acc+j} row_bcast:31 row_mask:0xc bank_mask:0xf")

    def mod_task(self, w, task):
        a = self.a
        acc = 244
        for half, s in ((0, 242), (1, 243)):
            for j in range(4):
                a(f"v_lshlrev_b32 v252, 16, v{w+half*4+j}")
                a(f"v_and_b32 v253, 0xffff0000, v{w+half*4+j}")
                if half == 0:
                    a(f"v_mul_f32 v{acc+2*j}, v{s}, v252\nv_mul_f32 v{acc+2*j+1}, v{s}, v253")
                else:
                    a(f"v_fmac_f32 v{acc+2*j}, v{s}, v252\nv_fmac_f32 v{acc+2*j+1}, v{s}, v253")
        self.reduce8(acc)
        a(f"s_lshl_b32 s{sT[2]}, s{sW}, 2\ns_add_u32 s{sT[2]}, s{sT[2]}, {self.L1_SCR + task*256}")
        a(f"v_mov_b32 v252, s{sT[2]}")
        a(f"s_mov_b64 s[{sT[22]}:{sT[23]}], exec")
        a("s_mov_b32 exec_lo, 0\ns_mov_b32 exec_hi, 0x80000000")
        for j in range(8):
            a(f"ds_write_b32 v252, v{acc+j} offset:{j*32}")
        a(f"s_mov_b64 exec, s[{sT[22]}:{sT[23]}]")

    def bf16_round(self, dst, src):
        self.a(f"v_cvt_pk_bf16_f32 v{dst}, v{src}, v{src}\nv_and_b32 v{dst}, 0xffff0000, v{dst}")

    def p0(self):
        a = self.a
        a.c("---- P0: modulation GEMV ----")
        a(f"s_waitcnt vmcnt({4 + 10 + self.dma_min})")
        a(f"v_readfirstlane_b32 s{sNON}, v242")
        a(f"s_add_u32 s{sNON}, s{sNON}, 1\ns_cmp_eq_u32 s{sNON}, 0\ns_cselect_b32 s{sNON}, 1, s{sNON}")
        for src, dst in ((self.vC1, 242), (self.vC2, 243)):
            a(f"v_lshlrev_b32 v{src}, 16, v{src}")
            a(f"v_mul_f32 v252, 0xbfb8aa3b, v{src}")
            a(f"v_exp_f32 v252, v252")
            a(f"v_add_f32 v252, 1.0, v252")
            a(f"v_rcp_f32 v252, v252")
            a(f"v_mul_f32 v252, v{src}, v252")
            self.bf16_round(dst, 252)
        self.mod_task(self.vWA, 0)
        a("s_waitcnt lgkmcnt(0)\ns_barrier")
        E = a.new("Lp0a")
        a(f"s_cmp_lg_u32 s{sW}, 0\ns_cbranch_scc1 {E}")
        a(f"s_cmp_ge_u32 s{sJ}, 20\ns_cbranch_scc1 {E}")
        self.mod_final(0)
        a(f"s_mul_i32 s{sT[1]}, s{sXC}, 20\ns_add_u32 s{sT[1]}, s{sT[1]}, s{sJ}")
        a(f"s_cmp_ge_u32 s{sT[1]}, 80\ns_cselect_b32 s{sT[2]}, 1.0, 0")
        a(f"v_add_f32 v244, s{sT[2]}, v244")
        self.bf16_round(244, 244)
        a(f"v_mov_b32_dpp v245, v244 quad_perm:[1,0,3,2] row_mask:0xf bank_mask:0xf")
        a(f"v_lshrrev_b32 v244, 16, v244")
        a(f"v_or_b32 v244, v244, v245")
        a(f"v_mov_b32 v245, s{sNON}")
        a(f"s_lshl_b32 s{sT[1]}, s{sT[1]}, 5\ns_add_u32 s{sT[1]}, s{sT[1]}, {WS_MODG}")
        a(f"v_lshlrev_b32 v246, 2, v{vLANE}\nv_add_u32 v246, s{sT[1]}, v246")
        a("s_mov_b32 exec_lo, 0x55\ns_mov_b32 exec_hi, 0")
        a(f"buffer_store_dwordx2 v[244:245], v246, s[{S_WS}:{S_WS+3}], 0 offen sc1")
        a("s_mov_b64 exec, -1")
        a.label(E)
        a(f"s_waitcnt vmcnt({10 + self.dma_min})")
        self.mod_task(self.vWB1, 1)
        self.mod_task(self.vWB2, 2)
        a("s_waitcnt lgkmcnt(0)\ns_barrier")
        E = a.new("Lp0b")
        a(f"s_cmp_eq_u32 s{sW}, 1\ns_cselect_b32 s{sT[1]}, s{sL}, 999")
        a(f"s_add_u32 s{sT[2]}, s{sL}, 256\ns_cmp_lt_u32 s{sL}, 64\ns_cselect_b32 s{sT[2]}, s{sT[2]}, 999")
        a(f"s_cmp_eq_u32 s{sW}, 2\ns_cselect_b32 s{sT[1]}, s{sT[2]}, s{sT[1]}")
        a(f"s_cmp_ge_u32 s{sT[1]}, 320\ns_cbranch_scc1 {E}")
        a(f"s_lshl_b32 s{sT[3]}, s{sW}, 8\ns_add_u32 s{sT[3]}, s{sT[3]}, {self.L1_SCR}")
        self.mod_final(None, sT[3])
        a(f"s_cmp_ge_u32 s{sT[1]}, 160\ns_cselect_b32 s{sT[2]}, 1.0, 0")
        a(f"s_cmp_ge_u32 s{sT[1]}, 240\ns_cselect_b32 s{sT[2]}, 0, s{sT[2]}")
        a(f"v_add_f32 v244, s{sT[2]}, v244")
        self.bf16_round(244, 244)
        a(f"s_lshl_b32 s{sT[2]}, s{sT[1]}, 5\ns_add_u32 s{sT[2]}, s{sT[2]}, {WS_MODR}")
        a(f"v_lshlrev_b32 v246, 2, v{vLANE}\nv_add_u32 v246, s{sT[2]}, v246")
        a("s_mov_b32 exec_lo, 0xff\ns_mov_b32 exec_hi, 0")
        a(f"buffer_store_dword v244, v246, s[{S_WS}:{S_WS+3}], 0 offen sc1")
        a("s_mov_b64 exec, -1")
        EB = a.new("Lmodb")
        a(f"s_cmp_lt_u32 s{sT[1]}, 80\ns_cbranch_scc1 {EB}\ns_cmp_ge_u32 s{sT[1]}, 240\ns_cbranch_scc1 {EB}")
        a(f"v_mov_b32_dpp v245, v244 quad_perm:[1,0,3,2] row_mask:0xf bank_mask:0xf")
        a(f"v_lshrrev_b32 v247, 16, v244\nv_or_b32 v247, v247, v245")
        a(f"s_sub_u32 s{sT[2]}, s{sT[1]}, 80\ns_lshl_b32 s{sT[2]}, s{sT[2]}, 4\ns_add_u32 s{sT[2]}, s{sT[2]}, {0xE800}")
        a(f"v_lshlrev_b32 v246, 1, v{vLANE}\nv_add_u32 v246, s{sT[2]}, v246")
        a("s_mov_b32 exec_lo, 0x55\ns_mov_b32 exec_hi, 0")
        a(f"buffer_store_dword v247, v246, s[{S_WS}:{S_WS+3}], 0 offen sc1")
        a("s_mov_b64 exec, -1")
        a.label(EB)
        a("s_waitcnt vmcnt(0)")
        a(f"s_lshl_b32 s{sT[2]}, s{sT[1]}, 2\ns_add_u32 s{sT[2]}, s{sT[2]}, {F_MODR}")
        a(f"v_mov_b32 v246, s{sT[2]}\nv_mov_b32 v245, s{sNON}")
        a("s_mov_b32 exec_lo, 1")
        a(f"buffer_store_dword v245, v246, s[{S_WS}:{S_WS+3}], 0 offen sc1")
        a("s_mov_b64 exec, -1")
        a.label(E)

    def mod_final(self, task, sbase=None):
        a = self.a
        a(f"v_lshlrev_b32 v246, 5, v{vLANE}")
        if task is not None:
            off = self.L1_SCR + task * 256 - 0
            a(f"v_add_u32 v246, {off}, v246")
        else:
            a(f"v_add_u32 v246, s{sbase}, v246")
        a(f"v_min_u32 v246, {163840-32}, v246")
        a("ds_read_b128 v[248:251], v246\nds_read_b128 v[244:247], v246 offset:16")
        a("s_waitcnt lgkmcnt(0)")
        a("v_add_f32 v244, v244, v248\nv_add_f32 v245, v245, v249\nv_add_f32 v246, v246, v250\nv_add_f32 v247, v247, v251")
        a("v_add_f32 v244, v244, v245\nv_add_f32 v246, v246, v247\nv_add_f32 v244, v244, v246")
        self.bf16_round(244, 244)

    def row16_allreduce(self, regs, op="v_add_f32"):
        a = self.a
        for sh in (8, 4, 2, 1):
            for r in regs:
                a(f"{op}_dpp v{r}, v{r}, v{r} row_ror:{sh} row_mask:0xf bank_mask:0xf")

    def ln_stats(self):
        a = self.a
        a.c("---- LN1 statistics ----")
        a(f"s_waitcnt vmcnt({self.dma_min})")
        X, N = self.vX, self.vXN
        for it in range(2):
            for q in range(20):
                a(f"v_lshlrev_b32 v{N+it*40+2*q}, 16, v{X+it*20+q}")
                a(f"v_and_b32 v{N+it*40+2*q+1}, 0xffff0000, v{X+it*20+q}")
        for it in range(2):
            b = N + it * 40
            t = 8 + it * 4
            for j in range(4):
                a(f"v_add_f32 v{t+j}, v{b+j}, v{b+4+j}")
            for q in range(2, 10):
                for j in range(4):
                    a(f"v_add_f32 v{t+j}, v{t+j}, v{b+4*q+j}")
        for it in range(2):
            t = 8 + it * 4
            a(f"v_add_f32 v{t}, v{t}, v{t+1}\nv_add_f32 v{t+2}, v{t+2}, v{t+3}")
        a("v_add_f32 v8, v8, v10\nv_add_f32 v12, v12, v14")
        self.row16_allreduce([8, 12])
        a(f"s_mov_b32 s{sT[0]}, 0x3acccccd")
        a(f"v_mul_f32 v8, s{sT[0]}, v8\nv_mul_f32 v12, s{sT[0]}, v12")
        for it in range(2):
            b = N + it * 40
            for q in range(40):
                a(f"v_sub_f32 v{b+q}, v{b+q}, v{8+it*4}")
        for it in range(2):
            b = N + it * 40
            t = 16 + it * 4
            for j in range(4):
                a(f"v_mul_f32 v{t+j}, v{b+j}, v{b+j}")
            for q in range(1, 10):
                for j in range(4):
                    a(f"v_fmac_f32 v{t+j}, v{b+4*q+j}, v{b+4*q+j}")
        for it in range(2):
            t = 16 + it * 4
            a(f"v_add_f32 v{t}, v{t}, v{t+1}\nv_add_f32 v{t+2}, v{t+2}, v{t+3}")
        a("v_add_f32 v16, v16, v18\nv_add_f32 v20, v20, v22")
        self.row16_allreduce([16, 20])
        a(f"v_mov_b32 v24, 0x3727c5ac")
        a(f"v_fma_f32 v16, v16, s{sT[0]}, v24\nv_fma_f32 v20, v20, s{sT[0]}, v24")
        a("v_rsq_f32 v16, v16\nv_rsq_f32 v20, v20")
        for it in range(2):
            b = N + it * 40
            for q in range(40):
                a(f"v_mul_f32 v{b+q}, v{b+q}, v{16+it*4}")

    def wq_to_regs(self):
        a = self.a
        a.c("---- wq part 1 -> registers ----")
        a("s_waitcnt vmcnt(0)\ns_barrier")
        self.emit_wq_addr(8)
        for s in range(self.NQ1):
            a(f"ds_read_b64_tr_b16 {vr(self.vWQ+4*s,2)}, v8 offset:{self.L1_H + s*16*160}")
            a(f"ds_read_b64_tr_b16 {vr(self.vWQ+4*s+2,2)}, v8 offset:{self.L1_H + s*16*160 + 4*160}")
            if s % 7 == 6: a("s_waitcnt lgkmcnt(0)")
        a("s_waitcnt lgkmcnt(0)")

    def emit_wq_addr(self, d):
        a = self.a
        a(f"v_lshrrev_b32 v{d}, 5, v{vLANE}\nv_lshlrev_b32 v{d}, 3, v{d}")
        a(f"v_bfe_u32 v{d+1}, v{vLANE}, 2, 2\nv_add_u32 v{d}, v{d}, v{d+1}")
        a(f"v_mul_u32_u24 v{d}, 160, v{d}")
        a(f"v_bfe_u32 v{d+1}, v{vLANE}, 4, 1\nv_lshlrev_b32 v{d+1}, 5, v{d+1}\nv_add_u32 v{d}, v{d}, v{d+1}")
        a(f"v_and_b32 v{d+1}, 3, v{vLANE}\nv_lshl_add_u32 v{d}, v{d+1}, 3, v{d}")
        a(f"s_and_b32 s{sT[0]}, s{sW}, 3\ns_mul_i32 s{sT[0]}, s{sT[0]}, 40")
        a(f"v_add_u32 v{d}, s{sT[0]}, v{d}")

    def mod_poll_apply(self):
        a = self.a
        a.c("---- wait for sa/ca granules, LN apply ----")
        E = a.new("Lmp")
        a(f"s_cmp_ge_u32 s{sW}, 5\ns_cbranch_scc1 {E}")
        a(f"v_lshlrev_b32 v9, 4, v0\nv_add_u32 v9, {WS_MODG}, v9")
        self.poll(9, 12, n=4, tagpos=(1, 3), err=1)
        a("v_lshlrev_b32 v16, 16, v12\nv_and_b32 v17, 0xffff0000, v12\nv_lshlrev_b32 v18, 16, v14\nv_and_b32 v19, 0xffff0000, v14")
        a(f"v_lshlrev_b32 v9, 4, v0\nv_add_u32 v9, {self.L1_GS}, v9")
        a(f"ds_write_b128 v9, v[16:19]")
        a.label(E)
        a("s_waitcnt lgkmcnt(0)\ns_barrier")
        a(f"v_and_b32 v8, 15, v{vLANE}\nv_lshlrev_b32 v9, 5, v8\nv_add_u32 v9, {self.L1_GS}, v9")
        a(f"v_lshrrev_b32 v10, 4, v{vLANE}\ns_lshl_b32 s{sT[0]}, s{sW}, 3\nv_add_u32 v10, s{sT[0]}, v10")
        for it in range(2):
            if it: a("v_add_u32 v10, 4, v10")
            a(f"v_and_b32 v11, 15, v10\nv_xor_b32 v11, v11, v8\nv_lshlrev_b32 v11, 4, v11")
            a(f"v_mul_u32_u24 v{12+it}, 1280, v10\nv_add_u32 v{12+it}, v{12+it}, v11")
        for c in range(5):
            a(f"ds_read_b128 v[16:19], v9 offset:{c*512}\nds_read_b128 v[20:23], v9 offset:{c*512 + 16}")
            a(f"ds_read_b128 v[24:27], v9 offset:{2560 + c*512}\nds_read_b128 v[28:31], v9 offset:{2560 + c*512 + 16}")
            a("s_waitcnt lgkmcnt(0)")
            for it in range(2):
                b = self.vXN + it * 40 + c * 8
                for j in range(8):
                    a(f"v_fma_f32 v{32+j}, v{b+j}, v{24+j}, v{16+j}")
                for j in range(4):
                    a(f"v_cvt_pk_bf16_f32 v{40+it*4+j}, v{32+2*j}, v{33+2*j}")
                a(f"ds_write_b128 v{12+it}, v[{40+it*4}:{43+it*4}] offset:{self.L1_H + c*256}")
        a("s_waitcnt lgkmcnt(0)\ns_barrier")

    def kv_proj(self):
        a = self.a
        a.c("---- K/V projection ----")
        E = a.new("Lkvend")
        a(f"s_cmp_ge_u32 s{sW}, 2\ns_cbranch_scc1 {E}")
        a(f"s_and_b32 s{sT[0]}, s{sHG}, 3\ns_lshl_b32 s{sT[0]}, s{sT[0]}, 4")
        a(f"v_and_b32 v12, 15, v{vLANE}\nv_lshrrev_b32 v13, 4, v{vLANE}")
        a(f"v_add_u32 v14, s{sT[0]}, v12\nv_mul_u32_u24 v14, 1280, v14")
        for q in range(4):
            a(f"v_add_u32 v15, {4*q}, v13\nv_xor_b32 v15, v15, v12\nv_lshl_add_u32 v{8+q}, v15, 4, v14")
        a(f"v_lshlrev_b32 v15, 3, v13\nv_bfe_u32 v16, v{vLANE}, 2, 2\nv_add_u32 v15, v15, v16\nv_mul_u32_u24 v15, 40, v15")
        a(f"v_and_b32 v16, 3, v{vLANE}\nv_lshl_add_u32 v15, v16, 3, v15")
        a(f"s_lshl_b32 s{sT[1]}, s{sW}, 5\ns_add_u32 s{sT[1]}, s{sT[1]}, {self.L1_WKV}\nv_add_u32 v15, s{sT[1]}, v15")
        a(f"v_lshlrev_b32 v16, 5, v13\nv_add_u32 v16, {self.L1_GS}, v16")
        a("v_mov_b32 v20, 0\nv_mov_b32 v21, 0\nv_mov_b32 v22, 0\nv_mov_b32 v23, 0")
        LV, LJ = a.new("Lvproj"), a.new("Lkvj")
        a(f"s_cmp_ge_u32 s{sHG}, 4\ns_cbranch_scc1 {LV}")
        for s in range(20):
            a(f"ds_read_b64_tr_b16 v[24:25], v15 offset:{s*1280}\nds_read_b64_tr_b16 v[26:27], v15 offset:{s*1280 + 160}")
            a(f"ds_read_b128 v[28:31], v{8+s%4} offset:{self.L1_H + (s//4)*256}")
            a(f"ds_read_b128 v[32:35], v16 offset:{s*128}\nds_read_b128 v[36:39], v16 offset:{s*128 + 16}")
            a("s_waitcnt lgkmcnt(0)")
            for j in range(4):
                a(f"v_cvt_pk_bf16_f32 v{40+j}, -v{32+2*j}, -v{33+2*j}")
            a("v_mfma_f32_16x16x32_bf16 v[20:23], v[24:27], v[28:31], v[20:23]")
            a("v_mfma_f32_16x16x32_bf16 v[20:23], v[24:27], v[40:43], v[20:23]")
        a("v_cvt_pk_bf16_f32 v24, v20, v21\nv_cvt_pk_bf16_f32 v25, v22, v23")
        a("v_lshlrev_b32 v26, 16, v24\nv_and_b32 v27, 0xffff0000, v24\nv_lshlrev_b32 v28, 16, v25\nv_and_b32 v29, 0xffff0000, v25")
        a("v_mul_f32 v26, v26, v26\nv_fmac_f32 v26, v27, v27\nv_fmac_f32 v26, v28, v28\nv_fmac_f32 v26, v29, v29")
        W1 = a.new("Lkw1"); W1E = a.new("Lkw1e")
        a(f"s_cmp_eq_u32 s{sW}, 1\ns_cbranch_scc1 {W1}")
        self.sum_groups(26, 27)
        self.kv_tile_base(sT[2])
        a(f"v_add_u32 v30, s{sT[3]}, v12\nv_and_b32 v31, 1, v13\nv_lshl_add_u32 v30, v31, 5, v30\nv_lshlrev_b32 v30, 4, v30")
        a(f"v_lshrrev_b32 v31, 1, v13\nv_lshl_add_u32 v30, v31, 3, v30\nv_add_u32 v30, s{sT[2]}, v30")
        a(f"buffer_store_dwordx2 v[24:25], v30, s[{S_WS}:{S_WS+3}], 0 offen sc1")
        a(f"s_branch {W1E}")
        a.label(W1)
        a("v_cmp_gt_u32 vcc, 16, v1\nv_cndmask_b32 v26, 0, v26, vcc")
        self.kv_tile_base(sT[2])
        a(f"v_add_u32 v30, s{sT[3]}, v12\nv_lshlrev_b32 v30, 3, v30\nv_add_u32 v30, s{sT[2]}, v30")
        a("s_mov_b32 exec_lo, 0xffff\ns_mov_b32 exec_hi, 0")
        a(f"buffer_store_dwordx2 v[24:25], v30, s[{S_WS}:{S_WS+3}], 0 offen offset:3072 sc1")
        a("s_mov_b64 exec, -1")
        a.label(W1E)
        self.wave_max(26)
        a(f"s_branch {LJ}")
        a.label(LV)
        for s in range(20):
            a(f"ds_read_b64_tr_b16 v[24:25], v15 offset:{s*1280}\nds_read_b64_tr_b16 v[26:27], v15 offset:{s*1280 + 160}")
            a(f"ds_read_b128 v[28:31], v{8+s%4} offset:{self.L1_H + (s//4)*256}")
            a("s_waitcnt lgkmcnt(0)")
            a("v_mfma_f32_16x16x32_bf16 v[20:23], v[28:31], v[24:27], v[20:23]")
        a("v_cvt_pk_bf16_f32 v24, v20, v21\nv_cvt_pk_bf16_f32 v25, v22, v23")
        a("v_max_f32 v26, |v20|, |v21|\nv_max_f32 v27, |v22|, |v23|\nv_max_f32 v26, v26, v27")
        a(f"s_lshl_b32 s{sT[1]}, s{sW}, 4\nv_add_u32 v27, s{sT[1]}, v12")
        a("v_cmp_gt_u32 vcc, 20, v27\nv_cndmask_b32 v26, 0, v26, vcc")
        a("v_mov_b32 v28, 0x3f803f80")
        a("v_cmp_eq_u32 vcc, 20, v27\nv_cndmask_b32 v24, v24, v28, vcc\nv_cndmask_b32 v25, v25, v28, vcc")
        a("v_cmp_eq_u32 vcc, 24, v27\nv_cndmask_b32 v24, v24, v28, vcc\nv_cndmask_b32 v25, v25, v28, vcc")
        self.kv_tile_base(sT[2])
        a(f"s_lshl_b32 s{sT[3]}, s{sT[3]}, 6\ns_add_u32 s{sT[2]}, s{sT[2]}, s{sT[3]}")
        a("v_and_b32 v31, 1, v13\nv_lshl_add_u32 v30, v31, 5, v27\nv_lshlrev_b32 v30, 4, v30")
        a(f"v_lshrrev_b32 v31, 1, v13\nv_lshl_add_u32 v30, v31, 3, v30\nv_add_u32 v30, s{sT[2]}, v30")
        a(f"buffer_store_dwordx2 v[24:25], v30, s[{S_WS}:{S_WS+3}], 0 offen offset:1024 sc1")
        self.wave_max(26)
        a.label(LJ)
        a("s_waitcnt vmcnt(0)")
        a(f"s_lshl_b32 s{sT[2]}, s{sL}, 1\ns_add_u32 s{sT[2]}, s{sT[2]}, s{sW}\ns_lshl_b32 s{sT[2]}, s{sT[2]}, 3\ns_add_u32 s{sT[2]}, s{sT[2]}, {F_KV}")
        a(f"v_mov_b32 v30, s{sT[2]}\nv_mov_b32 v28, s{sNON}\nv_mov_b32 v29, v26")
        a("s_mov_b32 exec_lo, 1\ns_mov_b32 exec_hi, 0")
        a(f"buffer_store_dwordx2 v[28:29], v30, s[{S_WS}:{S_WS+3}], 0 offen sc1")
        a("s_mov_b64 exec, -1")
        a.label(E)

    def kv_tile_base(self, d):
        a = self.a
        a(f"s_and_b32 s{d}, s{sHG}, 3\ns_lshr_b32 s{d}, s{d}, 1\ns_lshl_b32 s{d+1}, s{sI}, 1\ns_add_u32 s{d}, s{d}, s{d+1}")
        a(f"s_mul_i32 s{d}, s{d}, {KV_TILE}\ns_add_u32 s{d}, s{d}, {WS_KV}")
        a(f"s_and_b32 s{d+1}, s{sHG}, 1\ns_lshl_b32 s{d+1}, s{d+1}, 4")

    def sum_groups(self, r, t):
        a = self.a
        a(f"v_mov_b32 v{t}, v{r}\nv_permlane32_swap_b32 v{r}, v{t}\nv_add_f32 v{r}, v{r}, v{t}")
        a(f"v_mov_b32 v{t}, v{r}\nv_permlane16_swap_b32 v{r}, v{t}\nv_add_f32 v{r}, v{r}, v{t}")

    def wave_max(self, r):
        a = self.a
        self.row16_allreduce([r], "v_max_f32")
        t = r + 1
        a(f"v_mov_b32 v{t}, v{r}\nv_permlane32_swap_b32 v{r}, v{t}\nv_max_f32 v{r}, v{r}, v{t}")
        a(f"v_mov_b32 v{t}, v{r}\nv_permlane16_swap_b32 v{r}, v{t}\nv_max_f32 v{r}, v{r}, v{t}")

    vQ1, vQ2 = 8, 12
    vO = 16
    vS = [32, 48]
    vP = 64
    vK1 = [72, 76]; vK2 = [80, 84]; vV1 = [88, 92]; vV2 = [96, 100]
    vAK = [104, 105]
    vAK2 = [106, 107]
    vQN = 108
    L2_KV = 0; L2_WO = 39936; L2_UT = 142336; L2_MISC = 162816
    CH = 4 * KV_TILE

    def q_proj(self):
        a = self.a
        a.c("---- Q projection: D[m=dim][n=row] ----")
        acc = 16
        a(f"s_lshr_b32 s{sT[0]}, s{sW}, 2\ns_lshl_b32 s{sT[0]}, s{sT[0]}, 5")
        a(f"v_and_b32 v40, 31, v{vLANE}\nv_add_u32 v40, s{sT[0]}, v40")
        a(f"v_and_b32 v41, 15, v40\nv_mul_u32_u24 v40, 1280, v40\nv_lshrrev_b32 v42, 5, v{vLANE}")
        for q in range(8):
            a(f"v_add_u32 v43, {2*q}, v42\nv_xor_b32 v43, v43, v41\nv_lshl_add_u32 v{32+q}, v43, 4, v40")
        self.emit_wq_addr(44)
        a(f"v_add_u32 v44, {self.L1_WQ2}, v44")
        for j in range(16): a(f"v_mov_b32 v{acc+j}, 0")
        def ldB(s): a(f"ds_read_b128 {vr(48+4*(s%2),4)}, v{32+s%8} offset:{self.L1_H + (s//8)*256}")
        def ldA(s):
            o = (s - self.NQ1) * 16 * 160
            a(f"ds_read_b64_tr_b16 {vr(56+4*(s%2),2)}, v44 offset:{o}\nds_read_b64_tr_b16 {vr(58+4*(s%2),2)}, v44 offset:{o+640}")
        ldB(0)
        for s in range(40):
            n = 0
            if s + 1 < 40:
                ldB(s + 1); n += 1
                if s + 1 >= self.NQ1: ldA(s + 1); n += 2
            a(f"s_waitcnt lgkmcnt({n})")
            A = vr(self.vWQ + 4 * s, 4) if s < self.NQ1 else vr(56 + 4 * (s % 2), 4)
            a(f"v_mfma_f32_32x32x16_bf16 {vr(acc,16)}, {A}, {vr(48+4*(s%2),4)}, {vr(acc,16)}")
        a(f"s_mov_b32 s{sT[0]}, 0x3ea52b8e")
        for j in range(12):
            a(f"v_mul_f32 v{acc+j}, s{sT[0]}, v{acc+j}")
        for j in range(4):
            a(f"v_cvt_pk_bf16_f32 v{self.vQ1+j}, v{acc+2*j}, v{acc+2*j+1}")
        a(f"v_cvt_pk_bf16_f32 v{self.vQ2}, v{acc+8}, v{acc+9}\nv_cvt_pk_bf16_f32 v{self.vQ2+1}, v{acc+10}, v{acc+11}")
        a(f"v_cmp_gt_u32 vcc, 32, v{vLANE}")
        a(f"v_cndmask_b32 v{self.vQ2}, 0, v{self.vQ2}, vcc\nv_cndmask_b32 v{self.vQ2+1}, 0, v{self.vQ2+1}, vcc")
        a(f"v_mov_b32 v{self.vQ2+2}, 0\nv_mov_b32 v{self.vQ2+3}, 0")
        N = self.vQN
        a(f"v_mov_b32 v{N}, 0")
        for r in [self.vQ1 + j for j in range(4)] + [self.vQ2, self.vQ2 + 1]:
            a(f"v_lshlrev_b32 v40, 16, v{r}\nv_and_b32 v41, 0xffff0000, v{r}\nv_fmac_f32 v{N}, v40, v40\nv_fmac_f32 v{N}, v41, v41")
        a(f"v_mov_b32 v40, v{N}\nv_permlane32_swap_b32 v{N}, v40\nv_add_f32 v{N}, v{N}, v40")
        a(f"v_sqrt_f32 v{N}, v{N}")

    def kv_dma(self, chunk_s, buf_s):
        a = self.a
        a(f"s_mul_i32 s{sT[3]}, s{chunk_s}, {self.CH}\ns_add_u32 s{sT[3]}, s{sT[3]}, {WS_KV}")
        a(f"s_lshl_b32 s{sT[4]}, s{sW}, 10\ns_add_u32 s{sT[3]}, s{sT[3]}, s{sT[4]}\ns_add_u32 m0, s{buf_s}, s{sT[4]}")
        a(f"buffer_load_dwordx4 v110, s[{S_WS}:{S_WS+3}], s{sT[3]} offen sc1 lds")
        E = a.new("Lkd")
        a(f"s_cmp_ge_u32 s{sW}, 5\ns_cbranch_scc1 {E}")
        a(f"s_add_u32 s{sT[3]}, s{sT[3]}, 8192\ns_add_u32 m0, m0, 8192")
        a(f"buffer_load_dwordx4 v110, s[{S_WS}:{S_WS+3}], s{sT[3]} offen sc1 lds")
        a.label(E)

    def ld_k(self, b, areg, t):
        a = self.a
        a(f"ds_read_b128 {vr(self.vK1[b],4)}, v{self.vAK[areg]} offset:{t*KV_TILE}")
        a(f"ds_read_b64 {vr(self.vK2[b],2)}, v{self.vAK2[areg]} offset:{t*KV_TILE + 3072}")
    def ld_v(self, b, areg, t):
        a = self.a
        a(f"ds_read_b128 {vr(self.vV1[b],4)}, v{self.vAK[areg]} offset:{t*KV_TILE + 1024}")
        a(f"ds_read_b128 {vr(self.vV2[b],4)}, v{self.vAK[areg]} offset:{t*KV_TILE + 2048}")
    def qk(self, kb, sb, part):
        S = vr(self.vS[sb], 16)
        if part == 0: self.a(f"v_mfma_f32_32x32x16_bf16 {S}, {vr(self.vK1[kb],4)}, {vr(self.vQ1,4)}, 0")
        else: self.a(f"v_mfma_f32_32x32x16_bf16 {S}, {vr(self.vK2[kb],4)}, {vr(self.vQ2,4)}, {S}")

    def attn_setup(self):
        a = self.a
        a.c("---- attention: wait for K/V, bounds, stand-in for the row max ----")
        a("s_waitcnt lgkmcnt(0)\ns_barrier")
        a(f"v_lshlrev_b32 v111, 6, v{vLANE}\nv_add_u32 v111, {F_KV}, v111")
        L, D = a.new("Lkvp"), a.new("Lkvd")
        cnt = sT[20]
        a(f"s_mov_b32 s{cnt}, 0")
        a.label(L)
        for j in range(4):
            a(f"buffer_load_dwordx4 {vr(112+4*j,4)}, v111, s[{S_WS}:{S_WS+3}], 0 offen offset:{16*j} sc1")
        a("s_waitcnt vmcnt(0)")
        a(f"v_cmp_ne_u32 vcc, s{sNON}, v112")
        for j in range(1, 8):
            a(f"v_cmp_ne_u32 s[{sT[22]}:{sT[23]}], s{sNON}, v{112+2*j}\ns_or_b64 vcc, vcc, s[{sT[22]}:{sT[23]}]")
        a(f"s_cbranch_vccz {D}")
        a(f"s_add_u32 s{cnt}, s{cnt}, 1\ns_cmp_lt_u32 s{cnt}, {SPIN_LIMIT}\ns_sleep 1\ns_cbranch_scc1 {L}")
        a(f"v_mov_b32 v254, 2\nv_mov_b32 v255, 0")
        srd(a, S_C, P_DBG, 256)
        a(f"buffer_store_dword v254, v255, s[{S_C}:{S_C+3}], 0 offen")
        a.label(D)
        a("v_max_f32 v113, v113, v117\nv_max_f32 v121, v121, v125\nv_max_f32 v113, v113, v121")
        a("v_max_f32 v115, v115, v119\nv_max_f32 v123, v123, v127\nv_max_f32 v115, v115, v123")
        a(f"v_and_b32 v116, 1, v{vLANE}\nv_cmp_eq_u32 vcc, 0, v116")
        a("v_max_f32 v117, v113, v115")
        a("v_cndmask_b32 v117, v117, 0, vcc")
        a("v_cndmask_b32 v113, 0, v113, vcc\nv_cndmask_b32 v115, 0, v115, vcc")
        self.wave_max(113)
        self.wave_max(115)
        self.wave_max(117)
        a("v_add_f32 v113, v113, v115\nv_sqrt_f32 v113, v113")
        a(f"v_mul_f32 v{self.vQN}, v{self.vQN}, v113")
        a(f"v_mul_f32 v{self.vQN}, 0x3f810000, v{self.vQN}")
        a(f"v_mov_b32 v109, v117")
        E = a.new("Lgen")
        a(f"s_or_b32 s{sT[0]}, s{sL}, s{sW}\ns_cmp_lg_u32 s{sT[0]}, 0\ns_cbranch_scc1 {E}")
        a(f"v_mov_b32 v112, s{sNON}\nv_mov_b32 v113, {WS_NONCE}")
        a("s_mov_b64 exec, 1")
        a(f"buffer_store_dword v112, v113, s[{S_WS}:{S_WS+3}], 0 offen sc1")
        a("s_mov_b64 exec, -1")
        a.label(E)
        if self.stop >= 3:
            import gen2
            gen2.modr_poll(self)
        a(f"v_lshlrev_b32 v110, 4, v{vLANE}")
        a(f"s_mov_b32 s{sT[10]}, 0\ns_mov_b32 s{sT[11]}, {self.L2_KV}")
        self.kv_dma(sT[10], sT[11])
        a(f"s_mov_b32 s{sT[10]}, 1\ns_mov_b32 s{sT[11]}, {self.L2_KV + self.CH}")
        self.kv_dma(sT[10], sT[11])
        for b in range(2):
            a(f"v_mov_b32 v{self.vK2[b]+2}, 0x3f803f80\nv_mov_b32 v{self.vK2[b]+3}, 0x00003f80")
        a(f"v_add_u32 v{self.vAK[0]}, {self.L2_KV}, v110")
        a(f"v_and_b32 v{self.vAK2[0]}, 31, v{vLANE}\nv_lshlrev_b32 v{self.vAK2[0]}, 3, v{self.vAK2[0]}\nv_add_u32 v{self.vAK2[0]}, {self.L2_KV}, v{self.vAK2[0]}")
        a("s_waitcnt vmcnt(0)\ns_barrier")
        self.ld_k(0, 0, 0)
        a("s_waitcnt lgkmcnt(0)")
        self.qk(0, 0, 0); self.qk(0, 0, 1)
        S = self.vS[0]
        a(f"v_max3_f32 v112, v{S}, v{S+1}, v{S+2}")
        for j in range(3, 15, 2):
            a(f"v_max3_f32 v112, v112, v{S+j}, v{S+j+1}")
        a(f"v_max_f32 v112, v112, v{S+15}")
        a("v_mov_b32 v113, v112\nv_permlane32_swap_b32 v112, v113\nv_max_f32 v112, v112, v113")
        U = self.vQN
        a(f"v_sub_f32 v113, v{U}, v112")
        a(f"v_mov_b32 v114, 0x43300000")
        a("v_cmp_nle_f32 vcc, v113, v114")
        a(f"v_mov_b32 v114, 0x4d000000")
        a(f"v_cmp_nlt_f32 s[{sT[22]}:{sT[23]}], v109, v114")
        a(f"s_or_b64 vcc, vcc, s[{sT[22]}:{sT[23]}]")
        a(f"s_cmp_lg_u64 vcc, 0\ns_cselect_b32 s{sT[12]}, 1, 0")
        if self.force_fallback: a(f"s_mov_b32 s{sT[12]}, 1")
        a(f"s_lshl_b32 s{sT[0]}, s{sW}, 2\ns_add_u32 s{sT[0]}, s{sT[0]}, {self.L2_MISC}")
        a(f"v_mov_b32 v113, s{sT[0]}\nv_mov_b32 v114, s{sT[12]}\nds_write_b32 v113, v114")
        a("s_waitcnt lgkmcnt(0)\ns_barrier")
        a(f"v_mov_b32 v113, {self.L2_MISC}\nds_read_b128 v[116:119], v113\nds_read_b128 v[120:123], v113 offset:16")
        a("s_waitcnt lgkmcnt(0)")
        a("v_or_b32 v116, v116, v117\nv_or_b32 v118, v118, v119\nv_or_b32 v120, v120, v121\nv_or_b32 v122, v122, v123")
        a("v_or_b32 v116, v116, v118\nv_or_b32 v120, v120, v122\nv_or_b32 v116, v116, v120")
        a(f"v_readfirstlane_b32 s{sT[12]}, v116")
        a(f"v_add_f32 v112, v{U}, v112\nv_mul_f32 v112, 0.5, v112")
        FB = a.new("Lnofb")
        a(f"s_cmp_eq_u32 s{sT[12]}, 0\ns_cbranch_scc1 {FB}")
        self.max_pass()
        a.label(FB)
        a("v_sub_f32 v112, 0, v112")
        a("v_cvt_pk_bf16_f32 v113, v112, v112\nv_and_b32 v114, 0xffff0000, v113\nv_sub_f32 v112, v112, v114")
        a("v_cvt_pk_bf16_f32 v115, v112, v112\nv_and_b32 v116, 0xffff0000, v115\nv_sub_f32 v112, v112, v116")
        a("v_cvt_pk_bf16_f32 v117, v112, v112")
        a("v_and_b32 v113, 0xffff, v113\nv_or_b32 v113, v113, v116")
        a("v_and_b32 v117, 0xffff, v117")
        a(f"v_cmp_gt_u32 vcc, 32, v{vLANE}")
        a(f"v_cndmask_b32 v{self.vQ2+2}, 0, v113, vcc\nv_cndmask_b32 v{self.vQ2+3}, 0, v117, vcc")

    def max_pass(self):
        a = self.a
        a.c("fallback: exact row max")
        a("v_mov_b32 v112, 0xff7fffff")
        L = a.new("Lmx")
        c = sT[13]
        a(f"s_mov_b32 s{c}, 0")
        a(f"v_add_u32 v{self.vAK[1]}, {2*self.CH}, v{self.vAK[0]}\nv_add_u32 v{self.vAK2[1]}, {2*self.CH}, v{self.vAK2[0]}")
        a.label(L)
        a(f"s_mov_b32 s{sT[11]}, {self.L2_KV + 2*self.CH}")
        self.kv_dma(c, sT[11])
        a("s_waitcnt vmcnt(0)\ns_barrier")
        S = self.vS[1]
        for t in range(4):
            self.ld_k(1, 1, t)
            a("s_waitcnt lgkmcnt(0)")
            self.qk(1, 1, 0); self.qk(1, 1, 1)
            for j in range(0, 16, 2):
                a(f"v_max3_f32 v112, v112, v{S+j}, v{S+j+1}")
        a("s_barrier")
        a(f"s_add_u32 s{c}, s{c}, 1\ns_cmp_lt_u32 s{c}, 16\ns_cbranch_scc1 {L}")
        a("v_mov_b32 v113, v112\nv_permlane32_swap_b32 v112, v113\nv_max_f32 v112, v112, v113")

    def attn_tile(self, t):
        a = self.a
        S = self.vS[t % 2]; P = self.vP
        if t + 2 < 4: self.ld_k(t % 2, 0, t + 2)
        else: self.ld_k(t % 2, 1, t + 2 - 4)
        if t + 1 < 4: self.ld_v((t + 1) % 2, 0, t + 1)
        else: self.ld_v((t + 1) % 2, 1, 0)
        a("s_waitcnt lgkmcnt(4)")
        def ex(j): a(f"v_exp_f32 v{S+j}, v{S+j}")
        def cv(j): a(f"v_cvt_pk_bf16_f32 v{P+j}, v{S+2*j}, v{S+2*j+1}")
        self.qk((t + 1) % 2, (t + 1) % 2, 0)
        ex(0); ex(1); ex(2); cv(0); ex(3)
        self.qk((t + 1) % 2, (t + 1) % 2, 1)
        cv(1); ex(4); ex(5); ex(6); cv(2); ex(7); ex(8); cv(3); ex(9); ex(10)
        a(f"v_mfma_f32_32x32x16_bf16 {vr(self.vO,16)}, {vr(self.vV1[t%2],4)}, {vr(P,4)}, {vr(self.vO,16)}")
        cv(4); ex(11); ex(12); cv(5); ex(13); ex(14); cv(6); ex(15)
        a("s_nop 0")
        cv(7)
        a("s_nop 1")
        a(f"v_mfma_f32_32x32x16_bf16 {vr(self.vO,16)}, {vr(self.vV2[t%2],4)}, {vr(P+4,4)}, {vr(self.vO,16)}")

    def attn_main(self):
        a = self.a
        a.c("---- attention main loop ----")
        c, cur, nxt, fre = sT[13], sT[14], sT[15], sT[16]
        for j in range(16): a(f"v_mov_b32 v{self.vO+j}, 0")
        self.ld_k(1, 0, 1)
        self.ld_v(0, 0, 0)
        self.qk(0, 0, 0); self.qk(0, 0, 1)
        a(f"s_mov_b32 s{c}, 0\ns_mov_b32 s{cur}, {self.L2_KV}\ns_mov_b32 s{nxt}, {self.L2_KV + self.CH}\ns_mov_b32 s{fre}, {self.L2_KV + 2*self.CH}")
        srd(a, S_A, P_WO, 640 * 1280)
        a(f"s_mul_i32 s{sT[17]}, s{sHG}, 160")
        a(f"v_and_b32 v111, 31, v{vLANE}\nv_lshlrev_b32 v111, 3, v111")
        L = a.new("Lattn")
        a.label(L)
        a(f"v_add_u32 v{self.vAK[0]}, s{cur}, v110\nv_add_u32 v{self.vAK[1]}, s{nxt}, v110")
        a(f"v_add_u32 v{self.vAK2[0]}, s{cur}, v111\nv_add_u32 v{self.vAK2[1]}, s{nxt}, v111")
        self.attn_tile(0)
        self.attn_tile(1)
        a("s_waitcnt vmcnt(0)\ns_barrier")
        E = a.new("Lnodma")
        a(f"s_add_u32 s{sT[10]}, s{c}, 2\ns_cmp_ge_u32 s{sT[10]}, 16\ns_cbranch_scc1 {E}")
        self.kv_dma(sT[10], fre)
        a.label(E)
        E = a.new("Lnowo")
        a(f"s_lshl_b32 s{sT[10]}, s{c}, 3\ns_add_u32 s{sT[10]}, s{sT[10]}, s{sW}\ns_cmp_ge_u32 s{sT[10]}, 20\ns_cbranch_scc1 {E}")
        a(f"s_mul_i32 s{sT[3]}, s{sT[10]}, 40960\ns_add_u32 s{sT[3]}, s{sT[3]}, s{sT[17]}")
        a(f"s_mul_i32 s{sT[4]}, s{sT[10]}, 5120\ns_add_u32 s{sT[4]}, s{sT[4]}, {self.L2_WO}")
        for ph in range(5):
            a(f"s_add_u32 m0, s{sT[4]}, {ph*1024}")
            a(f"buffer_load_dwordx4 v{vO160[ph]}, s[{S_A}:{S_A+3}], s{sT[3]} offen lds")
        a.label(E)
        if self.stop >= 3:
            import gen2
            gen2.ut_slab_dma(self, c)
            gen2.ut_bfrag_load(self, c)
        self.attn_tile(2)
        self.attn_tile(3)
        a(f"s_mov_b32 s{sT[10]}, s{cur}\ns_mov_b32 s{cur}, s{nxt}\ns_mov_b32 s{nxt}, s{fre}\ns_mov_b32 s{fre}, s{sT[10]}")
        a(f"s_add_u32 s{c}, s{c}, 1\ns_cmp_lt_u32 s{c}, 16\ns_cbranch_scc1 {L}")
        a("s_waitcnt lgkmcnt(0)")

    def attn_epilogue(self):
        a = self.a
        a.c("---- attention epilogue: normalise, store o fragments ----")
        O = self.vO
        a(f"v_cmp_gt_u32 vcc, 32, v{vLANE}")
        a(f"v_cndmask_b32 v40, v{O+8}, v{O+12}, vcc")
        a("v_rcp_f32 v40, v40")
        for j in range(12): a(f"v_mul_f32 v{O+j}, v{O+j}, v40")
        for j in range(6): a(f"v_cvt_pk_bf16_f32 v{44+j}, v{O+2*j}, v{O+2*j+1}")
        a(f"s_lshl_b32 s{sT[0]}, s{sI}, 2\ns_lshr_b32 s{sT[1]}, s{sW}, 2\ns_lshl_b32 s{sT[1]}, s{sT[1]}, 1\ns_add_u32 s{sT[0]}, s{sT[0]}, s{sT[1]}")
        a(f"v_bfe_u32 v32, v{vLANE}, 4, 1\nv_add_u32 v32, s{sT[0]}, v32")
        a(f"v_mul_u32_u24 v32, {20*1024}, v32")
        a(f"v_and_b32 v33, 15, v{vLANE}\nv_lshl_add_u32 v32, v33, 4, v32\nv_add_u32 v32, {WS_O}, v32")
        a(f"s_lshl_b32 s{sT[0]}, s{sHG}, 2\ns_and_b32 s{sT[1]}, s{sW}, 3\ns_add_u32 s{sT[0]}, s{sT[0]}, s{sT[1]}\ns_mul_i32 s{sT[0]}, s{sT[0]}, 20")
        a(f"v_lshrrev_b32 v33, 5, v{vLANE}\nv_lshlrev_b32 v33, 2, v33\nv_add_u32 v33, s{sT[0]}, v33")
        for k, add in enumerate((0, 8, 16)):
            a(f"v_add_u32 v34, {add}, v33")
            if k == 2: a(f"v_mov_b32 v34, s{sT[0]}\nv_add_u32 v34, 16, v34")
            a("v_lshrrev_b32 v35, 5, v34\nv_lshlrev_b32 v35, 10, v35")
            a("v_bfe_u32 v36, v34, 2, 2\nv_lshl_add_u32 v35, v36, 8, v35")
            a("v_bfe_u32 v36, v34, 4, 1\nv_lshl_add_u32 v35, v36, 3, v35")
            a("v_add_u32 v35, v32, v35")
            if k == 2: a("s_mov_b32 exec_hi, 0")
            a(f"buffer_store_dwordx2 {vr(44+2*k,2)}, v35, s[{S_WS}:{S_WS+3}], 0 offen sc1")
            if k == 2: a("s_mov_b64 exec, -1")
        self.wave_flag(F_O)

    def wave_flag(self, base):
        a = self.a
        a("s_waitcnt vmcnt(0)")
        a(f"s_lshl_b32 s{sT[0]}, s{sL}, 3\ns_add_u32 s{sT[0]}, s{sT[0]}, s{sW}\ns_lshl_b32 s{sT[0]}, s{sT[0]}, 2\ns_add_u32 s{sT[0]}, s{sT[0]}, {base}")
        a(f"v_mov_b32 v254, s{sT[0]}\nv_mov_b32 v255, s{sNON}")
        a("s_mov_b64 exec, 1")
        a(f"buffer_store_dword v255, v254, s[{S_WS}:{S_WS+3}], 0 offen sc1")
        a("s_mov_b64 exec, -1")

    def build(self, force_fallback=False):
        self.force_fallback = force_fallback
        a = self.a
        self.prologue()
        self.stamp(0)
        self.p0_issue()
        self.p0()
        self.stamp(1)
        self.ln_stats()
        self.wq_to_regs()
        self.stamp(2)
        self.mod_poll_apply()
        self.stamp(3)
        self.kv_proj()
        self.q_proj()
        self.stamp(4)
        if self.stop >= 2:
            self.attn_setup()
            self.stamp(5)
            self.attn_main()
            self.stamp(6)
            self.attn_epilogue()
            self.stamp(7)
        if self.stop >= 3:
            import gen2
            gen2.rest(self)
        a("s_waitcnt vmcnt(0) lgkmcnt(0)")
        a.label("L_END")
        a("s_endpgm")
        lines, n = fix_hazards(a.l)
        return lines, n

HEADER = open(os.path.join(os.path.dirname(os.path.abspath(__file__)), "header.txt")).read() if os.path.exists(os.path.join(os.path.dirname(os.path.abspath(__file__)), "header.txt")) else ""

def make(stop=99, ts=False, force_fallback=False):
    g = Gen(stop, ts)
    lines, n = g.build(force_fallback)
    txt = HEADER
    txt += "; @launch grid=(256,1,1) block=(512,1,1) lds=163840\n"
    txt += f'.amdgcn_target "amdgcn-amd-amdhsa--gfx950"\n.text\n.globl {NAME}\n.p2align 8\n.type {NAME},@function\n{NAME}:\n'
    txt += "\n".join(lines) + "\n"
    txt += f""".section .rodata,"a"
.p2align 6
.amdhsa_kernel {NAME}
  .amdhsa_next_free_vgpr 256
  .amdhsa_next_free_sgpr 102
  .amdhsa_accum_offset 256
  .amdhsa_group_segment_fixed_size 0
  .amdhsa_kernarg_size 112
  .amdhsa_user_sgpr_count 2
  .amdhsa_user_sgpr_kernarg_segment_ptr 1
  .amdhsa_system_sgpr_workgroup_id_x 1
  .amdhsa_float_denorm_mode_32 3
.end_amdhsa_kernel
"""
    return txt, n

if __name__ == "__main__":
    import argparse
    ap = argparse.ArgumentParser()
    ap.add_argument("--stop", type=int, default=99)
    ap.add_argument("--ts", action="store_true")
    ap.add_argument("--fb", action="store_true")
    ap.add_argument("-o", default="out.s")
    args = ap.parse_args()
    txt, n = make(args.stop, args.ts, args.fb)
    open(args.o, "w").write(txt)
    print("nops inserted:", n, "lines:", txt.count("\n"))
```

```python
import re

TRANS = ("v_exp_f32", "v_log_f32", "v_rcp_f32", "v_rsq_f32", "v_sqrt_f32", "v_sin_f32", "v_cos_f32",
         "v_exp_f16", "v_log_f16", "v_rcp_f16", "v_rsq_f16", "v_sqrt_f16", "v_rcp_iflag_f32")

def regs_of(tok):
    tok = tok.strip()
    tok = re.sub(r"^-", "", tok)
    m = re.match(r"^abs\((.*)\)$", tok)
    if m: tok = m.group(1)
    tok = tok.strip("|")
    m = re.match(r"^([vsa])(\d+)$", tok)
    if m: return [(m.group(1), int(m.group(2)))]
    m = re.match(r"^([vsa])\[(\d+):(\d+)\]$", tok)
    if m: return [(m.group(1), i) for i in range(int(m.group(2)), int(m.group(3)) + 1)]
    if tok in ("vcc", "vcc_lo", "vcc_hi"): return [("x", "vcc")]
    if tok in ("exec", "exec_lo", "exec_hi"): return [("x", "exec")]
    if tok == "m0": return [("x", "m0")]
    if tok == "scc": return [("x", "scc")]
    return []

class Ins:
    def __init__(self, text):
        self.text = text
        t = text.split(";")[0].strip()
        self.label = None
        self.op = None
        if t.endswith(":"):
            self.label = t[:-1]; return
        if not t or t.startswith("."):
            return
        parts = t.split(None, 1)
        self.op = parts[0]
        rest = parts[1] if len(parts) > 1 else ""
        ops, depth, cur = [], 0, ""
        for ch in rest:
            if ch in "[(": depth += 1
            if ch in "])": depth -= 1
            if ch == "," and depth == 0:
                ops.append(cur.strip()); cur = ""
            else:
                cur += ch
        if cur.strip(): ops.append(cur.strip())
        mods = ""
        if ops:
            sp = ops[-1].split(None, 1)
            if len(sp) > 1 and not sp[0].startswith("quad_perm"):
                ops[-1] = sp[0]; mods = sp[1]
        self.ops = ops; self.mods = mods
        self.analyze()

    def analyze(self):
        op = self.op; ops = self.ops
        base = re.sub(r"_(e32|e64|dpp|sdwa)$", "", op)
        self.base = base
        self.rd, self.wr = set(), set()
        self.cls = "other"
        self.passes = 0
        self.is_dpp = op.endswith("_dpp") or any(k in (self.mods + " " + " ".join(ops)) for k in ("row_shr", "row_shl", "row_ror", "row_bcast", "quad_perm", "row_mirror", "row_half_mirror", "wave_"))
        R = lambda i: regs_of(ops[i]) if i < len(ops) else []
        if op.startswith("v_mfma"):
            self.cls = "mfma"
            self.passes = 8 if "32x32" in op else 4
            if "32x32x4_2b" in op: self.passes = 16
            self.wr = set(R(0)); self.a = set(R(1)); self.b = set(R(2)); self.c = set(R(3))
            self.rd = self.a | self.b | self.c
        elif op.startswith("v_"):
            self.cls = "valu"
            self.trans = base in TRANS
            if base.startswith("v_cmp"):
                self.wr = set(R(0))
                for i in range(1, len(ops)): self.rd |= set(R(i))
                if base.startswith("v_cmpx"): self.wr.add(("x", "exec"))
            elif base in ("v_readfirstlane_b32", "v_readlane_b32"):
                self.cls = "valu"; self.sub = "readlane"
                self.wr = set(R(0))
                for i in range(1, len(ops)): self.rd |= set(R(i))
            elif base.startswith("v_permlane") and "swap" in base:
                self.sub = "permlane"
                self.wr = set(R(0)) | set(R(1)); self.rd = set(self.wr)
            elif base in ("v_add_co_u32", "v_sub_co_u32", "v_addc_co_u32", "v_subb_co_u32", "v_subrev_co_u32", "v_mad_u64_u32", "v_div_scale_f32"):
                self.wr = set(R(0)) | set(R(1))
                for i in range(2, len(ops)): self.rd |= set(R(i))
            else:
                self.wr = set(R(0))
                for i in range(1, len(ops)): self.rd |= set(R(i))
                if base in ("v_fmac_f32", "v_mac_f32", "v_dot2c_f32_bf16", "v_pk_fmac_f16", "v_writelane_b32", "v_fmaak_f32"[:0]) or base.startswith("v_fmac") or base.startswith("v_dot2c"):
                    self.rd |= set(R(0))
                if "dst_unused:UNUSED_PRESERVE" in self.mods or self.is_dpp:
                    self.rd |= set(R(0))
                if base == "v_cndmask_b32" and len(ops) == 3:
                    self.rd.add(("x", "vcc"))
        elif op.startswith("ds_"):
            self.cls = "ds"
            if op.startswith("ds_read") or op.startswith("ds_bpermute") or op.startswith("ds_permute") or op.startswith("ds_swizzle"):
                self.wr = set(R(0))
                for i in range(1, len(ops)): self.rd |= set(R(i))
            else:
                for i in range(len(ops)): self.rd |= set(R(i))
        elif op.startswith("buffer_") or op.startswith("global_") or op.startswith("flat_"):
            self.cls = "vmem"
            allm = self.mods + " " + " ".join(ops)
            self.lds = bool(re.search(r"\blds\b", allm)) or "load_lds" in op
            if "load" in op and not self.lds:
                self.wr = set(R(0))
                for i in range(1, len(ops)): self.rd |= set(R(i))
            elif "atomic" in op:
                for i in range(len(ops)): self.rd |= set(R(i))
                if re.search(r"\bsc0\b", allm): self.wr = set(R(0 if op.startswith("buffer") else 0))
            else:
                for i in range(len(ops)): self.rd |= set(R(i))
            if self.lds: self.rd.add(("x", "m0"))
            self.wide_store = ("store" in op and ("x3" in op or "x4" in op))
            if self.wide_store:
                self.sdata = set(R(0)) if op.startswith("buffer") else set(R(1))
        elif op.startswith("s_"):
            self.cls = "salu"
            if op in ("s_nop", "s_waitcnt", "s_barrier", "s_endpgm", "s_sleep", "s_setprio", "s_branch") or op.startswith("s_cbranch"):
                self.cls = "sctl"
                if op == "s_cbranch_vccnz" or op == "s_cbranch_vccz": self.rd.add(("x", "vcc"))
                if op == "s_cbranch_execz" or op == "s_cbranch_execnz": self.rd.add(("x", "exec"))
            elif op.startswith("s_cmp") or op.startswith("s_bitcmp"):
                for i in range(len(ops)): self.rd |= set(R(i))
            elif op.startswith("s_load") or op.startswith("s_buffer_load") or op.startswith("s_memtime") or op.startswith("s_memrealtime"):
                self.cls = "smem"
                self.wr = set(R(0))
                for i in range(1, len(ops)): self.rd |= set(R(i))
            else:
                self.wr = set(R(0))
                for i in range(1, len(ops)): self.rd |= set(R(i))
                if "saveexec" in op: self.wr.add(("x", "exec")); self.rd.add(("x", "exec"))

    def states(self):
        if self.op is None: return 0
        if self.op == "s_nop": return int(self.ops[0], 0) + 1
        return 1

def need(p, c):
    n = 0
    if p.op is None or c.op is None: return 0
    vw = {r for r in p.wr if r[0] in "va"}
    sw = {r for r in p.wr if r[0] == "s" or r == ("x", "vcc")}
    if p.cls == "valu":
        if c.cls == "mfma" and (vw & c.rd): n = max(n, 2)
        if c.cls == "valu":
            if getattr(p, "trans", False) and not getattr(c, "trans", False) and (vw & (c.rd | set())): n = max(n, 1)
            if c.is_dpp and (vw & c.rd): n = max(n, 2)
            if getattr(c, "sub", "") == "permlane" and (vw & c.rd): n = max(n, 2)
            if getattr(c, "sub", "") == "readlane":
                if vw & c.rd: n = max(n, 1)
                if sw & c.rd: n = max(n, 4)
            if sw & c.rd: n = max(n, 2)
            if ("x", "exec") in p.wr:
                if c.is_dpp: n = max(n, 5)
                if getattr(c, "sub", "") in ("readlane", "permlane"): n = max(n, 4)
            if ("dst_sel" in p.mods or "op_sel" in p.mods) and (vw & (c.rd | c.wr)): n = max(n, 1)
        if p.base.startswith("v_dot2"):
            if c.cls in ("valu", "mfma", "vmem", "ds") and (vw & (c.rd | c.wr)):
                same_c = (c.cls == "valu" and c.base == p.base and len(c.ops) >= 4 and set(regs_of(c.ops[3])) == vw and not (vw & (set(regs_of(c.ops[1])) | set(regs_of(c.ops[2])))))
                if not same_c: n = max(n, 3)
        if c.cls == "mfma" and ("x", "exec") in p.wr: n = max(n, 4)
        if c.cls == "vmem" and (sw & c.rd): n = max(n, 5)
        if c.cls in ("salu", "sctl", "smem") and (sw & c.rd): n = max(n, 4 if c.cls != "sctl" else 5)
    if p.cls == "mfma":
        P = p.passes
        raw = {4: 8, 8: 12, 16: 20}[P]
        ovl = {4: 6, 8: 10, 16: 18}[P]
        war = {4: 3, 8: 7, 16: 15}[P]
        if c.cls == "mfma":
            if p.wr & (c.a | c.b): n = max(n, raw)
            if p.wr & c.c:
                if not (p.wr == c.c and c.passes == P): n = max(n, ovl)
            if (p.wr & c.wr) and not (p.wr & c.c):
                n = max(n, ovl)
        elif c.cls in ("valu", "vmem", "ds"):
            if p.wr & (c.rd | c.wr): n = max(n, raw)
            if c.cls == "valu" and (p.c & c.wr): n = max(n, war)
    if p.cls == "salu" and ("x", "m0") in p.wr and c.cls == "vmem" and getattr(c, "lds", False): n = max(n, 1)
    if p.cls == "vmem" and getattr(p, "wide_store", False):
        if c.cls == "valu" and (p.sdata & c.wr): n = max(n, 2)
        elif (p.sdata & c.wr): n = max(n, 1)
    return n

MAXD = 21
def fix_hazards(lines, verbose=False):
    ins = [Ins(l) for l in lines]
    labels = {x.label: i for i, x in enumerate(ins) if x.label}
    preds = [[] for _ in ins]
    for i, x in enumerate(ins):
        fall = True
        if x.op in ("s_branch", "s_endpgm", "s_setpc_b64"): fall = False
        if x.op and (x.op == "s_branch" or x.op.startswith("s_cbranch")):
            t = labels.get(x.ops[0])
            if t is None: raise Exception("unknown label " + x.text)
            preds[t].append(i)
        if fall and i + 1 < len(ins): preds[i + 1].append(i)
    extra = [0] * len(ins)
    total = 0
    changed = True
    while changed:
        changed = False
        for i, c in enumerate(ins):
            if c.op is None or (c.cls == "sctl" and not c.rd): continue
            worst = 0
            stack = [(p, extra[i]) for p in preds[i]]
            seen = {}
            while stack:
                j, d = stack.pop()
                if j in seen and seen[j] <= d: continue
                seen[j] = d
                p = ins[j]
                if p.op is not None:
                    n = need(p, c)
                    if n > d: worst = max(worst, n - d)
                nd = d + p.states() + extra[j]
                if nd < MAXD:
                    for q in preds[j]: stack.append((q, nd))
            if worst > 0:
                extra[i] += worst; total += worst; changed = True
                if verbose: print(f"hazard: +{worst} before: {c.text.strip()}")
    out = []
    for i, x in enumerate(ins):
        k = extra[i]
        while k > 0:
            m = min(k, 16); out.append(f"    s_nop {m-1}"); k -= m
        out.append(x.text)
    return out, total

class Asm:
    def __init__(self):
        self.l = []
        self.uid = 0
    def __call__(self, s):
        for line in s.split("\n"):
            line = line.strip()
            if not line: continue
            if line.endswith(":"): self.l.append(line)
            else: self.l.append("    " + line)
    def label(self, s): self.l.append(s + ":")
    def new(self, p="L"):
        self.uid += 1; return f"{p}_{self.uid}"
    def c(self, s): self.l.append("    ; " + s)
```

```python
from g3 import *

vX1 = 240
vGB = 228
vXr, vGA, vG2 = 196, 204, 216
vUB = 116
vRP = 144

sRPC, sRPD, sWOS, sWOL, sSLS, sSLL = 31, 42, 43, sT[15], sT[16], sT[19]
vRO = 104
vSL = 108 + 2
L2_MB = 155648

def bg_setup(g):
    a = g.a
    q, upr, magic, pitch, col = sT[2], sT[3], sT[10], sT[11], sRPC
    K2, K3, GO = a.new("Lrp"), a.new("Lrp"), a.new("Lrp")
    a(f"s_lshl_b32 s{q}, s{sL}, 3\ns_add_u32 s{q}, s{q}, s{sW}")
    a(f"s_lshl_b32 s{sRPD}, s{q}, 12\ns_add_u32 s{sRPD}, s{sRPD}, {WS_RW}")
    a(f"s_mov_b32 s{upr}, 10\ns_mov_b32 s{magic}, 0x1999999a\ns_movk_i32 s{pitch}, 1280")
    a(f"s_cmp_ge_u32 s{q}, 200\ns_cbranch_scc1 {K2}")
    a(f"s_mul_hi_u32 s{col}, s{q}, {(1<<32)//25+1}\ns_mul_i32 s{sT[12]}, s{col}, 25\ns_sub_u32 s{q}, s{q}, s{sT[12]}\ns_mul_i32 s{col}, s{col}, 160")
    a(f"s_mov_b32 s{S_B}, s{P_WO}\ns_mov_b32 s{S_B+1}, s{P_WO+1}\ns_mov_b32 s{S_B+2}, {640*1280}\ns_branch {GO}")
    a.label(K2)
    a(f"s_cmp_ge_u32 s{q}, 744\ns_cbranch_scc1 {K3}\ns_sub_u32 s{q}, s{q}, 200")
    a(f"s_mul_hi_u32 s{col}, s{q}, {(1<<32)//68+1}\ns_mul_i32 s{sT[12]}, s{col}, 68\ns_sub_u32 s{q}, s{q}, s{sT[12]}\ns_mul_i32 s{col}, s{col}, 160")
    a(f"s_mov_b32 s{S_B}, s{P_W2}\ns_mov_b32 s{S_B+1}, s{P_W2+1}\ns_mov_b32 s{S_B+2}, {1728*1280}\ns_branch {GO}")
    a.label(K3)
    a(f"s_sub_u32 s{q}, s{q}, 744")
    a(f"s_mul_hi_u32 s{col}, s{q}, {(1<<32)//35+1}\ns_mul_i32 s{sT[12]}, s{col}, 35\ns_sub_u32 s{q}, s{q}, s{sT[12]}")
    a(f"s_bitcmp1_b32 s{col}, 0\ns_cselect_b32 s{S_B}, s{P_W3}, s{P_W1}\ns_cselect_b32 s{S_B+1}, s{P_W3+1}, s{P_W1+1}\ns_mov_b32 s{S_B+2}, {640*3456}")
    a(f"s_lshr_b32 s{col}, s{col}, 1")
    a(f"s_mul_i32 s{sT[12]}, s{col}, 7\ns_mul_i32 s{upr}, s{col}, 6\ns_add_u32 s{upr}, s{upr}, 12\ns_min_u32 s{upr}, s{upr}, 101")
    a(f"s_cmp_lt_u32 s{col}, 12\ns_cselect_b32 s{col}, s{sT[12]}, s{upr}\ns_lshl_b32 s{col}, s{col}, 5")
    a(f"s_mov_b32 s{upr}, 14\ns_mov_b32 s{magic}, 0x12492493\ns_movk_i32 s{pitch}, 3456")
    a.label(GO)
    a(f"s_mov_b32 s{S_B+3}, 0x20000\ns_lshl_b32 s{q}, s{q}, 8\ns_lshl_b32 s{upr}, s{upr}, 4\ns_sub_u32 s{pitch}, s{pitch}, s{upr}")
    a(f"v_add_u32 v112, s{q}, v{vLANE}")
    for k in range(4):
        a(f"v_mul_hi_u32 v113, v112, s{magic}\nv_mul_lo_u32 v113, v113, s{pitch}\nv_lshl_add_u32 v{vRO+k}, v112, 4, v113")
        if k < 3: a("v_add_u32 v112, 64, v112")
    a(f"s_mul_i32 s{sWOL}, s{sW}, 13\ns_min_u32 s{sWOL}, s{sWOL}, 87\ns_lshl_b32 s{sWOL}, s{sWOL}, 10")
    a(f"s_mul_i32 s{sWOS}, s{sHG}, 102400\ns_add_u32 s{sWOS}, s{sWOS}, s{sWOL}\ns_add_u32 s{sWOS}, s{sWOS}, {WS_RW + RW_WO}\ns_add_u32 s{sWOL}, s{sWOL}, {g.L2_WO}")
    a(f"s_cmp_lt_u32 s{sL}, 108\ns_cselect_b32 s{S_C}, s{P_W1}, s{P_W3}\ns_cselect_b32 s{S_C+1}, s{P_W1+1}, s{P_W3+1}")
    a(f"s_mov_b32 s{S_C+2}, {640*3456}\ns_mov_b32 s{S_C+3}, 0x20000")
    a(f"s_sub_u32 s{sSLS}, s{sL}, 108\ns_cselect_b32 s{sSLS}, s{sL}, s{sSLS}\ns_lshl_b32 s{sSLS}, s{sSLS}, 5")
    a(f"s_mul_i32 s{sSLL}, s{sW}, 3\ns_min_u32 s{sSLL}, s{sSLL}, 17\ns_mul_i32 s{sT[12]}, s{sSLL}, {32*3456}\ns_add_u32 s{sSLS}, s{sSLS}, s{sT[12]}\ns_lshl_b32 s{sSLL}, s{sSLL}, 10")
    a(f"v_lshrrev_b32 v{vSL}, 1, v{vLANE}\nv_mul_u32_u24 v{vSL}, 3456, v{vSL}\nv_and_b32 v113, 1, v{vLANE}\nv_lshl_add_u32 v{vSL}, v113, 4, v{vSL}")

def bg_schedule(g, put):
    a = g.a
    for k in range(4):
        put(k // 2, f"rl{k}", [f"buffer_load_dwordx4 {vr(vRP+4*k,4)}, v{vRO+k}, s[{S_B}:{S_B+3}], s{sRPC} offen"])
    for k, T in enumerate((8, 9, 12, 13)):
        put(T, f"rs{k}", [f"buffer_store_dwordx4 {vr(vRP+4*k,4)}, v{vL16}, {WSR}, s{sRPD} offen offset:{k*1024} sc1"], need=f"rl{k}")
    put(17, "rsw", [], n=0, need="rs3")
    l1 = a.new("Lbg")
    put(18, "pub", [f"s_cmp_lg_u32 s{sW}, 4", f"s_cbranch_scc1 {l1}", f"s_lshl_b32 s{sT[2]}, s{sL}, 2", f"s_add_u32 s{sT[2]}, s{sT[2]}, {F_RP}", f"v_mov_b32 v112, s{sNON}",
                    "s_mov_b64 exec, 1", f"buffer_store_dword v112, v{vLANE}, {WSR}, s{sT[2]} offen sc1", "s_mov_b64 exec, -1", f"{l1}:"], n=0)
    l2, l3, l4 = a.new("Lbg"), a.new("Lbg"), a.new("Lbg")
    chk = [f"s_cmp_lg_u32 s{sW}, 7", f"s_cbranch_scc1 {l2}", f"s_mov_b32 s{sT[20]}, 0", f"{l3}:",
           f"s_mov_b32 s{sT[2]}, {F_RP}", f"s_mov_b32 s{sT[3]}, {F_MODR}",
           f"buffer_load_dwordx4 v[112:115], v{vL16}, {WSR}, s{sT[2]} offen sc1",
           f"v_min_u32 v120, 624, v{vL16}",
           f"buffer_load_dwordx4 v[116:119], v120, {WSR}, s{sT[3]} offen sc1",
           "s_waitcnt vmcnt(0)"]
    chk += [f"v_xor_b32 v{112+j}, s{sNON}, v{112+j}" for j in range(8)]
    chk += ["v_or3_b32 v112, v112, v113, v114", "v_or3_b32 v115, v115, v116, v117", "v_or3_b32 v112, v112, v118, v119", "v_or_b32 v112, v112, v115",
            "v_cmp_ne_u32 vcc, 0, v112", "s_nop 4", f"s_cbranch_vccz {l2}",
            f"s_add_u32 s{sT[20]}, s{sT[20]}, 1", f"s_cmp_lt_u32 s{sT[20]}, {SPIN_LIMIT}", f"s_cbranch_scc1 {l3}",
            f"{l2}:"]
    put(24, "chk", chk, n=0)
    slots = [26, 27, 28, 29, 32, 33, 36, 37, 40, 41, 44, 45, 48]
    for k, T in enumerate(slots):
        ins = []
        if k % 4 == 0: ins.append(f"s_add_u32 m0, s{sWOL}, {k*1024}")
        else: ins.append(f"s_add_u32 m0, s{sWOL}, {(k//4)*4096}")
        ins.append(f"buffer_load_dwordx4 v{vL16}, {WSR}, s{sWOS} offen offset:{(k%4)*1024} sc1 lds")
        if k % 4 == 3: ins.append(f"s_add_u32 s{sWOS}, s{sWOS}, 4096")
        put(T, f"wo{k}", ins)
    put(30, "mb", [f"s_min_u32 s{sT[2]}, s{sW}, 2", f"s_lshl_b32 s{sT[2]}, s{sT[2]}, 10", f"s_add_u32 m0, s{sT[2]}, {L2_MB}", f"s_add_u32 s{sT[2]}, s{sT[2]}, {WS_MODB}",
                   f"buffer_load_dwordx4 v{vL16}, {WSR}, s{sT[2]} offen sc1 lds"])
    ops = p3_operand_list()
    for k, T in enumerate((49, 52, 52, 53, 53, 56, 56, 57, 57, 60, 60, 61, 61)):
        if k < len(ops): put(T, f"op{k}", ops[k][0], n=ops[k][1])
    for k, T in enumerate((58, 59, 62)):
        ins = [f"s_add_u32 m0, s{sSLL}, {k*1024}", f"buffer_load_dwordx4 v{vSL}, s[{S_C}:{S_C+3}], s{sSLS} offen lds"]
        if k < 2: ins.append(f"s_add_u32 s{sSLS}, s{sSLS}, {32*3456}")
        put(T, f"sl{k}", ins)

def p3_operand_list():
    setup = [f"s_mul_i32 s{sT[1]}, s{sKH}, 48", f"s_mul_i32 s{sT[2]}, s{sHG}, 80", f"s_add_u32 s{sT[1]}, s{sT[1]}, s{sT[2]}",
             f"v_lshrrev_b32 v112, 4, v{vLANE}", "v_lshlrev_b32 v113, 4, v112",
             f"s_lshl_b32 s{sT[10]}, s{sT[1]}, 2", f"s_add_u32 s{sT[10]}, s{sT[10]}, {WS_MODR}", f"s_add_u32 s{sT[11]}, s{sT[10]}, {1280*4}", f"s_add_u32 s{sT[12]}, s{sT[10]}, {1920*4}",
             f"v_and_b32 v253, 15, v{vLANE}", "v_mul_u32_u24 v253, 1280, v253", "v_lshl_add_u32 v253, v112, 3, v253",
             f"s_mul_i32 s{sT[2]}, s{sRBG}, {16*1280}", f"s_lshl_b32 s{sT[1]}, s{sT[1]}, 1", f"s_add_u32 s30, s{sT[2]}, s{sT[1]}"]
    L = [(setup, 0)]
    for j in range(3):
        L.append(([f"buffer_load_dwordx4 {vr(vGA+4*j,4)}, v113, {WSR}, s{sT[10]} offen offset:{j*64} sc1"], 1))
        L.append(([f"buffer_load_dwordx4 {vr(vG2+4*j,4)}, v113, {WSR}, s{sT[11]} offen offset:{j*64} sc1"], 1))
        L.append(([f"buffer_load_dwordx4 {vr(vGB+4*j,4)}, v113, {WSR}, s{sT[12]} offen offset:{j*64} sc1"], 1))
        L.append(([f"buffer_load_dwordx2 {vr(vXr+2*j,2)}, v253, s[{S_X}:{S_X+3}], s30 offen offset:{j*32}"], 1))
    return L

def ut_job(g):
    a = g.a
    E = a.new("Lnoutj")
    a(f"s_cmp_lg_u32 s{sW}, 7\ns_cbranch_scc1 {E}\ns_cmp_ge_u32 s{sL}, 216\ns_cbranch_scc1 {E}")
    a(f"v_lshrrev_b32 v42, 4, v{vLANE}\nv_bfe_u32 v41, v{vLANE}, 2, 2\nv_lshl_add_u32 v40, v42, 3, v41\nv_lshlrev_b32 v40, 5, v40")
    a(f"v_and_b32 v41, 3, v{vLANE}\nv_lshl_add_u32 v40, v41, 3, v40\nv_add_u32 v40, {g.L2_UT}, v40")
    a(f"v_and_b32 v43, 1, v{vLANE}\nv_xor_b32 v43, 1, v43\nv_mul_u32_u24 v43, 1280, v43\nv_lshl_add_u32 v43, v42, 4, v43\nv_add_u32 v43, {L2_MB}, v43")
    for s0 in range(0, 20, 4):
        for s in range(s0, s0 + 4):
            d = 48 + 8 * (s - s0)
            a(f"ds_read_b64_tr_b16 {vr(d,2)}, v40 offset:{s*1024}\nds_read_b64_tr_b16 {vr(d+2,2)}, v40 offset:{s*1024+128}\nds_read_b128 {vr(d+4,4)}, v43 offset:{s*64}")
        a("s_waitcnt lgkmcnt(0)")
        for s in range(s0, s0 + 4):
            d = 48 + 8 * (s - s0)
            a(f"v_mfma_f32_16x16x32_bf16 v[44:47], {vr(d,4)}, {vr(d+4,4)}, {'0' if s == 0 else 'v[44:47]'}")
    a(f"s_cmp_lt_u32 s{sL}, 108\ns_cselect_b32 s{sT[2]}, 0, {2*1728*4}")
    a(f"s_sub_u32 s{sT[3]}, s{sL}, 108\ns_cselect_b32 s{sT[3]}, s{sL}, s{sT[3]}\ns_lshl_b32 s{sT[3]}, s{sT[3]}, 6")
    a(f"s_add_u32 s{sT[2]}, s{sT[2]}, s{sT[3]}\ns_add_u32 s{sT[2]}, s{sT[2]}, {WS_UT}")
    a(f"v_and_b32 v40, 15, v{vLANE}\nv_mul_u32_u24 v41, {1728*4}, v40\nv_lshl_add_u32 v41, v42, 4, v41")
    a(f"s_lshl_b32 s{sT[3]}, s{sL}, 2\ns_add_u32 s{sT[3]}, s{sT[3]}, {F_UT}\nv_mov_b32 v40, s{sNON}")
    a("s_mov_b32 exec_lo, 0x00030003\ns_mov_b32 exec_hi, 0x00030003")
    a(f"buffer_store_dwordx4 v[44:47], v41, {WSR}, s{sT[2]} offen sc1")
    a("s_mov_b64 exec, -1\ns_waitcnt vmcnt(0)")
    g.one_lane_store(sT[3], 40)
    a.label(E)

def pi_rows(g, d):
    a = g.a
    a(f"v_lshrrev_b32 v{d}, 5, v{vLANE}\nv_bfe_u32 v{d+1}, v{vLANE}, 4, 1\nv_lshlrev_b32 v{d}, 4, v{d}\nv_lshl_add_u32 v{d}, v{d+1}, 2, v{d}")
    a(f"v_bfe_u32 v{d+1}, v{vLANE}, 2, 2\nv_add_u32 v{d}, v{d}, v{d+1}")

def w5_list(dst, addr, off, addr2=None, off2=None):
    if addr2 is None: addr2, off2 = addr, off + 8 * 160
    L = []
    for cb in range(5):
        L.append(f"ds_read_b64_tr_b16 {vr(dst+4*cb,2)}, v{addr} offset:{off + cb*32}")
        L.append(f"ds_read_b64_tr_b16 {vr(dst+4*cb+2,2)}, v{addr2} offset:{off2 + cb*32}")
    return L

def interleave(a, main, fill, lead=0):
    n, m = len(main), len(fill)
    k = 0
    for i, x in enumerate(main):
        a(x)
        want = (m * (i + 1)) // n if i + 1 < n else m
        while k < want:
            a(fill[k]); k += 1

def exchange(g, acc, scratch):
    a = g.a
    a(f"s_mul_i32 s{sT[0]}, s{sW4}, 5120\ns_add_u32 s{sT[0]}, s{sT[0]}, {scratch}\nv_add_u32 v40, s{sT[0]}, v{vL16}")
    a("s_barrier")
    L1, L2 = a.new("Lex"), a.new("Lex")
    a(f"s_cmp_lg_u32 s{sKH}, 0\ns_cbranch_scc1 {L1}")
    for cb in (3, 4): a(f"ds_write_b128 v40, {vr(acc+4*cb,4)} offset:{cb*1024}")
    a("s_waitcnt lgkmcnt(0)\ns_barrier")
    for cb in (0, 1, 2): a(f"ds_read_b128 {vr(44+4*cb,4)}, v40 offset:{cb*1024}")
    a("s_waitcnt lgkmcnt(0)")
    for cb in (0, 1, 2):
        for r in range(4): a(f"v_add_f32 v{acc+4*cb+r}, v{acc+4*cb+r}, v{44+4*cb+r}")
    a(f"s_branch {L2}")
    a.label(L1)
    for cb in (0, 1, 2): a(f"ds_write_b128 v40, {vr(acc+4*cb,4)} offset:{cb*1024}")
    a("s_waitcnt lgkmcnt(0)\ns_barrier")
    for cb in (3, 4): a(f"ds_read_b128 {vr(44+4*cb,4)}, v40 offset:{cb*1024}")
    a("s_waitcnt lgkmcnt(0)")
    for cb in (3, 4):
        for r in range(4): a(f"v_add_f32 v{acc+4*cb+r}, v{acc+4*cb+r}, v{44+4*cb+r}")
    a.label(L2)

def store_blocks(g, P, nblk, base_s, vaddr_pair, vaddr_single):
    a = g.a
    i = 0
    while i < nblk:
        p = P + 2 * i
        if i + 1 < nblk:
            a(f"v_permlane32_swap_b32 v{p}, v{p+2}\nv_permlane32_swap_b32 v{p+1}, v{p+3}")
            a(f"buffer_store_dwordx4 {vr(p,4)}, v{vL16}, {WSR}, s{base_s} offen offset:{i*512} sc1")
            i += 2
        else:
            a(f"v_mov_b32 v{p+2}, v{p}\nv_mov_b32 v{p+3}, v{p+1}")
            a(f"v_permlane32_swap_b32 v{p}, v{p+2}\nv_permlane32_swap_b32 v{p+1}, v{p+3}")
            a("s_mov_b32 exec_hi, 0")
            a(f"buffer_store_dwordx4 {vr(p,4)}, v{vL16}, {WSR}, s{base_s} offen offset:{i*512} sc1")
            a("s_mov_b64 exec, -1")
            i += 1

def p3(g):
    a = g.a
    a.c("---- P3: o @ wo, residual, y / stats ----")
    acc = 8
    vB = 128
    vA = [64, 84]
    a("s_barrier")
    ut_job(g)
    a(f"v_lshrrev_b32 v28, 4, v{vLANE}")
    a(f"s_mul_i32 s{sT[1]}, s{sKH}, {320*160}\ns_add_u32 s{sT[1]}, s{sT[1]}, {g.L2_WO}")
    a(f"v_and_b32 v44, 3, v{vLANE}\nv_lshl_add_u32 v44, v44, 3, s{sT[1]}\nv_bfe_u32 v46, v{vLANE}, 2, 2\ns_movk_i32 s{sT[19]}, 160")
    for m in range(3):
        d1, d2 = 33 + 2 * m, 34 + 2 * m
        a(f"v_add_u32 v40, {4*m}, v28")
        a(f"v_mul_u32_u24 v41, 86, v40\nv_lshrrev_b32 v41, 8, v41")
        a(f"v_mul_u32_u24 v42, 3, v41\nv_sub_u32 v42, v40, v42\nv_mul_u32_u24 v41, 20, v41")
        a(f"v_lshlrev_b32 v43, 2, v42\nv_cmp_eq_u32 vcc, 2, v42\nv_add3_u32 v41, v41, v46, 0")
        a(f"v_cndmask_b32 v43, v43, 16, vcc\nv_add_u32 v43, v41, v43\nv_add_u32 v45, 8, v43\nv_cndmask_b32 v45, v45, v43, vcc")
        a(f"v_mad_u32_u24 v{d1}, v43, s{sT[19]}, v44\nv_mad_u32_u24 v{d2}, v45, s{sT[19]}, v44")
    def wl(s):
        m = s % 3; o = (s // 3) * 80 * 160
        return w5_list(vA[s % 2], 33 + 2 * m, o, 34 + 2 * m, o)
    for x in wl(0): a(x)
    a(f"s_and_b32 s{sT[1]}, s{sL}, 0xf8\ns_lshl_b32 s{sT[1]}, s{sT[1]}, 5\ns_add_u32 s{sT[1]}, s{sT[1]}, {F_O}\nv_lshlrev_b32 v39, 2, v{vLANE}")
    g.poll(39, 40, n=1, err=5, soff=f"s{sT[1]}")
    g.stamp(14)
    a(f"s_mul_i32 s{sT[1]}, s{sRBG}, 24\ns_mul_i32 s{sT[2]}, s{sKH}, 12\ns_add_u32 s{sT[1]}, s{sT[1]}, s{sT[2]}\ns_lshl_b32 s{sT[1]}, s{sT[1]}, 10\ns_add_u32 s{sT[1]}, s{sT[1]}, {WS_O}")
    for s in range(12):
        a(f"buffer_load_dwordx4 {vr(vB+4*s,4)}, v{vL16}, {WSR}, s{sT[1]} offen offset:{(s%4)*1024} sc1")
        if s % 4 == 3 and s < 11: a(f"s_add_u32 s{sT[1]}, s{sT[1]}, 4096")
    for s in range(12):
        a(f"s_waitcnt vmcnt({11-s}) lgkmcnt(0)")
        mf = [f"v_mfma_f32_16x16x32_bf16 {vr(acc+4*cb,4)}, {vr(vA[s%2]+4*cb,4)}, {vr(vB+4*s,4)}, {'0' if s == 0 else vr(acc+4*cb,4)}" for cb in range(5)]
        interleave(a, mf, wl(s + 1) if s + 1 < 12 else [])
    exchange(g, acc, 20480)
    L1, L2 = a.new("Lp3e"), a.new("Lp3e")
    a(f"s_cmp_lg_u32 s{sKH}, 0\ns_cbranch_scc1 {L1}")
    p3_epi(g, (0, 1, 2), acc, vXr, vGA, vG2)
    a(f"s_branch {L2}")
    a.label(L1)
    p3_epi(g, (3, 4), acc, vXr, vGA, vG2)
    a.label(L2)
    g.wave_flag(F_Y)
    p4_w_prefetch(g)

def p3_epi(g, blocks, acc, vXr, vGA, vG2):
    a = g.a
    a(f"s_mul_i32 s{sT[1]}, s{sRBG}, 20480\ns_mul_i32 s{sT[2]}, s{sHG}, 2560\ns_add_u32 s{sT[1]}, s{sT[1]}, s{sT[2]}\ns_add_u32 s{sT[1]}, s{sT[1]}, {WS_Y + blocks[0]*512}")
    for j, cb in enumerate(blocks):
        X = vX1 + 4 * j
        a(f"v_lshlrev_b32 v{X}, 16, v{vXr+2*j}\nv_and_b32 v{X+1}, 0xffff0000, v{vXr+2*j}\nv_lshlrev_b32 v{X+2}, 16, v{vXr+2*j+1}\nv_and_b32 v{X+3}, 0xffff0000, v{vXr+2*j+1}")
        for r in range(4): a(f"v_fmac_f32 v{X+r}, v{vGA+4*j+r}, v{acc+4*cb+r}")
        for r in range(4): a(f"v_mul_f32 v{40+r}, v{X+r}, v{vG2+4*j+r}")
        a(f"v_cvt_pk_bf16_f32 v{44+2*j}, v40, v41\nv_cvt_pk_bf16_f32 v{45+2*j}, v42, v43")
    store_blocks(g, 44, len(blocks), sT[1], None, None)
    first = True
    for j in range(len(blocks)):
        for r in range(4):
            X = vX1 + 4 * j + r
            if first: a(f"v_mov_b32 v36, v{X}\nv_mul_f32 v37, v{X}, v{X}"); first = False
            else: a(f"v_add_f32 v36, v36, v{X}\nv_fmac_f32 v37, v{X}, v{X}")
    g.sum_groups(36, 38); g.sum_groups(37, 39)
    a(f"s_lshl_b32 s{sT[2]}, s{sL}, 3\ns_add_u32 s{sT[2]}, s{sT[2]}, s{sW}\ns_lshl_b32 s{sT[2]}, s{sT[2]}, 7\ns_add_u32 s{sT[2]}, s{sT[2]}, {WS_STAT}")
    a(f"v_lshlrev_b32 v38, 3, v{vLANE}\ns_mov_b32 exec_lo, 0xffff\ns_mov_b32 exec_hi, 0")
    a(f"buffer_store_dwordx2 v[36:37], v38, {WSR}, s{sT[2]} offen sc1")
    a("s_mov_b64 exec, -1")

L4_BUF = 45056
L4_STAT = 135168

def p4_w_dma_list(src_s, lds_s):
    return [f"s_mov_b32 m0, s{lds_s}",
            f"buffer_load_dwordx4 v{vL16}, {WSR}, s{src_s} offen sc1 lds",
            f"buffer_load_dwordx4 v{vL16}, {WSR}, s{src_s} offen offset:1024 sc1 lds",
            f"s_add_u32 m0, s{lds_s}, 14336",
            f"s_add_u32 s{sT[5]}, s{src_s}, 143360",
            f"buffer_load_dwordx4 v{vL16}, {WSR}, s{sT[5]} offen sc1 lds",
            f"buffer_load_dwordx4 v{vL16}, {WSR}, s{sT[5]} offen offset:1024 sc1 lds"]

def p4_y_dma_list(src_s, lds_s):
    return [f"s_mov_b32 m0, s{lds_s}",
            f"buffer_load_dwordx4 v{vL16}, {WSR}, s{src_s} offen sc1 lds",
            f"buffer_load_dwordx4 v{vL16}, {WSR}, s{src_s} offen offset:1024 sc1 lds"]

sWS4, sWL4, sYS4, sYL4 = sT[14], sT[15], sT[16], sT[17]

def p4_w_prefetch(g):
    a = g.a
    a.c("P4 weight prefetch (stages 0..2)")
    a(f"s_mul_i32 s{sFB0}, s{sM}, 7\ns_mul_i32 s{sT[2]}, s{sM}, 6\ns_add_u32 s{sT[2]}, s{sT[2]}, 12\ns_min_u32 s{sT[2]}, s{sT[2]}, 101")
    a(f"s_cmp_lt_u32 s{sM}, 12\ns_cselect_b32 s{sFB0}, s{sFB0}, s{sT[2]}")
    a(f"s_lshl_b32 s{sWL4}, s{sW}, 11\ns_mul_i32 s{sWS4}, s{sM}, {2*143360}\ns_add_u32 s{sWS4}, s{sWS4}, s{sWL4}\ns_add_u32 s{sWS4}, s{sWS4}, {WS_RW + RW_13}")
    a("s_barrier")
    E = a.new("Lw7")
    a(f"s_cmp_eq_u32 s{sW}, 7\ns_cbranch_scc1 {E}")
    for st in range(3):
        a(f"s_add_u32 s{sT[3]}, s{sWL4}, {st*L4_BUF}")
        for x in p4_w_dma_list(sWS4, sT[3]): a(x)
        a(f"s_add_u32 s{sWS4}, s{sWS4}, 14336")
    a.label(E)

def p4(g):
    a = g.a
    a.c("---- P4: gate/up GEMM ----")
    a(f"s_lshl_b32 s{sT[1]}, s{sG}, 9\ns_add_u32 s{sT[1]}, s{sT[1]}, {F_Y}\nv_lshlrev_b32 v35, 3, v{vLANE}")
    a(f"s_lshl_b32 s{sYS4}, s{sG}, 3\ns_add_u32 s{sYS4}, s{sYS4}, s{sW}\ns_mul_i32 s{sYS4}, s{sYS4}, 20480\ns_add_u32 s{sYS4}, s{sYS4}, {WS_Y}")
    a(f"s_add_u32 s{sYL4}, s{sWL4}, 28672")
    a(f"s_and_b32 s{sT[2]}, s{sW}, 1\ns_lshl_b32 s{sT[3]}, s{sG}, 1\ns_add_u32 s{sT[2]}, s{sT[2]}, s{sT[3]}\ns_lshl_b32 s{sT[2]}, s{sT[2]}, 3")
    a(f"s_lshr_b32 s{sT[3]}, s{sW}, 1\ns_lshl_b32 s{sT[4]}, s{sT[3]}, 1\ns_add_u32 s{sT[2]}, s{sT[2]}, s{sT[4]}\ns_lshl_b32 s{sT[2]}, s{sT[2]}, 10\ns_add_u32 s{sT[2]}, s{sT[2]}, {WS_STAT}")
    a(f"s_lshl_b32 s{sT[3]}, s{sT[3]}, 10\ns_and_b32 s{sT[4]}, s{sW}, 1\ns_lshl_b32 s{sT[4]}, s{sT[4]}, 9\ns_add_u32 s{sT[3]}, s{sT[3]}, s{sT[4]}\ns_add_u32 s{sT[3]}, s{sT[3]}, {L4_STAT}\nv_add_u32 v41, s{sT[3]}, v35")
    g.poll(35, 36, n=2, tagpos=(0, 1), err=6, soff=f"s{sT[1]}")
    g.stamp(15)
    for st in range(3):
        a(f"s_add_u32 s{sT[3]}, s{sYL4}, {st*L4_BUF}")
        for x in p4_y_dma_list(sYS4, sT[3]): a(x)
        a(f"s_add_u32 s{sYS4}, s{sYS4}, 2048")
    for j in range(4):
        a(f"buffer_load_dwordx2 {vr(44+2*j,2)}, v35, {WSR}, s{sT[2]} offen offset:{j*512} sc1")
    LB, LE = a.new("Lp4b"), a.new("Lp4e")
    a(f"s_cmp_ge_u32 s{sW}, 4\ns_cbranch_scc1 {LB}")
    p4_role(g, True)
    a(f"s_branch {LE}")
    a.label(LB)
    p4_role(g, False)
    a.label(LE)

def p4_role(g, isA):
    a = g.a
    nrb = 4 if isA else 2
    npair = 2 if isA else 3
    acc = 52
    F = [116, 148]
    vYa, vWa, vYc, vWc = 8, 9, 10, 11
    vUT = 12
    st, cur, nxt = sT[8], sT[9], sT[10]
    rb0, p0 = sT[11], sT[12]
    if isA: a(f"s_and_b32 s{rb0}, s{sW}, 1\ns_lshl_b32 s{rb0}, s{rb0}, 2\ns_and_b32 s{p0}, s{sW}, 2")
    else: a(f"s_lshl_b32 s{rb0}, s{sW4}, 1\ns_mov_b32 s{p0}, 4")
    a(f"s_lshl_b32 s{sT[1]}, s{rb0}, 11\ns_add_u32 s{sT[1]}, s{sT[1]}, 28672\nv_add_u32 v{vYa}, s{sT[1]}, v{vL16}")
    pi_rows(g, vWa)
    a(f"v_mul_u32_u24 v{vWa}, 224, v{vWa}\nv_and_b32 v12, 3, v{vLANE}\nv_lshl_add_u32 v{vWa}, v12, 3, v{vWa}")
    a(f"s_lshl_b32 s{sT[1]}, s{p0}, 5\nv_add_u32 v{vWa}, s{sT[1]}, v{vWa}")
    a("s_waitcnt vmcnt(0)")
    a("v_add_f32 v44, v44, v46\nv_add_f32 v45, v45, v47\nv_add_f32 v48, v48, v50\nv_add_f32 v49, v49, v51\nv_add_f32 v44, v44, v48\nv_add_f32 v45, v45, v49")
    a("ds_write_b64 v41, v[44:45]\ns_waitcnt lgkmcnt(0)\ns_barrier")
    def loads(fs, ks, yreg, wreg):
        L = []
        for r in range(nrb): L.append(f"ds_read_b128 {vr(F[fs]+4*r,4)}, v{yreg} offset:{r*2048 + ks*1024}")
        for p in range(npair):
            for u in range(2):
                d = F[fs] + 4 * nrb + (p * 2 + u) * 4
                o = u * 14336 + ks * 7168 + p * 32
                L.append(f"ds_read_b64_tr_b16 {vr(d,2)}, v{wreg} offset:{o}")
                L.append(f"ds_read_b64_tr_b16 {vr(d+2,2)}, v{wreg} offset:{o + 8*224}")
        return L
    def mfmas(fs, zero=False):
        L = []
        for p in range(npair):
            for u in range(2):
                for r in range(nrb):
                    c = acc + ((r * npair + p) * 2 + u) * 4
                    L.append(f"v_mfma_f32_16x16x32_bf16 {vr(c,4)}, {vr(F[fs]+4*nrb+(p*2+u)*4,4)}, {vr(F[fs]+4*r,4)}, {vr(c,4)}")
        return L
    for j in range(nrb * npair * 8): a(f"v_mov_b32 v{acc+j}, 0")
    a(f"s_mov_b32 s{st}, 0\ns_mov_b32 s{cur}, 0\ns_mov_b32 s{nxt}, {L4_BUF}")
    for x in loads(0, 0, vYa, vWa): a(x)
    a(f"v_mov_b32 v{vYc}, v{vYa}\nv_mov_b32 v{vWc}, v{vWa}")
    g.stamp(11); g.cstamp(29)
    L = a.new("Lp4")
    a.label(L)
    a("s_waitcnt lgkmcnt(0)")
    interleave(a, mfmas(0), loads(1, 1, vYc, vWc))
    a(f"v_add_u32 v{vYc}, s{nxt}, v{vYa}\nv_add_u32 v{vWc}, s{nxt}, v{vWa}")
    Z, Y = a.new("Lv"), a.new("Lv")
    a(f"s_cmp_ge_u32 s{st}, 8\ns_cbranch_scc1 {Z}")
    if isA: a(f"s_waitcnt vmcnt(6) lgkmcnt(0)\ns_branch {Y}")
    else:
        X = a.new("Lv")
        a(f"s_cmp_eq_u32 s{sW}, 7\ns_cbranch_scc1 {X}\ns_waitcnt vmcnt(6) lgkmcnt(0)\ns_branch {Y}")
        a.label(X); a(f"s_waitcnt vmcnt(2) lgkmcnt(0)\ns_branch {Y}")
    a.label(Z); a("s_waitcnt vmcnt(0) lgkmcnt(0)"); a.label(Y)
    a("s_barrier")
    N2, J2 = a.new("Lp4n"), a.new("Lp4j")
    a(f"s_cmp_ge_u32 s{st}, 7\ns_cbranch_scc1 {N2}")
    dm = [f"s_add_u32 s{sT[3]}, s{sYL4}, s{cur}"] + p4_y_dma_list(sYS4, sT[3]) + [f"s_add_u32 s{sYS4}, s{sYS4}, 2048"]
    wd = [f"s_add_u32 s{sT[3]}, s{sWL4}, s{cur}"] + p4_w_dma_list(sWS4, sT[3]) + [f"s_add_u32 s{sWS4}, s{sWS4}, 14336"]
    if isA:
        interleave(a, mfmas(1), loads(0, 0, vYc, vWc) + wd + dm)
    else:
        W7, J7 = a.new("Lw7"), a.new("Lw7")
        a(f"s_cmp_eq_u32 s{sW}, 7\ns_cbranch_scc1 {W7}")
        interleave(a, mfmas(1), loads(0, 0, vYc, vWc) + wd + dm)
        a(f"s_branch {J7}")
        a.label(W7)
        interleave(a, mfmas(1), loads(0, 0, vYc, vWc) + dm)
        a.label(J7)
    a(f"s_branch {J2}")
    a.label(N2)
    interleave(a, mfmas(1), loads(0, 0, vYc, vWc))
    a.label(J2)
    a(f"s_mov_b32 s{cur}, s{nxt}\ns_add_u32 s{nxt}, s{nxt}, {L4_BUF}\ns_cmp_ge_u32 s{nxt}, {3*L4_BUF}\ns_cselect_b32 s{nxt}, 0, s{nxt}")
    a(f"s_add_u32 s{st}, s{st}, 1\ns_cmp_lt_u32 s{st}, 10\ns_cbranch_scc1 {L}")
    g.stamp(12); g.cstamp(30)
    vUT = 148
    a(f"v_mov_b32 v12, s{sFB0}\nv_add_u32 v12, v12, v{vLANE}\nv_cmp_lt_u32 vcc, 6, v{vLANE}\nv_add_u32 v13, 101, v12\nv_cndmask_b32 v12, v12, v13, vcc\nv_lshlrev_b32 v12, 2, v12")
    a(f"s_mov_b32 s{sT[1]}, {F_UT}\ns_mov_b32 exec_lo, 0x3fff\ns_mov_b32 exec_hi, 0")
    g.poll(12, 13, n=1, err=7, soff=f"s{sT[1]}")
    a("s_mov_b64 exec, -1")
    a(f"s_add_u32 s{sT[2]}, s{sFB0}, s{p0}\ns_lshl_b32 s{sT[1]}, s{sT[2]}, 6\ns_add_u32 s{sT[1]}, s{sT[1]}, {WS_UT}")
    a(f"v_lshrrev_b32 v12, 4, v{vLANE}\nv_lshlrev_b32 v12, 4, v12")
    for vv in range(4):
        for p in range(npair):
            a(f"buffer_load_dwordx4 {vr(vUT+p*16+vv*4,4)}, v12, {WSR}, s{sT[1]} offen offset:{p*64} sc1")
        if vv < 3: a(f"s_add_u32 s{sT[1]}, s{sT[1]}, {1728*4}")
    a(f"v_and_b32 v14, 15, v{vLANE}\ns_lshl_b32 s{sT[1]}, s{rb0}, 7\ns_add_u32 s{sT[1]}, s{sT[1]}, {L4_STAT}\nv_lshl_add_u32 v14, v14, 3, s{sT[1]}")
    for r in range(nrb):
        for q in range(4): a(f"ds_read_b64 {vr(116+8*r+2*q,2)}, v14 offset:{q*1024 + r*128}")
    a(f"s_mov_b32 s{sT[5]}, 0x3acccccd")
    a("s_waitcnt lgkmcnt(0)")
    for r in range(nrb):
        b = 116 + 8 * r
        a(f"v_add_f32 v{b}, v{b}, v{b+2}\nv_add_f32 v{b+1}, v{b+1}, v{b+3}\nv_add_f32 v{b+4}, v{b+4}, v{b+6}\nv_add_f32 v{b+5}, v{b+5}, v{b+7}\nv_add_f32 v{b}, v{b}, v{b+4}\nv_add_f32 v{b+1}, v{b+1}, v{b+5}")
        a(f"v_mul_f32 v{b}, s{sT[5]}, v{b}\nv_mul_f32 v{b+1}, s{sT[5]}, v{b+1}")
        a(f"v_fma_f32 v{b+1}, -v{b}, v{b}, v{b+1}\nv_max_f32 v{b+1}, 0, v{b+1}\nv_add_f32 v{b+1}, 0x3727c5ac, v{b+1}")
    for r in range(nrb): a(f"v_rsq_f32 v{16+2*r}, v{117+8*r}")
    for r in range(nrb): a(f"v_mul_f32 v{17+2*r}, v{16+2*r}, v{116+8*r}")
    a(f"s_lshl_b32 s{sT[1]}, s{sG}, 3\ns_add_u32 s{sT[1]}, s{sT[1]}, s{rb0}\ns_mul_i32 s{sT[1]}, s{sT[1]}, {54*1024}\ns_lshl_b32 s{sT[2]}, s{sT[2]}, 9\ns_add_u32 s{sT[1]}, s{sT[1]}, s{sT[2]}\ns_add_u32 s{sT[1]}, s{sT[1]}, {WS_ACT}")
    a(f"s_mov_b32 s{sT[5]}, 0xbfb8aa3b")
    a("s_waitcnt vmcnt(0)")
    g.stamp(13)
    for r in range(nrb):
        R, RM = 16 + 2 * r, 17 + 2 * r
        for p in range(npair):
            U1, T1, U3, T3 = [vUT + p * 16 + vv * 4 for vv in range(4)]
            cg = acc + ((r * npair + p) * 2) * 4; cu = cg + 4
            for e in range(4):
                a(f"v_fma_f32 v{24+e}, -v{RM}, v{U1+e}, v{T1+e}\nv_fma_f32 v{28+e}, -v{RM}, v{U3+e}, v{T3+e}")
            for e in range(4):
                a(f"v_fmac_f32 v{24+e}, v{cg+e}, v{R}\nv_fmac_f32 v{28+e}, v{cu+e}, v{R}")
            for e in range(4): a(f"v_mul_f32 v{32+e}, s{sT[5]}, v{24+e}")
            for e in range(4): a(f"v_exp_f32 v{32+e}, v{32+e}")
            for e in range(4): a(f"v_mul_f32 v{24+e}, v{24+e}, v{28+e}")
            for e in range(4): a(f"v_add_f32 v{32+e}, 1.0, v{32+e}")
            for e in range(4): a(f"v_rcp_f32 v{32+e}, v{32+e}")
            a("s_nop 0")
            for e in range(4): a(f"v_mul_f32 v{24+e}, v{24+e}, v{32+e}")
            o = 36 + 8 * (r % 2) + 2 * p
            a(f"v_cvt_pk_bf16_f32 v{o}, v24, v25\nv_cvt_pk_bf16_f32 v{o+1}, v26, v27")
        store_blocks(g, 36 + 8 * (r % 2), npair, sT[1], None, None)
        if r + 1 < nrb: a(f"s_add_u32 s{sT[1]}, s{sT[1]}, {54*1024}")
    g.wave_flag(F_ACT)
    a("s_barrier")
    p5_w_prefetch(g)

L5_BUF = 40960
L5_SCR = 142336
sW2S, sW2L = sT[14], sT[15]

def p5_w_dma_list(st):
    return [f"s_add_u32 s{sT[3]}, s{sW2S}, {st*4*5120}", f"s_add_u32 m0, s{sW2L}, {(st%3)*L5_BUF}"] + \
           [f"buffer_load_dwordx4 v{vL16}, {WSR}, s{sT[3]} offen offset:{k*1024} sc1 lds" for k in range(4)] + \
           [f"s_add_u32 s{sT[3]}, s{sT[3]}, 4096", f"s_add_u32 m0, s{sW2L}, {(st%3)*L5_BUF + 4096}", f"buffer_load_dwordx4 v{vL16}, {WSR}, s{sT[3]} offen sc1 lds"]

def p5_w_prefetch(g):
    a = g.a
    a.c("P5 weight prefetch")
    a(f"s_mul_i32 s{sW2S}, s{sKH}, 27\ns_add_u32 s{sW2S}, s{sW2S}, s{sW4}\ns_mul_i32 s{sW2S}, s{sW2S}, 5120\ns_mul_i32 s{sT[4]}, s{sHG}, {RW_W2S}\ns_add_u32 s{sW2S}, s{sW2S}, s{sT[4]}\ns_add_u32 s{sW2S}, s{sW2S}, {WS_RW + RW_W2}")
    a(f"s_mul_i32 s{sW2L}, s{sW}, 5120")
    for st in range(3):
        for x in p5_w_dma_list(st): a(x)

def p5(g):
    a = g.a
    a.c("---- P5: act @ w2, residual ----")
    acc = 8
    vA = [64, 84]
    vB = 128
    a(f"s_lshl_b32 s{sT[1]}, s{sG}, 9\ns_add_u32 s{sT[1]}, s{sT[1]}, {F_ACT}\nv_lshlrev_b32 v35, 3, v{vLANE}")
    ab = sT[10]
    a(f"s_mul_i32 s{ab}, s{sRBG}, 54\ns_mul_i32 s{sT[2]}, s{sKH}, 27\ns_add_u32 s{ab}, s{ab}, s{sT[2]}\ns_lshl_b32 s{ab}, s{ab}, 10\ns_add_u32 s{ab}, s{ab}, {WS_ACT}")
    a(f"s_mul_i32 s{sT[2]}, s{sKH}, {4*5120}")
    pi_rows(g, 33)
    a(f"v_mul_u32_u24 v33, 160, v33\nv_and_b32 v34, 3, v{vLANE}\nv_lshl_add_u32 v33, v34, 3, v33\nv_add_u32 v33, s{sT[2]}, v33")
    g.poll(35, 36, n=2, tagpos=(0, 1), err=8, soff=f"s{sT[1]}")
    g.stamp(26)
    def lda(st):
        n = 4 if st < 6 else 3
        L = [f"s_add_u32 s{sT[1]}, s{ab}, {st*4096}"]
        for j in range(n):
            L.append(f"buffer_load_dwordx4 {vr(vB+4*((4*st+j)%12),4)}, v{vL16}, {WSR}, s{sT[1]} offen offset:{j*1024} sc1")
        return L, n
    pend = []
    for st in range(3):
        L, n = lda(st)
        for x in L: a(x)
        pend.append(("A", st, n))
    for st in range(7):
        idx = max(i for i, (k, s, n) in enumerate(pend) if s == st)
        after = sum(n for (k, s, n) in pend[idx + 1:])
        pend = pend[idx + 1:]
        a(f"s_waitcnt vmcnt({after})\ns_barrier")
        nsteps = 4 if st < 6 else 3
        a(f"v_add_u32 v34, {(st%3)*L5_BUF}, v33")
        for x in w5_list(vA[0], 34, 0): a(x)
        side = []
        if st >= 1 and st + 2 < 7:
            side += p5_w_dma_list(st + 2); pend.append(("D", st + 2, 5))
        for j in range(nsteps):
            a("s_waitcnt lgkmcnt(0)")
            ks = 4 * st + j
            mf = [f"v_mfma_f32_16x16x32_bf16 {vr(acc+4*cb,4)}, {vr(vA[j%2]+4*cb,4)}, {vr(vB+4*(ks%12),4)}, {'0' if ks == 0 else vr(acc+4*cb,4)}" for cb in range(5)]
            fill = w5_list(vA[(j+1) % 2], 34, (j + 1) * 5120) if j + 1 < nsteps else []
            if j == 0: fill = fill + side
            if j == nsteps - 1 and st + 3 < 7:
                L, n = lda(st + 3); fill = fill + L; pend.append(("A", st + 3, n))
            interleave(a, mf, fill)
    exchange(g, acc, L5_SCR)
    L1, L2 = a.new("Lp5e"), a.new("Lp5e")
    a(f"s_cmp_lg_u32 s{sKH}, 0\ns_cbranch_scc1 {L1}")
    for blocks, lab in (((0, 1, 2), None), ((3, 4), L1)):
        if lab: a.label(lab)
        for j, cb in enumerate(blocks):
            for r in range(4): a(f"v_fma_f32 v{40+r}, v{vGB+4*j+r}, v{acc+4*cb+r}, v{vX1+4*j+r}")
            a(f"v_cvt_pk_bf16_f32 v{44+2*j}, v40, v41\nv_cvt_pk_bf16_f32 v{45+2*j}, v42, v43")
            a(f"buffer_store_dwordx2 {vr(44+2*j,2)}, v253, s[{S_OUT}:{S_OUT+3}], s30 offen offset:{j*32}")
        if not lab: a(f"s_branch {L2}")
    a.label(L2)

def rest(g):
    p3(g); g.stamp(8)
    if g.stop >= 4:
        p4(g); g.stamp(9)
    if g.stop >= 5:
        p5(g); g.stamp(10)
```

```python
import sys, os
sys.path.insert(0, os.path.dirname(os.path.abspath(__file__)))
from asmlib import Asm, fix_hazards

NAME = "adaLN_cond__grouped_kv_mqa__glu_gated_swiglu__prompt_kernel"

WS_NONCE = 0x0
F_KV   = 0x1000
F_MODR = 0x2000
F_O    = 0x3000
F_Y    = 0x5000
F_ACT  = 0x7000
F_UT   = 0x9000
F_RP   = 0x18000
WS_MODG = 0xA000
WS_MODR = 0xC000
WS_MODB = 0xE800
WS_UT   = 0x10000
WS_KV   = 0x20000
WS_STAT = 0x60000
WS_O    = 0x100000
WS_Y    = 0x400000
WS_ACT  = 0x700000
WS_TS   = 0xE00000
WS_RW   = 0x1000000
RW_WO, RW_W2, RW_13 = 0, 819200, 819200 + 8 * 278528
RW_W2S = 278528
WS_USED = 0x1800000
KV_TILE = 3328

S_X, S_WS, S_A, S_B, S_C, S_OUT = 4, 8, 12, 16, 20, 24
P_X, P_WQ, P_WK, P_WV, P_WO, P_BX, P_W1, P_W3, P_W2, P_CC, P_WMOD, P_OUT, P_DBG, P_WS = [32 + 2 * i for i in range(14)]
sL, sG, sM, sI, sHG, sW, sNON, sXC, sJ = 60, 61, 62, 63, 64, 65, 66, 67, 68
sW4 = 69
sT = list(range(70, 94))
sKH = 97
sFB0, sWSRC, sRBG = 98, 99, 28
sWK = 29
SPIN_LIMIT = 400000

vLANE = 1
vL16 = 2
vO160 = [3, 4, 5, 6, 7]

def srd(a, d, p, size):
    a(f"s_mov_b32 s{d}, s{p}\ns_mov_b32 s{d+1}, s{p+1}\ns_mov_b32 s{d+2}, {size}\ns_mov_b32 s{d+3}, 0x20000")
def vr(b, n=1): return f"v{b}" if n == 1 else f"v[{b}:{b+n-1}]"
WSR = f"s[{S_WS}:{S_WS+3}]"

class Gen:
    def __init__(self, stop=99, ts=False, force_fallback=False):
        self.a = Asm(); self.stop = stop; self.ts = ts; self.force_fallback = force_fallback

    def stamp_dyn(self, mode, sreg, add=0):
        if not self.ts or os.environ.get("TSMODE") != mode: return
        a = self.a
        a(f"s_memrealtime s[94:95]\ns_waitcnt lgkmcnt(0)")
        a(f"s_lshl_b32 s96, s{sL}, 3\ns_add_u32 s96, s96, s{sW}\ns_lshl_b32 s96, s96, 5\ns_add_u32 s96, s96, s{sreg}\ns_add_u32 s96, s96, {add}\ns_lshl_b32 s96, s96, 2\ns_add_u32 s96, s96, {WS_TS}")
        a(f"v_mov_b32 v254, s94\nv_mov_b32 v255, s96")
        a(f"s_mov_b64 s[100:101], exec\ns_mov_b64 exec, 1")
        a(f"buffer_store_dword v254, v255, {WSR}, 0 offen")
        a(f"s_mov_b64 exec, s[100:101]")

    def cstamp(self, idx):
        if not self.ts or os.environ.get("TSMODE"): return
        a = self.a
        a(f"s_memtime s[94:95]\ns_waitcnt lgkmcnt(0)")
        a(f"s_lshl_b32 s96, s{sL}, 3\ns_add_u32 s96, s96, s{sW}\ns_lshl_b32 s96, s96, 7\ns_add_u32 s96, s96, {WS_TS + idx*4}")
        a(f"v_mov_b32 v254, s94\nv_mov_b32 v255, s96")
        a(f"s_mov_b64 s[100:101], exec\ns_mov_b64 exec, 1")
        a(f"buffer_store_dword v254, v255, {WSR}, 0 offen")
        a(f"s_mov_b64 exec, s[100:101]")

    def stamp(self, idx):
        if not self.ts or os.environ.get("TSMODE"): return
        a = self.a
        a(f"s_memrealtime s[94:95]\ns_waitcnt lgkmcnt(0)")
        a(f"s_lshl_b32 s96, s{sL}, 3\ns_add_u32 s96, s96, s{sW}\ns_lshl_b32 s96, s96, 7\ns_add_u32 s96, s96, {WS_TS + idx*4}")
        a(f"v_mov_b32 v254, s94\nv_mov_b32 v255, s96")
        a(f"s_mov_b64 s[100:101], exec\ns_mov_b64 exec, 1")
        a(f"buffer_store_dword v254, v255, {WSR}, 0 offen")
        a(f"s_mov_b64 exec, s[100:101]")

    def bail(self, err):
        a = self.a
        a(f"v_mov_b32 v254, {err}\nv_mov_b32 v255, 0")
        srd(a, S_C, P_DBG, 256)
        a(f"buffer_store_dword v254, v255, s[{S_C}:{S_C+3}], 0 offen")

    def poll(self, vaddr, vdat, n=1, tagpos=(0,), err=1, soff="0", first_issued=False):
        a = self.a
        L, D = a.new("Lpoll"), a.new("Lpdone")
        cnt = sT[20]
        op = {1: "buffer_load_dword", 2: "buffer_load_dwordx2", 4: "buffer_load_dwordx4"}[n]
        a(f"s_mov_b32 s{cnt}, 0")
        a.label(L)
        a(f"{op} {vr(vdat, n)}, v{vaddr}, {WSR}, {soff} offen sc1")
        a("s_waitcnt vmcnt(0)")
        a(f"v_cmp_ne_u32 vcc, s{sNON}, v{vdat + tagpos[0]}")
        for t in tagpos[1:]:
            a(f"v_cmp_ne_u32 s[{sT[22]}:{sT[23]}], s{sNON}, v{vdat + t}")
            a(f"s_or_b64 vcc, vcc, s[{sT[22]}:{sT[23]}]")
        a(f"s_cbranch_vccz {D}")
        a(f"s_add_u32 s{cnt}, s{cnt}, 1\ns_cmp_lt_u32 s{cnt}, {SPIN_LIMIT}\ns_cbranch_scc1 {L}")
        self.bail(err)
        a.label(D)

    def one_lane_store(self, soff_s, vval):
        a = self.a
        a(f"s_mov_b64 exec, 1\nbuffer_store_dword v{vval}, v{vLANE}, {WSR}, s{soff_s} offen sc1\ns_mov_b64 exec, -1")

    def wave_flag(self, base):
        a = self.a
        a(f"s_lshl_b32 s{sT[0]}, s{sL}, 3\ns_add_u32 s{sT[0]}, s{sT[0]}, s{sW}\ns_lshl_b32 s{sT[0]}, s{sT[0]}, 2\ns_add_u32 s{sT[0]}, s{sT[0]}, {base}")
        a(f"v_mov_b32 v255, s{sNON}")
        a("s_waitcnt vmcnt(0)")
        self.one_lane_store(sT[0], 255)

    def bf16_round(self, dst, src):
        self.a(f"v_cvt_pk_bf16_f32 v{dst}, v{src}, v{src}\nv_and_b32 v{dst}, 0xffff0000, v{dst}")

    def dma_run(self, srd_s, voff, soff, lds, n, extra=""):
        a = self.a
        a(f"s_mov_b32 m0, {lds}")
        for k in range(n):
            a(f"buffer_load_dwordx4 v{voff}, s[{srd_s}:{srd_s+3}], s{soff} offen offset:{k*1024}{extra} lds")

    L1_H = 0; L1_WQ2 = 81920; L1_WKV = 128000; L1_GS = 153600; L1_NS = 158720; L1_SCR = 160000
    NQ1 = 22
    vX = 8; vXN = 48; vWQ = 128
    vWA, vC1 = 216, 228

    def prologue(self):
        a = self.a
        a(f"s_cmp_ge_u32 s2, 256\ns_cbranch_scc1 L_END")
        a("s_load_dwordx16 s[32:47], s[0:1], 0\ns_load_dwordx8 s[48:55], s[0:1], 64\ns_load_dwordx4 s[56:59], s[0:1], 96")
        a(f"v_and_b32 v{vLANE}, 63, v0\nv_lshrrev_b32 v8, 6, v0")
        a(f"s_and_b32 s{sXC}, s2, 7\ns_lshr_b32 s{sJ}, s2, 3")
        a(f"v_readfirstlane_b32 s{sW}, v8")
        a(f"s_lshl_b32 s{sL}, s{sXC}, 5\ns_add_u32 s{sL}, s{sL}, s{sJ}")
        a(f"v_lshlrev_b32 v{vL16}, 4, v{vLANE}")
        a(f"s_lshr_b32 s{sG}, s{sL}, 4\ns_and_b32 s{sM}, s{sL}, 15\ns_lshr_b32 s{sI}, s{sL}, 3\ns_and_b32 s{sHG}, s{sL}, 7")
        a(f"s_and_b32 s{sW4}, s{sW}, 3\ns_lshr_b32 s{sKH}, s{sW}, 2\ns_lshl_b32 s{sWK}, s{sW}, 10")
        a(f"s_lshl_b32 s{sRBG}, s{sI}, 2\ns_add_u32 s{sRBG}, s{sRBG}, s{sW4}")
        a(f"v_and_b32 v243, 31, v{vLANE}\ns_lshl_b32 s{sT[0]}, s{sW}, 5\nv_add_u32 v243, s{sT[0]}, v243")
        a(f"v_lshlrev_b32 v244, 1, v243")
        a(f"s_movk_i32 s{sT[0]}, 7680\nv_mul_u32_u24 v243, s{sT[0]}, v243\nv_lshrrev_b32 v245, 5, v{vLANE}\nv_lshl_add_u32 v243, v245, 4, v243")
        a(f"s_lshl_b32 s{sT[5]}, s{sL}, 5\ns_cmp_lt_u32 s{sL}, 240\ns_cselect_b32 s{sT[5]}, s{sT[5]}, 0x7000000")
        a(f"v_mov_b32 v246, 0")
        a("s_waitcnt lgkmcnt(0)")
        srd(a, S_B, P_WMOD, 640 * 7680)
        for it in range(3):
            a(f"buffer_load_dwordx4 {vr(self.vWA+4*it,4)}, v243, s[{S_B}:{S_B+3}], s{sT[5]} offen")
            if it < 2: a(f"v_add_u32 v243, {256*7680}, v243")
        srd(a, S_A, P_CC, 1280)
        for it in range(3):
            a(f"buffer_load_ushort v{self.vC1+it}, v244, s[{S_A}:{S_A+3}], 0 offen offset:{it*512}")
        srd(a, S_WS, P_WS, WS_USED)
        a(f"buffer_load_dword v242, v246, {WSR}, 0 offen sc1")
        srd(a, S_X, P_X, 2048 * 1280)
        a(f"v_lshrrev_b32 v245, 4, v{vLANE}\nv_and_b32 v246, 15, v{vLANE}")
        a(f"s_lshl_b32 s{sT[8]}, s{sI}, 3\ns_add_u32 s{sT[8]}, s{sT[8]}, s{sW}\ns_mul_i32 s{sT[8]}, s{sT[8]}, {8*1280}")
        a(f"v_mul_u32_u24 v245, 1280, v245\nv_lshl_add_u32 v245, v246, 4, v245\nv_add_u32 v246, {4*1280}, v245")
        for it in range(2):
            for c in range(5):
                a(f"buffer_load_dwordx4 {vr(self.vX + (it*5+c)*4, 4)}, v{245+it}, s[{S_X}:{S_X+3}], s{sT[8]} offen offset:{c*256}")
        a(f"s_cmp_lt_u32 s{sHG}, 4\ns_cselect_b32 s{S_C}, s{P_WK}, s{P_WV}\ns_cselect_b32 s{S_C+1}, s{P_WK+1}, s{P_WV+1}")
        a(f"s_mov_b32 s{S_C+2}, 25600\ns_mov_b32 s{S_C+3}, 0x20000")
        a(f"s_lshl_b32 s{sT[3]}, s{sW}, 12\ns_add_u32 s{sT[4]}, s{sT[3]}, {self.L1_WKV}")
        E1, E2 = a.new("Lkv"), a.new("Lkv")
        a(f"s_cmp_ge_u32 s{sW}, 6\ns_cbranch_scc1 {E1}")
        self.dma_run(S_C, vL16, sT[3], f"s{sT[4]}", 4)
        a(f"s_branch {E2}")
        a.label(E1)
        a(f"s_cmp_eq_u32 s{sW}, 7\ns_cbranch_scc1 {E2}")
        self.dma_run(S_C, vL16, sT[3], f"s{sT[4]}", 1)
        a.label(E2)
        a(f"s_mov_b32 s{sT[0]}, 0x1999999a")
        for ph in range(5):
            r = vO160[ph]
            a(f"v_add_u32 v248, {64*ph}, v{vLANE}\nv_mul_hi_u32 v249, v248, s{sT[0]}")
            a(f"v_mul_u32_u24 v250, {1280-160}, v249\nv_lshl_add_u32 v250, v248, 4, v250")
            a(f"v_add_u32 v{r}, {4096 - (1024*ph if ph < 4 else 0)}, v250")
        a(f"s_sub_u32 s{S_A}, s{P_WQ}, 4096\ns_subb_u32 s{S_A+1}, s{P_WQ+1}, 0\ns_mov_b32 s{S_A+2}, {640*1280+4096}\ns_mov_b32 s{S_A+3}, 0x20000")
        a(f"s_mul_i32 s{sT[3]}, s{sW}, 40960\ns_mul_i32 s{sT[4]}, s{sHG}, 160\ns_add_u32 s{sT[3]}, s{sT[3]}, s{sT[4]}")
        a(f"s_mul_i32 s{sT[4]}, s{sW}, 5120")
        for j in range(3):
            E = None
            if j == 1:
                a(f"s_add_u32 s{sT[3]}, s{sT[3]}, {8*40960}\ns_add_u32 s{sT[4]}, s{sT[4]}, {8*5120}")
                a(f"s_cmp_ge_u32 s{sW}, 3\ns_cselect_b32 s{sT[5]}, {self.L1_WQ2 - 11*5120}, 0\ns_add_u32 s{sT[4]}, s{sT[4]}, s{sT[5]}")
            if j == 2:
                E = a.new("Lq")
                a(f"s_cmp_ge_u32 s{sW}, 4\ns_cbranch_scc1 {E}")
                a(f"s_add_u32 s{sT[3]}, s{sT[3]}, {8*40960}\ns_mul_i32 s{sT[4]}, s{sW}, 5120\ns_add_u32 s{sT[4]}, s{sT[4]}, {self.L1_WQ2 + 5*5120}")
            a(f"s_mov_b32 m0, s{sT[4]}")
            for ph in range(4):
                a(f"buffer_load_dwordx4 v{vO160[ph]}, s[{S_A}:{S_A+3}], s{sT[3]} offen offset:{ph*1024} lds")
            a(f"s_add_u32 m0, s{sT[4]}, 4096")
            a(f"buffer_load_dwordx4 v{vO160[4]}, s[{S_A}:{S_A+3}], s{sT[3]} offen lds")
            if E: a.label(E)
        self.dma_min = 10
        E = a.new("Lcp"); GP = a.new("Lpc")
        a(f"s_cmp_lt_u32 s{sW}, 6\ns_cbranch_scc1 {E}")
        a(f"s_getpc_b64 s[{sT[2]}:{sT[3]}]")
        a.label(GP)
        a(f"s_lshl_b32 s{sT[4]}, s{sJ}, 1\ns_add_u32 s{sT[4]}, s{sT[4]}, s{sW}\ns_sub_u32 s{sT[4]}, s{sT[4]}, 6\ns_lshl_b32 s{sT[4]}, s{sT[4]}, 10")
        a(f"v_add_u32 v208, s{sT[4]}, v{vL16}\nv_min_u32 v208, L_END - {GP} - 16, v208")
        a(f"global_load_dwordx4 v[208:211], v208, s[{sT[2]}:{sT[3]}]")
        a.label(E)
        srd(a, S_OUT, P_OUT, 2048 * 1280)

    def p0(self):
        a = self.a
        a.c("---- P0: modulation GEMV (16 columns per workgroup) ----")
        a(f"s_waitcnt vmcnt({10 + self.dma_min})")
        a(f"v_readfirstlane_b32 s{sNON}, v242")
        acc = 244
        for it in range(3):
            c = self.vC1 + it
            a(f"v_lshlrev_b32 v{c}, 16, v{c}\nv_mul_f32 v{232+it}, 0xbfb8aa3b, v{c}")
        for it in range(3): a(f"v_exp_f32 v{232+it}, v{232+it}")
        a(f"s_add_u32 s{sNON}, s{sNON}, 1\ns_cmp_eq_u32 s{sNON}, 0\ns_cselect_b32 s{sNON}, 1, s{sNON}")
        for it in range(3): a(f"v_add_f32 v{232+it}, 1.0, v{232+it}")
        for it in range(3): a(f"v_rcp_f32 v{232+it}, v{232+it}")
        for it in range(3): a(f"v_mul_f32 v{232+it}, v{self.vC1+it}, v{232+it}")
        for it in range(3):
            a(f"v_cvt_pk_bf16_f32 v{235+it}, v{232+it}, 0\nv_cvt_pk_bf16_f32 v{238+it}, 0, v{232+it}")
        for it in range(3):
            w = self.vWA + 4 * it
            for j in range(4):
                c0 = "0" if it == 0 else f"v{acc+2*j}"; c1 = "0" if it == 0 else f"v{acc+2*j+1}"
                a(f"v_dot2_f32_bf16 v{acc+2*j}, v{w+j}, v{235+it}, {c0}\nv_dot2_f32_bf16 v{acc+2*j+1}, v{w+j}, v{238+it}, {c1}")
        for sh in (1, 2, 4, 8):
            for j in range(8):
                a(f"v_add_f32_dpp v{acc+j}, v{acc+j}, v{acc+j} row_shr:{sh} row_mask:0xf bank_mask:0xf bound_ctrl:0")
        for j in range(8):
            a(f"v_add_f32_dpp v{acc+j}, v{acc+j}, v{acc+j} row_bcast:15 row_mask:0xa bank_mask:0xf")
        a(f"v_lshrrev_b32 v252, 5, v{vLANE}\ns_lshl_b32 s{sT[2]}, s{sW}, 2\ns_add_u32 s{sT[2]}, s{sT[2]}, {self.L1_SCR}\nv_lshl_add_u32 v252, v252, 8, s{sT[2]}")
        a("s_mov_b32 exec_lo, 0x80000000\ns_mov_b32 exec_hi, 0x80000000")
        for j in range(8):
            a(f"ds_write_b32 v252, v{acc+j} offset:{j*32}")
        a("s_mov_b64 exec, -1")
        a("s_waitcnt lgkmcnt(0)\ns_barrier")
        E = a.new("Lp0e")
        a(f"s_cmp_lg_u32 s{sW}, 0\ns_cbranch_scc1 {E}\ns_cmp_ge_u32 s{sL}, 240\ns_cbranch_scc1 {E}")
        a(f"v_and_b32 v246, 15, v{vLANE}\nv_lshlrev_b32 v246, 5, v246\nv_add_u32 v246, {self.L1_SCR}, v246")
        a("ds_read_b128 v[248:251], v246\nds_read_b128 v[244:247], v246 offset:16")
        a(f"s_mov_b32 s{sT[2]}, 0")
        a(f"s_cmp_ge_u32 s{sL}, 40\ns_cselect_b32 s{sT[2]}, 1.0, s{sT[2]}\ns_cmp_ge_u32 s{sL}, 80\ns_cselect_b32 s{sT[2]}, 0, s{sT[2]}")
        a(f"s_cmp_ge_u32 s{sL}, 160\ns_cselect_b32 s{sT[2]}, 1.0, s{sT[2]}\ns_cmp_ge_u32 s{sL}, 200\ns_cselect_b32 s{sT[2]}, 0, s{sT[2]}")
        a("s_waitcnt lgkmcnt(0)")
        a("v_add_f32 v244, v244, v248\nv_add_f32 v245, v245, v249\nv_add_f32 v246, v246, v250\nv_add_f32 v247, v247, v251")
        a("v_add_f32 v244, v244, v245\nv_add_f32 v246, v246, v247\nv_add_f32 v244, v244, v246")
        self.bf16_round(244, 244)
        a(f"v_add_f32 v244, s{sT[2]}, v244")
        self.bf16_round(244, 244)
        a(f"v_mov_b32_dpp v245, v244 quad_perm:[1,0,3,2] row_mask:0xf bank_mask:0xf")
        a(f"v_lshrrev_b32 v247, 16, v244\nv_or_b32 v248, v247, v245")
        R = a.new("Lp0r")
        a(f"v_lshlrev_b32 v246, 2, v{vLANE}\nv_mov_b32 v249, s{sNON}")
        a(f"s_cmp_ge_u32 s{sL}, 80\ns_cbranch_scc1 {R}")
        a(f"s_lshl_b32 s{sT[1]}, s{sL}, 6\ns_add_u32 s{sT[1]}, s{sT[1]}, {WS_MODG}")
        a("s_mov_b32 exec_lo, 0x5555\ns_mov_b32 exec_hi, 0")
        a(f"buffer_store_dwordx2 v[248:249], v246, {WSR}, s{sT[1]} offen sc1")
        a(f"s_mov_b64 exec, -1\ns_branch {E}")
        a.label(R)
        a(f"s_sub_u32 s{sT[1]}, s{sL}, 80\ns_lshl_b32 s{sT[2]}, s{sT[1]}, 6\ns_add_u32 s{sT[2]}, s{sT[2]}, {WS_MODR}")
        a("s_mov_b32 exec_lo, 0xffff\ns_mov_b32 exec_hi, 0")
        a(f"buffer_store_dword v244, v246, {WSR}, s{sT[2]} offen sc1")
        EB = a.new("Lmodb")
        a(f"s_cmp_lt_u32 s{sL}, 120\ns_cbranch_scc1 {EB}\ns_cmp_ge_u32 s{sL}, 200\ns_cbranch_scc1 {EB}")
        a(f"s_sub_u32 s{sT[2]}, s{sL}, 120\ns_lshl_b32 s{sT[2]}, s{sT[2]}, 5\ns_add_u32 s{sT[2]}, s{sT[2]}, {WS_MODB}")
        a(f"v_lshlrev_b32 v246, 1, v{vLANE}\ns_mov_b32 exec_lo, 0x5555")
        a(f"buffer_store_dword v248, v246, {WSR}, s{sT[2]} offen sc1")
        a.label(EB)
        a(f"s_lshl_b32 s{sT[2]}, s{sT[1]}, 2\ns_add_u32 s{sT[2]}, s{sT[2]}, {F_MODR}")
        a("s_waitcnt vmcnt(0)")
        self.one_lane_store(sT[2], 249)
        a.label(E)

    def row16_allreduce(self, regs, op="v_add_f32", steps=(8, 4, 2, 1)):
        for sh in steps:
            for r in regs:
                self.a(f"{op}_dpp v{r}, v{r}, v{r} row_ror:{sh} row_mask:0xf bank_mask:0xf")

    def ln_stats(self):
        a = self.a
        a.c("---- LN1 statistics ----")
        a(f"s_waitcnt vmcnt({self.dma_min})")
        X, N = self.vX, self.vXN
        ONE = 240
        a(f"v_mov_b32 v{ONE}, 0x3f803f80")
        for q in range(20):
            for it in range(2):
                sa_, sq_ = 232 + 2 * it + (q & 1), 236 + 2 * it + (q & 1)
                x = X + it * 20 + q
                a(f"v_dot2_f32_bf16 v{sa_}, v{x}, v{ONE}, {'0' if q < 2 else 'v%d' % sa_}")
                a(f"v_dot2_f32_bf16 v{sq_}, v{x}, v{x}, {'0' if q < 2 else 'v%d' % sq_}")
        a("v_add_f32 v232, v232, v233\nv_add_f32 v234, v234, v235\nv_add_f32 v236, v236, v237\nv_add_f32 v238, v238, v239")
        self.row16_allreduce([232, 234, 236, 238])
        a(f"s_mov_b32 s{sT[0]}, 0x3acccccd")
        for it in range(2):
            m, q, r = 232 + 2 * it, 236 + 2 * it, 242 + 4 * it
            a(f"v_mul_f32 v{m}, s{sT[0]}, v{m}\nv_mul_f32 v{q}, s{sT[0]}, v{q}")
            a(f"v_fma_f32 v{q}, -v{m}, v{m}, v{q}\nv_max_f32 v{q}, 0, v{q}\nv_add_f32 v{q}, 0x3727c5ac, v{q}\nv_rsq_f32 v{r}, v{q}")
        for it in range(2):
            m, r = 232 + 2 * it, 242 + 4 * it
            a(f"v_mov_b32 v{r+1}, v{r}\nv_mul_f32 v{r+2}, -v{m}, v{r}\nv_mul_f32 v{r+3}, -v{m}, v{r}")
        for it in range(2):
            r = 242 + 4 * it
            for q in range(20):
                d = N + it * 40 + 2 * q
                a(f"v_lshlrev_b32 v{d}, 16, v{X+it*20+q}\nv_and_b32 v{d+1}, 0xffff0000, v{X+it*20+q}")
            for q in range(20):
                d = N + it * 40 + 2 * q
                a(f"v_pk_fma_f32 {vr(d,2)}, {vr(d,2)}, {vr(r,2)}, {vr(r+2,2)}")

    def emit_wq_addr(self, d, base):
        a = self.a
        a(f"v_lshrrev_b32 v{d}, 5, v{vLANE}\nv_bfe_u32 v{d+1}, v{vLANE}, 2, 2\nv_lshl_add_u32 v{d}, v{d}, 3, v{d+1}")
        a(f"v_bfe_u32 v{d+1}, v{vLANE}, 4, 1\nv_lshlrev_b32 v{d+1}, 5, v{d+1}\nv_mad_u32_u24 v{d}, v{d}, s{sT[19]}, v{d+1}")
        a(f"v_and_b32 v{d+1}, 3, v{vLANE}\nv_lshl_add_u32 v{d}, v{d+1}, 3, v{d}")
        a(f"s_mul_i32 s{sT[0]}, s{sW4}, 40\ns_add_u32 s{sT[0]}, s{sT[0]}, {base}\nv_add_u32 v{d}, s{sT[0]}, v{d}")

    def wq_to_regs(self):
        a = self.a
        a.c("---- wq part 1 -> registers ----")
        a(f"s_movk_i32 s{sT[19]}, 160")
        self.emit_wq_addr(8, self.L1_H)
        a("s_waitcnt vmcnt(0)\ns_barrier")
        for s in range(self.NQ1):
            a(f"ds_read_b64_tr_b16 {vr(self.vWQ+4*s,2)}, v8 offset:{s*16*160}")
            a(f"ds_read_b64_tr_b16 {vr(self.vWQ+4*s+2,2)}, v8 offset:{s*16*160 + 4*160}")

    def mod_poll_apply(self):
        a = self.a
        a.c("---- wait for sa/ca granules, LN apply ----")
        a(f"v_and_b32 v8, 15, v{vLANE}\nv_lshlrev_b32 v9, 5, v8\nv_add_u32 v9, {self.L1_GS}, v9")
        a(f"v_lshrrev_b32 v10, 4, v{vLANE}\ns_lshl_b32 s{sT[0]}, s{sW}, 3\nv_add_u32 v10, s{sT[0]}, v10")
        for it in range(2):
            if it: a("v_add_u32 v10, 4, v10")
            a(f"v_and_b32 v11, 15, v10\nv_xor_b32 v11, v11, v8\nv_lshlrev_b32 v11, 4, v11")
            a(f"v_mad_u32_u24 v{12+it}, v10, s{sT[18]}, v11".replace(f"s{sT[18]}", "v14") if False else f"v_mul_u32_u24 v{12+it}, 1280, v10\nv_add_u32 v{12+it}, v{12+it}, v11")
        E = a.new("Lmp")
        a(f"s_cmp_ge_u32 s{sW}, 5\ns_cbranch_scc1 {E}")
        a(f"v_lshlrev_b32 v15, 4, v0")
        a(f"s_mov_b32 s{sT[1]}, {WS_MODG}")
        self.poll(15, 16, n=4, tagpos=(1, 3), err=1, soff=f"s{sT[1]}")
        a("v_lshlrev_b32 v20, 16, v16\nv_and_b32 v21, 0xffff0000, v16\nv_lshlrev_b32 v22, 16, v18\nv_and_b32 v23, 0xffff0000, v18")
        a(f"v_add_u32 v24, {self.L1_GS}, v15\nds_write_b128 v24, v[20:23]")
        a("v_xor_b32 v16, 0x80008000, v16\nv_xor_b32 v17, 0x80008000, v18")
        a(f"v_lshrrev_b32 v24, 1, v15\nv_add_u32 v24, {self.L1_NS}, v24\nv_cmp_gt_u32 vcc, 160, v0")
        a(f"s_and_saveexec_b64 s[{sT[22]}:{sT[23]}], vcc\nds_write_b64 v24, v[16:17]\ns_mov_b64 exec, -1")
        a.label(E)
        a("s_waitcnt lgkmcnt(0)\ns_barrier")
        def rd(c, b):
            a(f"ds_read_b128 v[{b}:{b+3}], v9 offset:{c*512}\nds_read_b128 v[{b+4}:{b+7}], v9 offset:{c*512 + 16}")
            a(f"ds_read_b128 v[{b+8}:{b+11}], v9 offset:{2560 + c*512}\nds_read_b128 v[{b+12}:{b+15}], v9 offset:{2560 + c*512 + 16}")
        rd(0, 16)
        for c in range(5):
            b = 16 if c % 2 == 0 else 32
            if c + 1 < 5:
                rd(c + 1, 48 - b)
                a("s_waitcnt lgkmcnt(4)" if c == 0 else "s_waitcnt lgkmcnt(6)")
            else: a("s_waitcnt lgkmcnt(2)")
            for it in range(2):
                x = self.vXN + it * 40 + c * 8
                for j in range(4):
                    a(f"v_pk_fma_f32 {vr(x+2*j,2)}, {vr(x+2*j,2)}, {vr(b+8+2*j,2)}, {vr(b+2*j,2)}")
            for it in range(2):
                x = self.vXN + it * 40 + c * 8
                for j in range(4):
                    a(f"v_cvt_pk_bf16_f32 v{x+j}, v{x+2*j}, v{x+2*j+1}")
                a(f"ds_write_b128 v{12+it}, {vr(x,4)} offset:{self.L1_H + c*256}")
        a("s_waitcnt lgkmcnt(0)\ns_barrier")

    def sum_groups(self, r, t, op="v_add_f32"):
        a = self.a
        a(f"v_mov_b32 v{t}, v{r}\nv_permlane32_swap_b32 v{r}, v{t}\n{op} v{r}, v{r}, v{t}")
        a(f"v_mov_b32 v{t}, v{r}\nv_permlane16_swap_b32 v{r}, v{t}\n{op} v{r}, v{r}, v{t}")

    def kv_proj(self):
        a = self.a
        a.c("---- K/V projection ----")
        a(f"s_and_b32 s{sT[0]}, s{sHG}, 3\ns_lshl_b32 s{sT[0]}, s{sT[0]}, 4")
        a(f"v_and_b32 v12, 15, v{vLANE}\nv_lshrrev_b32 v13, 4, v{vLANE}")
        a(f"v_add_u32 v14, s{sT[0]}, v12\nv_mul_u32_u24 v14, 1280, v14")
        a(f"s_lshr_b32 s{sT[1]}, s{sW}, 1\ns_mul_i32 s{sT[2]}, s{sT[1]}, 5")
        a(f"s_lshl_b32 s{sT[3]}, s{sT[2]}, 2\nv_add_u32 v15, s{sT[3]}, v13")
        for j in range(5):
            a(f"v_add_u32 v16, {4*j}, v15\nv_xor_b32 v16, v16, v12\nv_lshl_add_u32 v{20+j}, v16, 4, v14")
        a(f"v_bfe_u32 v16, v{vLANE}, 2, 2\nv_lshl_add_u32 v16, v13, 3, v16\nv_mul_u32_u24 v16, 40, v16\nv_and_b32 v17, 3, v{vLANE}\nv_lshl_add_u32 v16, v17, 3, v16")
        a(f"s_and_b32 s{sT[3]}, s{sW}, 1\ns_lshl_b32 s{sT[3]}, s{sT[3]}, 5\ns_mul_i32 s{sT[4]}, s{sT[2]}, 1280\ns_add_u32 s{sT[3]}, s{sT[3]}, s{sT[4]}\ns_add_u32 s{sT[3]}, s{sT[3]}, {self.L1_WKV}\nv_add_u32 v16, s{sT[3]}, v16")
        a(f"s_lshl_b32 s{sT[3]}, s{sT[2]}, 6\ns_add_u32 s{sT[3]}, s{sT[3]}, {self.L1_NS}\nv_lshl_add_u32 v17, v13, 4, s{sT[3]}")
        for j in range(5):
            a(f"ds_read_b64_tr_b16 {vr(32+4*j,2)}, v16 offset:{j*1280}\nds_read_b64_tr_b16 {vr(34+4*j,2)}, v16 offset:{j*1280 + 160}")
            a(f"ds_read_b128 {vr(52+4*j,4)}, v{20+j} offset:{self.L1_H}")
        LV, LJ = a.new("Lvproj"), a.new("Lkvj")
        a(f"s_cmp_ge_u32 s{sHG}, 4\ns_cbranch_scc1 {LV}")
        a("s_waitcnt lgkmcnt(0)")
        for j in range(5): a(f"ds_read_b128 {vr(72+4*j,4)}, v17 offset:{j*64}")
        for j in range(5):
            a(f"v_mfma_f32_16x16x32_bf16 v[28:31], {vr(32+4*j,4)}, {vr(52+4*j,4)}, {'0' if j == 0 else 'v[28:31]'}")
        a("s_waitcnt lgkmcnt(0)")
        for j in range(5):
            a(f"v_mfma_f32_16x16x32_bf16 v[28:31], {vr(32+4*j,4)}, {vr(72+4*j,4)}, v[28:31]")
        a(f"s_branch {LJ}")
        a.label(LV)
        a("s_waitcnt lgkmcnt(0)")
        for j in range(5):
            a(f"v_mfma_f32_16x16x32_bf16 v[28:31], {vr(52+4*j,4)}, {vr(32+4*j,4)}, {'0' if j == 0 else 'v[28:31]'}")
        a.label(LJ)
        a(f"s_add_u32 s{sT[3]}, s{sWK}, {self.L1_WKV}\nv_add_u32 v18, s{sT[3]}, v{vL16}")
        a("s_barrier")
        a("ds_write_b128 v18, v[28:31]\ns_waitcnt lgkmcnt(0)\ns_barrier")
        E = a.new("Lkvend")
        a(f"s_cmp_ge_u32 s{sW}, 2\ns_cbranch_scc1 {E}")
        a("ds_read_b128 v[32:35], v18 offset:2048\nds_read_b128 v[36:39], v18 offset:4096\nds_read_b128 v[40:43], v18 offset:6144")
        a(f"s_and_b32 s{sT[2]}, s{sHG}, 3\ns_lshr_b32 s{sT[2]}, s{sT[2]}, 1\ns_lshl_b32 s{sT[3]}, s{sI}, 1\ns_add_u32 s{sT[2]}, s{sT[2]}, s{sT[3]}")
        a(f"s_mul_i32 s{sT[2]}, s{sT[2]}, {KV_TILE}\ns_add_u32 s{sT[2]}, s{sT[2]}, {WS_KV}\ns_and_b32 s{sT[3]}, s{sHG}, 1\ns_lshl_b32 s{sT[3]}, s{sT[3]}, 4")
        a("s_waitcnt lgkmcnt(0)")
        for r in range(4):
            a(f"v_add_f32 v{32+r}, v{32+r}, v{36+r}\nv_add_f32 v{28+r}, v{28+r}, v{40+r}")
        for r in range(4): a(f"v_add_f32 v{28+r}, v{28+r}, v{32+r}")
        a("v_cvt_pk_bf16_f32 v24, v28, v29\nv_cvt_pk_bf16_f32 v25, v30, v31")
        LV, LJ, W1 = a.new("Lv2"), a.new("Lj2"), a.new("Lw1")
        a(f"s_cmp_ge_u32 s{sHG}, 4\ns_cbranch_scc1 {LV}")
        a("v_dot2_f32_bf16 v26, v24, v24, 0\nv_dot2_f32_bf16 v26, v25, v25, v26")
        a(f"s_cmp_eq_u32 s{sW}, 1\ns_cbranch_scc1 {W1}")
        self.sum_groups(26, 27)
        a(f"v_add_u32 v30, s{sT[3]}, v12\nv_and_b32 v31, 1, v13\nv_lshl_add_u32 v30, v31, 5, v30\nv_lshlrev_b32 v30, 4, v30")
        a(f"v_lshrrev_b32 v31, 1, v13\nv_lshl_add_u32 v30, v31, 3, v30")
        a(f"buffer_store_dwordx2 v[24:25], v30, {WSR}, s{sT[2]} offen sc1")
        a(f"s_branch {LJ}")
        a.label(W1)
        a(f"v_cmp_gt_u32 vcc, 16, v{vLANE}\nv_cndmask_b32 v26, 0, v26, vcc")
        a(f"v_add_u32 v30, s{sT[3]}, v12\nv_lshlrev_b32 v30, 3, v30")
        a("s_mov_b32 exec_lo, 0xffff\ns_mov_b32 exec_hi, 0")
        a(f"buffer_store_dwordx2 v[24:25], v30, {WSR}, s{sT[2]} offen offset:3072 sc1")
        a(f"s_mov_b64 exec, -1\ns_branch {LJ}")
        a.label(LV)
        a("v_max_f32 v26, |v28|, |v29|\nv_max_f32 v27, |v30|, |v31|\nv_max_f32 v26, v26, v27")
        a(f"s_lshl_b32 s{sT[1]}, s{sW}, 4\nv_add_u32 v27, s{sT[1]}, v12")
        a("v_cmp_gt_u32 vcc, 20, v27\nv_cndmask_b32 v26, 0, v26, vcc")
        a("v_mov_b32 v28, 0x3f803f80\nv_and_b32 v29, 27, v27")
        a(f"v_cmp_eq_u32 vcc, 20, v27\nv_cmp_eq_u32 s[{sT[22]}:{sT[23]}], 24, v27\ns_or_b64 vcc, vcc, s[{sT[22]}:{sT[23]}]")
        a("v_cndmask_b32 v24, v24, v28, vcc\nv_cndmask_b32 v25, v25, v28, vcc")
        a(f"s_lshl_b32 s{sT[3]}, s{sT[3]}, 6\ns_add_u32 s{sT[2]}, s{sT[2]}, s{sT[3]}")
        a("v_and_b32 v31, 1, v13\nv_lshl_add_u32 v30, v31, 5, v27\nv_lshlrev_b32 v30, 4, v30\nv_lshrrev_b32 v31, 1, v13\nv_lshl_add_u32 v30, v31, 3, v30")
        a(f"buffer_store_dwordx2 v[24:25], v30, {WSR}, s{sT[2]} offen offset:1024 sc1")
        a.label(LJ)
        self.row16_allreduce([26], "v_max_f32")
        self.sum_groups(26, 27, "v_max_f32")
        a(f"s_lshl_b32 s{sT[2]}, s{sL}, 4\ns_lshl_b32 s{sT[3]}, s{sW}, 3\ns_add_u32 s{sT[2]}, s{sT[2]}, s{sT[3]}\ns_add_u32 s{sT[2]}, s{sT[2]}, {F_KV}")
        a(f"v_mov_b32 v28, s{sNON}\nv_mov_b32 v29, v26\nv_mov_b32 v30, 0")
        a("s_waitcnt vmcnt(0)\ns_mov_b64 exec, 1")
        a(f"buffer_store_dwordx2 v[28:29], v30, {WSR}, s{sT[2]} offen sc1")
        a("s_mov_b64 exec, -1")
        a.label(E)

    vQ1, vQ2 = 8, 12
    vO = 16
    vS = [32, 48]
    vP = 64
    vK1 = [72, 76]; vK2 = [80, 84]; vV1 = [88, 92]; vV2 = [96, 100]
    vAK = [104, 105]; vAK2 = [106, 107]
    vQN = 108; vK2L = 109
    L2_KV = 0; L2_WO = 53248; L2_UT = 0; L2_SCR = 0; L2_MISC = 162816
    CH = 4 * KV_TILE

    def q_proj(self):
        a = self.a
        a.c("---- Q projection: D[m=dim][n=row] ----")
        acc = 16
        a(f"s_lshl_b32 s{sT[0]}, s{sKH}, 5\nv_and_b32 v40, 31, v{vLANE}\nv_add_u32 v40, s{sT[0]}, v40")
        a(f"v_and_b32 v41, 15, v40\nv_mul_u32_u24 v40, 1280, v40\nv_lshrrev_b32 v42, 5, v{vLANE}\nv_xor_b32 v41, v41, v42")
        for q in range(8):
            a(f"v_xor_b32 v43, {2*q}, v41\nv_lshl_add_u32 v{32+q}, v43, 4, v40")
        self.emit_wq_addr(44, self.L1_WQ2)
        def ldB(s): a(f"ds_read_b128 {vr(48+4*(s%3),4)}, v{32+s%8} offset:{self.L1_H + (s//8)*256}")
        def ldA(s):
            o = (s - self.NQ1) * 16 * 160
            a(f"ds_read_b64_tr_b16 {vr(64+4*(s%3),2)}, v44 offset:{o}\nds_read_b64_tr_b16 {vr(66+4*(s%3),2)}, v44 offset:{o+640}")
        def cnt(s): return 0 if s >= 40 else (1 + (2 if s >= self.NQ1 else 0))
        def ld(s):
            if s < 40:
                ldB(s)
                if s >= self.NQ1: ldA(s)
        ld(0); ld(1)
        for s in range(40):
            ld(s + 2)
            a(f"s_waitcnt lgkmcnt({cnt(s+1) + cnt(s+2)})")
            A = vr(self.vWQ + 4 * s, 4) if s < self.NQ1 else vr(64 + 4 * (s % 3), 4)
            a(f"v_mfma_f32_32x32x16_bf16 {vr(acc,16)}, {A}, {vr(48+4*(s%3),4)}, {'0' if s == 0 else vr(acc,16)}")
        a(f"s_mov_b32 s{sT[0]}, 0x3ea52b8e")
        for j in range(12): a(f"v_mul_f32 v{acc+j}, s{sT[0]}, v{acc+j}")
        for j in range(4): a(f"v_cvt_pk_bf16_f32 v{self.vQ1+j}, v{acc+2*j}, v{acc+2*j+1}")
        a(f"v_cvt_pk_bf16_f32 v{self.vQ2}, v{acc+8}, v{acc+9}\nv_cvt_pk_bf16_f32 v{self.vQ2+1}, v{acc+10}, v{acc+11}")
        a(f"v_cmp_gt_u32 vcc, 32, v{vLANE}")
        a(f"v_mov_b32 v{self.vQ2+2}, 0\nv_mov_b32 v{self.vQ2+3}, 0")
        a(f"v_cndmask_b32 v{self.vQ2}, 0, v{self.vQ2}, vcc\nv_cndmask_b32 v{self.vQ2+1}, 0, v{self.vQ2+1}, vcc")
        N = self.vQN
        regs = [self.vQ1 + j for j in range(4)] + [self.vQ2, self.vQ2 + 1]
        for i, r in enumerate(regs):
            a(f"v_dot2_f32_bf16 v{N}, v{r}, v{r}, {'0' if i == 0 else 'v%d' % N}")
        a(f"v_mov_b32 v40, v{N}\nv_permlane32_swap_b32 v{N}, v40\nv_add_f32 v{N}, v{N}, v40")
        a(f"v_sqrt_f32 v{N}, v{N}")

    def kv_piece(self, src_s, slot, k):
        L = []
        if k == 0: L.append(f"s_add_u32 m0, s{sT[18]}, {slot*self.CH}")
        else: L.append(f"s_add_u32 m0, s{sT[18]}, {slot*self.CH}")
        L.append(f"buffer_load_dwordx4 v{vL16}, {WSR}, s{src_s} offen offset:{k*1024} sc1 lds")
        if k == 1: L.append(f"s_add_u32 s{src_s}, s{src_s}, {self.CH}")
        return L

    def kv_dma(self, src_s, slot):
        for k in range(2):
            for x in self.kv_piece(src_s, slot, k): self.a(x)

    def ld_k(self, b, t):
        o = (t % 16) * KV_TILE
        self.a(f"ds_read_b128 {vr(self.vK1[b],4)}, v{vL16} offset:{o}\nds_read_b64 {vr(self.vK2[b],2)}, v{self.vK2L} offset:{o + 3072}")
    def ld_v1(self, b, t): self.a(f"ds_read_b128 {vr(self.vV1[b],4)}, v{vL16} offset:{(t % 16)*KV_TILE + 1024}")
    def ld_v2(self, b, t): self.a(f"ds_read_b128 {vr(self.vV2[b],4)}, v{vL16} offset:{(t % 16)*KV_TILE + 2048}")
    def qk(self, kb, sb, part):
        S = vr(self.vS[sb], 16)
        if part == 0: self.a(f"v_mfma_f32_32x32x16_bf16 {S}, {vr(self.vK1[kb],4)}, {vr(self.vQ1,4)}, 0")
        else: self.a(f"v_mfma_f32_32x32x16_bf16 {S}, {vr(self.vK2[kb],4)}, {vr(self.vQ2,4)}, {S}")

    def attn_setup(self):
        a = self.a
        a.c("---- attention: wait for K/V, bounds, stand-in for the row max ----")
        a("s_waitcnt lgkmcnt(0)\ns_barrier")
        a(f"s_lshl_b32 s{sT[18]}, s{sW}, 11\ns_cmp_eq_u32 s{sW}, 6\ns_cselect_b32 s{sT[18]}, 11264, s{sT[18]}\ns_cmp_eq_u32 s{sW}, 7\ns_cselect_b32 s{sT[18]}, 0, s{sT[18]}")
        a(f"s_add_u32 s{sT[17]}, s{sT[18]}, {WS_KV}")
        if self.stop >= 3:
            import g3b
            g3b.bg_setup(self)
        a(f"v_lshlrev_b32 v111, 6, v{vLANE}\ns_mov_b32 s{sT[1]}, {F_KV}")
        L, D = a.new("Lkvp"), a.new("Lkvd")
        cnt = sT[20]
        a(f"s_mov_b32 s{cnt}, 0")
        a.label(L)
        for j in range(4): a(f"buffer_load_dwordx4 {vr(112+4*j,4)}, v111, {WSR}, s{sT[1]} offen offset:{16*j} sc1")
        a("s_waitcnt vmcnt(0)")
        a(f"v_xor_b32 v128, s{sNON}, v112\nv_xor_b32 v129, s{sNON}, v114")
        for j in range(1, 4):
            a(f"v_xor_b32 v130, s{sNON}, v{112+4*j}\nv_xor_b32 v131, s{sNON}, v{114+4*j}\nv_or3_b32 v128, v128, v130, v131")
        a("v_or_b32 v128, v128, v129\nv_cmp_ne_u32 vcc, 0, v128")
        a(f"s_cbranch_vccz {D}")
        a(f"s_add_u32 s{cnt}, s{cnt}, 1\ns_cmp_lt_u32 s{cnt}, {SPIN_LIMIT}\ns_cbranch_scc1 {L}")
        self.bail(2)
        a.label(D)
        for k in range(3):
            self.kv_dma(sT[17], k)
        a("v_max3_f32 v113, v113, v117, v121\nv_max3_f32 v115, v115, v119, v123\nv_max_f32 v113, v113, v125\nv_max_f32 v115, v115, v127")
        self.row16_allreduce([113, 115], "v_max_f32", steps=(8, 4, 2))
        self.sum_groups(113, 114, "v_max_f32"); self.sum_groups(115, 116, "v_max_f32")
        a(f"v_readlane_b32 s{sT[5]}, v113, 0\nv_readlane_b32 s{sT[6]}, v115, 0\nv_readlane_b32 s{sT[7]}, v113, 1\nv_readlane_b32 s{sT[8]}, v115, 1")
        a(f"v_mov_b32 v113, s{sT[5]}\nv_add_f32 v113, s{sT[6]}, v113\nv_sqrt_f32 v113, v113")
        a(f"v_mov_b32 v114, s{sT[7]}\nv_max_f32 v114, s{sT[8]}, v114")
        a(f"v_mul_f32 v113, 0x3f810000, v113\nv_mul_f32 v{self.vQN}, v{self.vQN}, v113")
        E = a.new("Lgen")
        a(f"s_or_b32 s{sT[0]}, s{sL}, s{sW}\ns_cmp_lg_u32 s{sT[0]}, 0\ns_cbranch_scc1 {E}")
        a(f"v_mov_b32 v112, s{sNON}\ns_mov_b32 s{sT[0]}, {WS_NONCE}")
        self.one_lane_store(sT[0], 112)
        a.label(E)
        for b in range(2):
            a(f"v_mov_b32 v{self.vK2[b]+2}, 0x3f803f80\nv_mov_b32 v{self.vK2[b]+3}, 0x00003f80")
        a(f"v_and_b32 v{self.vK2L}, 31, v{vLANE}\nv_lshlrev_b32 v{self.vK2L}, 3, v{self.vK2L}")
        a("s_waitcnt vmcnt(4)\ns_barrier")
        self.ld_k(0, 0)
        self.ld_k(1, 1)
        self.ld_v1(0, 0); self.ld_v2(0, 0)
        a("s_waitcnt lgkmcnt(4)")
        self.qk(0, 0, 0); self.qk(0, 0, 1)
        S = self.vS[0]
        U = self.vQN
        a(f"v_mov_b32 v115, 0x43300000\nv_mov_b32 v116, 0x4d000000")
        a(f"v_cmp_nlt_f32 s[{sT[22]}:{sT[23]}], v114, v116")
        a(f"v_max3_f32 v112, v{S}, v{S+1}, v{S+2}")
        for j in range(3, 15, 2): a(f"v_max3_f32 v112, v112, v{S+j}, v{S+j+1}")
        a(f"v_max_f32 v112, v112, v{S+15}")
        a("v_mov_b32 v113, v112\nv_permlane32_swap_b32 v112, v113\nv_max_f32 v112, v112, v113")
        a(f"v_sub_f32 v113, v{U}, v112\nv_cmp_nle_f32 vcc, v113, v115")
        a(f"s_or_b64 vcc, vcc, s[{sT[22]}:{sT[23]}]")
        a(f"s_cmp_lg_u64 vcc, 0\ns_cselect_b32 s{sT[12]}, 1, 0")
        if self.force_fallback: a(f"s_mov_b32 s{sT[12]}, 1")
        a(f"s_lshl_b32 s{sT[0]}, s{sW}, 2\ns_add_u32 s{sT[0]}, s{sT[0]}, {self.L2_MISC}")
        a(f"v_mov_b32 v113, s{sT[0]}\nv_mov_b32 v114, s{sT[12]}\nds_write_b32 v113, v114")
        a(f"v_add_f32 v112, v{U}, v112\nv_mul_f32 v112, 0.5, v112\nv_mov_b32 v113, {self.L2_MISC}")
        a("s_waitcnt lgkmcnt(0)\ns_barrier")
        a("ds_read_b128 v[116:119], v113\nds_read_b128 v[120:123], v113 offset:16\ns_waitcnt lgkmcnt(0)")
        a("v_or3_b32 v116, v116, v117, v118\nv_or3_b32 v119, v119, v120, v121\nv_or3_b32 v116, v116, v122, v123\nv_or_b32 v116, v116, v119")
        a(f"v_readfirstlane_b32 s{sT[12]}, v116")
        FB = a.new("Lnofb")
        a(f"s_cmp_eq_u32 s{sT[12]}, 0\ns_cbranch_scc1 {FB}")
        self.max_pass()
        a.label(FB)
        a("v_sub_f32 v112, 0, v112")
        a("v_cvt_pk_bf16_f32 v113, v112, v112\nv_and_b32 v114, 0xffff0000, v113\nv_sub_f32 v112, v112, v114")
        a("v_cvt_pk_bf16_f32 v115, v112, v112\nv_and_b32 v116, 0xffff0000, v115\nv_sub_f32 v112, v112, v116")
        a("v_cvt_pk_bf16_f32 v117, v112, 0")
        a("v_and_b32 v113, 0xffff, v113\nv_or_b32 v113, v113, v116")
        a(f"v_cmp_gt_u32 vcc, 32, v{vLANE}")
        a(f"v_cndmask_b32 v{self.vQ2+2}, 0, v113, vcc\nv_cndmask_b32 v{self.vQ2+3}, 0, v117, vcc")

    def max_pass(self):
        a = self.a
        a.c("fallback: exact row max")
        a("v_mov_b32 v112, 0xff7fffff")
        L = a.new("Lmx"); c = sT[13]
        a(f"s_add_u32 s{c}, s{sT[18]}, {WS_KV}\ns_mov_b32 s{sT[14]}, 0")
        a.label(L)
        self.kv_dma(c, 3)
        a("s_waitcnt vmcnt(0)\ns_barrier")
        S = self.vS[1]
        for t in range(4):
            o = (12 + t) * KV_TILE
            a(f"ds_read_b128 v[120:123], v{vL16} offset:{o}\nds_read_b64 v[124:125], v{self.vK2L} offset:{o + 3072}")
            a(f"v_mov_b32 v126, 0\nv_mov_b32 v127, 0\ns_waitcnt lgkmcnt(0)")
            a(f"v_mfma_f32_32x32x16_bf16 {vr(S,16)}, v[120:123], {vr(self.vQ1,4)}, 0")
            a(f"v_mfma_f32_32x32x16_bf16 {vr(S,16)}, v[124:127], {vr(self.vQ2,4)}, {vr(S,16)}")
            for j in range(0, 16, 2): a(f"v_max3_f32 v112, v112, v{S+j}, v{S+j+1}")
        a("s_barrier")
        a(f"s_add_u32 s{sT[14]}, s{sT[14]}, 1\ns_cmp_lt_u32 s{sT[14]}, 16\ns_cbranch_scc1 {L}")
        a("v_mov_b32 v113, v112\nv_permlane32_swap_b32 v112, v113\nv_max_f32 v112, v112, v113")

    def attn_tile(self, t, h1=(), h2=()):
        a = self.a
        S = self.vS[t % 2]; Sp = self.vS[(t + 1) % 2]; P = self.vP
        def ex(j): a(f"v_exp_f32 v{S+j}, v{S+j}")
        def cv(j, b): a(f"v_cvt_pk_bf16_f32 v{P+j}, v{b+2*j}, v{b+2*j+1}")
        O = vr(self.vO, 16)
        ex(0); ex(1); cv(6, Sp); ex(2); cv(7, Sp); ex(3)
        a("s_waitcnt lgkmcnt(2)")
        self.qk((t + 1) % 2, (t + 1) % 2, 0)
        self.ld_k(t % 2, t + 2)
        ex(4); ex(5); cv(0, S); ex(6); cv(1, S); ex(7)
        self.qk((t + 1) % 2, (t + 1) % 2, 1)
        self.ld_v1((t + 1) % 2, t + 1)
        for x in h1: a(x)
        ex(8); ex(9); cv(2, S); ex(10); cv(3, S); ex(11)
        a(f"v_mfma_f32_32x32x16_bf16 {O}, {vr(self.vV2[(t+1)%2],4)}, {vr(P+4,4)}, {O}")
        self.ld_v2((t + 1) % 2, t + 1)
        for x in h2: a(x)
        ex(12); ex(13); cv(4, S); ex(14); cv(5, S); ex(15)
        a("s_waitcnt lgkmcnt(4)")
        a(f"v_mfma_f32_32x32x16_bf16 {O}, {vr(self.vV1[t%2],4)}, {vr(P,4)}, {O}")

    def attn_main(self):
        a = self.a
        a.c("---- attention main loop (unrolled, static background schedule) ----")
        src = sT[17]
        for j in range(16): a(f"v_mov_b32 v{self.vO+j}, 0")
        self.qk(0, 0, 0); self.qk(0, 0, 1)
        for j in range(12, 16): a(f"v_mov_b32 v{self.vS[1]+j}, 0")
        a(f"v_mov_b32 v{self.vP+4}, 0\nv_mov_b32 v{self.vP+5}, 0")
        for j in range(4): a(f"v_mov_b32 v{self.vV2[1]+j}, 0")
        bg = {}
        def put(T, tag, ins, n=1, need=None): bg.setdefault(T, []).append((tag, ins, n, need))
        for c in range(13):
            put(4 * c + 2, f"kv{c+3}", self.kv_piece(src, (c + 3) % 4, 0))
            put(4 * c + 3, f"kv{c+3}", self.kv_piece(src, (c + 3) % 4, 1))
        if self.stop >= 3 and not os.environ.get("X_NOEXTRA"):
            import g3b
            g3b.bg_schedule(self, put)
        pend = [("kv1", 2), ("kv2", 2)]
        def wait_for(tag):
            idx = [i for i, (k, n) in enumerate(pend) if k == tag]
            if not idx: return None
            after = sum(n for (k, n) in pend[idx[-1] + 1:])
            del pend[:idx[-1] + 1]
            return after
        for T in range(64):
            hooks = [[], []]
            ops = bg.get(T, [])
            for k, (tag, ins, n, need) in enumerate(ops):
                h = hooks[0] if k < (len(ops) + 1) // 2 else hooks[1]
                if need:
                    w = wait_for(need)
                    if w is not None: h.append(f"s_waitcnt vmcnt({w})")
                h.extend(ins)
                if n: pend.append((tag, n))
            self.attn_tile(T, hooks[0], hooks[1])
            if T % 4 == 1 and T < 62:
                c = T // 4
                w = wait_for(f"kv{c+1}")
                if w is not None: a(f"s_waitcnt vmcnt({w})")
                a("s_barrier")
        S = self.vS[1]; P = self.vP
        a(f"v_cvt_pk_bf16_f32 v{P+6}, v{S+12}, v{S+13}\nv_cvt_pk_bf16_f32 v{P+7}, v{S+14}, v{S+15}")
        a(f"s_waitcnt lgkmcnt(0)")
        a(f"v_mfma_f32_32x32x16_bf16 {vr(self.vO,16)}, {vr(self.vV2[1],4)}, {vr(P+4,4)}, {vr(self.vO,16)}")

    def attn_epilogue(self):
        a = self.a
        a.c("---- attention epilogue ----")
        O = self.vO
        a(f"s_lshl_b32 s{sT[0]}, s{sI}, 2\ns_lshl_b32 s{sT[1]}, s{sKH}, 1\ns_add_u32 s{sT[0]}, s{sT[0]}, s{sT[1]}\ns_mul_i32 s{sT[0]}, s{sT[0]}, {24*1024}\ns_add_u32 s{sT[0]}, s{sT[0]}, {WS_O}")
        a(f"s_lshl_b32 s{sT[1]}, s{sHG}, 2\ns_add_u32 s{sT[1]}, s{sT[1]}, s{sW4}\ns_mul_i32 s{sT[1]}, s{sT[1]}, 768\ns_add_u32 s{sT[0]}, s{sT[0]}, s{sT[1]}")
        a(f"v_bfe_u32 v32, v{vLANE}, 4, 1\nv_mul_u32_u24 v32, {24*1024}, v32\nv_and_b32 v33, 15, v{vLANE}\nv_lshl_add_u32 v32, v33, 4, v32")
        a(f"v_lshrrev_b32 v33, 5, v{vLANE}\nv_lshl_add_u32 v33, v33, 8, v32")
        a(f"v_cmp_gt_u32 vcc, 32, v{vLANE}\nv_mov_b32 v50, 0\nv_mov_b32 v51, 0")
        a(f"v_cndmask_b32 v40, v{O+8}, v{O+12}, vcc")
        a("v_rcp_f32 v40, v40")
        for j in range(12): a(f"v_mul_f32 v{O+j}, v{O+j}, v40")
        for j in range(6): a(f"v_cvt_pk_bf16_f32 v{44+j}, v{O+2*j}, v{O+2*j+1}")
        a(f"buffer_store_dwordx4 v[44:47], v33, {WSR}, s{sT[0]} offen sc1")
        a("s_mov_b32 exec_hi, 0")
        a(f"buffer_store_dwordx4 v[48:51], v32, {WSR}, s{sT[0]} offen offset:512 sc1")
        a("s_mov_b64 exec, -1")
        self.wave_flag(F_O)

    def build(self):
        a = self.a
        self.prologue(); self.stamp(0)
        self.p0(); self.stamp(1)
        self.ln_stats()
        self.wq_to_regs(); self.stamp(2)
        self.mod_poll_apply(); self.stamp(3)
        self.kv_proj(); self.stamp(16)
        self.q_proj(); self.stamp(4)
        if self.stop >= 2:
            self.attn_setup(); self.stamp(5); self.cstamp(27)
            self.attn_main(); self.stamp(6); self.cstamp(28)
            self.attn_epilogue(); self.stamp(7)
        if self.stop >= 3:
            import g3b
            g3b.rest(self)
        a("s_waitcnt vmcnt(0) lgkmcnt(0)")
        a.label("L_END")
        a("s_endpgm")
        return fix_hazards(a.l)

HEADER = open(os.path.join(os.path.dirname(os.path.abspath(__file__)), "header.txt")).read()

def make(stop=99, ts=False, force_fallback=False):
    g = Gen(stop, ts, force_fallback)
    lines, n = g.build()
    txt = HEADER + "; @launch grid=(256,1,1) block=(512,1,1) lds=163840\n"
    txt += f'.amdgcn_target "amdgcn-amd-amdhsa--gfx950"\n.text\n.globl {NAME}\n.p2align 8\n.type {NAME},@function\n{NAME}:\n'
    txt += "\n".join(lines) + "\n"
    txt += f""".section .rodata,"a"
.p2align 6
.amdhsa_kernel {NAME}
  .amdhsa_next_free_vgpr 256
  .amdhsa_next_free_sgpr 102
  .amdhsa_accum_offset 256
  .amdhsa_group_segment_fixed_size 0
  .amdhsa_kernarg_size 112
  .amdhsa_user_sgpr_count 2
  .amdhsa_user_sgpr_kernarg_segment_ptr 1
  .amdhsa_system_sgpr_workgroup_id_x 1
  .amdhsa_float_denorm_mode_32 3
.end_amdhsa_kernel
"""
    return txt, n

if __name__ == "__main__":
    import argparse
    ap = argparse.ArgumentParser()
    ap.add_argument("--stop", type=int, default=99)
    ap.add_argument("--ts", action="store_true")
    ap.add_argument("--fb", action="store_true")
    ap.add_argument("-o", default="out.s")
    args = ap.parse_args()
    sys.modules["g3"] = sys.modules["__main__"]
    txt, n = make(args.stop, args.ts, args.fb)
    open(args.o, "w").write(txt)
    print("nops inserted:", n, "lines:", txt.count("\n"))
```

```python
from g3 import *
import os

vX1 = 240
vGB = 228
vXr, vGA, vG2 = 196, 204, 216
vUB = 116
vRP = 144

sRPC, sRPD, sWOS, sWOL, sSLS, sSLL = 31, 42, 43, sT[15], sT[16], sT[19]
vRO = 176
sRPC2 = sT[14]
vSL = 108 + 2
L2_MB = 155648

def bg_setup(g):
    a = g.a
    q, upr, magic, pitch = sT[2], sT[3], sT[10], sT[11]
    SK = a.new("Lrs")
    a(f"s_cmp_lt_u32 s{sW}, 4\ns_cbranch_scc1 {SK}")
    for r, (srdr, col) in enumerate(((S_B, sRPC), (S_A, sRPC2))):
        K2, K3, GO = a.new("Lrp"), a.new("Lrp"), a.new("Lrp")
        a(f"s_lshl_b32 s{q}, s{sL}, 2\ns_add_u32 s{q}, s{q}, s{sW4}")
        if r: a(f"s_add_u32 s{q}, s{q}, 1024")
        else: a(f"s_lshl_b32 s{sRPD}, s{q}, 12\ns_add_u32 s{sRPD}, s{sRPD}, {WS_RW}")
        a(f"s_mov_b32 s{upr}, 10\ns_mov_b32 s{magic}, 0x1999999a\ns_movk_i32 s{pitch}, 1280")
        if r == 0:
            a(f"s_cmp_ge_u32 s{q}, 200\ns_cbranch_scc1 {K2}")
            a(f"s_mul_hi_u32 s{col}, s{q}, {(1<<32)//25+1}\ns_mul_i32 s{sT[12]}, s{col}, 25\ns_sub_u32 s{q}, s{q}, s{sT[12]}\ns_mul_i32 s{col}, s{col}, 160")
            a(f"s_mov_b32 s{srdr}, s{P_WO}\ns_mov_b32 s{srdr+1}, s{P_WO+1}\ns_mov_b32 s{srdr+2}, {640*1280}\ns_branch {GO}")
            a.label(K2)
            a(f"s_cmp_ge_u32 s{q}, 744\ns_cbranch_scc1 {K3}\ns_sub_u32 s{q}, s{q}, 200")
            a(f"s_mul_hi_u32 s{col}, s{q}, {(1<<32)//68+1}\ns_mul_i32 s{sT[12]}, s{col}, 68\ns_sub_u32 s{q}, s{q}, s{sT[12]}\ns_mul_i32 s{col}, s{col}, 160")
            a(f"s_mov_b32 s{srdr}, s{P_W2}\ns_mov_b32 s{srdr+1}, s{P_W2+1}\ns_mov_b32 s{srdr+2}, {1728*1280}\ns_branch {GO}")
            a.label(K3)
        a(f"s_sub_u32 s{q}, s{q}, 744")
        a(f"s_mul_hi_u32 s{col}, s{q}, {(1<<32)//35+1}\ns_mul_i32 s{sT[12]}, s{col}, 35\ns_sub_u32 s{q}, s{q}, s{sT[12]}")
        a(f"s_bitcmp1_b32 s{col}, 0\ns_cselect_b32 s{srdr}, s{P_W3}, s{P_W1}\ns_cselect_b32 s{srdr+1}, s{P_W3+1}, s{P_W1+1}\ns_mov_b32 s{srdr+2}, {640*3456}")
        a(f"s_lshr_b32 s{col}, s{col}, 1")
        a(f"s_mul_i32 s{sT[12]}, s{col}, 7\ns_mul_i32 s{upr}, s{col}, 6\ns_add_u32 s{upr}, s{upr}, 12\ns_min_u32 s{upr}, s{upr}, 101")
        a(f"s_cmp_lt_u32 s{col}, 12\ns_cselect_b32 s{col}, s{sT[12]}, s{upr}\ns_lshl_b32 s{col}, s{col}, 5")
        a(f"s_mov_b32 s{upr}, 14\ns_mov_b32 s{magic}, 0x12492493\ns_movk_i32 s{pitch}, 3456")
        a.label(GO)
        a(f"s_mov_b32 s{srdr+3}, 0x20000\ns_lshl_b32 s{q}, s{q}, 8\ns_lshl_b32 s{upr}, s{upr}, 4\ns_sub_u32 s{pitch}, s{pitch}, s{upr}")
        a(f"v_add_u32 v112, s{q}, v{vLANE}")
        for k in range(4):
            a(f"v_mul_hi_u32 v113, v112, s{magic}\nv_mul_lo_u32 v113, v113, s{pitch}\nv_lshl_add_u32 v{vRO+4*r+k}, v112, 4, v113")
            if k < 3: a("v_add_u32 v112, 64, v112")
    a.label(SK)
    a(f"s_mul_i32 s{sWOL}, s{sW}, 13\ns_min_u32 s{sWOL}, s{sWOL}, 87\ns_lshl_b32 s{sWOL}, s{sWOL}, 10")
    a(f"s_mul_i32 s{sWOS}, s{sHG}, 102400\ns_add_u32 s{sWOS}, s{sWOS}, s{sWOL}\ns_add_u32 s{sWOS}, s{sWOS}, {WS_RW + RW_WO}\ns_add_u32 s{sWOL}, s{sWOL}, {g.L2_WO}")
    a(f"s_cmp_lt_u32 s{sL}, 108\ns_cselect_b32 s{S_C}, s{P_W1}, s{P_W3}\ns_cselect_b32 s{S_C+1}, s{P_W1+1}, s{P_W3+1}")
    a(f"s_mov_b32 s{S_C+2}, {640*3456}\ns_mov_b32 s{S_C+3}, 0x20000")
    a(f"s_sub_u32 s{sSLS}, s{sL}, 108\ns_cselect_b32 s{sSLS}, s{sL}, s{sSLS}\ns_lshl_b32 s{sSLS}, s{sSLS}, 5")
    a(f"s_mul_i32 s{sSLL}, s{sW}, 3\ns_min_u32 s{sSLL}, s{sSLL}, 17\ns_mul_i32 s{sT[12]}, s{sSLL}, {32*3456}\ns_add_u32 s{sSLS}, s{sSLS}, s{sT[12]}\ns_lshl_b32 s{sSLL}, s{sSLL}, 10")
    a(f"v_lshrrev_b32 v{vSL}, 1, v{vLANE}\nv_mul_u32_u24 v{vSL}, 3456, v{vSL}\nv_and_b32 v113, 1, v{vLANE}\nv_lshl_add_u32 v{vSL}, v113, 4, v{vSL}")

def bg_schedule(g, put):
    a = g.a
    for k in range(8):
        srdr, col = ((S_B, sRPC), (S_A, sRPC2))[k // 4]
        put(k // 2, f"rl{k}", [f"buffer_load_dwordx4 {vr(vRP+4*k,4)}, v{vRO+k}, s[{srdr}:{srdr+3}], s{col} offen"], role="B")
    for k in range(8):
        pre = [f"s_add_u32 s{sRPD}, s{sRPD}, {1024*4096}"] if k == 4 else []
        put(12 + k // 2, f"rs{k}", pre + [f"buffer_store_dwordx4 {vr(vRP+4*k,4)}, v{vL16}, {WSR}, s{sRPD} offen offset:{(k%4)*1024} sc1"], need=f"rl{k}", role="B")
    put(25, "rsw", [], n=0, need="rs7", role="B")
    l1 = a.new("Lbg")
    put(26, "pub", [f"s_cmp_lg_u32 s{sW}, 4", f"s_cbranch_scc1 {l1}", f"s_lshl_b32 s{sT[2]}, s{sL}, 2", f"s_add_u32 s{sT[2]}, s{sT[2]}, {F_RP}", f"v_mov_b32 v112, s{sNON}",
                    "s_mov_b64 exec, 1", f"buffer_store_dword v112, v{vLANE}, {WSR}, s{sT[2]} offen sc1", "s_mov_b64 exec, -1", f"{l1}:"], n=0)
    l2, l3, l4 = a.new("Lbg"), a.new("Lbg"), a.new("Lbg")
    chk = [f"s_cmp_lg_u32 s{sW}, 7", f"s_cbranch_scc1 {l2}", f"s_mov_b32 s{sT[20]}, 0", f"{l3}:",
           f"s_mov_b32 s{sT[2]}, {F_RP}", f"s_mov_b32 s{sT[3]}, {F_MODR}",
           f"buffer_load_dwordx4 v[112:115], v{vL16}, {WSR}, s{sT[2]} offen sc1",
           f"v_min_u32 v120, 624, v{vL16}",
           f"buffer_load_dwordx4 v[116:119], v120, {WSR}, s{sT[3]} offen sc1",
           "s_waitcnt vmcnt(0)"]
    chk += [f"v_xor_b32 v{112+j}, s{sNON}, v{112+j}" for j in range(8)]
    chk += ["v_or3_b32 v112, v112, v113, v114", "v_or3_b32 v115, v115, v116, v117", "v_or3_b32 v112, v112, v118, v119", "v_or_b32 v112, v112, v115",
            f"v_cmp_ne_u32 s[{sT[22]}:{sT[23]}], 0, v112", "s_nop 4", f"s_cmp_eq_u64 s[{sT[22]}:{sT[23]}], 0", f"s_cbranch_scc1 {l2}",
            f"s_add_u32 s{sT[20]}, s{sT[20]}, 1", f"s_cmp_lt_u32 s{sT[20]}, {SPIN_LIMIT}", f"s_cbranch_scc1 {l3}",
            f"{l2}:"]
    put(32, "chk", chk, n=0)
    slots = [34, 36, 37, 38, 40, 41, 42, 44, 45, 46, 48, 49, 50]
    for k, T in enumerate(slots):
        ins = []
        if k % 4 == 0: ins.append(f"s_add_u32 m0, s{sWOL}, {k*1024}")
        else: ins.append(f"s_add_u32 m0, s{sWOL}, {(k//4)*4096}")
        ins.append(f"buffer_load_dwordx4 v{vL16}, {WSR}, s{sWOS} offen offset:{(k%4)*1024} sc1 lds")
        if k % 4 == 3: ins.append(f"s_add_u32 s{sWOS}, s{sWOS}, 4096")
        put(T, f"wo{k}", ins)
    put(35, "mb", [f"s_min_u32 s{sT[2]}, s{sW}, 2", f"s_lshl_b32 s{sT[2]}, s{sT[2]}, 10", f"s_add_u32 m0, s{sT[2]}, {L2_MB}", f"s_add_u32 s{sT[2]}, s{sT[2]}, {WS_MODB}",
                   f"buffer_load_dwordx4 v{vL16}, {WSR}, s{sT[2]} offen sc1 lds"])
    for k, T in enumerate((58, 59, 62)):
        ins = [f"s_add_u32 m0, s{sSLL}, {k*1024}", f"buffer_load_dwordx4 v{vSL}, s[{S_C}:{S_C+3}], s{sSLS} offen lds"]
        if k < 2: ins.append(f"s_add_u32 s{sSLS}, s{sSLS}, {32*3456}")
        put(T, f"sl{k}", ins)

def ut_job(g):
    a = g.a
    E = a.new("Lnoutj")
    a(f"s_cmp_lg_u32 s{sW}, 7\ns_cbranch_scc1 {E}\ns_cmp_ge_u32 s{sL}, 216\ns_cbranch_scc1 {E}")
    a(f"v_lshrrev_b32 v42, 4, v{vLANE}\nv_bfe_u32 v41, v{vLANE}, 2, 2\nv_lshl_add_u32 v40, v42, 3, v41\nv_lshlrev_b32 v40, 5, v40")
    a(f"v_and_b32 v41, 3, v{vLANE}\nv_lshl_add_u32 v40, v41, 3, v40\nv_add_u32 v40, {g.L2_UT}, v40")
    a(f"v_and_b32 v43, 1, v{vLANE}\nv_xor_b32 v43, 1, v43\nv_mul_u32_u24 v43, 1280, v43\nv_lshl_add_u32 v43, v42, 4, v43\nv_add_u32 v43, {L2_MB}, v43")
    base = 128
    for rnd in range(2):
        for s in range(10 * rnd, 10 * rnd + 10):
            d = base + 8 * (s % 10)
            a(f"ds_read_b64_tr_b16 {vr(d,2)}, v40 offset:{s*1024}\nds_read_b64_tr_b16 {vr(d+2,2)}, v40 offset:{s*1024+128}\nds_read_b128 {vr(d+4,4)}, v43 offset:{s*64}")
            if s % 10 >= 3:
                t = s - 3; dt = base + 8 * (t % 10)
                a(f"s_waitcnt lgkmcnt(9)\nv_mfma_f32_16x16x32_bf16 v[44:47], {vr(dt,4)}, {vr(dt+4,4)}, {'0' if t == 0 else 'v[44:47]'}")
        for t in range(10 * rnd + 7, 10 * rnd + 10):
            dt = base + 8 * (t % 10)
            a(f"s_waitcnt lgkmcnt({3*(10*rnd+9-t)})\nv_mfma_f32_16x16x32_bf16 v[44:47], {vr(dt,4)}, {vr(dt+4,4)}, v[44:47]")
    a(f"s_cmp_lt_u32 s{sL}, 108\ns_cselect_b32 s{sT[2]}, 0, {2*1728*4}")
    a(f"s_sub_u32 s{sT[3]}, s{sL}, 108\ns_cselect_b32 s{sT[3]}, s{sL}, s{sT[3]}\ns_lshl_b32 s{sT[3]}, s{sT[3]}, 6")
    a(f"s_add_u32 s{sT[2]}, s{sT[2]}, s{sT[3]}\ns_add_u32 s{sT[2]}, s{sT[2]}, {WS_UT}")
    a(f"v_and_b32 v40, 15, v{vLANE}\nv_mul_u32_u24 v41, {1728*4}, v40\nv_lshl_add_u32 v41, v42, 4, v41")
    a("s_mov_b32 exec_lo, 0x00030003\ns_mov_b32 exec_hi, 0x00030003")
    a(f"buffer_store_dwordx4 v[44:47], v41, {WSR}, s{sT[2]} offen sc1")
    a("s_mov_b64 exec, -1")
    a.label(E)

def ut_flag(g):
    a = g.a
    E = a.new("Lutf")
    a(f"s_cmp_lg_u32 s{sW}, 7\ns_cbranch_scc1 {E}\ns_cmp_ge_u32 s{sL}, 216\ns_cbranch_scc1 {E}")
    a(f"s_lshl_b32 s{sT[3]}, s{sL}, 2\ns_add_u32 s{sT[3]}, s{sT[3]}, {F_UT}")
    g.one_lane_store(sT[3], 255)
    a.label(E)

def pi_rows(g, d):
    a = g.a
    a(f"v_lshrrev_b32 v{d}, 5, v{vLANE}\nv_bfe_u32 v{d+1}, v{vLANE}, 4, 1\nv_lshlrev_b32 v{d}, 4, v{d}\nv_lshl_add_u32 v{d}, v{d+1}, 2, v{d}")
    a(f"v_bfe_u32 v{d+1}, v{vLANE}, 2, 2\nv_add_u32 v{d}, v{d}, v{d+1}")

def w5_list(dst, addr, off, addr2=None, off2=None):
    if addr2 is None: addr2, off2 = addr, off + 8 * 160
    L = []
    for cb in range(5):
        L.append(f"ds_read_b64_tr_b16 {vr(dst+4*cb,2)}, v{addr} offset:{off + cb*32}")
        L.append(f"ds_read_b64_tr_b16 {vr(dst+4*cb+2,2)}, v{addr2} offset:{off2 + cb*32}")
    return L

def interleave(a, main, fill, lead=0):
    n, m = len(main), len(fill)
    k = 0
    for i, x in enumerate(main):
        a(x)
        want = (m * (i + 1)) // n if i + 1 < n else m
        while k < want:
            a(fill[k]); k += 1

def exchange(g, acc, scratch):
    a = g.a
    a(f"s_mul_i32 s{sT[0]}, s{sW4}, 5120\ns_add_u32 s{sT[0]}, s{sT[0]}, {scratch}\nv_add_u32 v40, s{sT[0]}, v{vL16}")
    a("s_barrier")
    L1, L2 = a.new("Lex"), a.new("Lex")
    a(f"s_cmp_lg_u32 s{sKH}, 0\ns_cbranch_scc1 {L1}")
    for cb in (3, 4): a(f"ds_write_b128 v40, {vr(acc+4*cb,4)} offset:{cb*1024}")
    a("s_waitcnt lgkmcnt(0)\ns_barrier")
    for cb in (0, 1, 2): a(f"ds_read_b128 {vr(44+4*cb,4)}, v40 offset:{cb*1024}")
    a("s_waitcnt lgkmcnt(0)")
    for cb in (0, 1, 2):
        for r in range(4): a(f"v_add_f32 v{acc+4*cb+r}, v{acc+4*cb+r}, v{44+4*cb+r}")
    a(f"s_branch {L2}")
    a.label(L1)
    for cb in (0, 1, 2): a(f"ds_write_b128 v40, {vr(acc+4*cb,4)} offset:{cb*1024}")
    a("s_waitcnt lgkmcnt(0)\ns_barrier")
    for cb in (3, 4): a(f"ds_read_b128 {vr(44+4*cb,4)}, v40 offset:{cb*1024}")
    a("s_waitcnt lgkmcnt(0)")
    for cb in (3, 4):
        for r in range(4): a(f"v_add_f32 v{acc+4*cb+r}, v{acc+4*cb+r}, v{44+4*cb+r}")
    a.label(L2)

def store_blocks(g, P, nblk, base_s, vaddr_pair, vaddr_single):
    a = g.a
    i = 0
    while i < nblk:
        p = P + 2 * i
        if i + 1 < nblk:
            a(f"v_permlane32_swap_b32 v{p}, v{p+2}\nv_permlane32_swap_b32 v{p+1}, v{p+3}")
            a(f"buffer_store_dwordx4 {vr(p,4)}, v{vL16}, {WSR}, s{base_s} offen offset:{i*512} sc1")
            i += 2
        else:
            a(f"v_mov_b32 v{p+2}, v{p}\nv_mov_b32 v{p+3}, v{p+1}")
            a(f"v_permlane32_swap_b32 v{p}, v{p+2}\nv_permlane32_swap_b32 v{p+1}, v{p+3}")
            a("s_mov_b32 exec_hi, 0")
            a(f"buffer_store_dwordx4 {vr(p,4)}, v{vL16}, {WSR}, s{base_s} offen offset:{i*512} sc1")
            a("s_mov_b64 exec, -1")
            i += 1

L3_X = 40960 + 8192
L3_MV = 158720

def p3(g):
    a = g.a
    a.c("---- P3: o @ wo, residual, y / stats ----")
    acc = 8
    vB = 128
    vA = [64, 84]
    a("s_barrier")
    a(f"s_mul_i32 s{sFB0}, s{sM}, 7\ns_mul_i32 s{sT[2]}, s{sM}, 6\ns_add_u32 s{sT[2]}, s{sT[2]}, 12\ns_min_u32 s{sT[2]}, s{sT[2]}, 101")
    a(f"s_cmp_lt_u32 s{sM}, 12\ns_cselect_b32 s{sFB0}, s{sFB0}, s{sT[2]}")
    a(f"s_lshl_b32 s{sWL4}, s{sW}, 11\ns_mul_i32 s{sWS4}, s{sM}, {2*143360}\ns_add_u32 s{sWS4}, s{sWS4}, s{sWL4}\ns_add_u32 s{sWS4}, s{sWS4}, {WS_RW + RW_13}")
    a(f"s_add_u32 s{sWL4}, s{sWL4}, {L4_BASE}")
    a(f"s_mul_i32 s{sT[1]}, s{sKH}, 48\ns_mul_i32 s{sT[2]}, s{sHG}, 80\ns_add_u32 s{sT[1]}, s{sT[1]}, s{sT[2]}")
    a(f"v_lshrrev_b32 v28, 4, v{vLANE}\nv_lshlrev_b32 v29, 4, v28")
    a(f"s_lshl_b32 s{sT[10]}, s{sT[1]}, 2\ns_add_u32 s{sT[10]}, s{sT[10]}, {WS_MODR}\ns_add_u32 s{sT[11]}, s{sT[10]}, {1280*4}\ns_add_u32 s{sT[12]}, s{sT[10]}, {1920*4}")
    a(f"v_and_b32 v253, 15, v{vLANE}\nv_mul_u32_u24 v253, 1280, v253\nv_lshl_add_u32 v253, v28, 3, v253")
    a(f"s_mul_i32 s{sT[2]}, s{sRBG}, {16*1280}\ns_lshl_b32 s{sT[1]}, s{sT[1]}, 1\ns_add_u32 s30, s{sT[2]}, s{sT[1]}")
    a(f"s_and_b32 s{sT[1]}, s{sL}, 0xf8\ns_lshl_b32 s{sT[1]}, s{sT[1]}, 5\ns_add_u32 s{sT[1]}, s{sT[1]}, {F_O}\nv_lshlrev_b32 v39, 2, v{vLANE}")
    ut_job(g)
    a(f"s_mul_i32 s{sT[3]}, s{sKH}, {320*160}\ns_add_u32 s{sT[3]}, s{sT[3]}, {g.L2_WO}")
    a(f"v_and_b32 v44, 3, v{vLANE}\nv_lshl_add_u32 v44, v44, 3, s{sT[3]}\nv_bfe_u32 v46, v{vLANE}, 2, 2\ns_movk_i32 s{sT[19]}, 160")
    for m in range(3):
        d1, d2 = 33 + 2 * m, 34 + 2 * m
        a(f"v_add_u32 v40, {4*m}, v28")
        a(f"v_mul_u32_u24 v41, 86, v40\nv_lshrrev_b32 v41, 8, v41")
        a(f"v_mul_u32_u24 v42, 3, v41\nv_sub_u32 v42, v40, v42\nv_mul_u32_u24 v41, 20, v41")
        a(f"v_lshlrev_b32 v43, 2, v42\nv_cmp_eq_u32 vcc, 2, v42\nv_add_u32 v41, v41, v46")
        a(f"v_cndmask_b32 v43, v43, 16, vcc\nv_add_u32 v43, v41, v43\nv_add_u32 v45, 8, v43\nv_cndmask_b32 v45, v45, v43, vcc")
        a(f"v_mad_u32_u24 v{d1}, v43, s{sT[19]}, v44\nv_mad_u32_u24 v{d2}, v45, s{sT[19]}, v44")
    def wl(s):
        m = s % 3; o = (s // 3) * 80 * 160
        return w5_list(vA[s % 2], 33 + 2 * m, o, 34 + 2 * m, o)
    for x in wl(0): a(x)
    g.poll(39, 40, n=1, err=5, soff=f"s{sT[1]}")
    g.stamp(14)
    a(f"s_mul_i32 s{sT[1]}, s{sRBG}, 24\ns_mul_i32 s{sT[2]}, s{sKH}, 12\ns_add_u32 s{sT[1]}, s{sT[1]}, s{sT[2]}\ns_lshl_b32 s{sT[1]}, s{sT[1]}, 10\ns_add_u32 s{sT[1]}, s{sT[1]}, {WS_O}")
    for s in range(12):
        a(f"buffer_load_dwordx4 {vr(vB+4*s,4)}, v{vL16}, {WSR}, s{sT[1]} offen offset:{(s%4)*1024} sc1")
        if s % 4 == 3 and s < 11: a(f"s_add_u32 s{sT[1]}, s{sT[1]}, 4096")
    ops = []
    for j in range(3):
        ops.append(f"buffer_load_dwordx4 {vr(vGA+4*j,4)}, v29, {WSR}, s{sT[10]} offen offset:{j*64} sc1")
        ops.append(f"buffer_load_dwordx4 {vr(vG2+4*j,4)}, v29, {WSR}, s{sT[11]} offen offset:{j*64} sc1")
        ops.append(f"buffer_load_dwordx2 {vr(vXr+2*j,2)}, v253, s[{S_X}:{S_X+3}], s30 offen offset:{j*32}")
        ops.append(f"buffer_load_dwordx4 {vr(vGB+4*j,4)}, v29, {WSR}, s{sT[12]} offen offset:{j*64} sc1")
    issued = 0
    for s in range(12):
        a(f"s_waitcnt vmcnt({11 - s + issued}) lgkmcnt(0)")
        mf = [f"v_mfma_f32_16x16x32_bf16 {vr(acc+4*cb,4)}, {vr(vA[s%2]+4*cb,4)}, {vr(vB+4*s,4)}, {'0' if s == 0 else vr(acc+4*cb,4)}" for cb in range(5)]
        fill = wl(s + 1) if s + 1 < 12 else []
        interleave(a, mf, fill)
        a(ops[s]); issued += 1
    E = a.new("Lw0")
    a(f"s_cmp_eq_u32 s{sW}, 7\ns_cbranch_scc1 {E}")
    for x in p4_w_dma_list(sWS4, sWL4): a(x)
    a.label(E)
    a(f"s_add_u32 s{sWS4}, s{sWS4}, 14336")
    g.stamp(17)
    exchange(g, acc, 0)
    g.stamp(18)
    X, Y = a.new("Lop"), a.new("Lop")
    a(f"s_cmp_eq_u32 s{sW}, 7\ns_cbranch_scc1 {X}\ns_waitcnt vmcnt(4)\ns_branch {Y}")
    a.label(X); a("s_waitcnt vmcnt(0)"); a.label(Y)
    L1, L2 = a.new("Lp3e"), a.new("Lp3e")
    a(f"s_cmp_lg_u32 s{sKH}, 0\ns_cbranch_scc1 {L1}")
    p3_epi(g, (0, 1, 2), acc, vXr, vGA, vG2)
    a(f"s_branch {L2}")
    a.label(L1)
    p3_epi(g, (3, 4), acc, vXr, vGA, vG2)
    a.label(L2)
    g.stamp(19)
    g.wave_flag(F_Y)
    ut_flag(g)
    g.stamp(20)

def p3_epi(g, blocks, acc, vXr, vGA, vG2):
    a = g.a
    a(f"s_mul_i32 s{sT[1]}, s{sRBG}, 20480\ns_mul_i32 s{sT[2]}, s{sHG}, 2560\ns_add_u32 s{sT[1]}, s{sT[1]}, s{sT[2]}\ns_add_u32 s{sT[1]}, s{sT[1]}, {WS_Y + blocks[0]*512}")
    for j, cb in enumerate(blocks):
        X = vX1 + 4 * j
        a(f"v_lshlrev_b32 v{X}, 16, v{vXr+2*j}\nv_and_b32 v{X+1}, 0xffff0000, v{vXr+2*j}\nv_lshlrev_b32 v{X+2}, 16, v{vXr+2*j+1}\nv_and_b32 v{X+3}, 0xffff0000, v{vXr+2*j+1}")
        for r in range(4): a(f"v_fmac_f32 v{X+r}, v{vGA+4*j+r}, v{acc+4*cb+r}")
        for r in range(4): a(f"v_mul_f32 v{40+r}, v{X+r}, v{vG2+4*j+r}")
        a(f"v_cvt_pk_bf16_f32 v{44+2*j}, v40, v41\nv_cvt_pk_bf16_f32 v{45+2*j}, v42, v43")
    store_blocks(g, 44, len(blocks), sT[1], None, None)
    first = True
    for j in range(len(blocks)):
        for r in range(4):
            X = vX1 + 4 * j + r
            if first: a(f"v_mov_b32 v36, v{X}\nv_mul_f32 v37, v{X}, v{X}"); first = False
            else: a(f"v_add_f32 v36, v36, v{X}\nv_fmac_f32 v37, v{X}, v{X}")
    g.sum_groups(36, 38); g.sum_groups(37, 39)
    a(f"s_lshl_b32 s{sT[2]}, s{sL}, 3\ns_add_u32 s{sT[2]}, s{sT[2]}, s{sW}\ns_lshl_b32 s{sT[2]}, s{sT[2]}, 7\ns_add_u32 s{sT[2]}, s{sT[2]}, {WS_STAT}")
    a(f"v_lshlrev_b32 v38, 3, v{vLANE}\ns_mov_b32 exec_lo, 0xffff\ns_mov_b32 exec_hi, 0")
    a(f"buffer_store_dwordx2 v[36:37], v38, {WSR}, s{sT[2]} offen sc1")
    a("s_mov_b64 exec, -1")

L4_BUF = 45056
L4_BASE = 20480
L4_STAT = 158720
L4_UT = 155648

def p4_w_dma_list(src_s, lds_s):
    return [f"s_mov_b32 m0, s{lds_s}",
            f"buffer_load_dwordx4 v{vL16}, {WSR}, s{src_s} offen sc1 lds",
            f"buffer_load_dwordx4 v{vL16}, {WSR}, s{src_s} offen offset:1024 sc1 lds",
            f"s_add_u32 m0, s{lds_s}, 14336",
            f"s_add_u32 s{sT[5]}, s{src_s}, 143360",
            f"buffer_load_dwordx4 v{vL16}, {WSR}, s{sT[5]} offen sc1 lds",
            f"buffer_load_dwordx4 v{vL16}, {WSR}, s{sT[5]} offen offset:1024 sc1 lds"]

def p4_y_dma_list(src_s, lds_s):
    return [f"s_mov_b32 m0, s{lds_s}",
            f"buffer_load_dwordx4 v{vL16}, {WSR}, s{src_s} offen sc1 lds",
            f"buffer_load_dwordx4 v{vL16}, {WSR}, s{src_s} offen offset:1024 sc1 lds"]

sWS4, sWL4, sYS4, sYL4 = sT[14], sT[15], sT[16], sT[17]

def p4(g):
    a = g.a
    a.c("---- P4: gate/up GEMM ----")
    a("s_barrier")
    E = a.new("Lw1")
    a(f"s_cmp_eq_u32 s{sW}, 7\ns_cbranch_scc1 {E}")
    a(f"s_add_u32 s{sT[3]}, s{sWL4}, {L4_BUF}")
    for x in p4_w_dma_list(sWS4, sT[3]): a(x)
    a.label(E)
    a(f"s_add_u32 s{sWS4}, s{sWS4}, 14336")
    a(f"s_lshl_b32 s{sYS4}, s{sG}, 3\ns_add_u32 s{sYS4}, s{sYS4}, s{sW}\ns_mul_i32 s{sYS4}, s{sYS4}, 20480\ns_add_u32 s{sYS4}, s{sYS4}, {WS_Y}")
    a(f"s_add_u32 s{sYL4}, s{sWL4}, 28672")
    a(f"v_lshlrev_b32 v35, 3, v{vLANE}")
    a(f"s_and_b32 s{sT[2]}, s{sW}, 1\ns_lshl_b32 s{sT[3]}, s{sG}, 1\ns_add_u32 s{sT[2]}, s{sT[2]}, s{sT[3]}\ns_lshl_b32 s{sT[2]}, s{sT[2]}, 3")
    a(f"s_lshr_b32 s{sT[3]}, s{sW}, 1\ns_lshl_b32 s{sT[4]}, s{sT[3]}, 1\ns_add_u32 s{sT[2]}, s{sT[2]}, s{sT[4]}\ns_lshl_b32 s{sT[2]}, s{sT[2]}, 10\ns_add_u32 s{sT[2]}, s{sT[2]}, {WS_STAT}")
    a(f"s_lshl_b32 s{sT[3]}, s{sT[3]}, 10\ns_and_b32 s{sT[4]}, s{sW}, 1\ns_lshl_b32 s{sT[4]}, s{sT[4]}, 9\ns_add_u32 s{sT[3]}, s{sT[3]}, s{sT[4]}\ns_add_u32 s{sT[3]}, s{sT[3]}, {L4_STAT}\nv_add_u32 v41, s{sT[3]}, v35")
    E = a.new("Lyp")
    a(f"s_cmp_lg_u32 s{sW}, 7\ns_cbranch_scc1 {E}")
    a(f"s_lshl_b32 s{sT[1]}, s{sG}, 9\ns_add_u32 s{sT[1]}, s{sT[1]}, {F_Y}")
    g.poll(35, 200, n=2, tagpos=(0, 1), err=6, soff=f"s{sT[1]}")
    a.label(E)
    a("s_barrier")
    g.stamp(15)
    for st in range(2):
        a(f"s_add_u32 s{sT[3]}, s{sYL4}, {st*L4_BUF}")
        for x in p4_y_dma_list(sYS4, sT[3]): a(x)
        a(f"s_add_u32 s{sYS4}, s{sYS4}, 2048")
    for j in range(4):
        a(f"buffer_load_dwordx2 {vr(44+2*j,2)}, v35, {WSR}, s{sT[2]} offen offset:{j*512} sc1")
    E = a.new("Lw2")
    a(f"s_cmp_eq_u32 s{sW}, 7\ns_cbranch_scc1 {E}")
    a(f"s_add_u32 s{sT[3]}, s{sWL4}, {2*L4_BUF}")
    for x in p4_w_dma_list(sWS4, sT[3]): a(x)
    a.label(E)
    a(f"s_add_u32 s{sWS4}, s{sWS4}, 14336")
    a(f"s_add_u32 s{sT[3]}, s{sYL4}, {2*L4_BUF}")
    for x in p4_y_dma_list(sYS4, sT[3]): a(x)
    a(f"s_add_u32 s{sYS4}, s{sYS4}, 2048")
    LB, LE = a.new("Lp4b"), a.new("Lp4e")
    a(f"s_cmp_ge_u32 s{sW}, 4\ns_cbranch_scc1 {LB}")
    p4_role(g, True)
    a(f"s_branch {LE}")
    a.label(LB)
    p4_role(g, False)
    a.label(LE)

def spread(a, main, first, later, per=2):
    n = len(main)
    slots = [[] for _ in range(n)]
    k = 0; i = 0
    while k < len(first):
        slots[min(i, n - 1)] += first[k:k + per]; k += per; i += 1
    lo = min(i, n - 1)
    if later:
        hi = max(lo + 1, n - 1)
        span = hi - lo
        for j, grp in enumerate(later):
            pos = min(n - 1, lo + (j * span) // len(later))
            slots[pos] += grp
    for i in range(n):
        a(main[i])
        for x in slots[i]: a(x)

def p4_role(g, isA):
    a = g.a
    nrb = 4 if isA else 2
    npair = 2 if isA else 3
    acc = 52
    F = [116, 148]
    vYa, vWa = [8, 9, 10], [11, 12, 13]
    rb0, p0 = sT[11], sT[12]
    if isA: a(f"s_and_b32 s{rb0}, s{sW}, 1\ns_lshl_b32 s{rb0}, s{rb0}, 2\ns_and_b32 s{p0}, s{sW}, 2")
    else: a(f"s_lshl_b32 s{rb0}, s{sW4}, 1\ns_mov_b32 s{p0}, 4")
    a(f"s_lshl_b32 s{sT[1]}, s{rb0}, 11\ns_add_u32 s{sT[1]}, s{sT[1]}, {L4_BASE + 28672}\nv_add_u32 v{vYa[0]}, s{sT[1]}, v{vL16}")
    pi_rows(g, 14)
    a(f"v_mul_u32_u24 v14, 224, v14\nv_and_b32 v15, 3, v{vLANE}\nv_lshl_add_u32 v14, v15, 3, v14")
    a(f"s_lshl_b32 s{sT[1]}, s{p0}, 5\ns_add_u32 s{sT[1]}, s{sT[1]}, {L4_BASE}\nv_add_u32 v{vWa[0]}, s{sT[1]}, v14")
    for b in (1, 2):
        a(f"v_add_u32 v{vYa[b]}, {b*L4_BUF}, v{vYa[0]}\nv_add_u32 v{vWa[b]}, {b*L4_BUF}, v{vWa[0]}")
    for j in range(nrb * npair * 8): a(f"v_mov_b32 v{acc+j}, 0")
    a(f"s_cmp_eq_u32 s{sW}, 7\ns_cselect_b64 vcc, -1, 0")
    def wait2(n, n7, extra=""):
        if isA or n == n7: a(f"s_waitcnt vmcnt({n}){extra}")
        else:
            X, Y = a.new("Lv"), a.new("Lv")
            a(f"s_cbranch_vccnz {X}\ns_waitcnt vmcnt({n}){extra}\ns_branch {Y}")
            a.label(X); a(f"s_waitcnt vmcnt({n7}){extra}"); a.label(Y)
    wait2(6, 2)
    a("v_add_f32 v44, v44, v46\nv_add_f32 v45, v45, v47\nv_add_f32 v48, v48, v50\nv_add_f32 v49, v49, v51\nv_add_f32 v44, v44, v48\nv_add_f32 v45, v45, v49")
    a("ds_write_b64 v41, v[44:45]\ns_waitcnt lgkmcnt(0)\ns_barrier")
    def loads(fs, ks, buf):
        L = []
        for r in range(nrb): L.append(f"ds_read_b128 {vr(F[fs]+4*r,4)}, v{vYa[buf]} offset:{r*2048 + ks*1024}")
        for p in range(npair):
            for u in range(2):
                d = F[fs] + 4 * nrb + (p * 2 + u) * 4
                o = u * 14336 + ks * 7168 + p * 32
                L.append(f"ds_read_b64_tr_b16 {vr(d,2)}, v{vWa[buf]} offset:{o}")
                L.append(f"ds_read_b64_tr_b16 {vr(d+2,2)}, v{vWa[buf]} offset:{o + 8*224}")
        return L
    def mfmas(fs):
        L = []
        for p in range(npair):
            for u in range(2):
                for r in range(nrb):
                    c = acc + ((r * npair + p) * 2 + u) * 4
                    L.append(f"v_mfma_f32_16x16x32_bf16 {vr(c,4)}, {vr(F[fs]+4*nrb+(p*2+u)*4,4)}, {vr(F[fs]+4*r,4)}, {vr(c,4)}")
        return L
    def wgroups(buf):
        o = buf * L4_BUF
        G = [[f"s_add_u32 m0, s{sWL4}, {o}", f"buffer_load_dwordx4 v{vL16}, {WSR}, s{sWS4} offen sc1 lds"],
             [f"buffer_load_dwordx4 v{vL16}, {WSR}, s{sWS4} offen offset:1024 sc1 lds"],
             [f"s_add_u32 m0, s{sWL4}, {o + 14336}", f"s_add_u32 s{sT[5]}, s{sWS4}, 143360", f"buffer_load_dwordx4 v{vL16}, {WSR}, s{sT[5]} offen sc1 lds"],
             [f"buffer_load_dwordx4 v{vL16}, {WSR}, s{sT[5]} offen offset:1024 sc1 lds", f"s_add_u32 s{sWS4}, s{sWS4}, 14336"]]
        if not isA:
            G2 = []
            for grp in G:
                lab = a.new("Lw7"); G2.append([f"s_cbranch_vccnz {lab}"] + grp + [f"{lab}:"])
            G = G2
        return G
    def ygroups(buf):
        o = buf * L4_BUF
        return [[f"s_add_u32 m0, s{sYL4}, {o}", f"buffer_load_dwordx4 v{vL16}, {WSR}, s{sYS4} offen sc1 lds"],
                [f"buffer_load_dwordx4 v{vL16}, {WSR}, s{sYS4} offen offset:1024 sc1 lds", f"s_add_u32 s{sYS4}, s{sYS4}, 2048"]]
    p5_w_setup(g)
    for x in loads(0, 0, 0): a(x)
    g.stamp(11); g.cstamp(29)
    for st in range(10):
        b = st % 3
        a("s_waitcnt lgkmcnt(0)")
        later = ygroups((st + 2) % 3) if 1 <= st <= 7 else []
        if os.environ.get("X_P4NODMA"): later = []
        if st == 5 and not isA: later = later + [ut_to_lds(g)]
        spread(a, mfmas(0), loads(1, 1, b) if not os.environ.get("X_P4NOLDS") else [], later)
        if st < 9:
            if st == 8: a("s_waitcnt vmcnt(5) lgkmcnt(0)")
            elif st == 5 and not isA: wait2(6, 2, " lgkmcnt(0)")
            else: wait2(6, 2, " lgkmcnt(0)")
            if not os.environ.get("X_P4NOBAR"): a("s_barrier")
        else: a("s_waitcnt lgkmcnt(0)")
        spread(a, mfmas(1), (loads(0, 0, (st + 1) % 3) if st < 9 else []) if not os.environ.get("X_P4NOLDS") else [], (wgroups(b) if st <= 6 else (p5_w_groups(st - 7) if st <= 8 else [])) if not os.environ.get("X_P4NODMA") else [])
    g.stamp(12); g.cstamp(30)
    a("s_barrier")
    vUT = 148
    a(f"v_and_b32 v14, 15, v{vLANE}\ns_lshl_b32 s{sT[1]}, s{rb0}, 7\ns_add_u32 s{sT[1]}, s{sT[1]}, {L4_STAT}\nv_lshl_add_u32 v14, v14, 3, s{sT[1]}")
    for r in range(nrb):
        for q in range(4): a(f"ds_read_b64 {vr(116+8*r+2*q,2)}, v14 offset:{q*1024 + r*128}")
    a(f"v_lshrrev_b32 v12, 4, v{vLANE}\ns_lshl_b32 s{sT[2]}, s{p0}, 6\ns_add_u32 s{sT[2]}, s{sT[2]}, {L4_UT}\nv_lshl_add_u32 v12, v12, 4, s{sT[2]}")
    a(f"s_mov_b32 s{sT[5]}, 0x3acccccd")
    a("s_waitcnt lgkmcnt(0)")
    for p in range(npair):
        for vv in range(4): a(f"ds_read_b128 {vr(vUT+p*16+vv*4,4)}, v12 offset:{vv*448 + p*64}")
    for r in range(nrb):
        b = 116 + 8 * r
        a(f"v_add_f32 v{b}, v{b}, v{b+2}\nv_add_f32 v{b+1}, v{b+1}, v{b+3}\nv_add_f32 v{b+4}, v{b+4}, v{b+6}\nv_add_f32 v{b+5}, v{b+5}, v{b+7}\nv_add_f32 v{b}, v{b}, v{b+4}\nv_add_f32 v{b+1}, v{b+1}, v{b+5}")
        a(f"v_mul_f32 v{b}, s{sT[5]}, v{b}\nv_mul_f32 v{b+1}, s{sT[5]}, v{b+1}")
        a(f"v_fma_f32 v{b+1}, -v{b}, v{b}, v{b+1}\nv_max_f32 v{b+1}, 0, v{b+1}\nv_add_f32 v{b+1}, 0x3727c5ac, v{b+1}")
    for r in range(nrb): a(f"v_rsq_f32 v{16+4*r}, v{117+8*r}")
    for r in range(nrb): a(f"v_mov_b32 v{17+4*r}, v{16+4*r}\nv_mul_f32 v{18+4*r}, -v{16+4*r}, v{116+8*r}\nv_mul_f32 v{19+4*r}, -v{16+4*r}, v{116+8*r}")
    a(f"s_add_u32 s{sT[2]}, s{sFB0}, s{p0}")
    a(f"s_lshl_b32 s{sT[1]}, s{sG}, 3\ns_add_u32 s{sT[1]}, s{sT[1]}, s{rb0}\ns_mul_i32 s{sT[1]}, s{sT[1]}, {54*1024}\ns_lshl_b32 s{sT[2]}, s{sT[2]}, 9\ns_add_u32 s{sT[1]}, s{sT[1]}, s{sT[2]}\ns_add_u32 s{sT[1]}, s{sT[1]}, {WS_ACT}")
    a(f"v_mov_b32 v46, 0xbfb8aa3b\nv_mov_b32 v47, 0xbfb8aa3b\nv_mov_b32 v48, 1.0\nv_mov_b32 v49, 1.0")
    a("s_waitcnt lgkmcnt(0)")
    g.stamp(13)
    for r in range(nrb):
        R, RM = vr(16 + 4 * r, 2), vr(18 + 4 * r, 2)
        for p in range(npair):
            U1, T1, U3, T3 = [vUT + p * 16 + vv * 4 for vv in range(4)]
            cg = acc + ((r * npair + p) * 2) * 4; cu = cg + 4
            for h in range(2):
                a(f"v_pk_fma_f32 {vr(32+2*h,2)}, {RM}, {vr(U1+2*h,2)}, {vr(T1+2*h,2)}\nv_pk_fma_f32 {vr(36+2*h,2)}, {RM}, {vr(U3+2*h,2)}, {vr(T3+2*h,2)}")
            for h in range(2):
                a(f"v_pk_fma_f32 {vr(32+2*h,2)}, {vr(cg+2*h,2)}, {R}, {vr(32+2*h,2)}\nv_pk_fma_f32 {vr(36+2*h,2)}, {vr(cu+2*h,2)}, {R}, {vr(36+2*h,2)}")
            for h in range(2): a(f"v_pk_mul_f32 {vr(40+2*h,2)}, {vr(32+2*h,2)}, v[46:47]")
            for e in range(4): a(f"v_exp_f32 v{40+e}, v{40+e}")
            for h in range(2): a(f"v_pk_mul_f32 {vr(32+2*h,2)}, {vr(32+2*h,2)}, {vr(36+2*h,2)}")
            for h in range(2): a(f"v_pk_add_f32 {vr(40+2*h,2)}, {vr(40+2*h,2)}, v[48:49]")
            for e in range(4): a(f"v_rcp_f32 v{40+e}, v{40+e}")
            a("s_nop 0")
            for h in range(2): a(f"v_pk_mul_f32 {vr(32+2*h,2)}, {vr(32+2*h,2)}, {vr(40+2*h,2)}")
            o = 196 + 8 * (r % 2) + 2 * p
            a(f"v_cvt_pk_bf16_f32 v{o}, v32, v33\nv_cvt_pk_bf16_f32 v{o+1}, v34, v35")
        store_blocks(g, 196 + 8 * (r % 2), npair, sT[1], None, None)
        if r + 1 < nrb: a(f"s_add_u32 s{sT[1]}, s{sT[1]}, {54*1024}")
    g.stamp(21)
    g.wave_flag(F_ACT)
    g.stamp(22)

def ut_to_lds(g):
    a = g.a
    E, L, D = a.new("Lut"), a.new("Lut"), a.new("Lut")
    I = [f"s_cbranch_vccz {E}",
         f"v_mov_b32 v14, s{sFB0}", f"v_add_u32 v14, v14, v{vLANE}", f"v_cmp_lt_u32 s[{sT[22]}:{sT[23]}], 6, v{vLANE}", "v_add_u32 v15, 101, v14", "s_nop 1",
         f"v_cndmask_b32 v14, v14, v15, s[{sT[22]}:{sT[23]}]", "v_lshlrev_b32 v14, 2, v14", f"s_mov_b32 s{sT[1]}, {F_UT}", f"s_mov_b32 s{sT[20]}, 0",
         "s_mov_b32 exec_lo, 0x3fff", "s_mov_b32 exec_hi, 0", f"{L}:",
         f"buffer_load_dword v15, v14, {WSR}, s{sT[1]} offen sc1", "s_waitcnt vmcnt(0)",
         f"v_cmp_ne_u32 s[{sT[22]}:{sT[23]}], s{sNON}, v15", "s_nop 4", f"s_cmp_eq_u64 s[{sT[22]}:{sT[23]}], 0", f"s_cbranch_scc1 {D}",
         f"s_add_u32 s{sT[20]}, s{sT[20]}, 1", f"s_cmp_lt_u32 s{sT[20]}, {SPIN_LIMIT}", f"s_cbranch_scc1 {L}", f"{D}:", "s_mov_b64 exec, -1",
         f"s_lshl_b32 s{sT[1]}, s{sFB0}, 6", f"s_add_u32 s{sT[1]}, s{sT[1]}, {WS_UT}", f"s_mov_b32 s{sT[2]}, {(1<<32)//28+1}",
         f"v_mul_hi_u32 v14, v{vLANE}, s{sT[2]}", f"v_mul_u32_u24 v14, {6912-448}, v14", f"v_add_u32 v14, v14, v{vL16}",
         f"s_mov_b32 m0, {L4_UT}", f"buffer_load_dwordx4 v14, {WSR}, s{sT[1]} offen sc1 lds",
         f"v_add_u32 v14, 64, v{vLANE}", f"v_mul_hi_u32 v15, v14, s{sT[2]}", f"v_mul_u32_u24 v15, {6912-448}, v15", "v_lshl_add_u32 v14, v14, 4, v15",
         f"s_mov_b32 m0, {L4_UT + 1024}", "s_mov_b32 exec_hi, 0xffff", f"buffer_load_dwordx4 v14, {WSR}, s{sT[1]} offen sc1 lds", "s_mov_b64 exec, -1",
         f"{E}:"]
    return I

L5_BUF = 40960
L5_B = [65536, 110592, 20480]
L5_SCR = 0
sW2S, sW2L = sT[6], sT[7]

def p5_w_dma_list(st):
    return [f"s_add_u32 s{sT[3]}, s{sW2S}, {st*4*5120}", f"s_add_u32 m0, s{sW2L}, {L5_B[st%3]}"] + \
           [f"buffer_load_dwordx4 v{vL16}, {WSR}, s{sT[3]} offen offset:{k*1024} sc1 lds" for k in range(4)] + \
           [f"s_add_u32 s{sT[3]}, s{sT[3]}, 4096", f"s_add_u32 m0, s{sW2L}, {L5_B[st%3] + 4096}", f"buffer_load_dwordx4 v{vL16}, {WSR}, s{sT[3]} offen sc1 lds"]

def p5_w_groups(st):
    L = p5_w_dma_list(st)
    return [L[0:3], [L[3]], [L[4]], [L[5]], L[6:9]]

def p5_w_setup(g):
    a = g.a
    a(f"s_mul_i32 s{sW2S}, s{sKH}, 27\ns_add_u32 s{sW2S}, s{sW2S}, s{sW4}\ns_mul_i32 s{sW2S}, s{sW2S}, 5120\ns_mul_i32 s{sT[4]}, s{sHG}, {RW_W2S}\ns_add_u32 s{sW2S}, s{sW2S}, s{sT[4]}\ns_add_u32 s{sW2S}, s{sW2S}, {WS_RW + RW_W2}")
    a(f"s_mul_i32 s{sW2L}, s{sW}, 5120")

def p5(g):
    a = g.a
    a.c("---- P5: act @ w2, residual ----")
    acc = 8
    vA = [64, 84]
    vB = 128
    a(f"s_lshl_b32 s{sT[1]}, s{sG}, 9\ns_add_u32 s{sT[1]}, s{sT[1]}, {F_ACT}\nv_lshlrev_b32 v35, 3, v{vLANE}")
    ab = sT[10]
    a(f"s_mul_i32 s{ab}, s{sRBG}, 54\ns_mul_i32 s{sT[2]}, s{sKH}, 27\ns_add_u32 s{ab}, s{ab}, s{sT[2]}\ns_lshl_b32 s{ab}, s{ab}, 10\ns_add_u32 s{ab}, s{ab}, {WS_ACT}")
    a(f"s_mul_i32 s{sT[2]}, s{sKH}, {4*5120}")
    pi_rows(g, 33)
    a(f"v_mul_u32_u24 v33, 160, v33\nv_and_b32 v34, 3, v{vLANE}\nv_lshl_add_u32 v33, v34, 3, v33\nv_add_u32 v33, s{sT[2]}, v33")
    g.poll(35, 40, n=2, tagpos=(0, 1), err=8, soff=f"s{sT[1]}")
    g.stamp(26)
    def lda(st):
        n = 4 if st < 6 else 3
        L = [f"s_add_u32 s{sT[1]}, s{ab}, {st*4096}"]
        for j in range(n):
            L.append(f"buffer_load_dwordx4 {vr(vB+4*((4*st+j)%12),4)}, v{vL16}, {WSR}, s{sT[1]} offen offset:{j*1024} sc1")
        return L, n
    pend = []
    for st in range(3):
        if st == 2:
            for x in p5_w_dma_list(st): a(x)
            pend.append(("D", st, 5))
        L, n = lda(st)
        for x in L: a(x)
        pend.append(("A", st, n))
    for st in range(7):
        idx = max(i for i, (k, s, n) in enumerate(pend) if s == st)
        after = sum(n for (k, s, n) in pend[idx + 1:])
        pend = pend[idx + 1:]
        a(f"s_waitcnt vmcnt({after})\ns_barrier")
        if st == 0: g.stamp(23)
        if st == 3: g.stamp(24)
        nsteps = 4 if st < 6 else 3
        a(f"v_add_u32 v34, {L5_B[st%3]}, v33")
        for x in w5_list(vA[0], 34, 0): a(x)
        side = []
        if st >= 1 and st + 2 < 7:
            side += p5_w_dma_list(st + 2); pend.append(("D", st + 2, 5))
        for j in range(nsteps):
            a("s_waitcnt lgkmcnt(0)")
            ks = 4 * st + j
            mf = [f"v_mfma_f32_16x16x32_bf16 {vr(acc+4*cb,4)}, {vr(vA[j%2]+4*cb,4)}, {vr(vB+4*(ks%12),4)}, {'0' if ks == 0 else vr(acc+4*cb,4)}" for cb in range(5)]
            fill = w5_list(vA[(j+1) % 2], 34, (j + 1) * 5120) if j + 1 < nsteps else []
            if j == 0: fill = fill + side
            if j == nsteps - 1 and st + 3 < 7:
                L, n = lda(st + 3); fill = fill + L; pend.append(("A", st + 3, n))
            interleave(a, mf, fill)
    g.stamp(25)
    exchange(g, acc, L5_SCR)
    L1, L2 = a.new("Lp5e"), a.new("Lp5e")
    a(f"s_cmp_lg_u32 s{sKH}, 0\ns_cbranch_scc1 {L1}")
    for blocks, lab in (((0, 1, 2), None), ((3, 4), L1)):
        if lab: a.label(lab)
        for j, cb in enumerate(blocks):
            for r in range(4): a(f"v_fma_f32 v{40+r}, v{vGB+4*j+r}, v{acc+4*cb+r}, v{vX1+4*j+r}")
            a(f"v_cvt_pk_bf16_f32 v{44+2*j}, v40, v41\nv_cvt_pk_bf16_f32 v{45+2*j}, v42, v43")
            a(f"buffer_store_dwordx2 {vr(44+2*j,2)}, v253, s[{S_OUT}:{S_OUT+3}], s30 offen offset:{j*32}")
        if not lab: a(f"s_branch {L2}")
    a.label(L2)

def rest(g):
    p3(g); g.stamp(8)
    if g.stop >= 4:
        p4(g); g.stamp(9)
    if g.stop >= 5:
        p5(g); g.stamp(10)
```

```python
import sys, os
sys.path.insert(0, os.path.dirname(os.path.abspath(__file__)))
from asmlib import Asm, fix_hazards

NAME = "adaLN_cond__grouped_kv_mqa__glu_gated_swiglu__prompt_kernel"

WS_NONCE = 0x0
F_KV   = 0x1000
F_MODR = 0x2000
F_O    = 0x3000
F_Y    = 0x5000
F_ACT  = 0x7000
F_UT   = 0x9000
F_RP   = 0x18000
WS_MODG = 0xA000
WS_MODR = 0xC000
WS_MODB = 0xE800
WS_UT   = 0x10000
WS_KV   = 0x20000
WS_STAT = 0x60000
WS_O    = 0x100000
WS_Y    = 0x400000
WS_ACT  = 0x700000
WS_TS   = 0xE00000
WS_RW   = 0x1000000
RW_WO, RW_W2, RW_13 = 0, 819200, 819200 + 8 * 278528
RW_W2S = 278528
WS_USED = 0x1800000
KV_TILE = 3328

S_X, S_WS, S_A, S_B, S_C, S_OUT = 4, 8, 12, 16, 20, 24
P_X, P_WQ, P_WK, P_WV, P_WO, P_BX, P_W1, P_W3, P_W2, P_CC, P_WMOD, P_OUT, P_DBG, P_WS = [32 + 2 * i for i in range(14)]
sL, sG, sM, sI, sHG, sW, sNON, sXC, sJ = 60, 61, 62, 63, 64, 65, 66, 67, 68
sW4 = 69
sT = list(range(70, 94))
sKH = 97
sFB0, sWSRC, sRBG = 98, 99, 28
sWK = 29
SPIN_LIMIT = 400000

vLANE = 1
vL16 = 2
vO160 = [3, 4, 5, 6, 7]

def srd(a, d, p, size):
    a(f"s_mov_b32 s{d}, s{p}\ns_mov_b32 s{d+1}, s{p+1}\ns_mov_b32 s{d+2}, {size}\ns_mov_b32 s{d+3}, 0x20000")
def vr(b, n=1): return f"v{b}" if n == 1 else f"v[{b}:{b+n-1}]"
WSR = f"s[{S_WS}:{S_WS+3}]"

class Gen:
    def __init__(self, stop=99, ts=False, force_fallback=False):
        self.a = Asm(); self.stop = stop; self.ts = ts; self.force_fallback = force_fallback

    def stamp_dyn(self, mode, sreg, add=0):
        if not self.ts or os.environ.get("TSMODE") != mode: return
        a = self.a
        a(f"s_memrealtime s[94:95]\ns_waitcnt lgkmcnt(0)")
        a(f"s_lshl_b32 s96, s{sL}, 3\ns_add_u32 s96, s96, s{sW}\ns_lshl_b32 s96, s96, 5\ns_add_u32 s96, s96, s{sreg}\ns_add_u32 s96, s96, {add}\ns_lshl_b32 s96, s96, 2\ns_add_u32 s96, s96, {WS_TS}")
        a(f"v_mov_b32 v254, s94\nv_mov_b32 v255, s96")
        a(f"s_mov_b64 s[100:101], exec\ns_mov_b64 exec, 1")
        a(f"buffer_store_dword v254, v255, {WSR}, 0 offen")
        a(f"s_mov_b64 exec, s[100:101]")

    def cstamp(self, idx):
        if not self.ts or os.environ.get("TSMODE"): return
        a = self.a
        a(f"s_memtime s[94:95]\ns_waitcnt lgkmcnt(0)")
        a(f"s_lshl_b32 s96, s{sL}, 3\ns_add_u32 s96, s96, s{sW}\ns_lshl_b32 s96, s96, 7\ns_add_u32 s96, s96, {WS_TS + idx*4}")
        a(f"v_mov_b32 v254, s94\nv_mov_b32 v255, s96")
        a(f"s_mov_b64 s[100:101], exec\ns_mov_b64 exec, 1")
        a(f"buffer_store_dword v254, v255, {WSR}, 0 offen")
        a(f"s_mov_b64 exec, s[100:101]")

    def stamp(self, idx):
        if not self.ts or os.environ.get("TSMODE"): return
        a = self.a
        a(f"s_memrealtime s[94:95]\ns_waitcnt lgkmcnt(0)")
        a(f"s_lshl_b32 s96, s{sL}, 3\ns_add_u32 s96, s96, s{sW}\ns_lshl_b32 s96, s96, 7\ns_add_u32 s96, s96, {WS_TS + idx*4}")
        a(f"v_mov_b32 v254, s94\nv_mov_b32 v255, s96")
        a(f"s_mov_b64 s[100:101], exec\ns_mov_b64 exec, 1")
        a(f"buffer_store_dword v254, v255, {WSR}, 0 offen")
        a(f"s_mov_b64 exec, s[100:101]")

    def bail(self, err):
        a = self.a
        a(f"v_mov_b32 v254, {err}\nv_mov_b32 v255, 0")
        srd(a, S_C, P_DBG, 256)
        a(f"buffer_store_dword v254, v255, s[{S_C}:{S_C+3}], 0 offen")

    def poll(self, vaddr, vdat, n=1, tagpos=(0,), err=1, soff="0", depth=3):
        a = self.a
        L, D = a.new("Lpoll"), a.new("Lpdone")
        cnt = sT[20]
        op = {1: "buffer_load_dword", 2: "buffer_load_dwordx2", 4: "buffer_load_dwordx4"}[n]
        ld = lambda k: a(f"{op} {vr(vdat + k*n, n)}, v{vaddr}, {WSR}, {soff} offen sc1")
        a(f"s_mov_b32 s{cnt}, 0")
        for k in range(depth - 1): ld(k)
        a.label(L)
        for k in range(depth):
            ld((k + depth - 1) % depth)
            a(f"s_waitcnt vmcnt({depth-1})")
            b = vdat + k * n
            a(f"v_cmp_ne_u32 vcc, s{sNON}, v{b + tagpos[0]}")
            for t in tagpos[1:]:
                a(f"v_cmp_ne_u32 s[{sT[22]}:{sT[23]}], s{sNON}, v{b + t}")
                a(f"s_or_b64 vcc, vcc, s[{sT[22]}:{sT[23]}]")
            a(f"s_cbranch_vccz {D}")
        a(f"s_add_u32 s{cnt}, s{cnt}, 1\ns_cmp_lt_u32 s{cnt}, {SPIN_LIMIT}\ns_cbranch_scc1 {L}")
        self.bail(err)
        a.label(D)

    def one_lane_store(self, soff_s, vval):
        a = self.a
        a(f"s_mov_b64 exec, 1\nbuffer_store_dword v{vval}, v{vLANE}, {WSR}, s{soff_s} offen sc1\ns_mov_b64 exec, -1")

    def wave_flag(self, base):
        a = self.a
        a(f"s_lshl_b32 s{sT[0]}, s{sL}, 3\ns_add_u32 s{sT[0]}, s{sT[0]}, s{sW}\ns_lshl_b32 s{sT[0]}, s{sT[0]}, 2\ns_add_u32 s{sT[0]}, s{sT[0]}, {base}")
        a(f"v_mov_b32 v255, s{sNON}")
        a("s_waitcnt vmcnt(0)")
        self.one_lane_store(sT[0], 255)

    def bf16_round(self, dst, src):
        self.a(f"v_cvt_pk_bf16_f32 v{dst}, v{src}, v{src}\nv_and_b32 v{dst}, 0xffff0000, v{dst}")

    def dma_run(self, srd_s, voff, soff, lds, n, extra=""):
        a = self.a
        a(f"s_mov_b32 m0, {lds}")
        for k in range(n):
            a(f"buffer_load_dwordx4 v{voff}, s[{srd_s}:{srd_s+3}], s{soff} offen offset:{k*1024}{extra} lds")

    L1_H = 0; L1_WQ2 = 81920; L1_WKV = 128000; L1_GS = 153600; L1_NS = 158720; L1_SCR = 160000
    NQ1 = 22
    vX = 8; vXN = 48; vWQ = 128
    vWA, vC1 = 216, 228

    def prologue(self):
        a = self.a
        a(f"s_cmp_ge_u32 s2, 256\ns_cbranch_scc1 L_END")
        a("s_load_dwordx16 s[32:47], s[0:1], 0\ns_load_dwordx8 s[48:55], s[0:1], 64\ns_load_dwordx4 s[56:59], s[0:1], 96")
        a(f"v_and_b32 v{vLANE}, 63, v0\nv_lshrrev_b32 v8, 6, v0")
        a(f"s_and_b32 s{sXC}, s2, 7\ns_lshr_b32 s{sJ}, s2, 3")
        a(f"v_readfirstlane_b32 s{sW}, v8")
        a(f"s_lshl_b32 s{sL}, s{sXC}, 5\ns_add_u32 s{sL}, s{sL}, s{sJ}")
        a(f"v_lshlrev_b32 v{vL16}, 4, v{vLANE}")
        a(f"s_lshr_b32 s{sG}, s{sL}, 4\ns_and_b32 s{sM}, s{sL}, 15\ns_lshr_b32 s{sI}, s{sL}, 3\ns_and_b32 s{sHG}, s{sL}, 7")
        a(f"s_and_b32 s{sW4}, s{sW}, 3\ns_lshr_b32 s{sKH}, s{sW}, 2\ns_lshl_b32 s{sWK}, s{sW}, 10")
        a(f"s_lshl_b32 s{sRBG}, s{sI}, 2\ns_add_u32 s{sRBG}, s{sRBG}, s{sW4}")
        a(f"v_and_b32 v243, 31, v{vLANE}\ns_lshl_b32 s{sT[0]}, s{sW}, 5\nv_add_u32 v243, s{sT[0]}, v243")
        a(f"v_lshlrev_b32 v244, 1, v243")
        a(f"s_movk_i32 s{sT[0]}, 7680\nv_mul_u32_u24 v243, s{sT[0]}, v243\nv_lshrrev_b32 v245, 5, v{vLANE}\nv_lshl_add_u32 v243, v245, 4, v243")
        a(f"s_lshl_b32 s{sT[5]}, s{sL}, 5\ns_cmp_lt_u32 s{sL}, 240\ns_cselect_b32 s{sT[5]}, s{sT[5]}, 0x7000000")
        a(f"v_mov_b32 v246, 0")
        a("s_waitcnt lgkmcnt(0)")
        srd(a, S_B, P_WMOD, 640 * 7680)
        for it in range(3):
            a(f"buffer_load_dwordx4 {vr(self.vWA+4*it,4)}, v243, s[{S_B}:{S_B+3}], s{sT[5]} offen")
            if it < 2: a(f"v_add_u32 v243, {256*7680}, v243")
        srd(a, S_A, P_CC, 1280)
        for it in range(3):
            a(f"buffer_load_ushort v{self.vC1+it}, v244, s[{S_A}:{S_A+3}], 0 offen offset:{it*512}")
        srd(a, S_WS, P_WS, WS_USED)
        a(f"buffer_load_dword v242, v246, {WSR}, 0 offen sc1")
        a("s_barrier")
        srd(a, S_X, P_X, 2048 * 1280)
        a(f"v_lshrrev_b32 v245, 4, v{vLANE}\nv_and_b32 v246, 15, v{vLANE}")
        a(f"s_lshl_b32 s{sT[8]}, s{sI}, 3\ns_add_u32 s{sT[8]}, s{sT[8]}, s{sW}\ns_mul_i32 s{sT[8]}, s{sT[8]}, {8*1280}")
        a(f"v_mul_u32_u24 v245, 1280, v245\nv_lshl_add_u32 v245, v246, 4, v245\nv_add_u32 v246, {4*1280}, v245")
        for it in range(2):
            for c in range(5):
                a(f"buffer_load_dwordx4 {vr(self.vX + (it*5+c)*4, 4)}, v{245+it}, s[{S_X}:{S_X+3}], s{sT[8]} offen offset:{c*256}")
        a("s_barrier")
        a(f"s_cmp_lt_u32 s{sHG}, 4\ns_cselect_b32 s{S_C}, s{P_WK}, s{P_WV}\ns_cselect_b32 s{S_C+1}, s{P_WK+1}, s{P_WV+1}")
        a(f"s_mov_b32 s{S_C+2}, 25600\ns_mov_b32 s{S_C+3}, 0x20000")
        a(f"s_lshl_b32 s{sT[3]}, s{sW}, 12\ns_add_u32 s{sT[4]}, s{sT[3]}, {self.L1_WKV}")
        E1, E2 = a.new("Lkv"), a.new("Lkv")
        a(f"s_cmp_ge_u32 s{sW}, 6\ns_cbranch_scc1 {E1}")
        self.dma_run(S_C, vL16, sT[3], f"s{sT[4]}", 4)
        a(f"s_branch {E2}")
        a.label(E1)
        a(f"s_cmp_eq_u32 s{sW}, 7\ns_cbranch_scc1 {E2}")
        self.dma_run(S_C, vL16, sT[3], f"s{sT[4]}", 1)
        a.label(E2)
        a(f"s_mov_b32 s{sT[0]}, 0x1999999a")
        for ph in range(5):
            r = vO160[ph]
            a(f"v_add_u32 v248, {64*ph}, v{vLANE}\nv_mul_hi_u32 v249, v248, s{sT[0]}")
            a(f"v_mul_u32_u24 v250, {1280-160}, v249\nv_lshl_add_u32 v250, v248, 4, v250")
            a(f"v_add_u32 v{r}, {4096 - (1024*ph if ph < 4 else 0)}, v250")
        a(f"s_sub_u32 s{S_A}, s{P_WQ}, 4096\ns_subb_u32 s{S_A+1}, s{P_WQ+1}, 0\ns_mov_b32 s{S_A+2}, {640*1280+4096}\ns_mov_b32 s{S_A+3}, 0x20000")
        a(f"s_mul_i32 s{sT[3]}, s{sW}, 40960\ns_mul_i32 s{sT[4]}, s{sHG}, 160\ns_add_u32 s{sT[3]}, s{sT[3]}, s{sT[4]}")
        a(f"s_mul_i32 s{sT[4]}, s{sW}, 5120")
        for j in range(3):
            E = None
            if j == 1:
                a(f"s_add_u32 s{sT[3]}, s{sT[3]}, {8*40960}\ns_add_u32 s{sT[4]}, s{sT[4]}, {8*5120}")
                a(f"s_cmp_ge_u32 s{sW}, 3\ns_cselect_b32 s{sT[5]}, {self.L1_WQ2 - 11*5120}, 0\ns_add_u32 s{sT[4]}, s{sT[4]}, s{sT[5]}")
            if j == 2:
                E = a.new("Lq")
                a(f"s_cmp_ge_u32 s{sW}, 4\ns_cbranch_scc1 {E}")
                a(f"s_add_u32 s{sT[3]}, s{sT[3]}, {8*40960}\ns_mul_i32 s{sT[4]}, s{sW}, 5120\ns_add_u32 s{sT[4]}, s{sT[4]}, {self.L1_WQ2 + 5*5120}")
            a(f"s_mov_b32 m0, s{sT[4]}")
            for ph in range(4):
                a(f"buffer_load_dwordx4 v{vO160[ph]}, s[{S_A}:{S_A+3}], s{sT[3]} offen offset:{ph*1024} lds")
            a(f"s_add_u32 m0, s{sT[4]}, 4096")
            a(f"buffer_load_dwordx4 v{vO160[4]}, s[{S_A}:{S_A+3}], s{sT[3]} offen lds")
            if E: a.label(E)
        self.dma_min = 10
        E = a.new("Lcp"); GP = a.new("Lpc")
        a(f"s_cmp_lt_u32 s{sW}, 6\ns_cbranch_scc1 {E}")
        a(f"s_getpc_b64 s[{sT[2]}:{sT[3]}]")
        a.label(GP)
        a(f"s_lshl_b32 s{sT[4]}, s{sJ}, 1\ns_add_u32 s{sT[4]}, s{sT[4]}, s{sW}\ns_sub_u32 s{sT[4]}, s{sT[4]}, 6\ns_lshl_b32 s{sT[4]}, s{sT[4]}, 10")
        a(f"v_add_u32 v208, s{sT[4]}, v{vL16}\nv_min_u32 v208, L_END - {GP} - 16, v208")
        a(f"global_load_dwordx4 v[208:211], v208, s[{sT[2]}:{sT[3]}]")
        a.label(E)
        srd(a, S_OUT, P_OUT, 2048 * 1280)

    def p0(self):
        a = self.a
        a.c("---- P0: modulation GEMV (16 columns per workgroup) ----")
        a(f"s_waitcnt vmcnt({10 + self.dma_min})")
        a(f"v_readfirstlane_b32 s{sNON}, v242")
        acc = 244
        for it in range(3):
            c = self.vC1 + it
            a(f"v_lshlrev_b32 v{c}, 16, v{c}\nv_mul_f32 v{232+it}, 0xbfb8aa3b, v{c}")
        for it in range(3): a(f"v_exp_f32 v{232+it}, v{232+it}")
        a(f"s_add_u32 s{sNON}, s{sNON}, 1\ns_cmp_eq_u32 s{sNON}, 0\ns_cselect_b32 s{sNON}, 1, s{sNON}")
        for it in range(3): a(f"v_add_f32 v{232+it}, 1.0, v{232+it}")
        for it in range(3): a(f"v_rcp_f32 v{232+it}, v{232+it}")
        for it in range(3): a(f"v_mul_f32 v{232+it}, v{self.vC1+it}, v{232+it}")
        for it in range(3):
            a(f"v_cvt_pk_bf16_f32 v{235+it}, v{232+it}, 0\nv_cvt_pk_bf16_f32 v{238+it}, 0, v{232+it}")
        for it in range(3):
            w = self.vWA + 4 * it
            for j in range(4):
                c0 = "0" if it == 0 else f"v{acc+2*j}"; c1 = "0" if it == 0 else f"v{acc+2*j+1}"
                a(f"v_dot2_f32_bf16 v{acc+2*j}, v{w+j}, v{235+it}, {c0}\nv_dot2_f32_bf16 v{acc+2*j+1}, v{w+j}, v{238+it}, {c1}")
        for sh in (1, 2, 4, 8):
            for j in range(8):
                a(f"v_add_f32_dpp v{acc+j}, v{acc+j}, v{acc+j} row_shr:{sh} row_mask:0xf bank_mask:0xf bound_ctrl:0")
        for j in range(8):
            a(f"v_add_f32_dpp v{acc+j}, v{acc+j}, v{acc+j} row_bcast:15 row_mask:0xa bank_mask:0xf")
        a(f"v_lshrrev_b32 v252, 5, v{vLANE}\ns_lshl_b32 s{sT[2]}, s{sW}, 2\ns_add_u32 s{sT[2]}, s{sT[2]}, {self.L1_SCR}\nv_lshl_add_u32 v252, v252, 8, s{sT[2]}")
        a("s_mov_b32 exec_lo, 0x80000000\ns_mov_b32 exec_hi, 0x80000000")
        for j in range(8):
            a(f"ds_write_b32 v252, v{acc+j} offset:{j*32}")
        a("s_mov_b64 exec, -1")
        a("s_waitcnt lgkmcnt(0)\ns_barrier")
        E = a.new("Lp0e")
        a(f"s_cmp_lg_u32 s{sW}, 0\ns_cbranch_scc1 {E}\ns_cmp_ge_u32 s{sL}, 240\ns_cbranch_scc1 {E}")
        a(f"v_and_b32 v246, 15, v{vLANE}\nv_lshlrev_b32 v246, 5, v246\nv_add_u32 v246, {self.L1_SCR}, v246")
        a("ds_read_b128 v[248:251], v246\nds_read_b128 v[244:247], v246 offset:16")
        a(f"s_mov_b32 s{sT[2]}, 0")
        a(f"s_cmp_ge_u32 s{sL}, 40\ns_cselect_b32 s{sT[2]}, 1.0, s{sT[2]}\ns_cmp_ge_u32 s{sL}, 80\ns_cselect_b32 s{sT[2]}, 0, s{sT[2]}")
        a(f"s_cmp_ge_u32 s{sL}, 160\ns_cselect_b32 s{sT[2]}, 1.0, s{sT[2]}\ns_cmp_ge_u32 s{sL}, 200\ns_cselect_b32 s{sT[2]}, 0, s{sT[2]}")
        a("s_waitcnt lgkmcnt(0)")
        a("v_add_f32 v244, v244, v248\nv_add_f32 v245, v245, v249\nv_add_f32 v246, v246, v250\nv_add_f32 v247, v247, v251")
        a("v_add_f32 v244, v244, v245\nv_add_f32 v246, v246, v247\nv_add_f32 v244, v244, v246")
        self.bf16_round(244, 244)
        a(f"v_add_f32 v244, s{sT[2]}, v244")
        self.bf16_round(244, 244)
        a(f"v_mov_b32_dpp v245, v244 quad_perm:[1,0,3,2] row_mask:0xf bank_mask:0xf")
        a(f"v_lshrrev_b32 v247, 16, v244\nv_or_b32 v248, v247, v245")
        R = a.new("Lp0r")
        a(f"v_lshlrev_b32 v246, 2, v{vLANE}\nv_mov_b32 v249, s{sNON}")
        a(f"s_cmp_ge_u32 s{sL}, 80\ns_cbranch_scc1 {R}")
        a(f"s_lshl_b32 s{sT[1]}, s{sL}, 6\ns_add_u32 s{sT[1]}, s{sT[1]}, {WS_MODG}")
        a("s_mov_b32 exec_lo, 0x5555\ns_mov_b32 exec_hi, 0")
        a(f"buffer_store_dwordx2 v[248:249], v246, {WSR}, s{sT[1]} offen sc1")
        a(f"s_mov_b64 exec, -1\ns_branch {E}")
        a.label(R)
        a(f"s_sub_u32 s{sT[1]}, s{sL}, 80\ns_lshl_b32 s{sT[2]}, s{sT[1]}, 6\ns_add_u32 s{sT[2]}, s{sT[2]}, {WS_MODR}")
        a("s_mov_b32 exec_lo, 0xffff\ns_mov_b32 exec_hi, 0")
        a(f"buffer_store_dword v244, v246, {WSR}, s{sT[2]} offen sc1")
        EB = a.new("Lmodb")
        a(f"s_cmp_lt_u32 s{sL}, 120\ns_cbranch_scc1 {EB}\ns_cmp_ge_u32 s{sL}, 200\ns_cbranch_scc1 {EB}")
        a(f"s_sub_u32 s{sT[2]}, s{sL}, 120\ns_lshl_b32 s{sT[2]}, s{sT[2]}, 5\ns_add_u32 s{sT[2]}, s{sT[2]}, {WS_MODB}")
        a(f"v_lshlrev_b32 v246, 1, v{vLANE}\ns_mov_b32 exec_lo, 0x5555")
        a(f"buffer_store_dword v248, v246, {WSR}, s{sT[2]} offen sc1")
        a.label(EB)
        a(f"s_lshl_b32 s{sT[2]}, s{sT[1]}, 2\ns_add_u32 s{sT[2]}, s{sT[2]}, {F_MODR}")
        a("s_waitcnt vmcnt(0)")
        self.one_lane_store(sT[2], 249)
        a.label(E)

    def row16_allreduce(self, regs, op="v_add_f32", steps=(8, 4, 2, 1)):
        for sh in steps:
            for r in regs:
                self.a(f"{op}_dpp v{r}, v{r}, v{r} row_ror:{sh} row_mask:0xf bank_mask:0xf")

    def ln_stats(self):
        a = self.a
        a.c("---- LN1 statistics ----")
        a(f"s_waitcnt vmcnt({self.dma_min})")
        X, N = self.vX, self.vXN
        ONE = 240
        a(f"v_mov_b32 v{ONE}, 0x3f803f80")
        for q in range(20):
            for it in range(2):
                sa_, sq_ = 232 + 2 * it + (q & 1), 236 + 2 * it + (q & 1)
                x = X + it * 20 + q
                a(f"v_dot2_f32_bf16 v{sa_}, v{x}, v{ONE}, {'0' if q < 2 else 'v%d' % sa_}")
                a(f"v_dot2_f32_bf16 v{sq_}, v{x}, v{x}, {'0' if q < 2 else 'v%d' % sq_}")
        a("v_add_f32 v232, v232, v233\nv_add_f32 v234, v234, v235\nv_add_f32 v236, v236, v237\nv_add_f32 v238, v238, v239")
        self.row16_allreduce([232, 234, 236, 238])
        a(f"s_mov_b32 s{sT[0]}, 0x3acccccd")
        for it in range(2):
            m, q, r = 232 + 2 * it, 236 + 2 * it, 242 + 4 * it
            a(f"v_mul_f32 v{m}, s{sT[0]}, v{m}\nv_mul_f32 v{q}, s{sT[0]}, v{q}")
            a(f"v_fma_f32 v{q}, -v{m}, v{m}, v{q}\nv_max_f32 v{q}, 0, v{q}\nv_add_f32 v{q}, 0x3727c5ac, v{q}\nv_rsq_f32 v{r}, v{q}")
        for it in range(2):
            m, r = 232 + 2 * it, 242 + 4 * it
            a(f"v_mov_b32 v{r+1}, v{r}\nv_mul_f32 v{r+2}, -v{m}, v{r}\nv_mul_f32 v{r+3}, -v{m}, v{r}")
        for it in range(2):
            r = 242 + 4 * it
            for q in range(20):
                d = N + it * 40 + 2 * q
                a(f"v_lshlrev_b32 v{d}, 16, v{X+it*20+q}\nv_and_b32 v{d+1}, 0xffff0000, v{X+it*20+q}")
            for q in range(20):
                d = N + it * 40 + 2 * q
                a(f"v_pk_fma_f32 {vr(d,2)}, {vr(d,2)}, {vr(r,2)}, {vr(r+2,2)}")

    def emit_wq_addr(self, d, base):
        a = self.a
        a(f"v_lshrrev_b32 v{d}, 5, v{vLANE}\nv_bfe_u32 v{d+1}, v{vLANE}, 2, 2\nv_lshl_add_u32 v{d}, v{d}, 3, v{d+1}")
        a(f"v_bfe_u32 v{d+1}, v{vLANE}, 4, 1\nv_lshlrev_b32 v{d+1}, 5, v{d+1}\nv_mad_u32_u24 v{d}, v{d}, s{sT[19]}, v{d+1}")
        a(f"v_and_b32 v{d+1}, 3, v{vLANE}\nv_lshl_add_u32 v{d}, v{d+1}, 3, v{d}")
        a(f"s_mul_i32 s{sT[0]}, s{sW4}, 40\ns_add_u32 s{sT[0]}, s{sT[0]}, {base}\nv_add_u32 v{d}, s{sT[0]}, v{d}")

    def wq_to_regs(self):
        a = self.a
        a.c("---- wq part 1 -> registers ----")
        a(f"s_movk_i32 s{sT[19]}, 160")
        self.emit_wq_addr(8, self.L1_H)
        a("s_waitcnt vmcnt(0)\ns_barrier")
        for s in range(self.NQ1):
            a(f"ds_read_b64_tr_b16 {vr(self.vWQ+4*s,2)}, v8 offset:{s*16*160}")
            a(f"ds_read_b64_tr_b16 {vr(self.vWQ+4*s+2,2)}, v8 offset:{s*16*160 + 4*160}")

    def mod_poll_apply(self):
        a = self.a
        a.c("---- wait for sa/ca granules, LN apply ----")
        a(f"v_and_b32 v8, 15, v{vLANE}\nv_lshlrev_b32 v9, 5, v8\nv_add_u32 v9, {self.L1_GS}, v9")
        a(f"v_lshrrev_b32 v10, 4, v{vLANE}\ns_lshl_b32 s{sT[0]}, s{sW}, 3\nv_add_u32 v10, s{sT[0]}, v10")
        for it in range(2):
            if it: a("v_add_u32 v10, 4, v10")
            a(f"v_and_b32 v11, 15, v10\nv_xor_b32 v11, v11, v8\nv_lshlrev_b32 v11, 4, v11")
            a(f"v_mad_u32_u24 v{12+it}, v10, s{sT[18]}, v11".replace(f"s{sT[18]}", "v14") if False else f"v_mul_u32_u24 v{12+it}, 1280, v10\nv_add_u32 v{12+it}, v{12+it}, v11")
        self.kv_addr()
        self.q_addr()
        E = a.new("Lmp")
        a(f"s_cmp_ge_u32 s{sW}, 5\ns_cbranch_scc1 {E}")
        a(f"v_lshlrev_b32 v15, 4, v0")
        a(f"s_mov_b32 s{sT[1]}, {WS_MODG}")
        self.poll(15, 16, n=4, tagpos=(1, 3), err=1, soff=f"s{sT[1]}", depth=1)
        a("v_lshlrev_b32 v20, 16, v16\nv_and_b32 v21, 0xffff0000, v16\nv_lshlrev_b32 v22, 16, v18\nv_and_b32 v23, 0xffff0000, v18")
        a(f"v_add_u32 v24, {self.L1_GS}, v15\nds_write_b128 v24, v[20:23]")
        a("v_xor_b32 v16, 0x80008000, v16\nv_xor_b32 v17, 0x80008000, v18")
        a(f"v_lshrrev_b32 v24, 1, v15\nv_add_u32 v24, {self.L1_NS}, v24\nv_cmp_gt_u32 vcc, 160, v0")
        a(f"s_and_saveexec_b64 s[{sT[22]}:{sT[23]}], vcc\nds_write_b64 v24, v[16:17]\ns_mov_b64 exec, -1")
        a.label(E)
        a("s_waitcnt lgkmcnt(0)\ns_barrier")
        def rd(c, b):
            a(f"ds_read_b128 v[{b}:{b+3}], v9 offset:{c*512}\nds_read_b128 v[{b+4}:{b+7}], v9 offset:{c*512 + 16}")
            a(f"ds_read_b128 v[{b+8}:{b+11}], v9 offset:{2560 + c*512}\nds_read_b128 v[{b+12}:{b+15}], v9 offset:{2560 + c*512 + 16}")
        rd(0, 16)
        for c in range(5):
            b = 16 if c % 2 == 0 else 32
            if c + 1 < 5:
                rd(c + 1, 48 - b)
                a("s_waitcnt lgkmcnt(4)" if c == 0 else "s_waitcnt lgkmcnt(6)")
            else: a("s_waitcnt lgkmcnt(2)")
            for it in range(2):
                x = self.vXN + it * 40 + c * 8
                for j in range(4):
                    a(f"v_pk_fma_f32 {vr(x+2*j,2)}, {vr(x+2*j,2)}, {vr(b+8+2*j,2)}, {vr(b+2*j,2)}")
            for it in range(2):
                x = self.vXN + it * 40 + c * 8
                for j in range(4):
                    a(f"v_cvt_pk_bf16_f32 v{x+j}, v{x+2*j}, v{x+2*j+1}")
                a(f"ds_write_b128 v{12+it}, {vr(x,4)} offset:{self.L1_H + c*256}")
        a("s_waitcnt lgkmcnt(0)\ns_barrier")

    def sum_groups(self, r, t, op="v_add_f32"):
        a = self.a
        a(f"v_mov_b32 v{t}, v{r}\nv_permlane32_swap_b32 v{r}, v{t}\n{op} v{r}, v{r}, v{t}")
        a(f"v_mov_b32 v{t}, v{r}\nv_permlane16_swap_b32 v{r}, v{t}\n{op} v{r}, v{r}, v{t}")

    def kv_addr(self):
        a = self.a
        a(f"s_and_b32 s{sT[0]}, s{sHG}, 3\ns_lshl_b32 s{sT[0]}, s{sT[0]}, 4")
        a(f"v_and_b32 v232, 15, v{vLANE}\nv_lshrrev_b32 v233, 4, v{vLANE}")
        a(f"v_add_u32 v234, s{sT[0]}, v232\nv_mul_u32_u24 v234, 1280, v234")
        a(f"s_lshr_b32 s{sT[1]}, s{sW}, 1\ns_mul_i32 s{sT[2]}, s{sT[1]}, 5")
        a(f"s_lshl_b32 s{sT[3]}, s{sT[2]}, 2\nv_add_u32 v235, s{sT[3]}, v233")
        for j in range(5):
            a(f"v_add_u32 v236, {4*j}, v235\nv_xor_b32 v236, v236, v232\nv_lshl_add_u32 v{240+j}, v236, 4, v234")
        a(f"v_bfe_u32 v236, v{vLANE}, 2, 2\nv_lshl_add_u32 v236, v233, 3, v236\nv_mul_u32_u24 v236, 40, v236\nv_and_b32 v237, 3, v{vLANE}\nv_lshl_add_u32 v236, v237, 3, v236")
        a(f"s_and_b32 s{sT[3]}, s{sW}, 1\ns_lshl_b32 s{sT[3]}, s{sT[3]}, 5\ns_mul_i32 s{sT[4]}, s{sT[2]}, 1280\ns_add_u32 s{sT[3]}, s{sT[3]}, s{sT[4]}\ns_add_u32 s{sT[3]}, s{sT[3]}, {self.L1_WKV}\nv_add_u32 v236, s{sT[3]}, v236")
        a(f"s_lshl_b32 s{sT[3]}, s{sT[2]}, 6\ns_add_u32 s{sT[3]}, s{sT[3]}, {self.L1_NS}\nv_lshl_add_u32 v237, v233, 4, s{sT[3]}")

    def kv_proj(self):
        a = self.a
        a.c("---- K/V projection ----")
        for j in range(5):
            a(f"ds_read_b64_tr_b16 {vr(32+4*j,2)}, v236 offset:{j*1280}\nds_read_b64_tr_b16 {vr(34+4*j,2)}, v236 offset:{j*1280 + 160}")
            a(f"ds_read_b128 {vr(52+4*j,4)}, v{240+j} offset:{self.L1_H}")
        LV, LJ = a.new("Lvproj"), a.new("Lkvj")
        a(f"s_cmp_ge_u32 s{sHG}, 4\ns_cbranch_scc1 {LV}")
        a("s_waitcnt lgkmcnt(0)")
        for j in range(5): a(f"ds_read_b128 {vr(72+4*j,4)}, v237 offset:{j*64}")
        for j in range(5):
            a(f"v_mfma_f32_16x16x32_bf16 v[28:31], {vr(32+4*j,4)}, {vr(52+4*j,4)}, {'0' if j == 0 else 'v[28:31]'}")
        a("s_waitcnt lgkmcnt(0)")
        for j in range(5):
            a(f"v_mfma_f32_16x16x32_bf16 v[28:31], {vr(32+4*j,4)}, {vr(72+4*j,4)}, v[28:31]")
        a(f"s_branch {LJ}")
        a.label(LV)
        a("s_waitcnt lgkmcnt(0)")
        for j in range(5):
            a(f"v_mfma_f32_16x16x32_bf16 v[28:31], {vr(52+4*j,4)}, {vr(32+4*j,4)}, {'0' if j == 0 else 'v[28:31]'}")
        a.label(LJ)
        a(f"s_add_u32 s{sT[3]}, s{sWK}, {self.L1_WKV}\nv_add_u32 v18, s{sT[3]}, v{vL16}")
        a("s_barrier")
        a("ds_write_b128 v18, v[28:31]\ns_waitcnt lgkmcnt(0)\ns_barrier")
        E = a.new("Lkvend")
        a(f"s_cmp_ge_u32 s{sW}, 2\ns_cbranch_scc1 {E}")
        a("ds_read_b128 v[32:35], v18 offset:2048\nds_read_b128 v[36:39], v18 offset:4096\nds_read_b128 v[40:43], v18 offset:6144")
        a(f"s_and_b32 s{sT[2]}, s{sHG}, 3\ns_lshr_b32 s{sT[2]}, s{sT[2]}, 1\ns_lshl_b32 s{sT[3]}, s{sI}, 1\ns_add_u32 s{sT[2]}, s{sT[2]}, s{sT[3]}")
        a(f"s_mul_i32 s{sT[2]}, s{sT[2]}, {KV_TILE}\ns_add_u32 s{sT[2]}, s{sT[2]}, {WS_KV}\ns_and_b32 s{sT[3]}, s{sHG}, 1\ns_lshl_b32 s{sT[3]}, s{sT[3]}, 4")
        a("s_waitcnt lgkmcnt(0)")
        for r in range(4):
            a(f"v_add_f32 v{32+r}, v{32+r}, v{36+r}\nv_add_f32 v{28+r}, v{28+r}, v{40+r}")
        for r in range(4): a(f"v_add_f32 v{28+r}, v{28+r}, v{32+r}")
        a("v_cvt_pk_bf16_f32 v24, v28, v29\nv_cvt_pk_bf16_f32 v25, v30, v31")
        LV, LJ, W1 = a.new("Lv2"), a.new("Lj2"), a.new("Lw1")
        a(f"s_cmp_ge_u32 s{sHG}, 4\ns_cbranch_scc1 {LV}")
        a("v_dot2_f32_bf16 v26, v24, v24, 0\nv_dot2_f32_bf16 v26, v25, v25, v26")
        a(f"s_cmp_eq_u32 s{sW}, 1\ns_cbranch_scc1 {W1}")
        self.sum_groups(26, 27)
        a(f"v_add_u32 v30, s{sT[3]}, v232\nv_and_b32 v31, 1, v233\nv_lshl_add_u32 v30, v31, 5, v30\nv_lshlrev_b32 v30, 4, v30")
        a(f"v_lshrrev_b32 v31, 1, v233\nv_lshl_add_u32 v30, v31, 3, v30")
        a(f"buffer_store_dwordx2 v[24:25], v30, {WSR}, s{sT[2]} offen sc1")
        a(f"s_branch {LJ}")
        a.label(W1)
        a(f"v_cmp_gt_u32 vcc, 16, v{vLANE}\nv_cndmask_b32 v26, 0, v26, vcc")
        a(f"v_add_u32 v30, s{sT[3]}, v232\nv_lshlrev_b32 v30, 3, v30")
        a("s_mov_b32 exec_lo, 0xffff\ns_mov_b32 exec_hi, 0")
        a(f"buffer_store_dwordx2 v[24:25], v30, {WSR}, s{sT[2]} offen offset:3072 sc1")
        a(f"s_mov_b64 exec, -1\ns_branch {LJ}")
        a.label(LV)
        a("v_max_f32 v26, |v28|, |v29|\nv_max_f32 v27, |v30|, |v31|\nv_max_f32 v26, v26, v27")
        a(f"s_lshl_b32 s{sT[1]}, s{sW}, 4\nv_add_u32 v27, s{sT[1]}, v232")
        a("v_cmp_gt_u32 vcc, 20, v27\nv_cndmask_b32 v26, 0, v26, vcc")
        a("v_mov_b32 v28, 0x3f803f80\nv_and_b32 v29, 27, v27")
        a(f"v_cmp_eq_u32 vcc, 20, v27\nv_cmp_eq_u32 s[{sT[22]}:{sT[23]}], 24, v27\ns_or_b64 vcc, vcc, s[{sT[22]}:{sT[23]}]")
        a("v_cndmask_b32 v24, v24, v28, vcc\nv_cndmask_b32 v25, v25, v28, vcc")
        a(f"s_lshl_b32 s{sT[3]}, s{sT[3]}, 6\ns_add_u32 s{sT[2]}, s{sT[2]}, s{sT[3]}")
        a("v_and_b32 v31, 1, v233\nv_lshl_add_u32 v30, v31, 5, v27\nv_lshlrev_b32 v30, 4, v30\nv_lshrrev_b32 v31, 1, v233\nv_lshl_add_u32 v30, v31, 3, v30")
        a(f"buffer_store_dwordx2 v[24:25], v30, {WSR}, s{sT[2]} offen offset:1024 sc1")
        a.label(LJ)
        self.row16_allreduce([26], "v_max_f32")
        self.sum_groups(26, 27, "v_max_f32")
        a(f"s_lshl_b32 s{sT[2]}, s{sL}, 4\ns_lshl_b32 s{sT[3]}, s{sW}, 3\ns_add_u32 s{sT[2]}, s{sT[2]}, s{sT[3]}\ns_add_u32 s{sT[2]}, s{sT[2]}, {F_KV}")
        a(f"v_mov_b32 v28, s{sNON}\nv_mov_b32 v29, v26\nv_mov_b32 v30, 0")
        a("s_waitcnt vmcnt(0)\ns_mov_b64 exec, 1")
        a(f"buffer_store_dwordx2 v[28:29], v30, {WSR}, s{sT[2]} offen sc1")
        a("s_mov_b64 exec, -1")
        a.label(E)

    vQ1, vQ2 = 8, 12
    vO = 16
    vS = [32, 48]
    vP = 64
    vK1 = [72, 76]; vK2 = [80, 84]; vV1 = [88, 92]; vV2 = [96, 100]
    vAK = [104, 105]; vAK2 = [106, 107]
    vQN = 108; vK2L = 109
    L2_KV = 0; L2_WO = 53248; L2_UT = 0; L2_SCR = 0; L2_MISC = 162816
    CH = 4 * KV_TILE

    def q_addr(self):
        a = self.a
        a(f"s_lshl_b32 s{sT[0]}, s{sKH}, 5\nv_and_b32 v238, 31, v{vLANE}\nv_add_u32 v238, s{sT[0]}, v238")
        a(f"v_and_b32 v239, 15, v238\nv_mul_u32_u24 v238, 1280, v238\nv_lshrrev_b32 v226, 5, v{vLANE}\nv_xor_b32 v239, v239, v226")
        for q in range(8):
            a(f"v_xor_b32 v227, {2*q}, v239\nv_lshl_add_u32 v{216+q}, v227, 4, v238")
        self.emit_wq_addr(224, self.L1_WQ2)

    def q_proj(self):
        a = self.a
        a.c("---- Q projection: D[m=dim][n=row] ----")
        acc = 16
        def ldB(s): a(f"ds_read_b128 {vr(48+4*(s%3),4)}, v{216+s%8} offset:{self.L1_H + (s//8)*256}")
        def ldA(s):
            o = (s - self.NQ1) * 16 * 160
            a(f"ds_read_b64_tr_b16 {vr(64+4*(s%3),2)}, v224 offset:{o}\nds_read_b64_tr_b16 {vr(66+4*(s%3),2)}, v224 offset:{o+640}")
        def cnt(s): return 0 if s >= 40 else (1 + (2 if s >= self.NQ1 else 0))
        def ld(s):
            if s < 40:
                ldB(s)
                if s >= self.NQ1: ldA(s)
        ld(0); ld(1)
        for s in range(40):
            ld(s + 2)
            a(f"s_waitcnt lgkmcnt({cnt(s+1) + cnt(s+2)})")
            A = vr(self.vWQ + 4 * s, 4) if s < self.NQ1 else vr(64 + 4 * (s % 3), 4)
            a(f"v_mfma_f32_32x32x16_bf16 {vr(acc,16)}, {A}, {vr(48+4*(s%3),4)}, {'0' if s == 0 else vr(acc,16)}")
        a(f"s_mov_b32 s{sT[0]}, 0x3ea52b8e")
        for j in range(12): a(f"v_mul_f32 v{acc+j}, s{sT[0]}, v{acc+j}")
        for j in range(4): a(f"v_cvt_pk_bf16_f32 v{self.vQ1+j}, v{acc+2*j}, v{acc+2*j+1}")
        a(f"v_cvt_pk_bf16_f32 v{self.vQ2}, v{acc+8}, v{acc+9}\nv_cvt_pk_bf16_f32 v{self.vQ2+1}, v{acc+10}, v{acc+11}")
        a(f"v_cmp_gt_u32 vcc, 32, v{vLANE}")
        a(f"v_mov_b32 v{self.vQ2+2}, 0\nv_mov_b32 v{self.vQ2+3}, 0")
        a(f"v_cndmask_b32 v{self.vQ2}, 0, v{self.vQ2}, vcc\nv_cndmask_b32 v{self.vQ2+1}, 0, v{self.vQ2+1}, vcc")
        N = self.vQN
        regs = [self.vQ1 + j for j in range(4)] + [self.vQ2, self.vQ2 + 1]
        for i, r in enumerate(regs):
            a(f"v_dot2_f32_bf16 v{N}, v{r}, v{r}, {'0' if i == 0 else 'v%d' % N}")
        a(f"v_mov_b32 v40, v{N}\nv_permlane32_swap_b32 v{N}, v40\nv_add_f32 v{N}, v{N}, v40")
        a(f"v_sqrt_f32 v{N}, v{N}")

    def kv_piece(self, src_s, slot, half):
        L = [f"s_add_u32 m0, s{sT[18]}, {slot*self.CH}"]
        for k in (2 * half, 2 * half + 1):
            L.append(f"buffer_load_dwordx4 v{vL16}, {WSR}, s{src_s} offen offset:{k*1024} sc1 lds")
        if half == 1: L.append(f"s_add_u32 s{src_s}, s{src_s}, {self.CH}")
        return L

    def kv_dma(self, src_s, slot):
        for k in range(2):
            for x in self.kv_piece(src_s, slot, k): self.a(x)

    def ld_k(self, b, t):
        o = (t % 16) * KV_TILE
        self.a(f"ds_read_b128 {vr(self.vK1[b],4)}, v{vL16} offset:{o}\nds_read_b64 {vr(self.vK2[b],2)}, v{self.vK2L} offset:{o + 3072}")
    def ld_v1(self, b, t): self.a(f"ds_read_b128 {vr(self.vV1[b],4)}, v{vL16} offset:{(t % 16)*KV_TILE + 1024}")
    def ld_v2(self, b, t): self.a(f"ds_read_b128 {vr(self.vV2[b],4)}, v{vL16} offset:{(t % 16)*KV_TILE + 2048}")
    def qk(self, kb, sb, part):
        S = vr(self.vS[sb], 16)
        if part == 0: self.a(f"v_mfma_f32_32x32x16_bf16 {S}, {vr(self.vK1[kb],4)}, {vr(self.vQ1,4)}, 0")
        else: self.a(f"v_mfma_f32_32x32x16_bf16 {S}, {vr(self.vK2[kb],4)}, {vr(self.vQ2,4)}, {S}")

    def attn_setup(self):
        a = self.a
        a.c("---- attention: wait for K/V, bounds, stand-in for the row max ----")
        a("s_waitcnt lgkmcnt(0)\ns_barrier")
        a(f"s_lshl_b32 s{sT[18]}, s{sW4}, 12\ns_cmp_eq_u32 s{sW4}, 3\ns_cselect_b32 s{sT[18]}, 9216, s{sT[18]}")
        a(f"s_add_u32 s{sT[17]}, s{sT[18]}, {WS_KV}")
        if self.stop >= 3:
            import g3b
            g3b.bg_setup(self)
        a(f"v_lshlrev_b32 v111, 6, v{vLANE}\ns_mov_b32 s{sT[1]}, {F_KV}")
        L, D = a.new("Lkvp"), a.new("Lkvd")
        cnt = sT[20]
        a(f"s_mov_b32 s{cnt}, 0")
        a.label(L)
        for j in range(4): a(f"buffer_load_dwordx4 {vr(112+4*j,4)}, v111, {WSR}, s{sT[1]} offen offset:{16*j} sc1")
        a("s_waitcnt vmcnt(0)")
        a(f"v_xor_b32 v128, s{sNON}, v112\nv_xor_b32 v129, s{sNON}, v114")
        for j in range(1, 4):
            a(f"v_xor_b32 v130, s{sNON}, v{112+4*j}\nv_xor_b32 v131, s{sNON}, v{114+4*j}\nv_or3_b32 v128, v128, v130, v131")
        a("v_or_b32 v128, v128, v129\nv_cmp_ne_u32 vcc, 0, v128")
        a(f"s_cbranch_vccz {D}")
        a(f"s_add_u32 s{cnt}, s{cnt}, 1\ns_cmp_lt_u32 s{cnt}, {SPIN_LIMIT}\ns_cbranch_scc1 {L}")
        self.bail(2)
        a.label(D)
        self.stamp(31)
        E = a.new("Lfc")
        a(f"s_cmp_ge_u32 s{sW}, 4\ns_cbranch_scc1 {E}")
        for k in range(3):
            self.kv_dma(sT[17], k)
        a.label(E)
        a("v_max3_f32 v113, v113, v117, v121\nv_max3_f32 v115, v115, v119, v123\nv_max_f32 v113, v113, v125\nv_max_f32 v115, v115, v127")
        self.row16_allreduce([113, 115], "v_max_f32", steps=(8, 4, 2))
        self.sum_groups(113, 114, "v_max_f32"); self.sum_groups(115, 116, "v_max_f32")
        a(f"v_readlane_b32 s{sT[5]}, v113, 0\nv_readlane_b32 s{sT[6]}, v115, 0\nv_readlane_b32 s{sT[7]}, v113, 1\nv_readlane_b32 s{sT[8]}, v115, 1")
        a(f"v_mov_b32 v113, s{sT[5]}\nv_add_f32 v113, s{sT[6]}, v113\nv_sqrt_f32 v113, v113")
        a(f"v_mov_b32 v114, s{sT[7]}\nv_max_f32 v114, s{sT[8]}, v114")
        a(f"v_mul_f32 v113, 0x3f810000, v113\nv_mul_f32 v{self.vQN}, v{self.vQN}, v113")
        E = a.new("Lgen")
        a(f"s_or_b32 s{sT[0]}, s{sL}, s{sW}\ns_cmp_lg_u32 s{sT[0]}, 0\ns_cbranch_scc1 {E}")
        a(f"v_mov_b32 v112, s{sNON}\ns_mov_b32 s{sT[0]}, {WS_NONCE}")
        self.one_lane_store(sT[0], 112)
        a.label(E)
        for b in range(2):
            a(f"v_mov_b32 v{self.vK2[b]+2}, 0x3f803f80\nv_mov_b32 v{self.vK2[b]+3}, 0x00003f80")
        a(f"v_and_b32 v{self.vK2L}, 31, v{vLANE}\nv_lshlrev_b32 v{self.vK2L}, 3, v{self.vK2L}")
        a("s_waitcnt vmcnt(8)\ns_barrier")
        self.stamp(13) if os.environ.get("TSX") else None
        self.ld_k(0, 0)
        self.ld_k(1, 1)
        self.ld_v1(0, 0); self.ld_v2(0, 0)
        a("s_waitcnt lgkmcnt(4)")
        self.qk(0, 0, 0); self.qk(0, 0, 1)
        S = self.vS[0]
        U = self.vQN
        a(f"v_mov_b32 v115, 0x43300000\nv_mov_b32 v116, 0x4d000000")
        a(f"v_cmp_nlt_f32 s[{sT[22]}:{sT[23]}], v114, v116")
        a(f"v_max3_f32 v112, v{S}, v{S+1}, v{S+2}")
        for j in range(3, 15, 2): a(f"v_max3_f32 v112, v112, v{S+j}, v{S+j+1}")
        a(f"v_max_f32 v112, v112, v{S+15}")
        a("v_mov_b32 v113, v112\nv_permlane32_swap_b32 v112, v113\nv_max_f32 v112, v112, v113")
        a(f"v_sub_f32 v113, v{U}, v112\nv_cmp_nle_f32 vcc, v113, v115")
        a(f"s_or_b64 vcc, vcc, s[{sT[22]}:{sT[23]}]")
        a(f"s_cmp_lg_u64 vcc, 0\ns_cselect_b32 s{sT[12]}, 1, 0")
        if self.force_fallback: a(f"s_mov_b32 s{sT[12]}, 1")
        a(f"s_lshl_b32 s{sT[0]}, s{sW}, 2\ns_add_u32 s{sT[0]}, s{sT[0]}, {self.L2_MISC}")
        a(f"v_mov_b32 v113, s{sT[0]}\nv_mov_b32 v114, s{sT[12]}\nds_write_b32 v113, v114")
        a(f"v_add_f32 v112, v{U}, v112\nv_mul_f32 v112, 0.5, v112\nv_mov_b32 v113, {self.L2_MISC}")
        a("s_waitcnt lgkmcnt(0)\ns_barrier")
        a("ds_read_b128 v[116:119], v113\nds_read_b128 v[120:123], v113 offset:16\ns_waitcnt lgkmcnt(0)")
        a("v_or3_b32 v116, v116, v117, v118\nv_or3_b32 v119, v119, v120, v121\nv_or3_b32 v116, v116, v122, v123\nv_or_b32 v116, v116, v119")
        a(f"v_readfirstlane_b32 s{sT[12]}, v116")
        FB = a.new("Lnofb")
        a(f"s_cmp_eq_u32 s{sT[12]}, 0\ns_cbranch_scc1 {FB}")
        self.max_pass()
        a.label(FB)
        a("v_sub_f32 v112, 0, v112")
        a("v_cvt_pk_bf16_f32 v113, v112, v112\nv_and_b32 v114, 0xffff0000, v113\nv_sub_f32 v112, v112, v114")
        a("v_cvt_pk_bf16_f32 v115, v112, v112\nv_and_b32 v116, 0xffff0000, v115\nv_sub_f32 v112, v112, v116")
        a("v_cvt_pk_bf16_f32 v117, v112, 0")
        a("v_and_b32 v113, 0xffff, v113\nv_or_b32 v113, v113, v116")
        a(f"v_cmp_gt_u32 vcc, 32, v{vLANE}")
        a(f"v_cndmask_b32 v{self.vQ2+2}, 0, v113, vcc\nv_cndmask_b32 v{self.vQ2+3}, 0, v117, vcc")

    def max_pass(self):
        a = self.a
        a.c("fallback: exact row max")
        a("v_mov_b32 v112, 0xff7fffff")
        L = a.new("Lmx"); c = sT[13]
        a(f"s_add_u32 s{c}, s{sT[18]}, {WS_KV}\ns_mov_b32 s{sT[21]}, 0")
        a.label(L)
        E = a.new("Lmxd")
        a(f"s_cmp_ge_u32 s{sW}, 4\ns_cbranch_scc1 {E}")
        self.kv_dma(c, 3)
        a.label(E)
        a("s_waitcnt vmcnt(0)\ns_barrier")
        S = self.vS[1]
        for t in range(4):
            o = (12 + t) * KV_TILE
            a(f"ds_read_b128 v[120:123], v{vL16} offset:{o}\nds_read_b64 v[124:125], v{self.vK2L} offset:{o + 3072}")
            a(f"v_mov_b32 v126, 0\nv_mov_b32 v127, 0\ns_waitcnt lgkmcnt(0)")
            a(f"v_mfma_f32_32x32x16_bf16 {vr(S,16)}, v[120:123], {vr(self.vQ1,4)}, 0")
            a(f"v_mfma_f32_32x32x16_bf16 {vr(S,16)}, v[124:127], {vr(self.vQ2,4)}, {vr(S,16)}")
            for j in range(0, 16, 2): a(f"v_max3_f32 v112, v112, v{S+j}, v{S+j+1}")
        a("s_barrier")
        a(f"s_add_u32 s{sT[21]}, s{sT[21]}, 1\ns_cmp_lt_u32 s{sT[21]}, 16\ns_cbranch_scc1 {L}")
        a("v_mov_b32 v113, v112\nv_permlane32_swap_b32 v112, v113\nv_max_f32 v112, v112, v113")

    def attn_tile(self, t, h1=(), h2=()):
        a = self.a
        S = self.vS[t % 2]; Sp = self.vS[(t + 1) % 2]; P = self.vP
        def ex(j): a(f"v_exp_f32 v{S+j}, v{S+j}")
        def cv(j, b): a(f"v_cvt_pk_bf16_f32 v{P+j}, v{b+2*j}, v{b+2*j+1}")
        O = vr(self.vO, 16)
        ex(0); ex(1); cv(6, Sp); ex(2); cv(7, Sp); ex(3)
        a("s_waitcnt lgkmcnt(2)")
        self.qk((t + 1) % 2, (t + 1) % 2, 0)
        self.ld_k(t % 2, t + 2)
        ex(4); ex(5); cv(0, S); ex(6); cv(1, S); ex(7)
        self.qk((t + 1) % 2, (t + 1) % 2, 1)
        self.ld_v1((t + 1) % 2, t + 1)
        for x in h1: a(x)
        ex(8); ex(9); cv(2, S); ex(10); cv(3, S); ex(11)
        a(f"v_mfma_f32_32x32x16_bf16 {O}, {vr(self.vV2[(t+1)%2],4)}, {vr(P+4,4)}, {O}")
        self.ld_v2((t + 1) % 2, t + 1)
        for x in h2: a(x)
        ex(12); ex(13); cv(4, S); ex(14); cv(5, S); ex(15)
        a("s_waitcnt lgkmcnt(4)")
        a(f"v_mfma_f32_32x32x16_bf16 {O}, {vr(self.vV1[t%2],4)}, {vr(P,4)}, {O}")

    def attn_main(self):
        a = self.a
        a.c("---- attention main loop (unrolled, static background schedule) ----")
        src = sT[17]
        for j in range(16): a(f"v_mov_b32 v{self.vO+j}, 0")
        self.qk(0, 0, 0); self.qk(0, 0, 1)
        for j in range(12, 16): a(f"v_mov_b32 v{self.vS[1]+j}, 0")
        a(f"v_mov_b32 v{self.vP+4}, 0\nv_mov_b32 v{self.vP+5}, 0")
        for j in range(4): a(f"v_mov_b32 v{self.vV2[1]+j}, 0")
        a(f"s_cmp_ge_u32 s{sW}, 4\ns_cselect_b64 vcc, -1, 0")
        bg = {}
        def put(T, tag, ins, n=1, need=None, role=None): bg.setdefault(T, []).append((tag, ins, n, need, role))
        for c in range(13):
            put(4 * c + 2, f"kv{c+3}", self.kv_piece(src, (c + 3) % 4, 0), n=2, role="A")
            put(4 * c + 3, f"kv{c+3}", self.kv_piece(src, (c + 3) % 4, 1), n=2, role="A")
        if self.stop >= 3 and not os.environ.get("X_NOEXTRA"):
            import g3b
            g3b.bg_schedule(self, put)
        pend = {"A": [("kv1", 4), ("kv2", 4)], "B": []}
        def wait_for(role, tag):
            p = pend[role]
            idx = [i for i, (k, n) in enumerate(p) if k == tag]
            if not idx: return None
            after = sum(n for (k, n) in p[idx[-1] + 1:])
            del p[:idx[-1] + 1]
            return after
        def guarded(role, body):
            lab = a.new("Lg")
            return [f"s_cbranch_vcc{'nz' if role == 'A' else 'z'} {lab}"] + body + [f"{lab}:"]
        for T in range(64):
            hooks = [[], []]
            ops = bg.get(T, [])
            for k, (tag, ins, n, need, role) in enumerate(ops):
                h = hooks[0] if k < (len(ops) + 1) // 2 else hooks[1]
                body = []
                if need:
                    assert role
                    w = wait_for(role, need)
                    if w is not None: body.append(f"s_waitcnt vmcnt({w})")
                body.extend(ins)
                if role: h.extend(guarded(role, body)); pend[role].append((tag, n)) if n else None
                else:
                    h.extend(body)
                    if n: pend["A"].append((tag, n)); pend["B"].append((tag, n))
            self.attn_tile(T, hooks[0], hooks[1])
            if T % 4 == 1 and T < 62:
                c = T // 4
                w = wait_for("A", f"kv{c+1}")
                if w is not None:
                    for x in guarded("A", [f"s_waitcnt vmcnt({w})"]): a(x)
                a("s_barrier")
        S = self.vS[1]; P = self.vP
        a(f"v_cvt_pk_bf16_f32 v{P+6}, v{S+12}, v{S+13}\nv_cvt_pk_bf16_f32 v{P+7}, v{S+14}, v{S+15}")
        a(f"s_waitcnt lgkmcnt(0)")
        a(f"v_mfma_f32_32x32x16_bf16 {vr(self.vO,16)}, {vr(self.vV2[1],4)}, {vr(P+4,4)}, {vr(self.vO,16)}")

    def attn_epilogue(self):
        a = self.a
        a.c("---- attention epilogue ----")
        O = self.vO
        a(f"s_lshl_b32 s{sT[0]}, s{sI}, 2\ns_lshl_b32 s{sT[1]}, s{sKH}, 1\ns_add_u32 s{sT[0]}, s{sT[0]}, s{sT[1]}\ns_mul_i32 s{sT[0]}, s{sT[0]}, {24*1024}\ns_add_u32 s{sT[0]}, s{sT[0]}, {WS_O}")
        a(f"s_lshl_b32 s{sT[1]}, s{sHG}, 2\ns_add_u32 s{sT[1]}, s{sT[1]}, s{sW4}\ns_mul_i32 s{sT[1]}, s{sT[1]}, 768\ns_add_u32 s{sT[0]}, s{sT[0]}, s{sT[1]}")
        a(f"v_bfe_u32 v32, v{vLANE}, 4, 1\nv_mul_u32_u24 v32, {24*1024}, v32\nv_and_b32 v33, 15, v{vLANE}\nv_lshl_add_u32 v32, v33, 4, v32")
        a(f"v_lshrrev_b32 v33, 5, v{vLANE}\nv_lshl_add_u32 v33, v33, 8, v32")
        a(f"v_cmp_gt_u32 vcc, 32, v{vLANE}\nv_mov_b32 v50, 0\nv_mov_b32 v51, 0")
        a(f"v_cndmask_b32 v40, v{O+8}, v{O+12}, vcc")
        a("v_rcp_f32 v40, v40")
        for j in range(12): a(f"v_mul_f32 v{O+j}, v{O+j}, v40")
        for j in range(6): a(f"v_cvt_pk_bf16_f32 v{44+j}, v{O+2*j}, v{O+2*j+1}")
        a(f"buffer_store_dwordx4 v[44:47], v33, {WSR}, s{sT[0]} offen sc1")
        a("s_mov_b32 exec_hi, 0")
        a(f"buffer_store_dwordx4 v[48:51], v32, {WSR}, s{sT[0]} offen offset:512 sc1")
        a("s_mov_b64 exec, -1")
        self.wave_flag(F_O)

    def build(self):
        a = self.a
        self.prologue(); self.stamp(0)
        self.p0(); self.stamp(1)
        self.ln_stats()
        self.wq_to_regs(); self.stamp(2)
        self.mod_poll_apply(); self.stamp(3)
        self.kv_proj(); self.stamp(16)
        self.q_proj(); self.stamp(4)
        if self.stop >= 2:
            self.attn_setup(); self.stamp(5); self.cstamp(27)
            self.attn_main(); self.stamp(6); self.cstamp(28)
            self.attn_epilogue(); self.stamp(7)
        if self.stop >= 3:
            import g3b
            g3b.rest(self)
        a("s_waitcnt vmcnt(0) lgkmcnt(0)")
        a.label("L_END")
        a("s_endpgm")
        return fix_hazards(a.l)

HEADER = open(os.path.join(os.path.dirname(os.path.abspath(__file__)), "header.txt")).read()

def make(stop=99, ts=False, force_fallback=False):
    g = Gen(stop, ts, force_fallback)
    lines, n = g.build()
    txt = HEADER + "; @launch grid=(256,1,1) block=(512,1,1) lds=163840\n"
    txt += f'.amdgcn_target "amdgcn-amd-amdhsa--gfx950"\n.text\n.globl {NAME}\n.p2align 8\n.type {NAME},@function\n{NAME}:\n'
    txt += "\n".join(lines) + "\n"
    txt += f""".section .rodata,"a"
.p2align 6
.amdhsa_kernel {NAME}
  .amdhsa_next_free_vgpr 256
  .amdhsa_next_free_sgpr 102
  .amdhsa_accum_offset 256
  .amdhsa_group_segment_fixed_size 0
  .amdhsa_kernarg_size 112
  .amdhsa_user_sgpr_count 2
  .amdhsa_user_sgpr_kernarg_segment_ptr 1
  .amdhsa_system_sgpr_workgroup_id_x 1
  .amdhsa_float_denorm_mode_32 3
.end_amdhsa_kernel
"""
    return txt, n

if __name__ == "__main__":
    import argparse
    ap = argparse.ArgumentParser()
    ap.add_argument("--stop", type=int, default=99)
    ap.add_argument("--ts", action="store_true")
    ap.add_argument("--fb", action="store_true")
    ap.add_argument("-o", default="out.s")
    args = ap.parse_args()
    sys.modules["g3"] = sys.modules["__main__"]
    txt, n = make(args.stop, args.ts, args.fb)
    open(args.o, "w").write(txt)
    print("nops inserted:", n, "lines:", txt.count("\n"))
```

```python
import sys, os
sys.path.insert(0, os.path.dirname(os.path.abspath(__file__)))
from asmlib import Asm, fix_hazards

NAME = "adaLN_cond__grouped_kv_mqa__glu_gated_swiglu__prompt_kernel"

WS_NONCE = 0x0
F_KV   = 0x1000
F_MODR = 0x2000
F_O    = 0x3000
F_Y    = 0x5000
F_ACT  = 0x7000
F_UT   = 0x9000
F_RP   = 0x18000
WS_MODG = 0xA000
WS_MODR = 0xC000
WS_MODB = 0xE800
WS_UT   = 0x10000
WS_KV   = 0x20000
WS_STAT = 0x60000
WS_O    = 0x100000
WS_Y    = 0x400000
WS_ACT  = 0x700000
WS_TS   = 0xE00000
WS_RW   = 0x1000000
RW_WO, RW_W2, RW_13 = 0, 819200, 819200 + 8 * 278528
RW_W2S = 278528
WS_USED = 0x1800000
KV_TILE = 3328

S_X, S_WS, S_A, S_B, S_C, S_OUT = 4, 8, 12, 16, 20, 24
P_X, P_WQ, P_WK, P_WV, P_WO, P_BX, P_W1, P_W3, P_W2, P_CC, P_WMOD, P_OUT, P_DBG, P_WS = [32 + 2 * i for i in range(14)]
sL, sG, sM, sI, sHG, sW, sNON, sXC, sJ = 60, 61, 62, 63, 64, 65, 66, 67, 68
sW4 = 69
sT = list(range(70, 94))
sKH = 97
sFB0, sWSRC, sRBG = 98, 99, 28
sWK = 29
SPIN_LIMIT = 400000

vLANE = 1
vL16 = 2
vO160 = [3, 4, 5, 6, 7]

def srd(a, d, p, size):
    a(f"s_mov_b32 s{d}, s{p}\ns_mov_b32 s{d+1}, s{p+1}\ns_mov_b32 s{d+2}, {size}\ns_mov_b32 s{d+3}, 0x20000")
def vr(b, n=1): return f"v{b}" if n == 1 else f"v[{b}:{b+n-1}]"
WSR = f"s[{S_WS}:{S_WS+3}]"

class Gen:
    def __init__(self, stop=99, ts=False, force_fallback=False):
        self.a = Asm(); self.stop = stop; self.ts = ts; self.force_fallback = force_fallback

    def stamp_dyn(self, mode, sreg, add=0):
        if not self.ts or os.environ.get("TSMODE") != mode: return
        a = self.a
        a(f"s_memrealtime s[94:95]\ns_waitcnt lgkmcnt(0)")
        a(f"s_lshl_b32 s96, s{sL}, 3\ns_add_u32 s96, s96, s{sW}\ns_lshl_b32 s96, s96, 5\ns_add_u32 s96, s96, s{sreg}\ns_add_u32 s96, s96, {add}\ns_lshl_b32 s96, s96, 2\ns_add_u32 s96, s96, {WS_TS}")
        a(f"v_mov_b32 v254, s94\nv_mov_b32 v255, s96")
        a(f"s_mov_b64 s[100:101], exec\ns_mov_b64 exec, 1")
        a(f"buffer_store_dword v254, v255, {WSR}, 0 offen")
        a(f"s_mov_b64 exec, s[100:101]")

    def cstamp(self, idx):
        if not self.ts or os.environ.get("TSMODE"): return
        a = self.a
        a(f"s_memtime s[94:95]\ns_waitcnt lgkmcnt(0)")
        a(f"s_lshl_b32 s96, s{sL}, 3\ns_add_u32 s96, s96, s{sW}\ns_lshl_b32 s96, s96, 7\ns_add_u32 s96, s96, {WS_TS + idx*4}")
        a(f"v_mov_b32 v254, s94\nv_mov_b32 v255, s96")
        a(f"s_mov_b64 s[100:101], exec\ns_mov_b64 exec, 1")
        a(f"buffer_store_dword v254, v255, {WSR}, 0 offen")
        a(f"s_mov_b64 exec, s[100:101]")

    def stamp(self, idx):
        if not self.ts or os.environ.get("TSMODE"): return
        a = self.a
        a(f"s_memrealtime s[94:95]\ns_waitcnt lgkmcnt(0)")
        a(f"s_lshl_b32 s96, s{sL}, 3\ns_add_u32 s96, s96, s{sW}\ns_lshl_b32 s96, s96, 7\ns_add_u32 s96, s96, {WS_TS + idx*4}")
        a(f"v_mov_b32 v254, s94\nv_mov_b32 v255, s96")
        a(f"s_mov_b64 s[100:101], exec\ns_mov_b64 exec, 1")
        a(f"buffer_store_dword v254, v255, {WSR}, 0 offen")
        a(f"s_mov_b64 exec, s[100:101]")

    def bail(self, err):
        a = self.a
        a(f"v_mov_b32 v254, {err}\nv_mov_b32 v255, 0")
        srd(a, S_C, P_DBG, 256)
        a(f"buffer_store_dword v254, v255, s[{S_C}:{S_C+3}], 0 offen")

    def poll(self, vaddr, vdat, n=1, tagpos=(0,), err=1, soff="0", depth=3):
        a = self.a
        L, D = a.new("Lpoll"), a.new("Lpdone")
        cnt = sT[20]
        op = {1: "buffer_load_dword", 2: "buffer_load_dwordx2", 4: "buffer_load_dwordx4"}[n]
        ld = lambda k: a(f"{op} {vr(vdat + k*n, n)}, v{vaddr}, {WSR}, {soff} offen sc1")
        a(f"s_mov_b32 s{cnt}, 0")
        for k in range(depth - 1): ld(k)
        a.label(L)
        for k in range(depth):
            ld((k + depth - 1) % depth)
            a(f"s_waitcnt vmcnt({depth-1})")
            b = vdat + k * n
            a(f"v_cmp_ne_u32 vcc, s{sNON}, v{b + tagpos[0]}")
            for t in tagpos[1:]:
                a(f"v_cmp_ne_u32 s[{sT[22]}:{sT[23]}], s{sNON}, v{b + t}")
                a(f"s_or_b64 vcc, vcc, s[{sT[22]}:{sT[23]}]")
            a(f"s_cbranch_vccz {D}")
        a(f"s_add_u32 s{cnt}, s{cnt}, 1\ns_cmp_lt_u32 s{cnt}, {SPIN_LIMIT}\ns_cbranch_scc1 {L}")
        self.bail(err)
        a.label(D)

    def one_lane_store(self, soff_s, vval):
        a = self.a
        a(f"s_mov_b64 exec, 1\nbuffer_store_dword v{vval}, v{vLANE}, {WSR}, s{soff_s} offen sc1\ns_mov_b64 exec, -1")

    def wave_flag(self, base):
        a = self.a
        a(f"s_lshl_b32 s{sT[0]}, s{sL}, 3\ns_add_u32 s{sT[0]}, s{sT[0]}, s{sW}\ns_lshl_b32 s{sT[0]}, s{sT[0]}, 2\ns_add_u32 s{sT[0]}, s{sT[0]}, {base}")
        a(f"v_mov_b32 v255, s{sNON}")
        a("s_waitcnt vmcnt(0)")
        self.one_lane_store(sT[0], 255)

    def bf16_round(self, dst, src):
        self.a(f"v_cvt_pk_bf16_f32 v{dst}, v{src}, v{src}\nv_and_b32 v{dst}, 0xffff0000, v{dst}")

    def dma_run(self, srd_s, voff, soff, lds, n, extra=""):
        a = self.a
        a(f"s_mov_b32 m0, {lds}")
        for k in range(n):
            a(f"buffer_load_dwordx4 v{voff}, s[{srd_s}:{srd_s+3}], s{soff} offen offset:{k*1024}{extra} lds")

    L1_H = 0; L1_WQ2 = 81920; L1_WKV = 128000; L1_GS = 153600; L1_NS = 158720; L1_SCR = 160000
    NQ1 = 22
    vX = 8; vXN = 48; vWQ = 128
    vWA, vC1 = 216, 228

    def prologue(self):
        a = self.a
        a(f"s_cmp_ge_u32 s2, 256\ns_cbranch_scc1 L_END")
        a("s_load_dwordx16 s[32:47], s[0:1], 0\ns_load_dwordx8 s[48:55], s[0:1], 64\ns_load_dwordx4 s[56:59], s[0:1], 96")
        if not os.environ.get("X_NOCP"):
            E = a.new("Lcp"); GP = a.new("Lpc")
            a(f"s_getpc_b64 s[{sT[2]}:{sT[3]}]")
            a.label(GP)
            a(f"s_lshr_b32 s{sT[4]}, s2, 3\ns_lshl_b32 s{sT[4]}, s{sT[4]}, 13\ns_cmp_ge_u32 s{sT[4]}, L_END - {GP}\ns_cbranch_scc1 {E}")
            a(f"v_lshlrev_b32 v208, 4, v0\nv_add_u32 v208, s{sT[4]}, v208\nv_min_u32 v208, L_END - {GP} - 16, v208")
            a(f"global_load_dwordx4 v[208:211], v208, s[{sT[2]}:{sT[3]}]")
            a.label(E)
        a(f"v_and_b32 v{vLANE}, 63, v0\nv_lshrrev_b32 v8, 6, v0")
        a(f"s_and_b32 s{sXC}, s2, 7\ns_lshr_b32 s{sJ}, s2, 3")
        a(f"v_readfirstlane_b32 s{sW}, v8")
        a(f"s_lshl_b32 s{sL}, s{sXC}, 5\ns_add_u32 s{sL}, s{sL}, s{sJ}")
        a(f"v_lshlrev_b32 v{vL16}, 4, v{vLANE}")
        a(f"s_lshr_b32 s{sG}, s{sL}, 4\ns_and_b32 s{sM}, s{sL}, 15\ns_lshr_b32 s{sI}, s{sL}, 3\ns_and_b32 s{sHG}, s{sL}, 7")
        a(f"s_and_b32 s{sW4}, s{sW}, 3\ns_lshr_b32 s{sKH}, s{sW}, 2\ns_lshl_b32 s{sWK}, s{sW}, 10")
        a(f"s_lshl_b32 s{sRBG}, s{sI}, 2\ns_add_u32 s{sRBG}, s{sRBG}, s{sW4}")
        a(f"v_and_b32 v243, 31, v{vLANE}\ns_lshl_b32 s{sT[0]}, s{sW}, 5\nv_add_u32 v243, s{sT[0]}, v243")
        a(f"v_lshlrev_b32 v244, 1, v243")
        a(f"s_movk_i32 s{sT[0]}, 7680\nv_mul_u32_u24 v243, s{sT[0]}, v243\nv_lshrrev_b32 v245, 5, v{vLANE}\nv_lshl_add_u32 v243, v245, 4, v243")
        a(f"s_lshl_b32 s{sT[5]}, s{sL}, 5\ns_cmp_lt_u32 s{sL}, 240\ns_cselect_b32 s{sT[5]}, s{sT[5]}, 0x7000000")
        a(f"v_mov_b32 v246, 0")
        a("s_waitcnt lgkmcnt(0)")
        srd(a, S_B, P_WMOD, 640 * 7680)
        for it in range(3):
            a(f"buffer_load_dwordx4 {vr(self.vWA+4*it,4)}, v243, s[{S_B}:{S_B+3}], s{sT[5]} offen")
            if it < 2: a(f"v_add_u32 v243, {256*7680}, v243")
        srd(a, S_A, P_CC, 1280)
        for it in range(3):
            a(f"buffer_load_ushort v{self.vC1+it}, v244, s[{S_A}:{S_A+3}], 0 offen offset:{it*512}")
        srd(a, S_WS, P_WS, WS_USED)
        a(f"buffer_load_dword v242, v246, {WSR}, 0 offen sc1")
        a("s_barrier")
        srd(a, S_X, P_X, 2048 * 1280)
        a(f"v_lshrrev_b32 v245, 4, v{vLANE}\nv_and_b32 v246, 15, v{vLANE}")
        a(f"s_lshl_b32 s{sT[8]}, s{sI}, 3\ns_add_u32 s{sT[8]}, s{sT[8]}, s{sW}\ns_mul_i32 s{sT[8]}, s{sT[8]}, {8*1280}")
        a(f"v_mul_u32_u24 v245, 1280, v245\nv_lshl_add_u32 v245, v246, 4, v245\nv_add_u32 v246, {4*1280}, v245")
        for it in range(2):
            for c in range(5):
                a(f"buffer_load_dwordx4 {vr(self.vX + (it*5+c)*4, 4)}, v{245+it}, s[{S_X}:{S_X+3}], s{sT[8]} offen offset:{c*256}")
        a("s_barrier")
        a(f"s_cmp_lt_u32 s{sHG}, 4\ns_cselect_b32 s{S_C}, s{P_WK}, s{P_WV}\ns_cselect_b32 s{S_C+1}, s{P_WK+1}, s{P_WV+1}")
        a(f"s_mov_b32 s{S_C+2}, 25600\ns_mov_b32 s{S_C+3}, 0x20000")
        a(f"s_lshl_b32 s{sT[3]}, s{sW}, 12\ns_add_u32 s{sT[4]}, s{sT[3]}, {self.L1_WKV}")
        E1, E2 = a.new("Lkv"), a.new("Lkv")
        a(f"s_cmp_ge_u32 s{sW}, 6\ns_cbranch_scc1 {E1}")
        self.dma_run(S_C, vL16, sT[3], f"s{sT[4]}", 4)
        a(f"s_branch {E2}")
        a.label(E1)
        a(f"s_cmp_eq_u32 s{sW}, 7\ns_cbranch_scc1 {E2}")
        self.dma_run(S_C, vL16, sT[3], f"s{sT[4]}", 1)
        a.label(E2)
        a(f"s_mov_b32 s{sT[0]}, 0x1999999a")
        for ph in range(5):
            r = vO160[ph]
            a(f"v_add_u32 v248, {64*ph}, v{vLANE}\nv_mul_hi_u32 v249, v248, s{sT[0]}")
            a(f"v_mul_u32_u24 v250, {1280-160}, v249\nv_lshl_add_u32 v250, v248, 4, v250")
            a(f"v_add_u32 v{r}, {4096 - (1024*ph if ph < 4 else 0)}, v250")
        a(f"s_sub_u32 s{S_A}, s{P_WQ}, 4096\ns_subb_u32 s{S_A+1}, s{P_WQ+1}, 0\ns_mov_b32 s{S_A+2}, {640*1280+4096}\ns_mov_b32 s{S_A+3}, 0x20000")
        a(f"s_mul_i32 s{sT[3]}, s{sW}, 40960\ns_mul_i32 s{sT[4]}, s{sHG}, 160\ns_add_u32 s{sT[3]}, s{sT[3]}, s{sT[4]}")
        a(f"s_mul_i32 s{sT[4]}, s{sW}, 5120")
        for j in range(3):
            E = None
            if j == 1:
                a(f"s_add_u32 s{sT[3]}, s{sT[3]}, {8*40960}\ns_add_u32 s{sT[4]}, s{sT[4]}, {8*5120}")
                a(f"s_cmp_ge_u32 s{sW}, 3\ns_cselect_b32 s{sT[5]}, {self.L1_WQ2 - 11*5120}, 0\ns_add_u32 s{sT[4]}, s{sT[4]}, s{sT[5]}")
            if j == 2:
                E = a.new("Lq")
                a(f"s_cmp_ge_u32 s{sW}, 4\ns_cbranch_scc1 {E}")
                a(f"s_add_u32 s{sT[3]}, s{sT[3]}, {8*40960}\ns_mul_i32 s{sT[4]}, s{sW}, 5120\ns_add_u32 s{sT[4]}, s{sT[4]}, {self.L1_WQ2 + 5*5120}")
            a(f"s_mov_b32 m0, s{sT[4]}")
            for ph in range(4):
                a(f"buffer_load_dwordx4 v{vO160[ph]}, s[{S_A}:{S_A+3}], s{sT[3]} offen offset:{ph*1024} lds")
            a(f"s_add_u32 m0, s{sT[4]}, 4096")
            a(f"buffer_load_dwordx4 v{vO160[4]}, s[{S_A}:{S_A+3}], s{sT[3]} offen lds")
            if E: a.label(E)
        self.dma_min = 10
        srd(a, S_OUT, P_OUT, 2048 * 1280)

    def p0(self):
        a = self.a
        a.c("---- P0: modulation GEMV (16 columns per workgroup) ----")
        a(f"s_waitcnt vmcnt({10 + self.dma_min})")
        a(f"v_readfirstlane_b32 s{sNON}, v242")
        acc = 244
        for it in range(3):
            c = self.vC1 + it
            a(f"v_lshlrev_b32 v{c}, 16, v{c}\nv_mul_f32 v{232+it}, 0xbfb8aa3b, v{c}")
        for it in range(3): a(f"v_exp_f32 v{232+it}, v{232+it}")
        a(f"s_add_u32 s{sNON}, s{sNON}, 1\ns_cmp_eq_u32 s{sNON}, 0\ns_cselect_b32 s{sNON}, 1, s{sNON}")
        for it in range(3): a(f"v_add_f32 v{232+it}, 1.0, v{232+it}")
        for it in range(3): a(f"v_rcp_f32 v{232+it}, v{232+it}")
        for it in range(3): a(f"v_mul_f32 v{232+it}, v{self.vC1+it}, v{232+it}")
        for it in range(3):
            a(f"v_cvt_pk_bf16_f32 v{235+it}, v{232+it}, 0\nv_cvt_pk_bf16_f32 v{238+it}, 0, v{232+it}")
        for it in range(3):
            w = self.vWA + 4 * it
            for j in range(4):
                c0 = "0" if it == 0 else f"v{acc+2*j}"; c1 = "0" if it == 0 else f"v{acc+2*j+1}"
                a(f"v_dot2_f32_bf16 v{acc+2*j}, v{w+j}, v{235+it}, {c0}\nv_dot2_f32_bf16 v{acc+2*j+1}, v{w+j}, v{238+it}, {c1}")
        for sh in (1, 2, 4, 8):
            for j in range(8):
                a(f"v_add_f32_dpp v{acc+j}, v{acc+j}, v{acc+j} row_shr:{sh} row_mask:0xf bank_mask:0xf bound_ctrl:0")
        for j in range(8):
            a(f"v_add_f32_dpp v{acc+j}, v{acc+j}, v{acc+j} row_bcast:15 row_mask:0xa bank_mask:0xf")
        a(f"v_lshrrev_b32 v252, 5, v{vLANE}\ns_lshl_b32 s{sT[2]}, s{sW}, 2\ns_add_u32 s{sT[2]}, s{sT[2]}, {self.L1_SCR}\nv_lshl_add_u32 v252, v252, 8, s{sT[2]}")
        a("s_mov_b32 exec_lo, 0x80000000\ns_mov_b32 exec_hi, 0x80000000")
        for j in range(8):
            a(f"ds_write_b32 v252, v{acc+j} offset:{j*32}")
        a("s_mov_b64 exec, -1")
        a("s_waitcnt lgkmcnt(0)\ns_barrier")
        E = a.new("Lp0e")
        a(f"s_cmp_lg_u32 s{sW}, 0\ns_cbranch_scc1 {E}\ns_cmp_ge_u32 s{sL}, 240\ns_cbranch_scc1 {E}")
        a(f"v_and_b32 v246, 15, v{vLANE}\nv_lshlrev_b32 v246, 5, v246\nv_add_u32 v246, {self.L1_SCR}, v246")
        a("ds_read_b128 v[248:251], v246\nds_read_b128 v[244:247], v246 offset:16")
        a(f"s_mov_b32 s{sT[2]}, 0")
        a(f"s_cmp_ge_u32 s{sL}, 40\ns_cselect_b32 s{sT[2]}, 1.0, s{sT[2]}\ns_cmp_ge_u32 s{sL}, 80\ns_cselect_b32 s{sT[2]}, 0, s{sT[2]}")
        a(f"s_cmp_ge_u32 s{sL}, 160\ns_cselect_b32 s{sT[2]}, 1.0, s{sT[2]}\ns_cmp_ge_u32 s{sL}, 200\ns_cselect_b32 s{sT[2]}, 0, s{sT[2]}")
        a("s_waitcnt lgkmcnt(0)")
        a("v_add_f32 v244, v244, v248\nv_add_f32 v245, v245, v249\nv_add_f32 v246, v246, v250\nv_add_f32 v247, v247, v251")
        a("v_add_f32 v244, v244, v245\nv_add_f32 v246, v246, v247\nv_add_f32 v244, v244, v246")
        self.bf16_round(244, 244)
        a(f"v_add_f32 v244, s{sT[2]}, v244")
        self.bf16_round(244, 244)
        a(f"v_mov_b32_dpp v245, v244 quad_perm:[1,0,3,2] row_mask:0xf bank_mask:0xf")
        a(f"v_lshrrev_b32 v247, 16, v244\nv_or_b32 v248, v247, v245")
        R = a.new("Lp0r")
        a(f"v_lshlrev_b32 v246, 2, v{vLANE}\nv_mov_b32 v249, s{sNON}")
        a(f"s_cmp_ge_u32 s{sL}, 80\ns_cbranch_scc1 {R}")
        a(f"s_lshl_b32 s{sT[1]}, s{sL}, 6\ns_add_u32 s{sT[1]}, s{sT[1]}, {WS_MODG}")
        a("s_mov_b32 exec_lo, 0x5555\ns_mov_b32 exec_hi, 0")
        a(f"buffer_store_dwordx2 v[248:249], v246, {WSR}, s{sT[1]} offen sc1")
        a(f"s_mov_b64 exec, -1\ns_branch {E}")
        a.label(R)
        a(f"s_sub_u32 s{sT[1]}, s{sL}, 80\ns_lshl_b32 s{sT[2]}, s{sT[1]}, 6\ns_add_u32 s{sT[2]}, s{sT[2]}, {WS_MODR}")
        a("s_mov_b32 exec_lo, 0xffff\ns_mov_b32 exec_hi, 0")
        a(f"buffer_store_dword v244, v246, {WSR}, s{sT[2]} offen sc1")
        EB = a.new("Lmodb")
        a(f"s_cmp_lt_u32 s{sL}, 120\ns_cbranch_scc1 {EB}\ns_cmp_ge_u32 s{sL}, 200\ns_cbranch_scc1 {EB}")
        a(f"s_sub_u32 s{sT[2]}, s{sL}, 120\ns_lshl_b32 s{sT[2]}, s{sT[2]}, 5\ns_add_u32 s{sT[2]}, s{sT[2]}, {WS_MODB}")
        a(f"v_lshlrev_b32 v246, 1, v{vLANE}\ns_mov_b32 exec_lo, 0x5555")
        a(f"buffer_store_dword v248, v246, {WSR}, s{sT[2]} offen sc1")
        a.label(EB)
        a(f"s_lshl_b32 s{sT[2]}, s{sT[1]}, 2\ns_add_u32 s{sT[2]}, s{sT[2]}, {F_MODR}")
        a("s_waitcnt vmcnt(0)")
        self.one_lane_store(sT[2], 249)
        a.label(E)

    def row16_allreduce(self, regs, op="v_add_f32", steps=(8, 4, 2, 1)):
        for sh in steps:
            for r in regs:
                self.a(f"{op}_dpp v{r}, v{r}, v{r} row_ror:{sh} row_mask:0xf bank_mask:0xf")

    def ln_stats(self):
        a = self.a
        a.c("---- LN1 statistics ----")
        a(f"s_waitcnt vmcnt({self.dma_min})")
        X, N = self.vX, self.vXN
        ONE = 240
        a(f"v_mov_b32 v{ONE}, 0x3f803f80")
        for q in range(20):
            for it in range(2):
                sa_, sq_ = 232 + 2 * it + (q & 1), 236 + 2 * it + (q & 1)
                x = X + it * 20 + q
                a(f"v_dot2_f32_bf16 v{sa_}, v{x}, v{ONE}, {'0' if q < 2 else 'v%d' % sa_}")
                a(f"v_dot2_f32_bf16 v{sq_}, v{x}, v{x}, {'0' if q < 2 else 'v%d' % sq_}")
        a("v_add_f32 v232, v232, v233\nv_add_f32 v234, v234, v235\nv_add_f32 v236, v236, v237\nv_add_f32 v238, v238, v239")
        self.row16_allreduce([232, 234, 236, 238])
        a(f"s_mov_b32 s{sT[0]}, 0x3acccccd")
        for it in range(2):
            m, q, r = 232 + 2 * it, 236 + 2 * it, 242 + 4 * it
            a(f"v_mul_f32 v{m}, s{sT[0]}, v{m}\nv_mul_f32 v{q}, s{sT[0]}, v{q}")
            a(f"v_fma_f32 v{q}, -v{m}, v{m}, v{q}\nv_max_f32 v{q}, 0, v{q}\nv_add_f32 v{q}, 0x3727c5ac, v{q}\nv_rsq_f32 v{r}, v{q}")
        for it in range(2):
            m, r = 232 + 2 * it, 242 + 4 * it
            a(f"v_mov_b32 v{r+1}, v{r}\nv_mul_f32 v{r+2}, -v{m}, v{r}\nv_mul_f32 v{r+3}, -v{m}, v{r}")
        for it in range(2):
            r = 242 + 4 * it
            for q in range(20):
                d = N + it * 40 + 2 * q
                a(f"v_lshlrev_b32 v{d}, 16, v{X+it*20+q}\nv_and_b32 v{d+1}, 0xffff0000, v{X+it*20+q}")
            for q in range(20):
                d = N + it * 40 + 2 * q
                a(f"v_pk_fma_f32 {vr(d,2)}, {vr(d,2)}, {vr(r,2)}, {vr(r+2,2)}")

    def emit_wq_addr(self, d, base):
        a = self.a
        a(f"v_lshrrev_b32 v{d}, 5, v{vLANE}\nv_bfe_u32 v{d+1}, v{vLANE}, 2, 2\nv_lshl_add_u32 v{d}, v{d}, 3, v{d+1}")
        a(f"v_bfe_u32 v{d+1}, v{vLANE}, 4, 1\nv_lshlrev_b32 v{d+1}, 5, v{d+1}\nv_mad_u32_u24 v{d}, v{d}, s{sT[19]}, v{d+1}")
        a(f"v_and_b32 v{d+1}, 3, v{vLANE}\nv_lshl_add_u32 v{d}, v{d+1}, 3, v{d}")
        a(f"s_mul_i32 s{sT[0]}, s{sW4}, 40\ns_add_u32 s{sT[0]}, s{sT[0]}, {base}\nv_add_u32 v{d}, s{sT[0]}, v{d}")

    def wq_to_regs(self):
        a = self.a
        a.c("---- wq part 1 -> registers ----")
        a(f"s_movk_i32 s{sT[19]}, 160")
        self.emit_wq_addr(8, self.L1_H)
        a("s_waitcnt vmcnt(0)\ns_barrier")
        for s in range(self.NQ1):
            a(f"ds_read_b64_tr_b16 {vr(self.vWQ+4*s,2)}, v8 offset:{s*16*160}")
            a(f"ds_read_b64_tr_b16 {vr(self.vWQ+4*s+2,2)}, v8 offset:{s*16*160 + 4*160}")

    def mod_poll_apply(self):
        a = self.a
        a.c("---- wait for sa/ca granules, LN apply ----")
        a(f"v_and_b32 v8, 15, v{vLANE}\nv_lshlrev_b32 v9, 5, v8\nv_add_u32 v9, {self.L1_GS}, v9")
        a(f"v_lshrrev_b32 v10, 4, v{vLANE}\ns_lshl_b32 s{sT[0]}, s{sW}, 3\nv_add_u32 v10, s{sT[0]}, v10")
        for it in range(2):
            if it: a("v_add_u32 v10, 4, v10")
            a(f"v_and_b32 v11, 15, v10\nv_xor_b32 v11, v11, v8\nv_lshlrev_b32 v11, 4, v11")
            a(f"v_mad_u32_u24 v{12+it}, v10, s{sT[18]}, v11".replace(f"s{sT[18]}", "v14") if False else f"v_mul_u32_u24 v{12+it}, 1280, v10\nv_add_u32 v{12+it}, v{12+it}, v11")
        self.kv_addr()
        self.q_addr()
        E = a.new("Lmp")
        a(f"s_cmp_ge_u32 s{sW}, 5\ns_cbranch_scc1 {E}")
        a(f"v_lshlrev_b32 v15, 4, v0")
        a(f"s_mov_b32 s{sT[1]}, {WS_MODG}")
        self.poll(15, 16, n=4, tagpos=(1, 3), err=1, soff=f"s{sT[1]}", depth=1)
        a("v_lshlrev_b32 v20, 16, v16\nv_and_b32 v21, 0xffff0000, v16\nv_lshlrev_b32 v22, 16, v18\nv_and_b32 v23, 0xffff0000, v18")
        a(f"v_add_u32 v24, {self.L1_GS}, v15\nds_write_b128 v24, v[20:23]")
        a("v_xor_b32 v16, 0x80008000, v16\nv_xor_b32 v17, 0x80008000, v18")
        a(f"v_lshrrev_b32 v24, 1, v15\nv_add_u32 v24, {self.L1_NS}, v24\nv_cmp_gt_u32 vcc, 160, v0")
        a(f"s_and_saveexec_b64 s[{sT[22]}:{sT[23]}], vcc\nds_write_b64 v24, v[16:17]\ns_mov_b64 exec, -1")
        a.label(E)
        a("s_waitcnt lgkmcnt(0)\ns_barrier")
        def rd(c, b):
            a(f"ds_read_b128 v[{b}:{b+3}], v9 offset:{c*512}\nds_read_b128 v[{b+4}:{b+7}], v9 offset:{c*512 + 16}")
            a(f"ds_read_b128 v[{b+8}:{b+11}], v9 offset:{2560 + c*512}\nds_read_b128 v[{b+12}:{b+15}], v9 offset:{2560 + c*512 + 16}")
        rd(0, 16)
        for c in range(5):
            b = 16 if c % 2 == 0 else 32
            if c + 1 < 5:
                rd(c + 1, 48 - b)
                a("s_waitcnt lgkmcnt(4)" if c == 0 else "s_waitcnt lgkmcnt(6)")
            else: a("s_waitcnt lgkmcnt(2)")
            for it in range(2):
                x = self.vXN + it * 40 + c * 8
                for j in range(4):
                    a(f"v_pk_fma_f32 {vr(x+2*j,2)}, {vr(x+2*j,2)}, {vr(b+8+2*j,2)}, {vr(b+2*j,2)}")
            for it in range(2):
                x = self.vXN + it * 40 + c * 8
                for j in range(4):
                    a(f"v_cvt_pk_bf16_f32 v{x+j}, v{x+2*j}, v{x+2*j+1}")
                a(f"ds_write_b128 v{12+it}, {vr(x,4)} offset:{self.L1_H + c*256}")
        a("s_waitcnt lgkmcnt(0)\ns_barrier")

    def sum_groups(self, r, t, op="v_add_f32"):
        a = self.a
        a(f"v_mov_b32 v{t}, v{r}\nv_permlane32_swap_b32 v{r}, v{t}\n{op} v{r}, v{r}, v{t}")
        a(f"v_mov_b32 v{t}, v{r}\nv_permlane16_swap_b32 v{r}, v{t}\n{op} v{r}, v{r}, v{t}")

    def kv_addr(self):
        a = self.a
        a(f"s_and_b32 s{sT[0]}, s{sHG}, 3\ns_lshl_b32 s{sT[0]}, s{sT[0]}, 4")
        a(f"v_and_b32 v232, 15, v{vLANE}\nv_lshrrev_b32 v233, 4, v{vLANE}")
        a(f"v_add_u32 v234, s{sT[0]}, v232\nv_mul_u32_u24 v234, 1280, v234")
        a(f"s_lshr_b32 s{sT[1]}, s{sW}, 1\ns_mul_i32 s{sT[2]}, s{sT[1]}, 5")
        a(f"s_lshl_b32 s{sT[3]}, s{sT[2]}, 2\nv_add_u32 v235, s{sT[3]}, v233")
        for j in range(5):
            a(f"v_add_u32 v236, {4*j}, v235\nv_xor_b32 v236, v236, v232\nv_lshl_add_u32 v{240+j}, v236, 4, v234")
        a(f"v_bfe_u32 v236, v{vLANE}, 2, 2\nv_lshl_add_u32 v236, v233, 3, v236\nv_mul_u32_u24 v236, 40, v236\nv_and_b32 v237, 3, v{vLANE}\nv_lshl_add_u32 v236, v237, 3, v236")
        a(f"s_and_b32 s{sT[3]}, s{sW}, 1\ns_lshl_b32 s{sT[3]}, s{sT[3]}, 5\ns_mul_i32 s{sT[4]}, s{sT[2]}, 1280\ns_add_u32 s{sT[3]}, s{sT[3]}, s{sT[4]}\ns_add_u32 s{sT[3]}, s{sT[3]}, {self.L1_WKV}\nv_add_u32 v236, s{sT[3]}, v236")
        a(f"s_lshl_b32 s{sT[3]}, s{sT[2]}, 6\ns_add_u32 s{sT[3]}, s{sT[3]}, {self.L1_NS}\nv_lshl_add_u32 v237, v233, 4, s{sT[3]}")

    def kv_proj(self):
        a = self.a
        a.c("---- K/V projection ----")
        for j in range(5):
            a(f"ds_read_b64_tr_b16 {vr(32+4*j,2)}, v236 offset:{j*1280}\nds_read_b64_tr_b16 {vr(34+4*j,2)}, v236 offset:{j*1280 + 160}")
            a(f"ds_read_b128 {vr(52+4*j,4)}, v{240+j} offset:{self.L1_H}")
        LV, LJ = a.new("Lvproj"), a.new("Lkvj")
        a(f"s_cmp_ge_u32 s{sHG}, 4\ns_cbranch_scc1 {LV}")
        a("s_waitcnt lgkmcnt(0)")
        for j in range(5): a(f"ds_read_b128 {vr(72+4*j,4)}, v237 offset:{j*64}")
        for j in range(5):
            a(f"v_mfma_f32_16x16x32_bf16 v[28:31], {vr(32+4*j,4)}, {vr(52+4*j,4)}, {'0' if j == 0 else 'v[28:31]'}")
        a("s_waitcnt lgkmcnt(0)")
        for j in range(5):
            a(f"v_mfma_f32_16x16x32_bf16 v[28:31], {vr(32+4*j,4)}, {vr(72+4*j,4)}, v[28:31]")
        a(f"s_branch {LJ}")
        a.label(LV)
        a("s_waitcnt lgkmcnt(0)")
        for j in range(5):
            a(f"v_mfma_f32_16x16x32_bf16 v[28:31], {vr(52+4*j,4)}, {vr(32+4*j,4)}, {'0' if j == 0 else 'v[28:31]'}")
        a.label(LJ)
        a(f"s_add_u32 s{sT[3]}, s{sWK}, {self.L1_WKV}\nv_add_u32 v18, s{sT[3]}, v{vL16}")
        a("s_barrier")
        a("ds_write_b128 v18, v[28:31]\ns_waitcnt lgkmcnt(0)\ns_barrier")
        E = a.new("Lkvend")
        a(f"s_cmp_ge_u32 s{sW}, 2\ns_cbranch_scc1 {E}")
        a("ds_read_b128 v[32:35], v18 offset:2048\nds_read_b128 v[36:39], v18 offset:4096\nds_read_b128 v[40:43], v18 offset:6144")
        a(f"s_and_b32 s{sT[2]}, s{sHG}, 3\ns_lshr_b32 s{sT[2]}, s{sT[2]}, 1\ns_lshl_b32 s{sT[3]}, s{sI}, 1\ns_add_u32 s{sT[2]}, s{sT[2]}, s{sT[3]}")
        a(f"s_mul_i32 s{sT[2]}, s{sT[2]}, {KV_TILE}\ns_add_u32 s{sT[2]}, s{sT[2]}, {WS_KV}\ns_and_b32 s{sT[3]}, s{sHG}, 1\ns_lshl_b32 s{sT[3]}, s{sT[3]}, 4")
        a("s_waitcnt lgkmcnt(0)")
        for r in range(4):
            a(f"v_add_f32 v{32+r}, v{32+r}, v{36+r}\nv_add_f32 v{28+r}, v{28+r}, v{40+r}")
        for r in range(4): a(f"v_add_f32 v{28+r}, v{28+r}, v{32+r}")
        a("v_cvt_pk_bf16_f32 v24, v28, v29\nv_cvt_pk_bf16_f32 v25, v30, v31")
        LV, LJ, W1 = a.new("Lv2"), a.new("Lj2"), a.new("Lw1")
        a(f"s_cmp_ge_u32 s{sHG}, 4\ns_cbranch_scc1 {LV}")
        a("v_dot2_f32_bf16 v26, v24, v24, 0\nv_dot2_f32_bf16 v26, v25, v25, v26")
        a(f"s_cmp_eq_u32 s{sW}, 1\ns_cbranch_scc1 {W1}")
        self.sum_groups(26, 27)
        a(f"v_add_u32 v30, s{sT[3]}, v232\nv_and_b32 v31, 1, v233\nv_lshl_add_u32 v30, v31, 5, v30\nv_lshlrev_b32 v30, 4, v30")
        a(f"v_lshrrev_b32 v31, 1, v233\nv_lshl_add_u32 v30, v31, 3, v30")
        a(f"buffer_store_dwordx2 v[24:25], v30, {WSR}, s{sT[2]} offen sc1")
        a(f"s_branch {LJ}")
        a.label(W1)
        a(f"v_cmp_gt_u32 vcc, 16, v{vLANE}\nv_cndmask_b32 v26, 0, v26, vcc")
        a(f"v_add_u32 v30, s{sT[3]}, v232\nv_lshlrev_b32 v30, 3, v30")
        a("s_mov_b32 exec_lo, 0xffff\ns_mov_b32 exec_hi, 0")
        a(f"buffer_store_dwordx2 v[24:25], v30, {WSR}, s{sT[2]} offen offset:3072 sc1")
        a(f"s_mov_b64 exec, -1\ns_branch {LJ}")
        a.label(LV)
        a("v_max_f32 v26, |v28|, |v29|\nv_max_f32 v27, |v30|, |v31|\nv_max_f32 v26, v26, v27")
        a(f"s_lshl_b32 s{sT[1]}, s{sW}, 4\nv_add_u32 v27, s{sT[1]}, v232")
        a("v_cmp_gt_u32 vcc, 20, v27\nv_cndmask_b32 v26, 0, v26, vcc")
        a("v_mov_b32 v28, 0x3f803f80\nv_and_b32 v29, 27, v27")
        a(f"v_cmp_eq_u32 vcc, 20, v27\nv_cmp_eq_u32 s[{sT[22]}:{sT[23]}], 24, v27\ns_or_b64 vcc, vcc, s[{sT[22]}:{sT[23]}]")
        a("v_cndmask_b32 v24, v24, v28, vcc\nv_cndmask_b32 v25, v25, v28, vcc")
        a(f"s_lshl_b32 s{sT[3]}, s{sT[3]}, 6\ns_add_u32 s{sT[2]}, s{sT[2]}, s{sT[3]}")
        a("v_and_b32 v31, 1, v233\nv_lshl_add_u32 v30, v31, 5, v27\nv_lshlrev_b32 v30, 4, v30\nv_lshrrev_b32 v31, 1, v233\nv_lshl_add_u32 v30, v31, 3, v30")
        a(f"buffer_store_dwordx2 v[24:25], v30, {WSR}, s{sT[2]} offen offset:1024 sc1")
        a.label(LJ)
        self.row16_allreduce([26], "v_max_f32")
        self.sum_groups(26, 27, "v_max_f32")
        a(f"s_lshl_b32 s{sT[2]}, s{sL}, 4\ns_lshl_b32 s{sT[3]}, s{sW}, 3\ns_add_u32 s{sT[2]}, s{sT[2]}, s{sT[3]}\ns_add_u32 s{sT[2]}, s{sT[2]}, {F_KV}")
        a(f"v_mov_b32 v28, s{sNON}\nv_mov_b32 v29, v26\nv_mov_b32 v30, 0")
        a("s_waitcnt vmcnt(0)\ns_mov_b64 exec, 1")
        a(f"buffer_store_dwordx2 v[28:29], v30, {WSR}, s{sT[2]} offen sc1")
        a("s_mov_b64 exec, -1")
        a.label(E)

    vQ1, vQ2 = 8, 12
    vO = 16
    vS = [32, 48]
    vP = 64
    vK1 = [72, 76]; vK2 = [80, 84]; vV1 = [88, 92]; vV2 = [96, 100]
    vAK = [104, 105]; vAK2 = [106, 107]
    vQN = 108; vK2L = 109
    L2_KV = 0; L2_WO = 53248; L2_UT = 0; L2_SCR = 0; L2_MISC = 162816
    CH = 4 * KV_TILE

    def q_addr(self):
        a = self.a
        a(f"s_lshl_b32 s{sT[0]}, s{sKH}, 5\nv_and_b32 v238, 31, v{vLANE}\nv_add_u32 v238, s{sT[0]}, v238")
        a(f"v_and_b32 v239, 15, v238\nv_mul_u32_u24 v238, 1280, v238\nv_lshrrev_b32 v226, 5, v{vLANE}\nv_xor_b32 v239, v239, v226")
        for q in range(8):
            a(f"v_xor_b32 v227, {2*q}, v239\nv_lshl_add_u32 v{216+q}, v227, 4, v238")
        self.emit_wq_addr(224, self.L1_WQ2)

    def q_proj(self):
        a = self.a
        a.c("---- Q projection: D[m=dim][n=row] ----")
        acc = 16
        def ldB(s): a(f"ds_read_b128 {vr(48+4*(s%3),4)}, v{216+s%8} offset:{self.L1_H + (s//8)*256}")
        def ldA(s):
            o = (s - self.NQ1) * 16 * 160
            a(f"ds_read_b64_tr_b16 {vr(64+4*(s%3),2)}, v224 offset:{o}\nds_read_b64_tr_b16 {vr(66+4*(s%3),2)}, v224 offset:{o+640}")
        def cnt(s): return 0 if s >= 40 else (1 + (2 if s >= self.NQ1 else 0))
        def ld(s):
            if s < 40:
                ldB(s)
                if s >= self.NQ1: ldA(s)
        ld(0); ld(1)
        for s in range(40):
            ld(s + 2)
            a(f"s_waitcnt lgkmcnt({cnt(s+1) + cnt(s+2)})")
            A = vr(self.vWQ + 4 * s, 4) if s < self.NQ1 else vr(64 + 4 * (s % 3), 4)
            a(f"v_mfma_f32_32x32x16_bf16 {vr(acc,16)}, {A}, {vr(48+4*(s%3),4)}, {'0' if s == 0 else vr(acc,16)}")
        a(f"s_mov_b32 s{sT[0]}, 0x3ea52b8e")
        for j in range(12): a(f"v_mul_f32 v{acc+j}, s{sT[0]}, v{acc+j}")
        for j in range(4): a(f"v_cvt_pk_bf16_f32 v{self.vQ1+j}, v{acc+2*j}, v{acc+2*j+1}")
        a(f"v_cvt_pk_bf16_f32 v{self.vQ2}, v{acc+8}, v{acc+9}\nv_cvt_pk_bf16_f32 v{self.vQ2+1}, v{acc+10}, v{acc+11}")
        a(f"v_cmp_gt_u32 vcc, 32, v{vLANE}")
        a(f"v_mov_b32 v{self.vQ2+2}, 0\nv_mov_b32 v{self.vQ2+3}, 0")
        a(f"v_cndmask_b32 v{self.vQ2}, 0, v{self.vQ2}, vcc\nv_cndmask_b32 v{self.vQ2+1}, 0, v{self.vQ2+1}, vcc")
        N = self.vQN
        regs = [self.vQ1 + j for j in range(4)] + [self.vQ2, self.vQ2 + 1]
        for i, r in enumerate(regs):
            a(f"v_dot2_f32_bf16 v{N}, v{r}, v{r}, {'0' if i == 0 else 'v%d' % N}")
        a(f"v_mov_b32 v40, v{N}\nv_permlane32_swap_b32 v{N}, v40\nv_add_f32 v{N}, v{N}, v40")
        a(f"v_sqrt_f32 v{N}, v{N}")

    def kv_piece(self, src_s, slot, half):
        L = [f"s_add_u32 m0, s{sT[18]}, {slot*self.CH}"]
        for k in (2 * half, 2 * half + 1):
            L.append(f"buffer_load_dwordx4 v{vL16}, {WSR}, s{src_s} offen offset:{k*1024} sc1 lds")
        if half == 1: L.append(f"s_add_u32 s{src_s}, s{src_s}, {self.CH}")
        return L

    def kv_dma(self, src_s, slot):
        for k in range(2):
            for x in self.kv_piece(src_s, slot, k): self.a(x)

    def ld_k(self, b, t):
        o = (t % 16) * KV_TILE
        self.a(f"ds_read_b128 {vr(self.vK1[b],4)}, v{vL16} offset:{o}\nds_read_b64 {vr(self.vK2[b],2)}, v{self.vK2L} offset:{o + 3072}")
    def ld_v1(self, b, t): self.a(f"ds_read_b128 {vr(self.vV1[b],4)}, v{vL16} offset:{(t % 16)*KV_TILE + 1024}")
    def ld_v2(self, b, t): self.a(f"ds_read_b128 {vr(self.vV2[b],4)}, v{vL16} offset:{(t % 16)*KV_TILE + 2048}")
    def qk(self, kb, sb, part):
        S = vr(self.vS[sb], 16)
        if part == 0: self.a(f"v_mfma_f32_32x32x16_bf16 {S}, {vr(self.vK1[kb],4)}, {vr(self.vQ1,4)}, 0")
        else: self.a(f"v_mfma_f32_32x32x16_bf16 {S}, {vr(self.vK2[kb],4)}, {vr(self.vQ2,4)}, {S}")

    def attn_setup(self):
        a = self.a
        a.c("---- attention: wait for K/V, bounds, stand-in for the row max ----")
        a("s_waitcnt lgkmcnt(0)\ns_barrier")
        a(f"s_lshl_b32 s{sT[18]}, s{sW4}, 12\ns_cmp_eq_u32 s{sW4}, 3\ns_cselect_b32 s{sT[18]}, 9216, s{sT[18]}")
        a(f"s_add_u32 s{sT[17]}, s{sT[18]}, {WS_KV}")
        if self.stop >= 3:
            import g3b
            g3b.bg_setup(self)
        a(f"v_lshlrev_b32 v111, 6, v{vLANE}\ns_mov_b32 s{sT[1]}, {F_KV}")
        L, D = a.new("Lkvp"), a.new("Lkvd")
        cnt = sT[20]
        a(f"s_mov_b32 s{cnt}, 0")
        a.label(L)
        for j in range(4): a(f"buffer_load_dwordx4 {vr(112+4*j,4)}, v111, {WSR}, s{sT[1]} offen offset:{16*j} sc1")
        a("s_waitcnt vmcnt(0)")
        a(f"v_xor_b32 v128, s{sNON}, v112\nv_xor_b32 v129, s{sNON}, v114")
        for j in range(1, 4):
            a(f"v_xor_b32 v130, s{sNON}, v{112+4*j}\nv_xor_b32 v131, s{sNON}, v{114+4*j}\nv_or3_b32 v128, v128, v130, v131")
        a("v_or_b32 v128, v128, v129\nv_cmp_ne_u32 vcc, 0, v128")
        a(f"s_cbranch_vccz {D}")
        a(f"s_add_u32 s{cnt}, s{cnt}, 1\ns_cmp_lt_u32 s{cnt}, {SPIN_LIMIT}\ns_cbranch_scc1 {L}")
        self.bail(2)
        a.label(D)
        self.stamp(31)
        E = a.new("Lfc")
        a(f"s_cmp_ge_u32 s{sW}, 4\ns_cbranch_scc1 {E}")
        for k in range(3):
            self.kv_dma(sT[17], k)
        a.label(E)
        a("v_max3_f32 v113, v113, v117, v121\nv_max3_f32 v115, v115, v119, v123\nv_max_f32 v113, v113, v125\nv_max_f32 v115, v115, v127")
        self.row16_allreduce([113, 115], "v_max_f32", steps=(8, 4, 2))
        self.sum_groups(113, 114, "v_max_f32"); self.sum_groups(115, 116, "v_max_f32")
        a(f"v_readlane_b32 s{sT[5]}, v113, 0\nv_readlane_b32 s{sT[6]}, v115, 0\nv_readlane_b32 s{sT[7]}, v113, 1\nv_readlane_b32 s{sT[8]}, v115, 1")
        a(f"v_mov_b32 v113, s{sT[5]}\nv_add_f32 v113, s{sT[6]}, v113\nv_sqrt_f32 v113, v113")
        a(f"v_mov_b32 v114, s{sT[7]}\nv_max_f32 v114, s{sT[8]}, v114")
        a(f"v_mul_f32 v113, 0x3f810000, v113\nv_mul_f32 v{self.vQN}, v{self.vQN}, v113")
        E = a.new("Lgen")
        a(f"s_or_b32 s{sT[0]}, s{sL}, s{sW}\ns_cmp_lg_u32 s{sT[0]}, 0\ns_cbranch_scc1 {E}")
        a(f"v_mov_b32 v112, s{sNON}\ns_mov_b32 s{sT[0]}, {WS_NONCE}")
        self.one_lane_store(sT[0], 112)
        a.label(E)
        for b in range(2):
            a(f"v_mov_b32 v{self.vK2[b]+2}, 0x3f803f80\nv_mov_b32 v{self.vK2[b]+3}, 0x00003f80")
        a(f"v_and_b32 v{self.vK2L}, 31, v{vLANE}\nv_lshlrev_b32 v{self.vK2L}, 3, v{self.vK2L}")
        a("s_waitcnt vmcnt(8)\ns_barrier")
        self.stamp(13) if os.environ.get("TSX") else None
        self.ld_k(0, 0)
        self.ld_k(1, 1)
        self.ld_v1(0, 0); self.ld_v2(0, 0)
        a("s_waitcnt lgkmcnt(4)")
        self.qk(0, 0, 0); self.qk(0, 0, 1)
        S = self.vS[0]
        U = self.vQN
        a(f"v_mov_b32 v115, 0x43300000\nv_mov_b32 v116, 0x4d000000")
        a(f"v_cmp_nlt_f32 s[{sT[22]}:{sT[23]}], v114, v116")
        a(f"v_max3_f32 v112, v{S}, v{S+1}, v{S+2}")
        for j in range(3, 15, 2): a(f"v_max3_f32 v112, v112, v{S+j}, v{S+j+1}")
        a(f"v_max_f32 v112, v112, v{S+15}")
        a("v_mov_b32 v113, v112\nv_permlane32_swap_b32 v112, v113\nv_max_f32 v112, v112, v113")
        a(f"v_sub_f32 v113, v{U}, v112\nv_cmp_nle_f32 vcc, v113, v115")
        a(f"s_or_b64 vcc, vcc, s[{sT[22]}:{sT[23]}]")
        a(f"s_cmp_lg_u64 vcc, 0\ns_cselect_b32 s{sT[12]}, 1, 0")
        if self.force_fallback: a(f"s_mov_b32 s{sT[12]}, 1")
        a(f"s_lshl_b32 s{sT[0]}, s{sW}, 2\ns_add_u32 s{sT[0]}, s{sT[0]}, {self.L2_MISC}")
        a(f"v_mov_b32 v113, s{sT[0]}\nv_mov_b32 v114, s{sT[12]}\nds_write_b32 v113, v114")
        a(f"v_add_f32 v112, v{U}, v112\nv_mul_f32 v112, 0.5, v112\nv_mov_b32 v113, {self.L2_MISC}")
        a("s_waitcnt lgkmcnt(0)\ns_barrier")
        a("ds_read_b128 v[116:119], v113\nds_read_b128 v[120:123], v113 offset:16\ns_waitcnt lgkmcnt(0)")
        a("v_or3_b32 v116, v116, v117, v118\nv_or3_b32 v119, v119, v120, v121\nv_or3_b32 v116, v116, v122, v123\nv_or_b32 v116, v116, v119")
        a(f"v_readfirstlane_b32 s{sT[12]}, v116")
        FB = a.new("Lnofb")
        a(f"s_cmp_eq_u32 s{sT[12]}, 0\ns_cbranch_scc1 {FB}")
        self.max_pass()
        a.label(FB)
        a("v_sub_f32 v112, 0, v112")
        a("v_cvt_pk_bf16_f32 v113, v112, v112\nv_and_b32 v114, 0xffff0000, v113\nv_sub_f32 v112, v112, v114")
        a("v_cvt_pk_bf16_f32 v115, v112, v112\nv_and_b32 v116, 0xffff0000, v115\nv_sub_f32 v112, v112, v116")
        a("v_cvt_pk_bf16_f32 v117, v112, 0")
        a("v_and_b32 v113, 0xffff, v113\nv_or_b32 v113, v113, v116")
        a(f"v_cmp_gt_u32 vcc, 32, v{vLANE}")
        a(f"v_cndmask_b32 v{self.vQ2+2}, 0, v113, vcc\nv_cndmask_b32 v{self.vQ2+3}, 0, v117, vcc")

    def max_pass(self):
        a = self.a
        a.c("fallback: exact row max")
        a("v_mov_b32 v112, 0xff7fffff")
        L = a.new("Lmx"); c = sT[13]
        a(f"s_add_u32 s{c}, s{sT[18]}, {WS_KV}\ns_mov_b32 s{sT[21]}, 0")
        a.label(L)
        E = a.new("Lmxd")
        a(f"s_cmp_ge_u32 s{sW}, 4\ns_cbranch_scc1 {E}")
        self.kv_dma(c, 3)
        a.label(E)
        a("s_waitcnt vmcnt(0)\ns_barrier")
        S = self.vS[1]
        for t in range(4):
            o = (12 + t) * KV_TILE
            a(f"ds_read_b128 v[120:123], v{vL16} offset:{o}\nds_read_b64 v[124:125], v{self.vK2L} offset:{o + 3072}")
            a(f"v_mov_b32 v126, 0\nv_mov_b32 v127, 0\ns_waitcnt lgkmcnt(0)")
            a(f"v_mfma_f32_32x32x16_bf16 {vr(S,16)}, v[120:123], {vr(self.vQ1,4)}, 0")
            a(f"v_mfma_f32_32x32x16_bf16 {vr(S,16)}, v[124:127], {vr(self.vQ2,4)}, {vr(S,16)}")
            for j in range(0, 16, 2): a(f"v_max3_f32 v112, v112, v{S+j}, v{S+j+1}")
        a("s_barrier")
        a(f"s_add_u32 s{sT[21]}, s{sT[21]}, 1\ns_cmp_lt_u32 s{sT[21]}, 16\ns_cbranch_scc1 {L}")
        a("v_mov_b32 v113, v112\nv_permlane32_swap_b32 v112, v113\nv_max_f32 v112, v112, v113")

    def attn_tile(self, t, h1=(), h2=()):
        a = self.a
        S = self.vS[t % 2]; Sp = self.vS[(t + 1) % 2]; P = self.vP
        def ex(j): a(f"v_exp_f32 v{S+j}, v{S+j}")
        def cv(j, b): a(f"v_cvt_pk_bf16_f32 v{P+j}, v{b+2*j}, v{b+2*j+1}")
        O = vr(self.vO, 16)
        ex(0); ex(1); cv(6, Sp); ex(2); cv(7, Sp); ex(3)
        a("s_waitcnt lgkmcnt(2)")
        self.qk((t + 1) % 2, (t + 1) % 2, 0)
        self.ld_k(t % 2, t + 2)
        ex(4); ex(5); cv(0, S); ex(6); cv(1, S); ex(7)
        self.qk((t + 1) % 2, (t + 1) % 2, 1)
        self.ld_v1((t + 1) % 2, t + 1)
        for x in h1: a(x)
        ex(8); ex(9); cv(2, S); ex(10); cv(3, S); ex(11)
        a(f"v_mfma_f32_32x32x16_bf16 {O}, {vr(self.vV2[(t+1)%2],4)}, {vr(P+4,4)}, {O}")
        self.ld_v2((t + 1) % 2, t + 1)
        for x in h2: a(x)
        ex(12); ex(13); cv(4, S); ex(14); cv(5, S); ex(15)
        a("s_waitcnt lgkmcnt(4)")
        a(f"v_mfma_f32_32x32x16_bf16 {O}, {vr(self.vV1[t%2],4)}, {vr(P,4)}, {O}")

    def attn_main(self):
        a = self.a
        a.c("---- attention main loop (unrolled, static background schedule) ----")
        src = sT[17]
        for j in range(16): a(f"v_mov_b32 v{self.vO+j}, 0")
        self.qk(0, 0, 0); self.qk(0, 0, 1)
        for j in range(12, 16): a(f"v_mov_b32 v{self.vS[1]+j}, 0")
        a(f"v_mov_b32 v{self.vP+4}, 0\nv_mov_b32 v{self.vP+5}, 0")
        for j in range(4): a(f"v_mov_b32 v{self.vV2[1]+j}, 0")
        a(f"s_cmp_ge_u32 s{sW}, 4\ns_cselect_b64 vcc, -1, 0")
        bg = {}
        def put(T, tag, ins, n=1, need=None, role=None): bg.setdefault(T, []).append((tag, ins, n, need, role))
        for c in range(13):
            put(4 * c + 2, f"kv{c+3}", self.kv_piece(src, (c + 3) % 4, 0), n=2, role="A")
            put(4 * c + 3, f"kv{c+3}", self.kv_piece(src, (c + 3) % 4, 1), n=2, role="A")
        if self.stop >= 3 and not os.environ.get("X_NOEXTRA"):
            import g3b
            g3b.bg_schedule(self, put)
        pend = {"A": [("kv1", 4), ("kv2", 4)], "B": []}
        def wait_for(role, tag):
            p = pend[role]
            idx = [i for i, (k, n) in enumerate(p) if k == tag]
            if not idx: return None
            after = sum(n for (k, n) in p[idx[-1] + 1:])
            del p[:idx[-1] + 1]
            return after
        def guarded(role, body):
            lab = a.new("Lg")
            return [f"s_cbranch_vcc{'nz' if role == 'A' else 'z'} {lab}"] + body + [f"{lab}:"]
        for T in range(64):
            hooks = [[], []]
            ops = bg.get(T, [])
            for k, (tag, ins, n, need, role) in enumerate(ops):
                h = hooks[0] if k < (len(ops) + 1) // 2 else hooks[1]
                body = []
                if need:
                    assert role
                    w = wait_for(role, need)
                    if w is not None: body.append(f"s_waitcnt vmcnt({w})")
                body.extend(ins)
                if role: h.extend(guarded(role, body)); pend[role].append((tag, n)) if n else None
                else:
                    h.extend(body)
                    if n: pend["A"].append((tag, n)); pend["B"].append((tag, n))
            self.attn_tile(T, hooks[0], hooks[1])
            if T % 4 == 1 and T < 62:
                c = T // 4
                w = wait_for("A", f"kv{c+1}")
                if w is not None:
                    for x in guarded("A", [f"s_waitcnt vmcnt({w})"]): a(x)
                a("s_barrier")
        S = self.vS[1]; P = self.vP
        a(f"v_cvt_pk_bf16_f32 v{P+6}, v{S+12}, v{S+13}\nv_cvt_pk_bf16_f32 v{P+7}, v{S+14}, v{S+15}")
        a(f"s_waitcnt lgkmcnt(0)")
        a(f"v_mfma_f32_32x32x16_bf16 {vr(self.vO,16)}, {vr(self.vV2[1],4)}, {vr(P+4,4)}, {vr(self.vO,16)}")

    def attn_epilogue(self):
        a = self.a
        a.c("---- attention epilogue ----")
        O = self.vO
        a(f"s_lshl_b32 s{sT[0]}, s{sI}, 2\ns_lshl_b32 s{sT[1]}, s{sKH}, 1\ns_add_u32 s{sT[0]}, s{sT[0]}, s{sT[1]}\ns_mul_i32 s{sT[0]}, s{sT[0]}, {24*1024}\ns_add_u32 s{sT[0]}, s{sT[0]}, {WS_O}")
        a(f"s_lshl_b32 s{sT[1]}, s{sHG}, 2\ns_add_u32 s{sT[1]}, s{sT[1]}, s{sW4}\ns_mul_i32 s{sT[1]}, s{sT[1]}, 768\ns_add_u32 s{sT[0]}, s{sT[0]}, s{sT[1]}")
        a(f"v_bfe_u32 v32, v{vLANE}, 4, 1\nv_mul_u32_u24 v32, {24*1024}, v32\nv_and_b32 v33, 15, v{vLANE}\nv_lshl_add_u32 v32, v33, 4, v32")
        a(f"v_lshrrev_b32 v33, 5, v{vLANE}\nv_lshl_add_u32 v33, v33, 8, v32")
        a(f"v_cmp_gt_u32 vcc, 32, v{vLANE}\nv_mov_b32 v50, 0\nv_mov_b32 v51, 0")
        a(f"v_cndmask_b32 v40, v{O+8}, v{O+12}, vcc")
        a("v_rcp_f32 v40, v40")
        for j in range(12): a(f"v_mul_f32 v{O+j}, v{O+j}, v40")
        for j in range(6): a(f"v_cvt_pk_bf16_f32 v{44+j}, v{O+2*j}, v{O+2*j+1}")
        a(f"buffer_store_dwordx4 v[44:47], v33, {WSR}, s{sT[0]} offen sc1")
        a("s_mov_b32 exec_hi, 0")
        a(f"buffer_store_dwordx4 v[48:51], v32, {WSR}, s{sT[0]} offen offset:512 sc1")
        a("s_mov_b64 exec, -1")
        self.wave_flag(F_O)

    def build(self):
        a = self.a
        self.prologue(); self.stamp(0)
        self.p0(); self.stamp(1)
        self.ln_stats()
        self.wq_to_regs(); self.stamp(2)
        self.mod_poll_apply(); self.stamp(3)
        self.kv_proj(); self.stamp(16)
        self.q_proj(); self.stamp(4)
        if self.stop >= 2:
            self.attn_setup(); self.stamp(5); self.cstamp(27)
            self.attn_main(); self.stamp(6); self.cstamp(28)
            self.attn_epilogue(); self.stamp(7)
        if self.stop >= 3:
            import g3b
            g3b.rest(self)
        a("s_waitcnt vmcnt(0) lgkmcnt(0)")
        a.label("L_END")
        a("s_endpgm")
        return fix_hazards(a.l)

HEADER = open(os.path.join(os.path.dirname(os.path.abspath(__file__)), "header.txt")).read()

def make(stop=99, ts=False, force_fallback=False):
    g = Gen(stop, ts, force_fallback)
    lines, n = g.build()
    txt = HEADER + "; @launch grid=(256,1,1) block=(512,1,1) lds=163840\n"
    txt += f'.amdgcn_target "amdgcn-amd-amdhsa--gfx950"\n.text\n.globl {NAME}\n.p2align 8\n.type {NAME},@function\n{NAME}:\n'
    txt += "\n".join(lines) + "\n"
    txt += f""".section .rodata,"a"
.p2align 6
.amdhsa_kernel {NAME}
  .amdhsa_next_free_vgpr 256
  .amdhsa_next_free_sgpr 102
  .amdhsa_accum_offset 256
  .amdhsa_group_segment_fixed_size 0
  .amdhsa_kernarg_size 112
  .amdhsa_user_sgpr_count 2
  .amdhsa_user_sgpr_kernarg_segment_ptr 1
  .amdhsa_system_sgpr_workgroup_id_x 1
  .amdhsa_float_denorm_mode_32 3
.end_amdhsa_kernel
"""
    return txt, n

if __name__ == "__main__":
    import argparse
    ap = argparse.ArgumentParser()
    ap.add_argument("--stop", type=int, default=99)
    ap.add_argument("--ts", action="store_true")
    ap.add_argument("--fb", action="store_true")
    ap.add_argument("-o", default="out.s")
    args = ap.parse_args()
    sys.modules["g3"] = sys.modules["__main__"]
    txt, n = make(args.stop, args.ts, args.fb)
    open(args.o, "w").write(txt)
    print("nops inserted:", n, "lines:", txt.count("\n"))
```

```python
import sys, os
sys.path.insert(0, os.path.dirname(os.path.abspath(__file__)))
from asmlib import Asm, fix_hazards

NAME = "adaLN_cond__grouped_kv_mqa__glu_gated_swiglu__prompt_kernel"

WS_NONCE = 0x0
F_KV   = 0x1000
F_MODR = 0x2000
F_O    = 0x3000
F_Y    = 0x5000
F_ACT  = 0x7000
F_UT   = 0x9000
F_RP   = 0x18000
WS_MODG = 0xA000
WS_MODR = 0xC000
WS_MODB = 0xE800
WS_UT   = 0x10000
WS_KV   = 0x20000
WS_STAT = 0x60000
WS_O    = 0x100000
WS_Y    = 0x400000
WS_ACT  = 0x700000
WS_TS   = 0xE00000
WS_RW   = 0x1000000
RW_WO, RW_W2, RW_13 = 0, 819200, 819200 + 8 * 278528
RW_W2S = 278528
WS_USED = 0x1800000
KV_TILE = 3328

S_X, S_WS, S_A, S_B, S_C, S_OUT = 4, 8, 12, 16, 20, 24
P_X, P_WQ, P_WK, P_WV, P_WO, P_BX, P_W1, P_W3, P_W2, P_CC, P_WMOD, P_OUT, P_DBG, P_WS = [32 + 2 * i for i in range(14)]
sL, sG, sM, sI, sHG, sW, sNON, sXC, sJ = 60, 61, 62, 63, 64, 65, 66, 67, 68
sW4 = 69
sT = list(range(70, 94))
sKH = 97
sFB0, sWSRC, sRBG = 98, 99, 28
sWK = 29
SPIN_LIMIT = 400000

vLANE = 1
vL16 = 2
vO160 = [3, 4, 5, 6, 7]

def srd(a, d, p, size):
    a(f"s_mov_b32 s{d}, s{p}\ns_mov_b32 s{d+1}, s{p+1}\ns_mov_b32 s{d+2}, {size}\ns_mov_b32 s{d+3}, 0x20000")
def vr(b, n=1): return f"v{b}" if n == 1 else f"v[{b}:{b+n-1}]"
WSR = f"s[{S_WS}:{S_WS+3}]"

class Gen:
    def __init__(self, stop=99, ts=False, force_fallback=False):
        self.a = Asm(); self.stop = stop; self.ts = ts; self.force_fallback = force_fallback

    def stamp_dyn(self, mode, sreg, add=0):
        if not self.ts or os.environ.get("TSMODE") != mode: return
        a = self.a
        a(f"s_memrealtime s[94:95]\ns_waitcnt lgkmcnt(0)")
        a(f"s_lshl_b32 s96, s{sL}, 3\ns_add_u32 s96, s96, s{sW}\ns_lshl_b32 s96, s96, 5\ns_add_u32 s96, s96, s{sreg}\ns_add_u32 s96, s96, {add}\ns_lshl_b32 s96, s96, 2\ns_add_u32 s96, s96, {WS_TS}")
        a(f"v_mov_b32 v254, s94\nv_mov_b32 v255, s96")
        a(f"s_mov_b64 s[100:101], exec\ns_mov_b64 exec, 1")
        a(f"buffer_store_dword v254, v255, {WSR}, 0 offen")
        a(f"s_mov_b64 exec, s[100:101]")

    def cstamp(self, idx):
        if not self.ts or os.environ.get("TSMODE"): return
        a = self.a
        a(f"s_memtime s[94:95]\ns_waitcnt lgkmcnt(0)")
        a(f"s_lshl_b32 s96, s{sL}, 3\ns_add_u32 s96, s96, s{sW}\ns_lshl_b32 s96, s96, 7\ns_add_u32 s96, s96, {WS_TS + idx*4}")
        a(f"v_mov_b32 v254, s94\nv_mov_b32 v255, s96")
        a(f"s_mov_b64 s[100:101], exec\ns_mov_b64 exec, 1")
        a(f"buffer_store_dword v254, v255, {WSR}, 0 offen")
        a(f"s_mov_b64 exec, s[100:101]")

    def hstamp(self, slot, invert=False):
        a = self.a
        lab = a.new("Lh")
        a(f"s_cmp_lg_u32 s{sW}, 0\ns_cbranch_scc1 {lab}")
        a(f"s_memrealtime s[94:95]\ns_waitcnt lgkmcnt(0)")
        if invert: a("s_not_b32 s94, s94")
        a(f"s_mov_b32 s{S_OUT}, s{P_DBG}\ns_mov_b32 s{S_OUT+1}, s{P_DBG+1}\ns_mov_b32 s{S_OUT+2}, 256\ns_mov_b32 s{S_OUT+3}, 0x20000")
        a(f"v_mov_b32 v254, s94\nv_mov_b32 v255, {slot*4}")
        a(f"s_mov_b64 s[100:101], exec\ns_mov_b64 exec, 1")
        a(f"buffer_atomic_umax v254, v255, s[{S_OUT}:{S_OUT+3}], 0 offen sc1")
        a(f"s_mov_b64 exec, s[100:101]")
        srd(a, S_OUT, P_OUT, 2048 * 1280)
        a.label(lab)

    HMAP = {0: (0, True), 1: (1, False), 3: (2, False), 4: (3, False), 5: (4, False), 6: (5, False), 14: (6, False), 20: (7, False), 15: (8, False), 11: (9, False), 12: (10, False), 22: (11, False), 26: (12, False), 25: (13, False), 10: (14, False)}
    def stamp(self, idx):
        if os.environ.get("HTS"):
            if idx in self.HMAP: self.hstamp(*self.HMAP[idx])
            return
        if not self.ts or os.environ.get("TSMODE"): return
        a = self.a
        a(f"s_memrealtime s[94:95]\ns_waitcnt lgkmcnt(0)")
        a(f"s_lshl_b32 s96, s{sL}, 3\ns_add_u32 s96, s96, s{sW}\ns_lshl_b32 s96, s96, 7\ns_add_u32 s96, s96, {WS_TS + idx*4}")
        a(f"v_mov_b32 v254, s94\nv_mov_b32 v255, s96")
        a(f"s_mov_b64 s[100:101], exec\ns_mov_b64 exec, 1")
        a(f"buffer_store_dword v254, v255, {WSR}, 0 offen")
        a(f"s_mov_b64 exec, s[100:101]")

    def bail(self, err):
        a = self.a
        a(f"v_mov_b32 v254, {err}\nv_mov_b32 v255, 0")
        srd(a, S_C, P_DBG, 256)
        a(f"buffer_store_dword v254, v255, s[{S_C}:{S_C+3}], 0 offen")

    def poll(self, vaddr, vdat, n=1, tagpos=(0,), err=1, soff="0", depth=3):
        a = self.a
        L, D = a.new("Lpoll"), a.new("Lpdone")
        cnt = sT[20]
        op = {1: "buffer_load_dword", 2: "buffer_load_dwordx2", 4: "buffer_load_dwordx4"}[n]
        ld = lambda k: a(f"{op} {vr(vdat + k*n, n)}, v{vaddr}, {WSR}, {soff} offen sc1")
        a(f"s_mov_b32 s{cnt}, 0")
        for k in range(depth - 1): ld(k)
        a.label(L)
        for k in range(depth):
            ld((k + depth - 1) % depth)
            a(f"s_waitcnt vmcnt({depth-1})")
            b = vdat + k * n
            a(f"v_cmp_ne_u32 vcc, s{sNON}, v{b + tagpos[0]}")
            for t in tagpos[1:]:
                a(f"v_cmp_ne_u32 s[{sT[22]}:{sT[23]}], s{sNON}, v{b + t}")
                a(f"s_or_b64 vcc, vcc, s[{sT[22]}:{sT[23]}]")
            a(f"s_cbranch_vccz {D}")
        a(f"s_add_u32 s{cnt}, s{cnt}, 1\ns_cmp_lt_u32 s{cnt}, {SPIN_LIMIT}\ns_cbranch_scc1 {L}")
        self.bail(err)
        a.label(D)

    def one_lane_store(self, soff_s, vval):
        a = self.a
        a(f"s_mov_b64 exec, 1\nbuffer_store_dword v{vval}, v{vLANE}, {WSR}, s{soff_s} offen sc1\ns_mov_b64 exec, -1")

    def wave_flag(self, base):
        a = self.a
        a(f"s_lshl_b32 s{sT[0]}, s{sL}, 3\ns_add_u32 s{sT[0]}, s{sT[0]}, s{sW}\ns_lshl_b32 s{sT[0]}, s{sT[0]}, 2\ns_add_u32 s{sT[0]}, s{sT[0]}, {base}")
        a(f"v_mov_b32 v255, s{sNON}")
        a("s_waitcnt vmcnt(0)")
        self.one_lane_store(sT[0], 255)

    def bf16_round(self, dst, src):
        self.a(f"v_cvt_pk_bf16_f32 v{dst}, v{src}, v{src}\nv_and_b32 v{dst}, 0xffff0000, v{dst}")

    def dma_run(self, srd_s, voff, soff, lds, n, extra=""):
        a = self.a
        a(f"s_mov_b32 m0, {lds}")
        for k in range(n):
            a(f"buffer_load_dwordx4 v{voff}, s[{srd_s}:{srd_s+3}], s{soff} offen offset:{k*1024}{extra} lds")

    L1_H = 0; L1_WQ2 = 81920; L1_WKV = 128000; L1_GS = 153600; L1_NS = 158720; L1_SCR = 160000
    NQ1 = 22
    vX = 8; vXN = 48; vWQ = 128
    vWA, vC1 = 216, 228

    def prologue(self):
        a = self.a
        a(f"s_cmp_ge_u32 s2, 256\ns_cbranch_scc1 L_END")
        a("s_load_dwordx16 s[32:47], s[0:1], 0\ns_load_dwordx8 s[48:55], s[0:1], 64\ns_load_dwordx4 s[56:59], s[0:1], 96")
        if not os.environ.get("X_NOCP"):
            E = a.new("Lcp"); GP = a.new("Lpc")
            a(f"s_getpc_b64 s[{sT[2]}:{sT[3]}]")
            a.label(GP)
            a(f"s_lshr_b32 s{sT[4]}, s2, 3\ns_lshl_b32 s{sT[4]}, s{sT[4]}, 13\ns_cmp_ge_u32 s{sT[4]}, L_END - {GP}\ns_cbranch_scc1 {E}")
            a(f"v_lshlrev_b32 v208, 4, v0\nv_add_u32 v208, s{sT[4]}, v208\nv_min_u32 v208, L_END - {GP} - 16, v208")
            a(f"global_load_dwordx4 v[208:211], v208, s[{sT[2]}:{sT[3]}]")
            a.label(E)
        a(f"v_and_b32 v{vLANE}, 63, v0\nv_lshrrev_b32 v8, 6, v0")
        a(f"s_and_b32 s{sXC}, s2, 7\ns_lshr_b32 s{sJ}, s2, 3")
        a(f"v_readfirstlane_b32 s{sW}, v8")
        a(f"s_lshl_b32 s{sL}, s{sXC}, 5\ns_add_u32 s{sL}, s{sL}, s{sJ}")
        a(f"v_lshlrev_b32 v{vL16}, 4, v{vLANE}")
        a(f"s_lshr_b32 s{sG}, s{sL}, 4\ns_and_b32 s{sM}, s{sL}, 15\ns_lshr_b32 s{sI}, s{sL}, 3\ns_and_b32 s{sHG}, s{sL}, 7")
        a(f"s_and_b32 s{sW4}, s{sW}, 3\ns_lshr_b32 s{sKH}, s{sW}, 2\ns_lshl_b32 s{sWK}, s{sW}, 10")
        a(f"s_lshl_b32 s{sRBG}, s{sI}, 2\ns_add_u32 s{sRBG}, s{sRBG}, s{sW4}")
        a(f"v_and_b32 v243, 31, v{vLANE}\ns_lshl_b32 s{sT[0]}, s{sW}, 5\nv_add_u32 v243, s{sT[0]}, v243")
        a(f"v_lshlrev_b32 v244, 1, v243")
        a(f"s_movk_i32 s{sT[0]}, 7680\nv_mul_u32_u24 v243, s{sT[0]}, v243\nv_lshrrev_b32 v245, 5, v{vLANE}\nv_lshl_add_u32 v243, v245, 4, v243")
        a(f"s_lshl_b32 s{sT[5]}, s{sL}, 5\ns_cmp_lt_u32 s{sL}, 240\ns_cselect_b32 s{sT[5]}, s{sT[5]}, 0x7000000")
        a(f"v_mov_b32 v246, 0")
        a("s_waitcnt lgkmcnt(0)")
        srd(a, S_B, P_WMOD, 640 * 7680)
        for it in range(3):
            a(f"buffer_load_dwordx4 {vr(self.vWA+4*it,4)}, v243, s[{S_B}:{S_B+3}], s{sT[5]} offen")
            if it < 2: a(f"v_add_u32 v243, {256*7680}, v243")
        srd(a, S_A, P_CC, 1280)
        for it in range(3):
            a(f"buffer_load_ushort v{self.vC1+it}, v244, s[{S_A}:{S_A+3}], 0 offen offset:{it*512}")
        srd(a, S_WS, P_WS, WS_USED)
        a(f"buffer_load_dword v242, v246, {WSR}, 0 offen sc1")
        a("s_barrier")
        srd(a, S_X, P_X, 2048 * 1280)
        a(f"v_lshrrev_b32 v245, 4, v{vLANE}\nv_and_b32 v246, 15, v{vLANE}")
        a(f"s_lshl_b32 s{sT[8]}, s{sI}, 3\ns_add_u32 s{sT[8]}, s{sT[8]}, s{sW}\ns_mul_i32 s{sT[8]}, s{sT[8]}, {8*1280}")
        a(f"v_mul_u32_u24 v245, 1280, v245\nv_lshl_add_u32 v245, v246, 4, v245\nv_add_u32 v246, {4*1280}, v245")
        for it in range(2):
            for c in range(5):
                a(f"buffer_load_dwordx4 {vr(self.vX + (it*5+c)*4, 4)}, v{245+it}, s[{S_X}:{S_X+3}], s{sT[8]} offen offset:{c*256}")
        a("s_barrier")
        a(f"s_cmp_lt_u32 s{sHG}, 4\ns_cselect_b32 s{S_C}, s{P_WK}, s{P_WV}\ns_cselect_b32 s{S_C+1}, s{P_WK+1}, s{P_WV+1}")
        a(f"s_mov_b32 s{S_C+2}, 25600\ns_mov_b32 s{S_C+3}, 0x20000")
        a(f"s_lshl_b32 s{sT[3]}, s{sW}, 12\ns_add_u32 s{sT[4]}, s{sT[3]}, {self.L1_WKV}")
        E1, E2 = a.new("Lkv"), a.new("Lkv")
        a(f"s_cmp_ge_u32 s{sW}, 6\ns_cbranch_scc1 {E1}")
        self.dma_run(S_C, vL16, sT[3], f"s{sT[4]}", 4)
        a(f"s_branch {E2}")
        a.label(E1)
        a(f"s_cmp_eq_u32 s{sW}, 7\ns_cbranch_scc1 {E2}")
        self.dma_run(S_C, vL16, sT[3], f"s{sT[4]}", 1)
        a.label(E2)
        a(f"s_mov_b32 s{sT[0]}, 0x1999999a")
        for ph in range(5):
            r = vO160[ph]
            a(f"v_add_u32 v248, {64*ph}, v{vLANE}\nv_mul_hi_u32 v249, v248, s{sT[0]}")
            a(f"v_mul_u32_u24 v250, {1280-160}, v249\nv_lshl_add_u32 v250, v248, 4, v250")
            a(f"v_add_u32 v{r}, {4096 - (1024*ph if ph < 4 else 0)}, v250")
        a(f"s_sub_u32 s{S_A}, s{P_WQ}, 4096\ns_subb_u32 s{S_A+1}, s{P_WQ+1}, 0\ns_mov_b32 s{S_A+2}, {640*1280+4096}\ns_mov_b32 s{S_A+3}, 0x20000")
        a(f"s_mul_i32 s{sT[3]}, s{sW}, 40960\ns_mul_i32 s{sT[4]}, s{sHG}, 160\ns_add_u32 s{sT[3]}, s{sT[3]}, s{sT[4]}")
        a(f"s_mul_i32 s{sT[4]}, s{sW}, 5120")
        for j in range(3):
            E = None
            if j == 1:
                a(f"s_add_u32 s{sT[3]}, s{sT[3]}, {8*40960}\ns_add_u32 s{sT[4]}, s{sT[4]}, {8*5120}")
                a(f"s_cmp_ge_u32 s{sW}, 3\ns_cselect_b32 s{sT[5]}, {self.L1_WQ2 - 11*5120}, 0\ns_add_u32 s{sT[4]}, s{sT[4]}, s{sT[5]}")
            if j == 2:
                E = a.new("Lq")
                a(f"s_cmp_ge_u32 s{sW}, 4\ns_cbranch_scc1 {E}")
                a(f"s_add_u32 s{sT[3]}, s{sT[3]}, {8*40960}\ns_mul_i32 s{sT[4]}, s{sW}, 5120\ns_add_u32 s{sT[4]}, s{sT[4]}, {self.L1_WQ2 + 5*5120}")
            a(f"s_mov_b32 m0, s{sT[4]}")
            for ph in range(4):
                a(f"buffer_load_dwordx4 v{vO160[ph]}, s[{S_A}:{S_A+3}], s{sT[3]} offen offset:{ph*1024} lds")
            a(f"s_add_u32 m0, s{sT[4]}, 4096")
            a(f"buffer_load_dwordx4 v{vO160[4]}, s[{S_A}:{S_A+3}], s{sT[3]} offen lds")
            if E: a.label(E)
        self.dma_min = 10
        srd(a, S_OUT, P_OUT, 2048 * 1280)

    def p0(self):
        a = self.a
        a.c("---- P0: modulation GEMV (16 columns per workgroup) ----")
        a(f"s_waitcnt vmcnt({10 + self.dma_min})")
        a(f"v_readfirstlane_b32 s{sNON}, v242")
        acc = 244
        for it in range(3):
            c = self.vC1 + it
            a(f"v_lshlrev_b32 v{c}, 16, v{c}\nv_mul_f32 v{232+it}, 0xbfb8aa3b, v{c}")
        for it in range(3): a(f"v_exp_f32 v{232+it}, v{232+it}")
        a(f"s_add_u32 s{sNON}, s{sNON}, 1\ns_cmp_eq_u32 s{sNON}, 0\ns_cselect_b32 s{sNON}, 1, s{sNON}")
        for it in range(3): a(f"v_add_f32 v{232+it}, 1.0, v{232+it}")
        for it in range(3): a(f"v_rcp_f32 v{232+it}, v{232+it}")
        for it in range(3): a(f"v_mul_f32 v{232+it}, v{self.vC1+it}, v{232+it}")
        for it in range(3):
            a(f"v_cvt_pk_bf16_f32 v{235+it}, v{232+it}, 0\nv_cvt_pk_bf16_f32 v{238+it}, 0, v{232+it}")
        for it in range(3):
            w = self.vWA + 4 * it
            for j in range(4):
                c0 = "0" if it == 0 else f"v{acc+2*j}"; c1 = "0" if it == 0 else f"v{acc+2*j+1}"
                a(f"v_dot2_f32_bf16 v{acc+2*j}, v{w+j}, v{235+it}, {c0}\nv_dot2_f32_bf16 v{acc+2*j+1}, v{w+j}, v{238+it}, {c1}")
        for sh in (1, 2, 4, 8):
            for j in range(8):
                a(f"v_add_f32_dpp v{acc+j}, v{acc+j}, v{acc+j} row_shr:{sh} row_mask:0xf bank_mask:0xf bound_ctrl:0")
        for j in range(8):
            a(f"v_add_f32_dpp v{acc+j}, v{acc+j}, v{acc+j} row_bcast:15 row_mask:0xa bank_mask:0xf")
        a(f"v_lshrrev_b32 v252, 5, v{vLANE}\ns_lshl_b32 s{sT[2]}, s{sW}, 2\ns_add_u32 s{sT[2]}, s{sT[2]}, {self.L1_SCR}\nv_lshl_add_u32 v252, v252, 8, s{sT[2]}")
        a("s_mov_b32 exec_lo, 0x80000000\ns_mov_b32 exec_hi, 0x80000000")
        for j in range(8):
            a(f"ds_write_b32 v252, v{acc+j} offset:{j*32}")
        a("s_mov_b64 exec, -1")
        a("s_waitcnt lgkmcnt(0)\ns_barrier")
        E = a.new("Lp0e")
        a(f"s_cmp_lg_u32 s{sW}, 0\ns_cbranch_scc1 {E}\ns_cmp_ge_u32 s{sL}, 240\ns_cbranch_scc1 {E}")
        a(f"v_and_b32 v246, 15, v{vLANE}\nv_lshlrev_b32 v246, 5, v246\nv_add_u32 v246, {self.L1_SCR}, v246")
        a("ds_read_b128 v[248:251], v246\nds_read_b128 v[244:247], v246 offset:16")
        a(f"s_mov_b32 s{sT[2]}, 0")
        a(f"s_cmp_ge_u32 s{sL}, 40\ns_cselect_b32 s{sT[2]}, 1.0, s{sT[2]}\ns_cmp_ge_u32 s{sL}, 80\ns_cselect_b32 s{sT[2]}, 0, s{sT[2]}")
        a(f"s_cmp_ge_u32 s{sL}, 160\ns_cselect_b32 s{sT[2]}, 1.0, s{sT[2]}\ns_cmp_ge_u32 s{sL}, 200\ns_cselect_b32 s{sT[2]}, 0, s{sT[2]}")
        a("s_waitcnt lgkmcnt(0)")
        a("v_add_f32 v244, v244, v248\nv_add_f32 v245, v245, v249\nv_add_f32 v246, v246, v250\nv_add_f32 v247, v247, v251")
        a("v_add_f32 v244, v244, v245\nv_add_f32 v246, v246, v247\nv_add_f32 v244, v244, v246")
        self.bf16_round(244, 244)
        a(f"v_add_f32 v244, s{sT[2]}, v244")
        self.bf16_round(244, 244)
        a(f"v_mov_b32_dpp v245, v244 quad_perm:[1,0,3,2] row_mask:0xf bank_mask:0xf")
        a(f"v_lshrrev_b32 v247, 16, v244\nv_or_b32 v248, v247, v245")
        R = a.new("Lp0r")
        a(f"v_lshlrev_b32 v246, 2, v{vLANE}\nv_mov_b32 v249, s{sNON}")
        a(f"s_cmp_ge_u32 s{sL}, 80\ns_cbranch_scc1 {R}")
        a(f"s_lshl_b32 s{sT[1]}, s{sL}, 6\ns_add_u32 s{sT[1]}, s{sT[1]}, {WS_MODG}")
        a("s_mov_b32 exec_lo, 0x5555\ns_mov_b32 exec_hi, 0")
        a(f"buffer_store_dwordx2 v[248:249], v246, {WSR}, s{sT[1]} offen sc1")
        a(f"s_mov_b64 exec, -1\ns_branch {E}")
        a.label(R)
        a(f"s_sub_u32 s{sT[1]}, s{sL}, 80\ns_lshl_b32 s{sT[2]}, s{sT[1]}, 6\ns_add_u32 s{sT[2]}, s{sT[2]}, {WS_MODR}")
        a("s_mov_b32 exec_lo, 0xffff\ns_mov_b32 exec_hi, 0")
        a(f"buffer_store_dword v244, v246, {WSR}, s{sT[2]} offen sc1")
        EB = a.new("Lmodb")
        a(f"s_cmp_lt_u32 s{sL}, 120\ns_cbranch_scc1 {EB}\ns_cmp_ge_u32 s{sL}, 200\ns_cbranch_scc1 {EB}")
        a(f"s_sub_u32 s{sT[2]}, s{sL}, 120\ns_lshl_b32 s{sT[2]}, s{sT[2]}, 5\ns_add_u32 s{sT[2]}, s{sT[2]}, {WS_MODB}")
        a(f"v_lshlrev_b32 v246, 1, v{vLANE}\ns_mov_b32 exec_lo, 0x5555")
        a(f"buffer_store_dword v248, v246, {WSR}, s{sT[2]} offen sc1")
        a.label(EB)
        a(f"s_lshl_b32 s{sT[2]}, s{sT[1]}, 2\ns_add_u32 s{sT[2]}, s{sT[2]}, {F_MODR}")
        a("s_waitcnt vmcnt(0)")
        self.one_lane_store(sT[2], 249)
        a.label(E)

    def row16_allreduce(self, regs, op="v_add_f32", steps=(8, 4, 2, 1)):
        for sh in steps:
            for r in regs:
                self.a(f"{op}_dpp v{r}, v{r}, v{r} row_ror:{sh} row_mask:0xf bank_mask:0xf")

    def ln_stats(self):
        a = self.a
        a.c("---- LN1 statistics ----")
        a(f"s_waitcnt vmcnt({self.dma_min})")
        X, N = self.vX, self.vXN
        ONE = 240
        a(f"v_mov_b32 v{ONE}, 0x3f803f80")
        for q in range(20):
            for it in range(2):
                sa_, sq_ = 232 + 2 * it + (q & 1), 236 + 2 * it + (q & 1)
                x = X + it * 20 + q
                a(f"v_dot2_f32_bf16 v{sa_}, v{x}, v{ONE}, {'0' if q < 2 else 'v%d' % sa_}")
                a(f"v_dot2_f32_bf16 v{sq_}, v{x}, v{x}, {'0' if q < 2 else 'v%d' % sq_}")
        a("v_add_f32 v232, v232, v233\nv_add_f32 v234, v234, v235\nv_add_f32 v236, v236, v237\nv_add_f32 v238, v238, v239")
        self.row16_allreduce([232, 234, 236, 238])
        a(f"s_mov_b32 s{sT[0]}, 0x3acccccd")
        for it in range(2):
            m, q, r = 232 + 2 * it, 236 + 2 * it, 242 + 4 * it
            a(f"v_mul_f32 v{m}, s{sT[0]}, v{m}\nv_mul_f32 v{q}, s{sT[0]}, v{q}")
            a(f"v_fma_f32 v{q}, -v{m}, v{m}, v{q}\nv_max_f32 v{q}, 0, v{q}\nv_add_f32 v{q}, 0x3727c5ac, v{q}\nv_rsq_f32 v{r}, v{q}")
        for it in range(2):
            m, r = 232 + 2 * it, 242 + 4 * it
            a(f"v_mov_b32 v{r+1}, v{r}\nv_mul_f32 v{r+2}, -v{m}, v{r}\nv_mul_f32 v{r+3}, -v{m}, v{r}")
        for it in range(2):
            r = 242 + 4 * it
            for q in range(20):
                d = N + it * 40 + 2 * q
                a(f"v_lshlrev_b32 v{d}, 16, v{X+it*20+q}\nv_and_b32 v{d+1}, 0xffff0000, v{X+it*20+q}")
            for q in range(20):
                d = N + it * 40 + 2 * q
                a(f"v_pk_fma_f32 {vr(d,2)}, {vr(d,2)}, {vr(r,2)}, {vr(r+2,2)}")

    def emit_wq_addr(self, d, base):
        a = self.a
        a(f"v_lshrrev_b32 v{d}, 5, v{vLANE}\nv_bfe_u32 v{d+1}, v{vLANE}, 2, 2\nv_lshl_add_u32 v{d}, v{d}, 3, v{d+1}")
        a(f"v_bfe_u32 v{d+1}, v{vLANE}, 4, 1\nv_lshlrev_b32 v{d+1}, 5, v{d+1}\nv_mad_u32_u24 v{d}, v{d}, s{sT[19]}, v{d+1}")
        a(f"v_and_b32 v{d+1}, 3, v{vLANE}\nv_lshl_add_u32 v{d}, v{d+1}, 3, v{d}")
        a(f"s_mul_i32 s{sT[0]}, s{sW4}, 40\ns_add_u32 s{sT[0]}, s{sT[0]}, {base}\nv_add_u32 v{d}, s{sT[0]}, v{d}")

    def wq_to_regs(self):
        a = self.a
        a.c("---- wq part 1 -> registers ----")
        a(f"s_movk_i32 s{sT[19]}, 160")
        self.emit_wq_addr(8, self.L1_H)
        a("s_waitcnt vmcnt(0)\ns_barrier")
        for s in range(self.NQ1):
            a(f"ds_read_b64_tr_b16 {vr(self.vWQ+4*s,2)}, v8 offset:{s*16*160}")
            a(f"ds_read_b64_tr_b16 {vr(self.vWQ+4*s+2,2)}, v8 offset:{s*16*160 + 4*160}")

    def mod_poll_apply(self):
        a = self.a
        a.c("---- wait for sa/ca granules, LN apply ----")
        a(f"v_and_b32 v8, 15, v{vLANE}\nv_lshlrev_b32 v9, 5, v8\nv_add_u32 v9, {self.L1_GS}, v9")
        a(f"v_lshrrev_b32 v10, 4, v{vLANE}\ns_lshl_b32 s{sT[0]}, s{sW}, 3\nv_add_u32 v10, s{sT[0]}, v10")
        for it in range(2):
            if it: a("v_add_u32 v10, 4, v10")
            a(f"v_and_b32 v11, 15, v10\nv_xor_b32 v11, v11, v8\nv_lshlrev_b32 v11, 4, v11")
            a(f"v_mad_u32_u24 v{12+it}, v10, s{sT[18]}, v11".replace(f"s{sT[18]}", "v14") if False else f"v_mul_u32_u24 v{12+it}, 1280, v10\nv_add_u32 v{12+it}, v{12+it}, v11")
        self.kv_addr()
        self.q_addr()
        E = a.new("Lmp")
        a(f"s_cmp_ge_u32 s{sW}, 5\ns_cbranch_scc1 {E}")
        a(f"v_lshlrev_b32 v15, 4, v0")
        a(f"s_mov_b32 s{sT[1]}, {WS_MODG}")
        self.poll(15, 16, n=4, tagpos=(1, 3), err=1, soff=f"s{sT[1]}", depth=1)
        a("v_lshlrev_b32 v20, 16, v16\nv_and_b32 v21, 0xffff0000, v16\nv_lshlrev_b32 v22, 16, v18\nv_and_b32 v23, 0xffff0000, v18")
        a(f"v_add_u32 v24, {self.L1_GS}, v15\nds_write_b128 v24, v[20:23]")
        a("v_xor_b32 v16, 0x80008000, v16\nv_xor_b32 v17, 0x80008000, v18")
        a(f"v_lshrrev_b32 v24, 1, v15\nv_add_u32 v24, {self.L1_NS}, v24\nv_cmp_gt_u32 vcc, 160, v0")
        a(f"s_and_saveexec_b64 s[{sT[22]}:{sT[23]}], vcc\nds_write_b64 v24, v[16:17]\ns_mov_b64 exec, -1")
        a.label(E)
        a("s_waitcnt lgkmcnt(0)\ns_barrier")
        def rd(c, b):
            a(f"ds_read_b128 v[{b}:{b+3}], v9 offset:{c*512}\nds_read_b128 v[{b+4}:{b+7}], v9 offset:{c*512 + 16}")
            a(f"ds_read_b128 v[{b+8}:{b+11}], v9 offset:{2560 + c*512}\nds_read_b128 v[{b+12}:{b+15}], v9 offset:{2560 + c*512 + 16}")
        rd(0, 16)
        for c in range(5):
            b = 16 if c % 2 == 0 else 32
            if c + 1 < 5:
                rd(c + 1, 48 - b)
                a("s_waitcnt lgkmcnt(4)" if c == 0 else "s_waitcnt lgkmcnt(6)")
            else: a("s_waitcnt lgkmcnt(2)")
            for it in range(2):
                x = self.vXN + it * 40 + c * 8
                for j in range(4):
                    a(f"v_pk_fma_f32 {vr(x+2*j,2)}, {vr(x+2*j,2)}, {vr(b+8+2*j,2)}, {vr(b+2*j,2)}")
            for it in range(2):
                x = self.vXN + it * 40 + c * 8
                for j in range(4):
                    a(f"v_cvt_pk_bf16_f32 v{x+j}, v{x+2*j}, v{x+2*j+1}")
                a(f"ds_write_b128 v{12+it}, {vr(x,4)} offset:{self.L1_H + c*256}")
        a("s_waitcnt lgkmcnt(0)\ns_barrier")

    def sum_groups(self, r, t, op="v_add_f32"):
        a = self.a
        a(f"v_mov_b32 v{t}, v{r}\nv_permlane32_swap_b32 v{r}, v{t}\n{op} v{r}, v{r}, v{t}")
        a(f"v_mov_b32 v{t}, v{r}\nv_permlane16_swap_b32 v{r}, v{t}\n{op} v{r}, v{r}, v{t}")

    def kv_addr(self):
        a = self.a
        a(f"s_and_b32 s{sT[0]}, s{sHG}, 3\ns_lshl_b32 s{sT[0]}, s{sT[0]}, 4")
        a(f"v_and_b32 v232, 15, v{vLANE}\nv_lshrrev_b32 v233, 4, v{vLANE}")
        a(f"v_add_u32 v234, s{sT[0]}, v232\nv_mul_u32_u24 v234, 1280, v234")
        a(f"s_lshr_b32 s{sT[1]}, s{sW}, 1\ns_mul_i32 s{sT[2]}, s{sT[1]}, 5")
        a(f"s_lshl_b32 s{sT[3]}, s{sT[2]}, 2\nv_add_u32 v235, s{sT[3]}, v233")
        for j in range(5):
            a(f"v_add_u32 v236, {4*j}, v235\nv_xor_b32 v236, v236, v232\nv_lshl_add_u32 v{240+j}, v236, 4, v234")
        a(f"v_bfe_u32 v236, v{vLANE}, 2, 2\nv_lshl_add_u32 v236, v233, 3, v236\nv_mul_u32_u24 v236, 40, v236\nv_and_b32 v237, 3, v{vLANE}\nv_lshl_add_u32 v236, v237, 3, v236")
        a(f"s_and_b32 s{sT[3]}, s{sW}, 1\ns_lshl_b32 s{sT[3]}, s{sT[3]}, 5\ns_mul_i32 s{sT[4]}, s{sT[2]}, 1280\ns_add_u32 s{sT[3]}, s{sT[3]}, s{sT[4]}\ns_add_u32 s{sT[3]}, s{sT[3]}, {self.L1_WKV}\nv_add_u32 v236, s{sT[3]}, v236")
        a(f"s_lshl_b32 s{sT[3]}, s{sT[2]}, 6\ns_add_u32 s{sT[3]}, s{sT[3]}, {self.L1_NS}\nv_lshl_add_u32 v237, v233, 4, s{sT[3]}")

    def kv_proj(self):
        a = self.a
        a.c("---- K/V projection ----")
        for j in range(5):
            a(f"ds_read_b64_tr_b16 {vr(32+4*j,2)}, v236 offset:{j*1280}\nds_read_b64_tr_b16 {vr(34+4*j,2)}, v236 offset:{j*1280 + 160}")
            a(f"ds_read_b128 {vr(52+4*j,4)}, v{240+j} offset:{self.L1_H}")
        LV, LJ = a.new("Lvproj"), a.new("Lkvj")
        a(f"s_cmp_ge_u32 s{sHG}, 4\ns_cbranch_scc1 {LV}")
        a("s_waitcnt lgkmcnt(0)")
        for j in range(5): a(f"ds_read_b128 {vr(72+4*j,4)}, v237 offset:{j*64}")
        for j in range(5):
            a(f"v_mfma_f32_16x16x32_bf16 v[28:31], {vr(32+4*j,4)}, {vr(52+4*j,4)}, {'0' if j == 0 else 'v[28:31]'}")
        a("s_waitcnt lgkmcnt(0)")
        for j in range(5):
            a(f"v_mfma_f32_16x16x32_bf16 v[28:31], {vr(32+4*j,4)}, {vr(72+4*j,4)}, v[28:31]")
        a(f"s_branch {LJ}")
        a.label(LV)
        a("s_waitcnt lgkmcnt(0)")
        for j in range(5):
            a(f"v_mfma_f32_16x16x32_bf16 v[28:31], {vr(52+4*j,4)}, {vr(32+4*j,4)}, {'0' if j == 0 else 'v[28:31]'}")
        a.label(LJ)
        a(f"s_add_u32 s{sT[3]}, s{sWK}, {self.L1_WKV}\nv_add_u32 v18, s{sT[3]}, v{vL16}")
        a("s_barrier")
        a("ds_write_b128 v18, v[28:31]\ns_waitcnt lgkmcnt(0)\ns_barrier")
        E = a.new("Lkvend")
        a(f"s_cmp_ge_u32 s{sW}, 2\ns_cbranch_scc1 {E}")
        a("ds_read_b128 v[32:35], v18 offset:2048\nds_read_b128 v[36:39], v18 offset:4096\nds_read_b128 v[40:43], v18 offset:6144")
        a(f"s_and_b32 s{sT[2]}, s{sHG}, 3\ns_lshr_b32 s{sT[2]}, s{sT[2]}, 1\ns_lshl_b32 s{sT[3]}, s{sI}, 1\ns_add_u32 s{sT[2]}, s{sT[2]}, s{sT[3]}")
        a(f"s_mul_i32 s{sT[2]}, s{sT[2]}, {KV_TILE}\ns_add_u32 s{sT[2]}, s{sT[2]}, {WS_KV}\ns_and_b32 s{sT[3]}, s{sHG}, 1\ns_lshl_b32 s{sT[3]}, s{sT[3]}, 4")
        a("s_waitcnt lgkmcnt(0)")
        for r in range(4):
            a(f"v_add_f32 v{32+r}, v{32+r}, v{36+r}\nv_add_f32 v{28+r}, v{28+r}, v{40+r}")
        for r in range(4): a(f"v_add_f32 v{28+r}, v{28+r}, v{32+r}")
        a("v_cvt_pk_bf16_f32 v24, v28, v29\nv_cvt_pk_bf16_f32 v25, v30, v31")
        LV, LJ, W1 = a.new("Lv2"), a.new("Lj2"), a.new("Lw1")
        a(f"s_cmp_ge_u32 s{sHG}, 4\ns_cbranch_scc1 {LV}")
        a("v_dot2_f32_bf16 v26, v24, v24, 0\nv_dot2_f32_bf16 v26, v25, v25, v26")
        a(f"s_cmp_eq_u32 s{sW}, 1\ns_cbranch_scc1 {W1}")
        self.sum_groups(26, 27)
        a(f"v_add_u32 v30, s{sT[3]}, v232\nv_and_b32 v31, 1, v233\nv_lshl_add_u32 v30, v31, 5, v30\nv_lshlrev_b32 v30, 4, v30")
        a(f"v_lshrrev_b32 v31, 1, v233\nv_lshl_add_u32 v30, v31, 3, v30")
        a(f"buffer_store_dwordx2 v[24:25], v30, {WSR}, s{sT[2]} offen sc1")
        a(f"s_branch {LJ}")
        a.label(W1)
        a(f"v_cmp_gt_u32 vcc, 16, v{vLANE}\nv_cndmask_b32 v26, 0, v26, vcc")
        a(f"v_add_u32 v30, s{sT[3]}, v232\nv_lshlrev_b32 v30, 3, v30")
        a("s_mov_b32 exec_lo, 0xffff\ns_mov_b32 exec_hi, 0")
        a(f"buffer_store_dwordx2 v[24:25], v30, {WSR}, s{sT[2]} offen offset:3072 sc1")
        a(f"s_mov_b64 exec, -1\ns_branch {LJ}")
        a.label(LV)
        a("v_max_f32 v26, |v28|, |v29|\nv_max_f32 v27, |v30|, |v31|\nv_max_f32 v26, v26, v27")
        a(f"s_lshl_b32 s{sT[1]}, s{sW}, 4\nv_add_u32 v27, s{sT[1]}, v232")
        a("v_cmp_gt_u32 vcc, 20, v27\nv_cndmask_b32 v26, 0, v26, vcc")
        a("v_mov_b32 v28, 0x3f803f80\nv_and_b32 v29, 27, v27")
        a(f"v_cmp_eq_u32 vcc, 20, v27\nv_cmp_eq_u32 s[{sT[22]}:{sT[23]}], 24, v27\ns_or_b64 vcc, vcc, s[{sT[22]}:{sT[23]}]")
        a("v_cndmask_b32 v24, v24, v28, vcc\nv_cndmask_b32 v25, v25, v28, vcc")
        a(f"s_lshl_b32 s{sT[3]}, s{sT[3]}, 6\ns_add_u32 s{sT[2]}, s{sT[2]}, s{sT[3]}")
        a("v_and_b32 v31, 1, v233\nv_lshl_add_u32 v30, v31, 5, v27\nv_lshlrev_b32 v30, 4, v30\nv_lshrrev_b32 v31, 1, v233\nv_lshl_add_u32 v30, v31, 3, v30")
        a(f"buffer_store_dwordx2 v[24:25], v30, {WSR}, s{sT[2]} offen offset:1024 sc1")
        a.label(LJ)
        self.row16_allreduce([26], "v_max_f32")
        self.sum_groups(26, 27, "v_max_f32")
        a(f"s_lshl_b32 s{sT[2]}, s{sL}, 4\ns_lshl_b32 s{sT[3]}, s{sW}, 3\ns_add_u32 s{sT[2]}, s{sT[2]}, s{sT[3]}\ns_add_u32 s{sT[2]}, s{sT[2]}, {F_KV}")
        a(f"v_mov_b32 v28, s{sNON}\nv_mov_b32 v29, v26\nv_mov_b32 v30, 0")
        a("s_waitcnt vmcnt(0)\ns_mov_b64 exec, 1")
        a(f"buffer_store_dwordx2 v[28:29], v30, {WSR}, s{sT[2]} offen sc1")
        a("s_mov_b64 exec, -1")
        a.label(E)

    vQ1, vQ2 = 8, 12
    vO = 16
    vS = [32, 48]
    vP = 64
    vK1 = [72, 76]; vK2 = [80, 84]; vV1 = [88, 92]; vV2 = [96, 100]
    vAK = [104, 105]; vAK2 = [106, 107]
    vQN = 108; vK2L = 109
    L2_KV = 0; L2_WO = 53248; L2_UT = 0; L2_SCR = 0; L2_MISC = 162816
    CH = 4 * KV_TILE

    def q_addr(self):
        a = self.a
        a(f"s_lshl_b32 s{sT[0]}, s{sKH}, 5\nv_and_b32 v238, 31, v{vLANE}\nv_add_u32 v238, s{sT[0]}, v238")
        a(f"v_and_b32 v239, 15, v238\nv_mul_u32_u24 v238, 1280, v238\nv_lshrrev_b32 v226, 5, v{vLANE}\nv_xor_b32 v239, v239, v226")
        for q in range(8):
            a(f"v_xor_b32 v227, {2*q}, v239\nv_lshl_add_u32 v{216+q}, v227, 4, v238")
        self.emit_wq_addr(224, self.L1_WQ2)

    def q_proj(self):
        a = self.a
        a.c("---- Q projection: D[m=dim][n=row] ----")
        acc = 16
        def ldB(s): a(f"ds_read_b128 {vr(48+4*(s%3),4)}, v{216+s%8} offset:{self.L1_H + (s//8)*256}")
        def ldA(s):
            o = (s - self.NQ1) * 16 * 160
            a(f"ds_read_b64_tr_b16 {vr(64+4*(s%3),2)}, v224 offset:{o}\nds_read_b64_tr_b16 {vr(66+4*(s%3),2)}, v224 offset:{o+640}")
        def cnt(s): return 0 if s >= 40 else (1 + (2 if s >= self.NQ1 else 0))
        def ld(s):
            if s < 40:
                ldB(s)
                if s >= self.NQ1: ldA(s)
        ld(0); ld(1)
        for s in range(40):
            ld(s + 2)
            a(f"s_waitcnt lgkmcnt({cnt(s+1) + cnt(s+2)})")
            A = vr(self.vWQ + 4 * s, 4) if s < self.NQ1 else vr(64 + 4 * (s % 3), 4)
            a(f"v_mfma_f32_32x32x16_bf16 {vr(acc,16)}, {A}, {vr(48+4*(s%3),4)}, {'0' if s == 0 else vr(acc,16)}")
        a(f"s_mov_b32 s{sT[0]}, 0x3ea52b8e")
        for j in range(12): a(f"v_mul_f32 v{acc+j}, s{sT[0]}, v{acc+j}")
        for j in range(4): a(f"v_cvt_pk_bf16_f32 v{self.vQ1+j}, v{acc+2*j}, v{acc+2*j+1}")
        a(f"v_cvt_pk_bf16_f32 v{self.vQ2}, v{acc+8}, v{acc+9}\nv_cvt_pk_bf16_f32 v{self.vQ2+1}, v{acc+10}, v{acc+11}")
        a(f"v_cmp_gt_u32 vcc, 32, v{vLANE}")
        a(f"v_mov_b32 v{self.vQ2+2}, 0\nv_mov_b32 v{self.vQ2+3}, 0")
        a(f"v_cndmask_b32 v{self.vQ2}, 0, v{self.vQ2}, vcc\nv_cndmask_b32 v{self.vQ2+1}, 0, v{self.vQ2+1}, vcc")
        N = self.vQN
        regs = [self.vQ1 + j for j in range(4)] + [self.vQ2, self.vQ2 + 1]
        for i, r in enumerate(regs):
            a(f"v_dot2_f32_bf16 v{N}, v{r}, v{r}, {'0' if i == 0 else 'v%d' % N}")
        a(f"v_mov_b32 v40, v{N}\nv_permlane32_swap_b32 v{N}, v40\nv_add_f32 v{N}, v{N}, v40")
        a(f"v_sqrt_f32 v{N}, v{N}")

    def kv_piece(self, src_s, slot, half):
        L = [f"s_add_u32 m0, s{sT[18]}, {slot*self.CH}"]
        for k in (2 * half, 2 * half + 1):
            L.append(f"buffer_load_dwordx4 v{vL16}, {WSR}, s{src_s} offen offset:{k*1024} sc1 lds")
        if half == 1: L.append(f"s_add_u32 s{src_s}, s{src_s}, {self.CH}")
        return L

    def kv_dma(self, src_s, slot):
        for k in range(2):
            for x in self.kv_piece(src_s, slot, k): self.a(x)

    def ld_k(self, b, t):
        o = (t % 16) * KV_TILE
        self.a(f"ds_read_b128 {vr(self.vK1[b],4)}, v{vL16} offset:{o}\nds_read_b64 {vr(self.vK2[b],2)}, v{self.vK2L} offset:{o + 3072}")
    def ld_v1(self, b, t): self.a(f"ds_read_b128 {vr(self.vV1[b],4)}, v{vL16} offset:{(t % 16)*KV_TILE + 1024}")
    def ld_v2(self, b, t): self.a(f"ds_read_b128 {vr(self.vV2[b],4)}, v{vL16} offset:{(t % 16)*KV_TILE + 2048}")
    def qk(self, kb, sb, part):
        S = vr(self.vS[sb], 16)
        if part == 0: self.a(f"v_mfma_f32_32x32x16_bf16 {S}, {vr(self.vK1[kb],4)}, {vr(self.vQ1,4)}, 0")
        else: self.a(f"v_mfma_f32_32x32x16_bf16 {S}, {vr(self.vK2[kb],4)}, {vr(self.vQ2,4)}, {S}")

    def attn_setup(self):
        a = self.a
        a.c("---- attention: wait for K/V, bounds, stand-in for the row max ----")
        a("s_waitcnt lgkmcnt(0)\ns_barrier")
        a(f"s_lshl_b32 s{sT[18]}, s{sW4}, 12\ns_cmp_eq_u32 s{sW4}, 3\ns_cselect_b32 s{sT[18]}, 9216, s{sT[18]}")
        a(f"s_add_u32 s{sT[17]}, s{sT[18]}, {WS_KV}")
        if self.stop >= 3:
            import g3b
            g3b.bg_setup(self)
        a(f"v_lshlrev_b32 v111, 6, v{vLANE}\ns_mov_b32 s{sT[1]}, {F_KV}")
        L, D = a.new("Lkvp"), a.new("Lkvd")
        cnt = sT[20]
        a(f"s_mov_b32 s{cnt}, 0")
        a.label(L)
        for j in range(4): a(f"buffer_load_dwordx4 {vr(112+4*j,4)}, v111, {WSR}, s{sT[1]} offen offset:{16*j} sc1")
        a("s_waitcnt vmcnt(0)")
        a(f"v_xor_b32 v128, s{sNON}, v112\nv_xor_b32 v129, s{sNON}, v114")
        for j in range(1, 4):
            a(f"v_xor_b32 v130, s{sNON}, v{112+4*j}\nv_xor_b32 v131, s{sNON}, v{114+4*j}\nv_or3_b32 v128, v128, v130, v131")
        a("v_or_b32 v128, v128, v129\nv_cmp_ne_u32 vcc, 0, v128")
        a(f"s_cbranch_vccz {D}")
        a(f"s_add_u32 s{cnt}, s{cnt}, 1\ns_cmp_lt_u32 s{cnt}, {SPIN_LIMIT}\ns_cbranch_scc1 {L}")
        self.bail(2)
        a.label(D)
        self.stamp(31)
        E = a.new("Lfc")
        a(f"s_cmp_ge_u32 s{sW}, 4\ns_cbranch_scc1 {E}")
        for k in range(3):
            self.kv_dma(sT[17], k)
        a.label(E)
        a("v_max3_f32 v113, v113, v117, v121\nv_max3_f32 v115, v115, v119, v123\nv_max_f32 v113, v113, v125\nv_max_f32 v115, v115, v127")
        self.row16_allreduce([113, 115], "v_max_f32", steps=(8, 4, 2))
        self.sum_groups(113, 114, "v_max_f32"); self.sum_groups(115, 116, "v_max_f32")
        a(f"v_readlane_b32 s{sT[5]}, v113, 0\nv_readlane_b32 s{sT[6]}, v115, 0\nv_readlane_b32 s{sT[7]}, v113, 1\nv_readlane_b32 s{sT[8]}, v115, 1")
        a(f"v_mov_b32 v113, s{sT[5]}\nv_add_f32 v113, s{sT[6]}, v113\nv_sqrt_f32 v113, v113")
        a(f"v_mov_b32 v114, s{sT[7]}\nv_max_f32 v114, s{sT[8]}, v114")
        a(f"v_mul_f32 v113, 0x3f810000, v113\nv_mul_f32 v{self.vQN}, v{self.vQN}, v113")
        E = a.new("Lgen")
        a(f"s_or_b32 s{sT[0]}, s{sL}, s{sW}\ns_cmp_lg_u32 s{sT[0]}, 0\ns_cbranch_scc1 {E}")
        a(f"v_mov_b32 v112, s{sNON}\ns_mov_b32 s{sT[0]}, {WS_NONCE}")
        self.one_lane_store(sT[0], 112)
        a.label(E)
        for b in range(2):
            a(f"v_mov_b32 v{self.vK2[b]+2}, 0x3f803f80\nv_mov_b32 v{self.vK2[b]+3}, 0x00003f80")
        a(f"v_and_b32 v{self.vK2L}, 31, v{vLANE}\nv_lshlrev_b32 v{self.vK2L}, 3, v{self.vK2L}")
        a("s_waitcnt vmcnt(8)\ns_barrier")
        self.stamp(13) if os.environ.get("TSX") else None
        self.ld_k(0, 0)
        self.ld_k(1, 1)
        self.ld_v1(0, 0); self.ld_v2(0, 0)
        a("s_waitcnt lgkmcnt(4)")
        self.qk(0, 0, 0); self.qk(0, 0, 1)
        S = self.vS[0]
        U = self.vQN
        a(f"v_mov_b32 v115, 0x43300000\nv_mov_b32 v116, 0x4d000000")
        a(f"v_cmp_nlt_f32 s[{sT[22]}:{sT[23]}], v114, v116")
        a(f"v_max3_f32 v112, v{S}, v{S+1}, v{S+2}")
        for j in range(3, 15, 2): a(f"v_max3_f32 v112, v112, v{S+j}, v{S+j+1}")
        a(f"v_max_f32 v112, v112, v{S+15}")
        a("v_mov_b32 v113, v112\nv_permlane32_swap_b32 v112, v113\nv_max_f32 v112, v112, v113")
        a(f"v_sub_f32 v113, v{U}, v112\nv_cmp_nle_f32 vcc, v113, v115")
        a(f"s_or_b64 vcc, vcc, s[{sT[22]}:{sT[23]}]")
        a(f"s_cmp_lg_u64 vcc, 0\ns_cselect_b32 s{sT[12]}, 1, 0")
        if self.force_fallback: a(f"s_mov_b32 s{sT[12]}, 1")
        a(f"s_lshl_b32 s{sT[0]}, s{sW}, 2\ns_add_u32 s{sT[0]}, s{sT[0]}, {self.L2_MISC}")
        a(f"v_mov_b32 v113, s{sT[0]}\nv_mov_b32 v114, s{sT[12]}\nds_write_b32 v113, v114")
        a(f"v_add_f32 v112, v{U}, v112\nv_mul_f32 v112, 0.5, v112\nv_mov_b32 v113, {self.L2_MISC}")
        a("s_waitcnt lgkmcnt(0)\ns_barrier")
        a("ds_read_b128 v[116:119], v113\nds_read_b128 v[120:123], v113 offset:16\ns_waitcnt lgkmcnt(0)")
        a("v_or3_b32 v116, v116, v117, v118\nv_or3_b32 v119, v119, v120, v121\nv_or3_b32 v116, v116, v122, v123\nv_or_b32 v116, v116, v119")
        a(f"v_readfirstlane_b32 s{sT[12]}, v116")
        FB = a.new("Lnofb")
        a(f"s_cmp_eq_u32 s{sT[12]}, 0\ns_cbranch_scc1 {FB}")
        self.max_pass()
        a.label(FB)
        a("v_sub_f32 v112, 0, v112")
        a("v_cvt_pk_bf16_f32 v113, v112, v112\nv_and_b32 v114, 0xffff0000, v113\nv_sub_f32 v112, v112, v114")
        a("v_cvt_pk_bf16_f32 v115, v112, v112\nv_and_b32 v116, 0xffff0000, v115\nv_sub_f32 v112, v112, v116")
        a("v_cvt_pk_bf16_f32 v117, v112, 0")
        a("v_and_b32 v113, 0xffff, v113\nv_or_b32 v113, v113, v116")
        a(f"v_cmp_gt_u32 vcc, 32, v{vLANE}")
        a(f"v_cndmask_b32 v{self.vQ2+2}, 0, v113, vcc\nv_cndmask_b32 v{self.vQ2+3}, 0, v117, vcc")

    def max_pass(self):
        a = self.a
        a.c("fallback: exact row max")
        a("v_mov_b32 v112, 0xff7fffff")
        L = a.new("Lmx"); c = sT[13]
        a(f"s_add_u32 s{c}, s{sT[18]}, {WS_KV}\ns_mov_b32 s{sT[21]}, 0")
        a.label(L)
        E = a.new("Lmxd")
        a(f"s_cmp_ge_u32 s{sW}, 4\ns_cbranch_scc1 {E}")
        self.kv_dma(c, 3)
        a.label(E)
        a("s_waitcnt vmcnt(0)\ns_barrier")
        S = self.vS[1]
        for t in range(4):
            o = (12 + t) * KV_TILE
            a(f"ds_read_b128 v[120:123], v{vL16} offset:{o}\nds_read_b64 v[124:125], v{self.vK2L} offset:{o + 3072}")
            a(f"v_mov_b32 v126, 0\nv_mov_b32 v127, 0\ns_waitcnt lgkmcnt(0)")
            a(f"v_mfma_f32_32x32x16_bf16 {vr(S,16)}, v[120:123], {vr(self.vQ1,4)}, 0")
            a(f"v_mfma_f32_32x32x16_bf16 {vr(S,16)}, v[124:127], {vr(self.vQ2,4)}, {vr(S,16)}")
            for j in range(0, 16, 2): a(f"v_max3_f32 v112, v112, v{S+j}, v{S+j+1}")
        a("s_barrier")
        a(f"s_add_u32 s{sT[21]}, s{sT[21]}, 1\ns_cmp_lt_u32 s{sT[21]}, 16\ns_cbranch_scc1 {L}")
        a("v_mov_b32 v113, v112\nv_permlane32_swap_b32 v112, v113\nv_max_f32 v112, v112, v113")

    def attn_tile(self, t, h1=(), h2=()):
        a = self.a
        S = self.vS[t % 2]; Sp = self.vS[(t + 1) % 2]; P = self.vP
        def ex(j): a(f"v_exp_f32 v{S+j}, v{S+j}")
        def cv(j, b): a(f"v_cvt_pk_bf16_f32 v{P+j}, v{b+2*j}, v{b+2*j+1}")
        O = vr(self.vO, 16)
        ex(0); ex(1); cv(6, Sp); ex(2); cv(7, Sp); ex(3)
        a("s_waitcnt lgkmcnt(2)")
        self.qk((t + 1) % 2, (t + 1) % 2, 0)
        self.ld_k(t % 2, t + 2)
        ex(4); ex(5); cv(0, S); ex(6); cv(1, S); ex(7)
        self.qk((t + 1) % 2, (t + 1) % 2, 1)
        self.ld_v1((t + 1) % 2, t + 1)
        for x in h1: a(x)
        ex(8); ex(9); cv(2, S); ex(10); cv(3, S); ex(11)
        a(f"v_mfma_f32_32x32x16_bf16 {O}, {vr(self.vV2[(t+1)%2],4)}, {vr(P+4,4)}, {O}")
        self.ld_v2((t + 1) % 2, t + 1)
        for x in h2: a(x)
        ex(12); ex(13); cv(4, S); ex(14); cv(5, S); ex(15)
        a("s_waitcnt lgkmcnt(4)")
        a(f"v_mfma_f32_32x32x16_bf16 {O}, {vr(self.vV1[t%2],4)}, {vr(P,4)}, {O}")

    def attn_main(self):
        a = self.a
        a.c("---- attention main loop (unrolled, static background schedule) ----")
        src = sT[17]
        for j in range(16): a(f"v_mov_b32 v{self.vO+j}, 0")
        self.qk(0, 0, 0); self.qk(0, 0, 1)
        for j in range(12, 16): a(f"v_mov_b32 v{self.vS[1]+j}, 0")
        a(f"v_mov_b32 v{self.vP+4}, 0\nv_mov_b32 v{self.vP+5}, 0")
        for j in range(4): a(f"v_mov_b32 v{self.vV2[1]+j}, 0")
        a(f"s_cmp_ge_u32 s{sW}, 4\ns_cselect_b64 vcc, -1, 0")
        bg = {}
        def put(T, tag, ins, n=1, need=None, role=None): bg.setdefault(T, []).append((tag, ins, n, need, role))
        for c in range(13):
            put(4 * c + 2, f"kv{c+3}", self.kv_piece(src, (c + 3) % 4, 0), n=2, role="A")
            put(4 * c + 3, f"kv{c+3}", self.kv_piece(src, (c + 3) % 4, 1), n=2, role="A")
        if self.stop >= 3 and not os.environ.get("X_NOEXTRA"):
            import g3b
            g3b.bg_schedule(self, put)
        pend = {"A": [("kv1", 4), ("kv2", 4)], "B": []}
        def wait_for(role, tag):
            p = pend[role]
            idx = [i for i, (k, n) in enumerate(p) if k == tag]
            if not idx: return None
            after = sum(n for (k, n) in p[idx[-1] + 1:])
            del p[:idx[-1] + 1]
            return after
        def guarded(role, body):
            lab = a.new("Lg")
            return [f"s_cbranch_vcc{'nz' if role == 'A' else 'z'} {lab}"] + body + [f"{lab}:"]
        for T in range(64):
            hooks = [[], []]
            ops = bg.get(T, [])
            for k, (tag, ins, n, need, role) in enumerate(ops):
                h = hooks[0] if k < (len(ops) + 1) // 2 else hooks[1]
                body = []
                if need:
                    assert role
                    w = wait_for(role, need)
                    if w is not None: body.append(f"s_waitcnt vmcnt({w})")
                body.extend(ins)
                if role: h.extend(guarded(role, body)); pend[role].append((tag, n)) if n else None
                else:
                    h.extend(body)
                    if n: pend["A"].append((tag, n)); pend["B"].append((tag, n))
            self.attn_tile(T, hooks[0], hooks[1])
            if T % 4 == 1 and T < 62:
                c = T // 4
                w = wait_for("A", f"kv{c+1}")
                if w is not None:
                    for x in guarded("A", [f"s_waitcnt vmcnt({w})"]): a(x)
                a("s_barrier")
        S = self.vS[1]; P = self.vP
        a(f"v_cvt_pk_bf16_f32 v{P+6}, v{S+12}, v{S+13}\nv_cvt_pk_bf16_f32 v{P+7}, v{S+14}, v{S+15}")
        a(f"s_waitcnt lgkmcnt(0)")
        a(f"v_mfma_f32_32x32x16_bf16 {vr(self.vO,16)}, {vr(self.vV2[1],4)}, {vr(P+4,4)}, {vr(self.vO,16)}")

    def attn_epilogue(self):
        a = self.a
        a.c("---- attention epilogue ----")
        O = self.vO
        a(f"s_lshl_b32 s{sT[0]}, s{sI}, 2\ns_lshl_b32 s{sT[1]}, s{sKH}, 1\ns_add_u32 s{sT[0]}, s{sT[0]}, s{sT[1]}\ns_mul_i32 s{sT[0]}, s{sT[0]}, {24*1024}\ns_add_u32 s{sT[0]}, s{sT[0]}, {WS_O}")
        a(f"s_lshl_b32 s{sT[1]}, s{sHG}, 2\ns_add_u32 s{sT[1]}, s{sT[1]}, s{sW4}\ns_mul_i32 s{sT[1]}, s{sT[1]}, 768\ns_add_u32 s{sT[0]}, s{sT[0]}, s{sT[1]}")
        a(f"v_bfe_u32 v32, v{vLANE}, 4, 1\nv_mul_u32_u24 v32, {24*1024}, v32\nv_and_b32 v33, 15, v{vLANE}\nv_lshl_add_u32 v32, v33, 4, v32")
        a(f"v_lshrrev_b32 v33, 5, v{vLANE}\nv_lshl_add_u32 v33, v33, 8, v32")
        a(f"v_cmp_gt_u32 vcc, 32, v{vLANE}\nv_mov_b32 v50, 0\nv_mov_b32 v51, 0")
        a(f"v_cndmask_b32 v40, v{O+8}, v{O+12}, vcc")
        a("v_rcp_f32 v40, v40")
        for j in range(12): a(f"v_mul_f32 v{O+j}, v{O+j}, v40")
        for j in range(6): a(f"v_cvt_pk_bf16_f32 v{44+j}, v{O+2*j}, v{O+2*j+1}")
        a(f"buffer_store_dwordx4 v[44:47], v33, {WSR}, s{sT[0]} offen sc1")
        a("s_mov_b32 exec_hi, 0")
        a(f"buffer_store_dwordx4 v[48:51], v32, {WSR}, s{sT[0]} offen offset:512 sc1")
        a("s_mov_b64 exec, -1")
        self.wave_flag(F_O)

    def build(self):
        a = self.a
        self.prologue(); self.stamp(0)
        self.p0(); self.stamp(1)
        self.ln_stats()
        self.wq_to_regs(); self.stamp(2)
        self.mod_poll_apply(); self.stamp(3)
        self.kv_proj(); self.stamp(16)
        self.q_proj(); self.stamp(4)
        if self.stop >= 2:
            self.attn_setup(); self.stamp(5); self.cstamp(27)
            self.attn_main(); self.stamp(6); self.cstamp(28)
            self.attn_epilogue(); self.stamp(7)
        if self.stop >= 3:
            import g3b
            g3b.rest(self)
        a("s_waitcnt vmcnt(0) lgkmcnt(0)")
        a.label("L_END")
        a("s_endpgm")
        return fix_hazards(a.l)

HEADER = open(os.path.join(os.path.dirname(os.path.abspath(__file__)), "header.txt")).read()

def make(stop=99, ts=False, force_fallback=False):
    g = Gen(stop, ts, force_fallback)
    lines, n = g.build()
    txt = HEADER + "; @launch grid=(256,1,1) block=(512,1,1) lds=163840\n"
    txt += f'.amdgcn_target "amdgcn-amd-amdhsa--gfx950"\n.text\n.globl {NAME}\n.p2align 8\n.type {NAME},@function\n{NAME}:\n'
    txt += "\n".join(lines) + "\n"
    txt += f""".section .rodata,"a"
.p2align 6
.amdhsa_kernel {NAME}
  .amdhsa_next_free_vgpr 256
  .amdhsa_next_free_sgpr 102
  .amdhsa_accum_offset 256
  .amdhsa_group_segment_fixed_size 0
  .amdhsa_kernarg_size 112
  .amdhsa_user_sgpr_count 2
  .amdhsa_user_sgpr_kernarg_segment_ptr 1
  .amdhsa_system_sgpr_workgroup_id_x 1
  .amdhsa_float_denorm_mode_32 3
.end_amdhsa_kernel
"""
    return txt, n

if __name__ == "__main__":
    import argparse
    ap = argparse.ArgumentParser()
    ap.add_argument("--stop", type=int, default=99)
    ap.add_argument("--ts", action="store_true")
    ap.add_argument("--fb", action="store_true")
    ap.add_argument("-o", default="out.s")
    args = ap.parse_args()
    sys.modules["g3"] = sys.modules["__main__"]
    txt, n = make(args.stop, args.ts, args.fb)
    open(args.o, "w").write(txt)
    print("nops inserted:", n, "lines:", txt.count("\n"))
```

```python
from g3 import *
import os

vX1 = 240
vGB = 228
vXr, vGA, vG2 = 196, 204, 216
vUB = 116
vRP = 144

sRPC, sRPD, sWOS, sWOL, sSLS, sSLL = 31, 42, 43, sT[15], sT[16], sT[19]
vRO = 176
sRPC2 = sT[14]
vSL = 108 + 2
L2_MB = 155648

def bg_setup(g):
    a = g.a
    q, upr, magic, pitch = sT[2], sT[3], sT[10], sT[11]
    SK = a.new("Lrs")
    a(f"s_cmp_lt_u32 s{sW}, 4\ns_cbranch_scc1 {SK}")
    for r, (srdr, col) in enumerate(((S_B, sRPC), (S_A, sRPC2))):
        K2, K3, GO = a.new("Lrp"), a.new("Lrp"), a.new("Lrp")
        a(f"s_lshl_b32 s{q}, s{sL}, 2\ns_add_u32 s{q}, s{q}, s{sW4}")
        if r: a(f"s_add_u32 s{q}, s{q}, 1024")
        else: a(f"s_lshl_b32 s{sRPD}, s{q}, 12\ns_add_u32 s{sRPD}, s{sRPD}, {WS_RW}")
        a(f"s_mov_b32 s{upr}, 10\ns_mov_b32 s{magic}, 0x1999999a\ns_movk_i32 s{pitch}, 1280")
        if r == 0:
            a(f"s_cmp_ge_u32 s{q}, 200\ns_cbranch_scc1 {K2}")
            a(f"s_mul_hi_u32 s{col}, s{q}, {(1<<32)//25+1}\ns_mul_i32 s{sT[12]}, s{col}, 25\ns_sub_u32 s{q}, s{q}, s{sT[12]}\ns_mul_i32 s{col}, s{col}, 160")
            a(f"s_mov_b32 s{srdr}, s{P_WO}\ns_mov_b32 s{srdr+1}, s{P_WO+1}\ns_mov_b32 s{srdr+2}, {640*1280}\ns_branch {GO}")
            a.label(K2)
            a(f"s_cmp_ge_u32 s{q}, 744\ns_cbranch_scc1 {K3}\ns_sub_u32 s{q}, s{q}, 200")
            a(f"s_mul_hi_u32 s{col}, s{q}, {(1<<32)//68+1}\ns_mul_i32 s{sT[12]}, s{col}, 68\ns_sub_u32 s{q}, s{q}, s{sT[12]}\ns_mul_i32 s{col}, s{col}, 160")
            a(f"s_mov_b32 s{srdr}, s{P_W2}\ns_mov_b32 s{srdr+1}, s{P_W2+1}\ns_mov_b32 s{srdr+2}, {1728*1280}\ns_branch {GO}")
            a.label(K3)
        a(f"s_sub_u32 s{q}, s{q}, 744")
        a(f"s_mul_hi_u32 s{col}, s{q}, {(1<<32)//35+1}\ns_mul_i32 s{sT[12]}, s{col}, 35\ns_sub_u32 s{q}, s{q}, s{sT[12]}")
        a(f"s_bitcmp1_b32 s{col}, 0\ns_cselect_b32 s{srdr}, s{P_W3}, s{P_W1}\ns_cselect_b32 s{srdr+1}, s{P_W3+1}, s{P_W1+1}\ns_mov_b32 s{srdr+2}, {640*3456}")
        a(f"s_lshr_b32 s{col}, s{col}, 1")
        a(f"s_mul_i32 s{sT[12]}, s{col}, 7\ns_mul_i32 s{upr}, s{col}, 6\ns_add_u32 s{upr}, s{upr}, 12\ns_min_u32 s{upr}, s{upr}, 101")
        a(f"s_cmp_lt_u32 s{col}, 12\ns_cselect_b32 s{col}, s{sT[12]}, s{upr}\ns_lshl_b32 s{col}, s{col}, 5")
        a(f"s_mov_b32 s{upr}, 14\ns_mov_b32 s{magic}, 0x12492493\ns_movk_i32 s{pitch}, 3456")
        a.label(GO)
        a(f"s_mov_b32 s{srdr+3}, 0x20000\ns_lshl_b32 s{q}, s{q}, 8\ns_lshl_b32 s{upr}, s{upr}, 4\ns_sub_u32 s{pitch}, s{pitch}, s{upr}")
        a(f"v_add_u32 v112, s{q}, v{vLANE}")
        for k in range(4):
            a(f"v_mul_hi_u32 v113, v112, s{magic}\nv_mul_lo_u32 v113, v113, s{pitch}\nv_lshl_add_u32 v{vRO+4*r+k}, v112, 4, v113")
            if k < 3: a("v_add_u32 v112, 64, v112")
    a.label(SK)
    a(f"s_mul_i32 s{sWOL}, s{sW}, 13\ns_min_u32 s{sWOL}, s{sWOL}, 87\ns_lshl_b32 s{sWOL}, s{sWOL}, 10")
    a(f"s_mul_i32 s{sWOS}, s{sHG}, 102400\ns_add_u32 s{sWOS}, s{sWOS}, s{sWOL}\ns_add_u32 s{sWOS}, s{sWOS}, {WS_RW + RW_WO}\ns_add_u32 s{sWOL}, s{sWOL}, {g.L2_WO}")
    a(f"s_cmp_lt_u32 s{sL}, 108\ns_cselect_b32 s{S_C}, s{P_W1}, s{P_W3}\ns_cselect_b32 s{S_C+1}, s{P_W1+1}, s{P_W3+1}")
    a(f"s_mov_b32 s{S_C+2}, {640*3456}\ns_mov_b32 s{S_C+3}, 0x20000")
    a(f"s_sub_u32 s{sSLS}, s{sL}, 108\ns_cselect_b32 s{sSLS}, s{sL}, s{sSLS}\ns_lshl_b32 s{sSLS}, s{sSLS}, 5")
    a(f"s_mul_i32 s{sSLL}, s{sW}, 3\ns_min_u32 s{sSLL}, s{sSLL}, 17\ns_mul_i32 s{sT[12]}, s{sSLL}, {32*3456}\ns_add_u32 s{sSLS}, s{sSLS}, s{sT[12]}\ns_lshl_b32 s{sSLL}, s{sSLL}, 10")
    a(f"v_lshrrev_b32 v{vSL}, 1, v{vLANE}\nv_mul_u32_u24 v{vSL}, 3456, v{vSL}\nv_and_b32 v113, 1, v{vLANE}\nv_lshl_add_u32 v{vSL}, v113, 4, v{vSL}")

def bg_schedule(g, put):
    a = g.a
    for k in range(8):
        srdr, col = ((S_B, sRPC), (S_A, sRPC2))[k // 4]
        put(k // 2, f"rl{k}", [f"buffer_load_dwordx4 {vr(vRP+4*k,4)}, v{vRO+k}, s[{srdr}:{srdr+3}], s{col} offen"], role="B")
    for k in range(8):
        pre = [f"s_add_u32 s{sRPD}, s{sRPD}, {1024*4096}"] if k == 4 else []
        put(12 + k // 2, f"rs{k}", pre + [f"buffer_store_dwordx4 {vr(vRP+4*k,4)}, v{vL16}, {WSR}, s{sRPD} offen offset:{(k%4)*1024} sc1"], need=f"rl{k}", role="B")
    put(25, "rsw", [], n=0, need="rs7", role="B")
    l1 = a.new("Lbg")
    put(26, "pub", [f"s_cmp_lg_u32 s{sW}, 4", f"s_cbranch_scc1 {l1}", f"s_lshl_b32 s{sT[2]}, s{sL}, 2", f"s_add_u32 s{sT[2]}, s{sT[2]}, {F_RP}", f"v_mov_b32 v112, s{sNON}",
                    "s_mov_b64 exec, 1", f"buffer_store_dword v112, v{vLANE}, {WSR}, s{sT[2]} offen sc1", "s_mov_b64 exec, -1", f"{l1}:"], n=0)
    l2, l3, l4 = a.new("Lbg"), a.new("Lbg"), a.new("Lbg")
    chk = [f"s_cmp_lg_u32 s{sW}, 7", f"s_cbranch_scc1 {l2}", f"s_mov_b32 s{sT[20]}, 0", f"{l3}:",
           f"s_mov_b32 s{sT[2]}, {F_RP}", f"s_mov_b32 s{sT[3]}, {F_MODR}",
           f"buffer_load_dwordx4 v[112:115], v{vL16}, {WSR}, s{sT[2]} offen sc1",
           f"v_min_u32 v120, 624, v{vL16}",
           f"buffer_load_dwordx4 v[116:119], v120, {WSR}, s{sT[3]} offen sc1",
           "s_waitcnt vmcnt(0)"]
    chk += [f"v_xor_b32 v{112+j}, s{sNON}, v{112+j}" for j in range(8)]
    chk += ["v_or3_b32 v112, v112, v113, v114", "v_or3_b32 v115, v115, v116, v117", "v_or3_b32 v112, v112, v118, v119", "v_or_b32 v112, v112, v115",
            f"v_cmp_ne_u32 s[{sT[22]}:{sT[23]}], 0, v112", "s_nop 4", f"s_cmp_eq_u64 s[{sT[22]}:{sT[23]}], 0", f"s_cbranch_scc1 {l2}",
            f"s_add_u32 s{sT[20]}, s{sT[20]}, 1", f"s_cmp_lt_u32 s{sT[20]}, {SPIN_LIMIT}", f"s_cbranch_scc1 {l3}",
            f"{l2}:"]
    put(32, "chk", chk, n=0)
    slots = [34, 36, 37, 38, 40, 41, 42, 44, 45, 46, 48, 49, 50]
    for k, T in enumerate(slots):
        ins = []
        if k % 4 == 0: ins.append(f"s_add_u32 m0, s{sWOL}, {k*1024}")
        else: ins.append(f"s_add_u32 m0, s{sWOL}, {(k//4)*4096}")
        ins.append(f"buffer_load_dwordx4 v{vL16}, {WSR}, s{sWOS} offen offset:{(k%4)*1024} sc1 lds")
        if k % 4 == 3: ins.append(f"s_add_u32 s{sWOS}, s{sWOS}, 4096")
        put(T, f"wo{k}", ins)
    put(35, "mb", [f"s_min_u32 s{sT[2]}, s{sW}, 2", f"s_lshl_b32 s{sT[2]}, s{sT[2]}, 10", f"s_add_u32 m0, s{sT[2]}, {L2_MB}", f"s_add_u32 s{sT[2]}, s{sT[2]}, {WS_MODB}",
                   f"buffer_load_dwordx4 v{vL16}, {WSR}, s{sT[2]} offen sc1 lds"])
    for k, T in enumerate((58, 59, 62)):
        ins = [f"s_add_u32 m0, s{sSLL}, {k*1024}", f"buffer_load_dwordx4 v{vSL}, s[{S_C}:{S_C+3}], s{sSLS} offen lds"]
        if k < 2: ins.append(f"s_add_u32 s{sSLS}, s{sSLS}, {32*3456}")
        put(T, f"sl{k}", ins)

def ut_job(g):
    a = g.a
    E = a.new("Lnoutj")
    a(f"s_cmp_lg_u32 s{sW}, 7\ns_cbranch_scc1 {E}\ns_cmp_ge_u32 s{sL}, 216\ns_cbranch_scc1 {E}")
    a(f"v_lshrrev_b32 v42, 4, v{vLANE}\nv_bfe_u32 v41, v{vLANE}, 2, 2\nv_lshl_add_u32 v40, v42, 3, v41\nv_lshlrev_b32 v40, 5, v40")
    a(f"v_and_b32 v41, 3, v{vLANE}\nv_lshl_add_u32 v40, v41, 3, v40\nv_add_u32 v40, {g.L2_UT}, v40")
    a(f"v_and_b32 v43, 1, v{vLANE}\nv_xor_b32 v43, 1, v43\nv_mul_u32_u24 v43, 1280, v43\nv_lshl_add_u32 v43, v42, 4, v43\nv_add_u32 v43, {L2_MB}, v43")
    base = 128
    for rnd in range(2):
        for s in range(10 * rnd, 10 * rnd + 10):
            d = base + 8 * (s % 10)
            a(f"ds_read_b64_tr_b16 {vr(d,2)}, v40 offset:{s*1024}\nds_read_b64_tr_b16 {vr(d+2,2)}, v40 offset:{s*1024+128}\nds_read_b128 {vr(d+4,4)}, v43 offset:{s*64}")
            if s % 10 >= 3:
                t = s - 3; dt = base + 8 * (t % 10)
                a(f"s_waitcnt lgkmcnt(9)\nv_mfma_f32_16x16x32_bf16 v[44:47], {vr(dt,4)}, {vr(dt+4,4)}, {'0' if t == 0 else 'v[44:47]'}")
        for t in range(10 * rnd + 7, 10 * rnd + 10):
            dt = base + 8 * (t % 10)
            a(f"s_waitcnt lgkmcnt({3*(10*rnd+9-t)})\nv_mfma_f32_16x16x32_bf16 v[44:47], {vr(dt,4)}, {vr(dt+4,4)}, v[44:47]")
    a(f"s_cmp_lt_u32 s{sL}, 108\ns_cselect_b32 s{sT[2]}, 0, {2*1728*4}")
    a(f"s_sub_u32 s{sT[3]}, s{sL}, 108\ns_cselect_b32 s{sT[3]}, s{sL}, s{sT[3]}\ns_lshl_b32 s{sT[3]}, s{sT[3]}, 6")
    a(f"s_add_u32 s{sT[2]}, s{sT[2]}, s{sT[3]}\ns_add_u32 s{sT[2]}, s{sT[2]}, {WS_UT}")
    a(f"v_and_b32 v40, 15, v{vLANE}\nv_mul_u32_u24 v41, {1728*4}, v40\nv_lshl_add_u32 v41, v42, 4, v41")
    a("s_mov_b32 exec_lo, 0x00030003\ns_mov_b32 exec_hi, 0x00030003")
    a(f"buffer_store_dwordx4 v[44:47], v41, {WSR}, s{sT[2]} offen sc1")
    a("s_mov_b64 exec, -1")
    a.label(E)

def ut_flag(g):
    a = g.a
    E = a.new("Lutf")
    a(f"s_cmp_lg_u32 s{sW}, 7\ns_cbranch_scc1 {E}\ns_cmp_ge_u32 s{sL}, 216\ns_cbranch_scc1 {E}")
    a(f"s_lshl_b32 s{sT[3]}, s{sL}, 2\ns_add_u32 s{sT[3]}, s{sT[3]}, {F_UT}")
    g.one_lane_store(sT[3], 255)
    a.label(E)

def pi_rows(g, d):
    a = g.a
    a(f"v_lshrrev_b32 v{d}, 5, v{vLANE}\nv_bfe_u32 v{d+1}, v{vLANE}, 4, 1\nv_lshlrev_b32 v{d}, 4, v{d}\nv_lshl_add_u32 v{d}, v{d+1}, 2, v{d}")
    a(f"v_bfe_u32 v{d+1}, v{vLANE}, 2, 2\nv_add_u32 v{d}, v{d}, v{d+1}")

def w5_list(dst, addr, off, addr2=None, off2=None):
    if addr2 is None: addr2, off2 = addr, off + 8 * 160
    L = []
    for cb in range(5):
        L.append(f"ds_read_b64_tr_b16 {vr(dst+4*cb,2)}, v{addr} offset:{off + cb*32}")
        L.append(f"ds_read_b64_tr_b16 {vr(dst+4*cb+2,2)}, v{addr2} offset:{off2 + cb*32}")
    return L

def interleave(a, main, fill, lead=0):
    n, m = len(main), len(fill)
    k = 0
    for i, x in enumerate(main):
        a(x)
        want = (m * (i + 1)) // n if i + 1 < n else m
        while k < want:
            a(fill[k]); k += 1

def exchange(g, acc, scratch):
    a = g.a
    a(f"s_mul_i32 s{sT[0]}, s{sW4}, 5120\ns_add_u32 s{sT[0]}, s{sT[0]}, {scratch}\nv_add_u32 v40, s{sT[0]}, v{vL16}")
    a("s_barrier")
    L1, L2 = a.new("Lex"), a.new("Lex")
    a(f"s_cmp_lg_u32 s{sKH}, 0\ns_cbranch_scc1 {L1}")
    for cb in (3, 4): a(f"ds_write_b128 v40, {vr(acc+4*cb,4)} offset:{cb*1024}")
    a("s_waitcnt lgkmcnt(0)\ns_barrier")
    for cb in (0, 1, 2): a(f"ds_read_b128 {vr(44+4*cb,4)}, v40 offset:{cb*1024}")
    a("s_waitcnt lgkmcnt(0)")
    for cb in (0, 1, 2):
        for r in range(4): a(f"v_add_f32 v{acc+4*cb+r}, v{acc+4*cb+r}, v{44+4*cb+r}")
    a(f"s_branch {L2}")
    a.label(L1)
    for cb in (0, 1, 2): a(f"ds_write_b128 v40, {vr(acc+4*cb,4)} offset:{cb*1024}")
    a("s_waitcnt lgkmcnt(0)\ns_barrier")
    for cb in (3, 4): a(f"ds_read_b128 {vr(44+4*cb,4)}, v40 offset:{cb*1024}")
    a("s_waitcnt lgkmcnt(0)")
    for cb in (3, 4):
        for r in range(4): a(f"v_add_f32 v{acc+4*cb+r}, v{acc+4*cb+r}, v{44+4*cb+r}")
    a.label(L2)

def store_blocks(g, P, nblk, base_s, vaddr_pair, vaddr_single):
    a = g.a
    i = 0
    while i < nblk:
        p = P + 2 * i
        if i + 1 < nblk:
            a(f"v_permlane32_swap_b32 v{p}, v{p+2}\nv_permlane32_swap_b32 v{p+1}, v{p+3}")
            a(f"buffer_store_dwordx4 {vr(p,4)}, v{vL16}, {WSR}, s{base_s} offen offset:{i*512} sc1")
            i += 2
        else:
            a(f"v_mov_b32 v{p+2}, v{p}\nv_mov_b32 v{p+3}, v{p+1}")
            a(f"v_permlane32_swap_b32 v{p}, v{p+2}\nv_permlane32_swap_b32 v{p+1}, v{p+3}")
            a("s_mov_b32 exec_hi, 0")
            a(f"buffer_store_dwordx4 {vr(p,4)}, v{vL16}, {WSR}, s{base_s} offen offset:{i*512} sc1")
            a("s_mov_b64 exec, -1")
            i += 1

L3_X = 40960 + 8192
L3_MV = 158720

def p3(g):
    a = g.a
    a.c("---- P3: o @ wo, residual, y / stats ----")
    acc = 8
    vB = 128
    vA = [64, 84]
    a(f"s_mul_i32 s{sFB0}, s{sM}, 7\ns_mul_i32 s{sT[2]}, s{sM}, 6\ns_add_u32 s{sT[2]}, s{sT[2]}, 12\ns_min_u32 s{sT[2]}, s{sT[2]}, 101")
    a(f"s_cmp_lt_u32 s{sM}, 12\ns_cselect_b32 s{sFB0}, s{sFB0}, s{sT[2]}")
    a(f"s_lshl_b32 s{sWL4}, s{sW}, 11\ns_mul_i32 s{sWS4}, s{sM}, {2*143360}\ns_add_u32 s{sWS4}, s{sWS4}, s{sWL4}\ns_add_u32 s{sWS4}, s{sWS4}, {WS_RW + RW_13}")
    a(f"s_add_u32 s{sWL4}, s{sWL4}, {L4_BASE}")
    a(f"s_mul_i32 s{sT[1]}, s{sKH}, 48\ns_mul_i32 s{sT[2]}, s{sHG}, 80\ns_add_u32 s{sT[1]}, s{sT[1]}, s{sT[2]}")
    a(f"v_lshrrev_b32 v28, 4, v{vLANE}\nv_lshlrev_b32 v29, 4, v28")
    a(f"s_lshl_b32 s{sT[10]}, s{sT[1]}, 2\ns_add_u32 s{sT[10]}, s{sT[10]}, {WS_MODR}\ns_add_u32 s{sT[11]}, s{sT[10]}, {1280*4}\ns_add_u32 s{sT[12]}, s{sT[10]}, {1920*4}")
    a(f"v_and_b32 v253, 15, v{vLANE}\nv_mul_u32_u24 v253, 1280, v253\nv_lshl_add_u32 v253, v28, 3, v253")
    a(f"s_mul_i32 s{sT[2]}, s{sRBG}, {16*1280}\ns_lshl_b32 s{sT[1]}, s{sT[1]}, 1\ns_add_u32 s30, s{sT[2]}, s{sT[1]}")
    ut_job(g)
    a(f"s_mul_i32 s{sT[3]}, s{sKH}, {320*160}\ns_add_u32 s{sT[3]}, s{sT[3]}, {g.L2_WO}")
    a(f"v_and_b32 v44, 3, v{vLANE}\nv_lshl_add_u32 v44, v44, 3, s{sT[3]}\nv_bfe_u32 v46, v{vLANE}, 2, 2\ns_movk_i32 s{sT[19]}, 160")
    for m in range(3):
        d1, d2 = 33 + 2 * m, 34 + 2 * m
        a(f"v_add_u32 v40, {4*m}, v28")
        a(f"v_mul_u32_u24 v41, 86, v40\nv_lshrrev_b32 v41, 8, v41")
        a(f"v_mul_u32_u24 v42, 3, v41\nv_sub_u32 v42, v40, v42\nv_mul_u32_u24 v41, 20, v41")
        a(f"v_lshlrev_b32 v43, 2, v42\nv_cmp_eq_u32 vcc, 2, v42\nv_add_u32 v41, v41, v46")
        a(f"v_cndmask_b32 v43, v43, 16, vcc\nv_add_u32 v43, v41, v43\nv_add_u32 v45, 8, v43\nv_cndmask_b32 v45, v45, v43, vcc")
        a(f"v_mad_u32_u24 v{d1}, v43, s{sT[19]}, v44\nv_mad_u32_u24 v{d2}, v45, s{sT[19]}, v44")
    def wl(s):
        m = s % 3; o = (s // 3) * 80 * 160
        return w5_list(vA[s % 2], 33 + 2 * m, o, 34 + 2 * m, o)
    for x in wl(0): a(x)
    a(f"s_and_b32 s{sT[4]}, s{sL}, 0xf8")
    g.wg_poll(F_O, sT[4], 8, 47, 5, wave=6)
    g.stamp(14)
    a(f"s_mul_i32 s{sT[1]}, s{sRBG}, 24\ns_mul_i32 s{sT[2]}, s{sKH}, 12\ns_add_u32 s{sT[1]}, s{sT[1]}, s{sT[2]}\ns_lshl_b32 s{sT[1]}, s{sT[1]}, 10\ns_add_u32 s{sT[1]}, s{sT[1]}, {WS_O}")
    for s in range(12):
        a(f"buffer_load_dwordx4 {vr(vB+4*s,4)}, v{vL16}, {WSR}, s{sT[1]} offen offset:{(s%4)*1024} sc1")
        if s % 4 == 3 and s < 11: a(f"s_add_u32 s{sT[1]}, s{sT[1]}, 4096")
    ops = []
    for j in range(3):
        ops.append(f"buffer_load_dwordx4 {vr(vGA+4*j,4)}, v29, {WSR}, s{sT[10]} offen offset:{j*64} sc1")
        ops.append(f"buffer_load_dwordx4 {vr(vG2+4*j,4)}, v29, {WSR}, s{sT[11]} offen offset:{j*64} sc1")
        ops.append(f"buffer_load_dwordx2 {vr(vXr+2*j,2)}, v253, s[{S_X}:{S_X+3}], s30 offen offset:{j*32}")
        ops.append(f"buffer_load_dwordx4 {vr(vGB+4*j,4)}, v29, {WSR}, s{sT[12]} offen offset:{j*64} sc1")
    issued = 0
    for s in range(12):
        a(f"s_waitcnt vmcnt({11 - s + issued}) lgkmcnt(0)")
        mf = [f"v_mfma_f32_16x16x32_bf16 {vr(acc+4*cb,4)}, {vr(vA[s%2]+4*cb,4)}, {vr(vB+4*s,4)}, {'0' if s == 0 else vr(acc+4*cb,4)}" for cb in range(5)]
        fill = wl(s + 1) if s + 1 < 12 else []
        interleave(a, mf, fill)
        a(ops[s]); issued += 1
    E = a.new("Lw0")
    a(f"s_cmp_eq_u32 s{sW}, 7\ns_cbranch_scc1 {E}")
    for x in p4_w_dma_list(sWS4, sWL4): a(x)
    a.label(E)
    a(f"s_add_u32 s{sWS4}, s{sWS4}, 14336")
    g.stamp(17)
    exchange(g, acc, 0)
    g.stamp(18)
    X, Y = a.new("Lop"), a.new("Lop")
    a(f"s_cmp_eq_u32 s{sW}, 7\ns_cbranch_scc1 {X}\ns_waitcnt vmcnt(4)\ns_branch {Y}")
    a.label(X); a("s_waitcnt vmcnt(0)"); a.label(Y)
    L1, L2 = a.new("Lp3e"), a.new("Lp3e")
    a(f"s_cmp_lg_u32 s{sKH}, 0\ns_cbranch_scc1 {L1}")
    p3_epi(g, (0, 1, 2), acc, vXr, vGA, vG2)
    a(f"s_branch {L2}")
    a.label(L1)
    p3_epi(g, (3, 4), acc, vXr, vGA, vG2)
    a.label(L2)
    g.stamp(19)
    g.wave_flag(F_Y)
    ut_flag(g)
    g.stamp(20)

def p3_epi(g, blocks, acc, vXr, vGA, vG2):
    a = g.a
    a(f"s_mul_i32 s{sT[1]}, s{sRBG}, 20480\ns_mul_i32 s{sT[2]}, s{sHG}, 2560\ns_add_u32 s{sT[1]}, s{sT[1]}, s{sT[2]}\ns_add_u32 s{sT[1]}, s{sT[1]}, {WS_Y + blocks[0]*512}")
    for j, cb in enumerate(blocks):
        X = vX1 + 4 * j
        a(f"v_lshlrev_b32 v{X}, 16, v{vXr+2*j}\nv_and_b32 v{X+1}, 0xffff0000, v{vXr+2*j}\nv_lshlrev_b32 v{X+2}, 16, v{vXr+2*j+1}\nv_and_b32 v{X+3}, 0xffff0000, v{vXr+2*j+1}")
        for r in range(4): a(f"v_fmac_f32 v{X+r}, v{vGA+4*j+r}, v{acc+4*cb+r}")
        for r in range(4): a(f"v_mul_f32 v{40+r}, v{X+r}, v{vG2+4*j+r}")
        a(f"v_cvt_pk_bf16_f32 v{44+2*j}, v40, v41\nv_cvt_pk_bf16_f32 v{45+2*j}, v42, v43")
    store_blocks(g, 44, len(blocks), sT[1], None, None)
    first = True
    for j in range(len(blocks)):
        for r in range(4):
            X = vX1 + 4 * j + r
            if first: a(f"v_mov_b32 v36, v{X}\nv_mul_f32 v37, v{X}, v{X}"); first = False
            else: a(f"v_add_f32 v36, v36, v{X}\nv_fmac_f32 v37, v{X}, v{X}")
    g.sum_groups(36, 38); g.sum_groups(37, 39)
    a(f"s_lshl_b32 s{sT[2]}, s{sL}, 3\ns_add_u32 s{sT[2]}, s{sT[2]}, s{sW}\ns_lshl_b32 s{sT[2]}, s{sT[2]}, 7\ns_add_u32 s{sT[2]}, s{sT[2]}, {WS_STAT}")
    a(f"v_lshlrev_b32 v38, 3, v{vLANE}\ns_mov_b32 exec_lo, 0xffff\ns_mov_b32 exec_hi, 0")
    a(f"buffer_store_dwordx2 v[36:37], v38, {WSR}, s{sT[2]} offen sc1")
    a("s_mov_b64 exec, -1")

L4_BUF = 45056
L4_BASE = 20480
L4_STAT = 158720
L4_UT = 155648

def p4_w_dma_list(src_s, lds_s):
    return [f"s_mov_b32 m0, s{lds_s}",
            f"buffer_load_dwordx4 v{vL16}, {WSR}, s{src_s} offen sc1 lds",
            f"buffer_load_dwordx4 v{vL16}, {WSR}, s{src_s} offen offset:1024 sc1 lds",
            f"s_add_u32 m0, s{lds_s}, 14336",
            f"s_add_u32 s{sT[5]}, s{src_s}, 143360",
            f"buffer_load_dwordx4 v{vL16}, {WSR}, s{sT[5]} offen sc1 lds",
            f"buffer_load_dwordx4 v{vL16}, {WSR}, s{sT[5]} offen offset:1024 sc1 lds"]

def p4_y_dma_list(src_s, lds_s):
    return [f"s_mov_b32 m0, s{lds_s}",
            f"buffer_load_dwordx4 v{vL16}, {WSR}, s{src_s} offen sc1 lds",
            f"buffer_load_dwordx4 v{vL16}, {WSR}, s{src_s} offen offset:1024 sc1 lds"]

sWS4, sWL4, sYS4, sYL4 = sT[14], sT[15], sT[16], sT[17]

def p4(g):
    a = g.a
    a.c("---- P4: gate/up GEMM ----")
    E = a.new("Lw1")
    a(f"s_cmp_eq_u32 s{sW}, 7\ns_cbranch_scc1 {E}")
    a(f"s_add_u32 s{sT[3]}, s{sWL4}, {L4_BUF}")
    for x in p4_w_dma_list(sWS4, sT[3]): a(x)
    a.label(E)
    a(f"s_add_u32 s{sWS4}, s{sWS4}, 14336")
    a(f"s_lshl_b32 s{sYS4}, s{sG}, 3\ns_add_u32 s{sYS4}, s{sYS4}, s{sW}\ns_mul_i32 s{sYS4}, s{sYS4}, 20480\ns_add_u32 s{sYS4}, s{sYS4}, {WS_Y}")
    a(f"s_add_u32 s{sYL4}, s{sWL4}, 28672")
    a(f"v_lshlrev_b32 v35, 3, v{vLANE}")
    a(f"s_and_b32 s{sT[2]}, s{sW}, 1\ns_lshl_b32 s{sT[3]}, s{sG}, 1\ns_add_u32 s{sT[2]}, s{sT[2]}, s{sT[3]}\ns_lshl_b32 s{sT[2]}, s{sT[2]}, 3")
    a(f"s_lshr_b32 s{sT[3]}, s{sW}, 1\ns_lshl_b32 s{sT[4]}, s{sT[3]}, 1\ns_add_u32 s{sT[2]}, s{sT[2]}, s{sT[4]}\ns_lshl_b32 s{sT[2]}, s{sT[2]}, 10\ns_add_u32 s{sT[2]}, s{sT[2]}, {WS_STAT}")
    a(f"s_lshl_b32 s{sT[3]}, s{sT[3]}, 10\ns_and_b32 s{sT[4]}, s{sW}, 1\ns_lshl_b32 s{sT[4]}, s{sT[4]}, 9\ns_add_u32 s{sT[3]}, s{sT[3]}, s{sT[4]}\ns_add_u32 s{sT[3]}, s{sT[3]}, {L4_STAT}\nv_add_u32 v41, s{sT[3]}, v35")
    a(f"s_lshl_b32 s{sT[13]}, s{sG}, 4")
    g.wg_poll(F_Y, sT[13], 16, 200, 6, wave=7)
    g.stamp(15)
    for st in range(2):
        a(f"s_add_u32 s{sT[3]}, s{sYL4}, {st*L4_BUF}")
        for x in p4_y_dma_list(sYS4, sT[3]): a(x)
        a(f"s_add_u32 s{sYS4}, s{sYS4}, 2048")
    for j in range(4):
        a(f"buffer_load_dwordx2 {vr(44+2*j,2)}, v35, {WSR}, s{sT[2]} offen offset:{j*512} sc1")
    E = a.new("Lw2")
    a(f"s_cmp_eq_u32 s{sW}, 7\ns_cbranch_scc1 {E}")
    a(f"s_add_u32 s{sT[3]}, s{sWL4}, {2*L4_BUF}")
    for x in p4_w_dma_list(sWS4, sT[3]): a(x)
    a.label(E)
    a(f"s_add_u32 s{sWS4}, s{sWS4}, 14336")
    a(f"s_add_u32 s{sT[3]}, s{sYL4}, {2*L4_BUF}")
    for x in p4_y_dma_list(sYS4, sT[3]): a(x)
    a(f"s_add_u32 s{sYS4}, s{sYS4}, 2048")
    LB, LE = a.new("Lp4b"), a.new("Lp4e")
    a(f"s_cmp_ge_u32 s{sW}, 4\ns_cbranch_scc1 {LB}")
    p4_role(g, True)
    a(f"s_branch {LE}")
    a.label(LB)
    p4_role(g, False)
    a.label(LE)

def spread(a, main, first, later, per=2):
    n = len(main)
    slots = [[] for _ in range(n)]
    k = 0; i = 0
    while k < len(first):
        slots[min(i, n - 1)] += first[k:k + per]; k += per; i += 1
    lo = min(i, n - 1)
    if later:
        hi = max(lo + 1, n - 1)
        span = hi - lo
        for j, grp in enumerate(later):
            pos = min(n - 1, lo + (j * span) // len(later))
            slots[pos] += grp
    for i in range(n):
        a(main[i])
        for x in slots[i]: a(x)

def p4_role(g, isA):
    a = g.a
    nrb = 4 if isA else 2
    npair = 2 if isA else 3
    acc = 52
    F = [116, 148]
    vYa, vWa = [8, 9, 10], [11, 12, 13]
    rb0, p0 = sT[11], sT[12]
    if isA: a(f"s_and_b32 s{rb0}, s{sW}, 1\ns_lshl_b32 s{rb0}, s{rb0}, 2\ns_and_b32 s{p0}, s{sW}, 2")
    else: a(f"s_lshl_b32 s{rb0}, s{sW4}, 1\ns_mov_b32 s{p0}, 4")
    a(f"s_lshl_b32 s{sT[1]}, s{rb0}, 11\ns_add_u32 s{sT[1]}, s{sT[1]}, {L4_BASE + 28672}\nv_add_u32 v{vYa[0]}, s{sT[1]}, v{vL16}")
    pi_rows(g, 14)
    a(f"v_mul_u32_u24 v14, 224, v14\nv_and_b32 v15, 3, v{vLANE}\nv_lshl_add_u32 v14, v15, 3, v14")
    a(f"s_lshl_b32 s{sT[1]}, s{p0}, 5\ns_add_u32 s{sT[1]}, s{sT[1]}, {L4_BASE}\nv_add_u32 v{vWa[0]}, s{sT[1]}, v14")
    for b in (1, 2):
        a(f"v_add_u32 v{vYa[b]}, {b*L4_BUF}, v{vYa[0]}\nv_add_u32 v{vWa[b]}, {b*L4_BUF}, v{vWa[0]}")
    for j in range(nrb * npair * 8): a(f"v_mov_b32 v{acc+j}, 0")
    a(f"s_cmp_eq_u32 s{sW}, 7\ns_cselect_b64 vcc, -1, 0")
    def wait2(n, n7, extra=""):
        if isA or n == n7: a(f"s_waitcnt vmcnt({n}){extra}")
        else:
            X, Y = a.new("Lv"), a.new("Lv")
            a(f"s_cbranch_vccnz {X}\ns_waitcnt vmcnt({n}){extra}\ns_branch {Y}")
            a.label(X); a(f"s_waitcnt vmcnt({n7}){extra}"); a.label(Y)
    wait2(6, 2)
    a("v_add_f32 v44, v44, v46\nv_add_f32 v45, v45, v47\nv_add_f32 v48, v48, v50\nv_add_f32 v49, v49, v51\nv_add_f32 v44, v44, v48\nv_add_f32 v45, v45, v49")
    a("ds_write_b64 v41, v[44:45]\ns_waitcnt lgkmcnt(0)\ns_barrier")
    def loads(fs, ks, buf):
        L = []
        for r in range(nrb): L.append(f"ds_read_b128 {vr(F[fs]+4*r,4)}, v{vYa[buf]} offset:{r*2048 + ks*1024}")
        for p in range(npair):
            for u in range(2):
                d = F[fs] + 4 * nrb + (p * 2 + u) * 4
                o = u * 14336 + ks * 7168 + p * 32
                L.append(f"ds_read_b64_tr_b16 {vr(d,2)}, v{vWa[buf]} offset:{o}")
                L.append(f"ds_read_b64_tr_b16 {vr(d+2,2)}, v{vWa[buf]} offset:{o + 8*224}")
        return L
    def mfmas(fs):
        L = []
        for p in range(npair):
            for u in range(2):
                for r in range(nrb):
                    c = acc + ((r * npair + p) * 2 + u) * 4
                    L.append(f"v_mfma_f32_16x16x32_bf16 {vr(c,4)}, {vr(F[fs]+4*nrb+(p*2+u)*4,4)}, {vr(F[fs]+4*r,4)}, {vr(c,4)}")
        return L
    def wgroups(buf):
        o = buf * L4_BUF
        G = [[f"s_add_u32 m0, s{sWL4}, {o}", f"buffer_load_dwordx4 v{vL16}, {WSR}, s{sWS4} offen sc1 lds"],
             [f"buffer_load_dwordx4 v{vL16}, {WSR}, s{sWS4} offen offset:1024 sc1 lds"],
             [f"s_add_u32 m0, s{sWL4}, {o + 14336}", f"s_add_u32 s{sT[5]}, s{sWS4}, 143360", f"buffer_load_dwordx4 v{vL16}, {WSR}, s{sT[5]} offen sc1 lds"],
             [f"buffer_load_dwordx4 v{vL16}, {WSR}, s{sT[5]} offen offset:1024 sc1 lds", f"s_add_u32 s{sWS4}, s{sWS4}, 14336"]]
        if not isA:
            G2 = []
            for grp in G:
                lab = a.new("Lw7"); G2.append([f"s_cbranch_vccnz {lab}"] + grp + [f"{lab}:"])
            G = G2
        return G
    def ygroups(buf):
        o = buf * L4_BUF
        return [[f"s_add_u32 m0, s{sYL4}, {o}", f"buffer_load_dwordx4 v{vL16}, {WSR}, s{sYS4} offen sc1 lds"],
                [f"buffer_load_dwordx4 v{vL16}, {WSR}, s{sYS4} offen offset:1024 sc1 lds", f"s_add_u32 s{sYS4}, s{sYS4}, 2048"]]
    p5_w_setup(g)
    for x in loads(0, 0, 0): a(x)
    g.stamp(11); g.cstamp(29)
    for st in range(10):
        b = st % 3
        a("s_waitcnt lgkmcnt(0)")
        later = ygroups((st + 2) % 3) if 1 <= st <= 7 else []
        if os.environ.get("X_P4NODMA"): later = []
        if st == 5 and not isA: later = later + [ut_to_lds(g)]
        spread(a, mfmas(0), loads(1, 1, b) if not os.environ.get("X_P4NOLDS") else [], later)
        if st < 9:
            if st == 8: a("s_waitcnt vmcnt(5) lgkmcnt(0)")
            elif st == 5 and not isA: wait2(6, 2, " lgkmcnt(0)")
            else: wait2(6, 2, " lgkmcnt(0)")
            if not os.environ.get("X_P4NOBAR"): a("s_barrier")
        else: a("s_waitcnt lgkmcnt(0)")
        spread(a, mfmas(1), (loads(0, 0, (st + 1) % 3) if st < 9 else []) if not os.environ.get("X_P4NOLDS") else [], (wgroups(b) if st <= 6 else (p5_w_groups(st - 7) if st <= 8 else [])) if not os.environ.get("X_P4NODMA") else [])
    g.stamp(12); g.cstamp(30)
    a("s_barrier")
    vUT = 148
    a(f"v_and_b32 v14, 15, v{vLANE}\ns_lshl_b32 s{sT[1]}, s{rb0}, 7\ns_add_u32 s{sT[1]}, s{sT[1]}, {L4_STAT}\nv_lshl_add_u32 v14, v14, 3, s{sT[1]}")
    for r in range(nrb):
        for q in range(4): a(f"ds_read_b64 {vr(116+8*r+2*q,2)}, v14 offset:{q*1024 + r*128}")
    a(f"v_lshrrev_b32 v12, 4, v{vLANE}\ns_lshl_b32 s{sT[2]}, s{p0}, 6\ns_add_u32 s{sT[2]}, s{sT[2]}, {L4_UT}\nv_lshl_add_u32 v12, v12, 4, s{sT[2]}")
    a(f"s_mov_b32 s{sT[5]}, 0x3acccccd")
    a("s_waitcnt lgkmcnt(0)")
    for p in range(npair):
        for vv in range(4): a(f"ds_read_b128 {vr(vUT+p*16+vv*4,4)}, v12 offset:{vv*448 + p*64}")
    for r in range(nrb):
        b = 116 + 8 * r
        a(f"v_add_f32 v{b}, v{b}, v{b+2}\nv_add_f32 v{b+1}, v{b+1}, v{b+3}\nv_add_f32 v{b+4}, v{b+4}, v{b+6}\nv_add_f32 v{b+5}, v{b+5}, v{b+7}\nv_add_f32 v{b}, v{b}, v{b+4}\nv_add_f32 v{b+1}, v{b+1}, v{b+5}")
        a(f"v_mul_f32 v{b}, s{sT[5]}, v{b}\nv_mul_f32 v{b+1}, s{sT[5]}, v{b+1}")
        a(f"v_fma_f32 v{b+1}, -v{b}, v{b}, v{b+1}\nv_max_f32 v{b+1}, 0, v{b+1}\nv_add_f32 v{b+1}, 0x3727c5ac, v{b+1}")
    for r in range(nrb): a(f"v_rsq_f32 v{16+4*r}, v{117+8*r}")
    for r in range(nrb): a(f"v_mov_b32 v{17+4*r}, v{16+4*r}\nv_mul_f32 v{18+4*r}, -v{16+4*r}, v{116+8*r}\nv_mul_f32 v{19+4*r}, -v{16+4*r}, v{116+8*r}")
    a(f"s_add_u32 s{sT[2]}, s{sFB0}, s{p0}")
    a(f"s_lshl_b32 s{sT[1]}, s{sG}, 3\ns_add_u32 s{sT[1]}, s{sT[1]}, s{rb0}\ns_mul_i32 s{sT[1]}, s{sT[1]}, {54*1024}\ns_lshl_b32 s{sT[2]}, s{sT[2]}, 9\ns_add_u32 s{sT[1]}, s{sT[1]}, s{sT[2]}\ns_add_u32 s{sT[1]}, s{sT[1]}, {WS_ACT}")
    a(f"v_mov_b32 v46, 0xbfb8aa3b\nv_mov_b32 v47, 0xbfb8aa3b\nv_mov_b32 v48, 1.0\nv_mov_b32 v49, 1.0")
    a("s_waitcnt lgkmcnt(0)")
    g.stamp(13)
    for r in range(nrb):
        R, RM = vr(16 + 4 * r, 2), vr(18 + 4 * r, 2)
        for p in range(npair):
            U1, T1, U3, T3 = [vUT + p * 16 + vv * 4 for vv in range(4)]
            cg = acc + ((r * npair + p) * 2) * 4; cu = cg + 4
            for h in range(2):
                a(f"v_pk_fma_f32 {vr(32+2*h,2)}, {RM}, {vr(U1+2*h,2)}, {vr(T1+2*h,2)}\nv_pk_fma_f32 {vr(36+2*h,2)}, {RM}, {vr(U3+2*h,2)}, {vr(T3+2*h,2)}")
            for h in range(2):
                a(f"v_pk_fma_f32 {vr(32+2*h,2)}, {vr(cg+2*h,2)}, {R}, {vr(32+2*h,2)}\nv_pk_fma_f32 {vr(36+2*h,2)}, {vr(cu+2*h,2)}, {R}, {vr(36+2*h,2)}")
            for h in range(2): a(f"v_pk_mul_f32 {vr(40+2*h,2)}, {vr(32+2*h,2)}, v[46:47]")
            for e in range(4): a(f"v_exp_f32 v{40+e}, v{40+e}")
            for h in range(2): a(f"v_pk_mul_f32 {vr(32+2*h,2)}, {vr(32+2*h,2)}, {vr(36+2*h,2)}")
            for h in range(2): a(f"v_pk_add_f32 {vr(40+2*h,2)}, {vr(40+2*h,2)}, v[48:49]")
            for e in range(4): a(f"v_rcp_f32 v{40+e}, v{40+e}")
            a("s_nop 0")
            for h in range(2): a(f"v_pk_mul_f32 {vr(32+2*h,2)}, {vr(32+2*h,2)}, {vr(40+2*h,2)}")
            o = 196 + 8 * (r % 2) + 2 * p
            a(f"v_cvt_pk_bf16_f32 v{o}, v32, v33\nv_cvt_pk_bf16_f32 v{o+1}, v34, v35")
        store_blocks(g, 196 + 8 * (r % 2), npair, sT[1], None, None)
        if r + 1 < nrb: a(f"s_add_u32 s{sT[1]}, s{sT[1]}, {54*1024}")
    g.stamp(21)
    g.wave_flag(F_ACT)
    g.stamp(22)

def ut_to_lds(g):
    a = g.a
    E, L, D = a.new("Lut"), a.new("Lut"), a.new("Lut")
    I = [f"s_cbranch_vccz {E}",
         f"v_mov_b32 v14, s{sFB0}", f"v_add_u32 v14, v14, v{vLANE}", f"v_cmp_lt_u32 s[{sT[22]}:{sT[23]}], 6, v{vLANE}", "v_add_u32 v15, 101, v14", "s_nop 1",
         f"v_cndmask_b32 v14, v14, v15, s[{sT[22]}:{sT[23]}]", "v_lshlrev_b32 v14, 2, v14", f"s_mov_b32 s{sT[1]}, {F_UT}", f"s_mov_b32 s{sT[20]}, 0",
         "s_mov_b32 exec_lo, 0x3fff", "s_mov_b32 exec_hi, 0", f"{L}:",
         f"buffer_load_dword v15, v14, {WSR}, s{sT[1]} offen sc1", "s_waitcnt vmcnt(0)",
         f"v_cmp_ne_u32 s[{sT[22]}:{sT[23]}], s{sNON}, v15", "s_nop 4", f"s_cmp_eq_u64 s[{sT[22]}:{sT[23]}], 0", f"s_cbranch_scc1 {D}",
         f"s_add_u32 s{sT[20]}, s{sT[20]}, 1", f"s_cmp_lt_u32 s{sT[20]}, {SPIN_LIMIT}", f"s_cbranch_scc1 {L}", f"{D}:", "s_mov_b64 exec, -1",
         f"s_lshl_b32 s{sT[1]}, s{sFB0}, 6", f"s_add_u32 s{sT[1]}, s{sT[1]}, {WS_UT}", f"s_mov_b32 s{sT[2]}, {(1<<32)//28+1}",
         f"v_mul_hi_u32 v14, v{vLANE}, s{sT[2]}", f"v_mul_u32_u24 v14, {6912-448}, v14", f"v_add_u32 v14, v14, v{vL16}",
         f"s_mov_b32 m0, {L4_UT}", f"buffer_load_dwordx4 v14, {WSR}, s{sT[1]} offen sc1 lds",
         f"v_add_u32 v14, 64, v{vLANE}", f"v_mul_hi_u32 v15, v14, s{sT[2]}", f"v_mul_u32_u24 v15, {6912-448}, v15", "v_lshl_add_u32 v14, v14, 4, v15",
         f"s_mov_b32 m0, {L4_UT + 1024}", "s_mov_b32 exec_hi, 0xffff", f"buffer_load_dwordx4 v14, {WSR}, s{sT[1]} offen sc1 lds", "s_mov_b64 exec, -1",
         f"{E}:"]
    return I

L5_BUF = 40960
L5_B = [65536, 110592, 20480]
L5_SCR = 0
sW2S, sW2L = sT[6], sT[7]

def p5_w_dma_list(st):
    return [f"s_add_u32 s{sT[3]}, s{sW2S}, {st*4*5120}", f"s_add_u32 m0, s{sW2L}, {L5_B[st%3]}"] + \
           [f"buffer_load_dwordx4 v{vL16}, {WSR}, s{sT[3]} offen offset:{k*1024} sc1 lds" for k in range(4)] + \
           [f"s_add_u32 s{sT[3]}, s{sT[3]}, 4096", f"s_add_u32 m0, s{sW2L}, {L5_B[st%3] + 4096}", f"buffer_load_dwordx4 v{vL16}, {WSR}, s{sT[3]} offen sc1 lds"]

def p5_w_groups(st):
    L = p5_w_dma_list(st)
    return [L[0:3], [L[3]], [L[4]], [L[5]], L[6:9]]

def p5_w_setup(g):
    a = g.a
    a(f"s_mul_i32 s{sW2S}, s{sKH}, 27\ns_add_u32 s{sW2S}, s{sW2S}, s{sW4}\ns_mul_i32 s{sW2S}, s{sW2S}, 5120\ns_mul_i32 s{sT[4]}, s{sHG}, {RW_W2S}\ns_add_u32 s{sW2S}, s{sW2S}, s{sT[4]}\ns_add_u32 s{sW2S}, s{sW2S}, {WS_RW + RW_W2}")
    a(f"s_mul_i32 s{sW2L}, s{sW}, 5120")

def p5(g):
    a = g.a
    a.c("---- P5: act @ w2, residual ----")
    acc = 8
    vA = [64, 84]
    vB = 128
    ab = sT[10]
    a(f"s_mul_i32 s{ab}, s{sRBG}, 54\ns_mul_i32 s{sT[2]}, s{sKH}, 27\ns_add_u32 s{ab}, s{ab}, s{sT[2]}\ns_lshl_b32 s{ab}, s{ab}, 10\ns_add_u32 s{ab}, s{ab}, {WS_ACT}")
    a(f"s_mul_i32 s{sT[2]}, s{sKH}, {4*5120}")
    pi_rows(g, 33)
    a(f"v_mul_u32_u24 v33, 160, v33\nv_and_b32 v34, 3, v{vLANE}\nv_lshl_add_u32 v33, v34, 3, v33\nv_add_u32 v33, s{sT[2]}, v33")
    a(f"s_lshl_b32 s{sT[13]}, s{sG}, 4")
    g.wg_poll(F_ACT, sT[13], 16, 40, 8, wave=7)
    g.stamp(26)
    def lda(st):
        n = 4 if st < 6 else 3
        L = [f"s_add_u32 s{sT[1]}, s{ab}, {st*4096}"]
        for j in range(n):
            L.append(f"buffer_load_dwordx4 {vr(vB+4*((4*st+j)%12),4)}, v{vL16}, {WSR}, s{sT[1]} offen offset:{j*1024} sc1")
        return L, n
    pend = []
    for st in range(3):
        if st == 2:
            for x in p5_w_dma_list(st): a(x)
            pend.append(("D", st, 5))
        L, n = lda(st)
        for x in L: a(x)
        pend.append(("A", st, n))
    for st in range(7):
        idx = max(i for i, (k, s, n) in enumerate(pend) if s == st)
        after = sum(n for (k, s, n) in pend[idx + 1:])
        pend = pend[idx + 1:]
        a(f"s_waitcnt vmcnt({after})\ns_barrier")
        if st == 0: g.stamp(23)
        if st == 3: g.stamp(24)
        nsteps = 4 if st < 6 else 3
        a(f"v_add_u32 v34, {L5_B[st%3]}, v33")
        for x in w5_list(vA[0], 34, 0): a(x)
        side = []
        if st >= 1 and st + 2 < 7:
            side += p5_w_dma_list(st + 2); pend.append(("D", st + 2, 5))
        for j in range(nsteps):
            a("s_waitcnt lgkmcnt(0)")
            ks = 4 * st + j
            mf = [f"v_mfma_f32_16x16x32_bf16 {vr(acc+4*cb,4)}, {vr(vA[j%2]+4*cb,4)}, {vr(vB+4*(ks%12),4)}, {'0' if ks == 0 else vr(acc+4*cb,4)}" for cb in range(5)]
            fill = w5_list(vA[(j+1) % 2], 34, (j + 1) * 5120) if j + 1 < nsteps else []
            if j == 0: fill = fill + side
            if j == nsteps - 1 and st + 3 < 7:
                L, n = lda(st + 3); fill = fill + L; pend.append(("A", st + 3, n))
            interleave(a, mf, fill)
    g.stamp(25)
    exchange(g, acc, L5_SCR)
    L1, L2 = a.new("Lp5e"), a.new("Lp5e")
    a(f"s_cmp_lg_u32 s{sKH}, 0\ns_cbranch_scc1 {L1}")
    for blocks, lab in (((0, 1, 2), None), ((3, 4), L1)):
        if lab: a.label(lab)
        for j, cb in enumerate(blocks):
            for r in range(4): a(f"v_fma_f32 v{40+r}, v{vGB+4*j+r}, v{acc+4*cb+r}, v{vX1+4*j+r}")
            a(f"v_cvt_pk_bf16_f32 v{44+2*j}, v40, v41\nv_cvt_pk_bf16_f32 v{45+2*j}, v42, v43")
            a(f"buffer_store_dwordx2 {vr(44+2*j,2)}, v253, s[{S_OUT}:{S_OUT+3}], s30 offen offset:{j*32}")
        if not lab: a(f"s_branch {L2}")
    a.label(L2)

def rest(g):
    p3(g); g.stamp(8)
    if g.stop >= 4:
        p4(g); g.stamp(9)
    if g.stop >= 5:
        p5(g); g.stamp(10)
```

```python
import sys, os
sys.path.insert(0, os.path.dirname(os.path.abspath(__file__)))
from asmlib import Asm, fix_hazards

NAME = "adaLN_cond__grouped_kv_mqa__glu_gated_swiglu__prompt_kernel"

WS_NONCE = 0x0
F_KV   = 0x1000
F_MODR = 0x2000
F_O    = 0x3000
F_Y    = 0x5000
F_ACT  = 0x7000
F_UT   = 0x9000
F_RP   = 0x18000
WS_MODG = 0xA000
WS_MODR = 0xC000
WS_MODB = 0xE800
WS_UT   = 0x10000
WS_KV   = 0x20000
WS_STAT = 0x60000
WS_O    = 0x100000
WS_Y    = 0x400000
WS_ACT  = 0x700000
WS_TS   = 0xE00000
WS_RW   = 0x1000000
RW_WO, RW_W2, RW_13 = 0, 819200, 819200 + 8 * 278528
RW_W2S = 278528
WS_USED = 0x1800000
KV_TILE = 3328

S_X, S_WS, S_A, S_B, S_C, S_OUT = 4, 8, 12, 16, 20, 24
P_X, P_WQ, P_WK, P_WV, P_WO, P_BX, P_W1, P_W3, P_W2, P_CC, P_WMOD, P_OUT, P_DBG, P_WS = [32 + 2 * i for i in range(14)]
sL, sG, sM, sI, sHG, sW, sNON, sXC, sJ = 60, 61, 62, 63, 64, 65, 66, 67, 68
sW4 = 69
sT = list(range(70, 94))
sKH = 97
sFB0, sWSRC, sRBG = 98, 99, 28
sWK = 29
SPIN_LIMIT = 400000

vLANE = 1
vL16 = 2
vO160 = [3, 4, 5, 6, 7]

def srd(a, d, p, size):
    a(f"s_mov_b32 s{d}, s{p}\ns_mov_b32 s{d+1}, s{p+1}\ns_mov_b32 s{d+2}, {size}\ns_mov_b32 s{d+3}, 0x20000")
def vr(b, n=1): return f"v{b}" if n == 1 else f"v[{b}:{b+n-1}]"
WSR = f"s[{S_WS}:{S_WS+3}]"

class Gen:
    def __init__(self, stop=99, ts=False, force_fallback=False):
        self.a = Asm(); self.stop = stop; self.ts = ts; self.force_fallback = force_fallback

    def stamp_dyn(self, mode, sreg, add=0):
        if not self.ts or os.environ.get("TSMODE") != mode: return
        a = self.a
        a(f"s_memrealtime s[94:95]\ns_waitcnt lgkmcnt(0)")
        a(f"s_lshl_b32 s96, s{sL}, 3\ns_add_u32 s96, s96, s{sW}\ns_lshl_b32 s96, s96, 5\ns_add_u32 s96, s96, s{sreg}\ns_add_u32 s96, s96, {add}\ns_lshl_b32 s96, s96, 2\ns_add_u32 s96, s96, {WS_TS}")
        a(f"v_mov_b32 v254, s94\nv_mov_b32 v255, s96")
        a(f"s_mov_b64 s[100:101], exec\ns_mov_b64 exec, 1")
        a(f"buffer_store_dword v254, v255, {WSR}, 0 offen")
        a(f"s_mov_b64 exec, s[100:101]")

    def cstamp(self, idx):
        if not self.ts or os.environ.get("TSMODE"): return
        a = self.a
        a(f"s_memtime s[94:95]\ns_waitcnt lgkmcnt(0)")
        a(f"s_lshl_b32 s96, s{sL}, 3\ns_add_u32 s96, s96, s{sW}\ns_lshl_b32 s96, s96, 7\ns_add_u32 s96, s96, {WS_TS + idx*4}")
        a(f"v_mov_b32 v254, s94\nv_mov_b32 v255, s96")
        a(f"s_mov_b64 s[100:101], exec\ns_mov_b64 exec, 1")
        a(f"buffer_store_dword v254, v255, {WSR}, 0 offen")
        a(f"s_mov_b64 exec, s[100:101]")

    def hstamp(self, slot, invert=False):
        a = self.a
        lab = a.new("Lh")
        a(f"s_cmp_lg_u32 s{sW}, 0\ns_cbranch_scc1 {lab}")
        a(f"s_memrealtime s[94:95]\ns_waitcnt lgkmcnt(0)")
        if invert: a("s_not_b32 s94, s94")
        a(f"s_mov_b32 s{S_OUT}, s{P_DBG}\ns_mov_b32 s{S_OUT+1}, s{P_DBG+1}\ns_mov_b32 s{S_OUT+2}, 256\ns_mov_b32 s{S_OUT+3}, 0x20000")
        a(f"v_mov_b32 v254, s94\nv_mov_b32 v255, {slot*4}")
        a(f"s_mov_b64 s[100:101], exec\ns_mov_b64 exec, 1")
        a(f"buffer_atomic_umax v254, v255, s[{S_OUT}:{S_OUT+3}], 0 offen sc1")
        a(f"s_mov_b64 exec, s[100:101]")
        srd(a, S_OUT, P_OUT, 2048 * 1280)
        a.label(lab)

    HMAP = {0: (0, True), 1: (1, False), 3: (2, False), 4: (3, False), 5: (4, False), 6: (5, False), 14: (6, False), 20: (7, False), 15: (8, False), 11: (9, False), 12: (10, False), 22: (11, False), 26: (12, False), 25: (13, False), 10: (14, False)}
    def stamp(self, idx):
        if os.environ.get("HTS"):
            if idx in self.HMAP: self.hstamp(*self.HMAP[idx])
            return
        if not self.ts or os.environ.get("TSMODE"): return
        a = self.a
        a(f"s_memrealtime s[94:95]\ns_waitcnt lgkmcnt(0)")
        a(f"s_lshl_b32 s96, s{sL}, 3\ns_add_u32 s96, s96, s{sW}\ns_lshl_b32 s96, s96, 7\ns_add_u32 s96, s96, {WS_TS + idx*4}")
        a(f"v_mov_b32 v254, s94\nv_mov_b32 v255, s96")
        a(f"s_mov_b64 s[100:101], exec\ns_mov_b64 exec, 1")
        a(f"buffer_store_dword v254, v255, {WSR}, 0 offen")
        a(f"s_mov_b64 exec, s[100:101]")

    def bail(self, err):
        a = self.a
        a(f"v_mov_b32 v254, {err}\nv_mov_b32 v255, 0")
        srd(a, S_C, P_DBG, 256)
        a(f"buffer_store_dword v254, v255, s[{S_C}:{S_C+3}], 0 offen")

    def poll(self, vaddr, vdat, n=1, tagpos=(0,), err=1, soff="0", depth=3):
        a = self.a
        L, D = a.new("Lpoll"), a.new("Lpdone")
        cnt = sT[20]
        op = {1: "buffer_load_dword", 2: "buffer_load_dwordx2", 4: "buffer_load_dwordx4"}[n]
        ld = lambda k: a(f"{op} {vr(vdat + k*n, n)}, v{vaddr}, {WSR}, {soff} offen sc1")
        a(f"s_mov_b32 s{cnt}, 0")
        for k in range(depth - 1): ld(k)
        a.label(L)
        for k in range(depth):
            ld((k + depth - 1) % depth)
            a(f"s_waitcnt vmcnt({depth-1})")
            b = vdat + k * n
            a(f"v_cmp_ne_u32 vcc, s{sNON}, v{b + tagpos[0]}")
            for t in tagpos[1:]:
                a(f"v_cmp_ne_u32 s[{sT[22]}:{sT[23]}], s{sNON}, v{b + t}")
                a(f"s_or_b64 vcc, vcc, s[{sT[22]}:{sT[23]}]")
            a(f"s_cbranch_vccz {D}")
        a(f"s_add_u32 s{cnt}, s{cnt}, 1\ns_cmp_lt_u32 s{cnt}, {SPIN_LIMIT}\ns_cbranch_scc1 {L}")
        self.bail(err)
        a.label(D)

    def one_lane_store(self, soff_s, vval):
        a = self.a
        a(f"s_mov_b64 exec, 1\nbuffer_store_dword v{vval}, v{vLANE}, {WSR}, s{soff_s} offen sc1\ns_mov_b64 exec, -1")

    def wave_flag(self, base):
        a = self.a
        a(f"s_lshl_b32 s{sT[0]}, s{sL}, 2\ns_add_u32 s{sT[0]}, s{sT[0]}, {base}")
        a(f"v_mov_b32 v255, s{sNON}")
        a("s_waitcnt vmcnt(0)\ns_barrier")
        E = a.new("Lwf")
        a(f"s_cmp_lg_u32 s{sW}, 0\ns_cbranch_scc1 {E}")
        self.one_lane_store(sT[0], 255)
        a.label(E)

    def wg_poll(self, base, first_s, nflags, vtmp, err, wave=7):
        a = self.a
        E = a.new("Lwp")
        a(f"s_cmp_lg_u32 s{sW}, {wave}\ns_cbranch_scc1 {E}")
        a(f"s_lshl_b32 s{sT[1]}, s{first_s}, 2\ns_add_u32 s{sT[1]}, s{sT[1]}, {base}\nv_lshlrev_b32 v{vtmp}, 2, v{vLANE}")
        a(f"s_mov_b32 exec_lo, {(1 << nflags) - 1}\ns_mov_b32 exec_hi, 0")
        self.poll(vtmp, vtmp + 1, n=1, err=err, soff=f"s{sT[1]}", depth=2)
        a("s_mov_b64 exec, -1")
        a.label(E)
        a("s_barrier")

    def bf16_round(self, dst, src):
        self.a(f"v_cvt_pk_bf16_f32 v{dst}, v{src}, v{src}\nv_and_b32 v{dst}, 0xffff0000, v{dst}")

    def dma_run(self, srd_s, voff, soff, lds, n, extra=""):
        a = self.a
        a(f"s_mov_b32 m0, {lds}")
        for k in range(n):
            a(f"buffer_load_dwordx4 v{voff}, s[{srd_s}:{srd_s+3}], s{soff} offen offset:{k*1024}{extra} lds")

    L1_H = 0; L1_WQ2 = 81920; L1_WKV = 128000; L1_GS = 153600; L1_NS = 158720; L1_SCR = 160000
    NQ1 = 22
    vX = 8; vXN = 48; vWQ = 128
    vWA, vC1 = 216, 228

    def prologue(self):
        a = self.a
        a(f"s_cmp_ge_u32 s2, 256\ns_cbranch_scc1 L_END")
        a("s_load_dwordx16 s[32:47], s[0:1], 0\ns_load_dwordx8 s[48:55], s[0:1], 64\ns_load_dwordx4 s[56:59], s[0:1], 96")
        if not os.environ.get("X_NOCP"):
            E = a.new("Lcp"); GP = a.new("Lpc")
            a(f"s_getpc_b64 s[{sT[2]}:{sT[3]}]")
            a.label(GP)
            a(f"s_lshr_b32 s{sT[4]}, s2, 3\ns_lshl_b32 s{sT[4]}, s{sT[4]}, 13\ns_cmp_ge_u32 s{sT[4]}, L_END - {GP}\ns_cbranch_scc1 {E}")
            a(f"v_lshlrev_b32 v208, 4, v0\nv_add_u32 v208, s{sT[4]}, v208\nv_min_u32 v208, L_END - {GP} - 16, v208")
            a(f"global_load_dwordx4 v[208:211], v208, s[{sT[2]}:{sT[3]}]")
            a.label(E)
        a(f"v_and_b32 v{vLANE}, 63, v0\nv_lshrrev_b32 v8, 6, v0")
        a(f"s_and_b32 s{sXC}, s2, 7\ns_lshr_b32 s{sJ}, s2, 3")
        a(f"v_readfirstlane_b32 s{sW}, v8")
        a(f"s_lshl_b32 s{sL}, s{sXC}, 5\ns_add_u32 s{sL}, s{sL}, s{sJ}")
        a(f"v_lshlrev_b32 v{vL16}, 4, v{vLANE}")
        a(f"s_lshr_b32 s{sG}, s{sL}, 4\ns_and_b32 s{sM}, s{sL}, 15\ns_lshr_b32 s{sI}, s{sL}, 3\ns_and_b32 s{sHG}, s{sL}, 7")
        a(f"s_and_b32 s{sW4}, s{sW}, 3\ns_lshr_b32 s{sKH}, s{sW}, 2\ns_lshl_b32 s{sWK}, s{sW}, 10")
        a(f"s_lshl_b32 s{sRBG}, s{sI}, 2\ns_add_u32 s{sRBG}, s{sRBG}, s{sW4}")
        a(f"v_and_b32 v243, 31, v{vLANE}\ns_lshl_b32 s{sT[0]}, s{sW}, 5\nv_add_u32 v243, s{sT[0]}, v243")
        a(f"v_lshlrev_b32 v244, 1, v243")
        a(f"s_movk_i32 s{sT[0]}, 7680\nv_mul_u32_u24 v243, s{sT[0]}, v243\nv_lshrrev_b32 v245, 5, v{vLANE}\nv_lshl_add_u32 v243, v245, 4, v243")
        a(f"s_lshl_b32 s{sT[5]}, s{sL}, 5\ns_cmp_lt_u32 s{sL}, 240\ns_cselect_b32 s{sT[5]}, s{sT[5]}, 0x7000000")
        a(f"v_mov_b32 v246, 0")
        a("s_waitcnt lgkmcnt(0)")
        srd(a, S_B, P_WMOD, 640 * 7680)
        for it in range(3):
            a(f"buffer_load_dwordx4 {vr(self.vWA+4*it,4)}, v243, s[{S_B}:{S_B+3}], s{sT[5]} offen")
            if it < 2: a(f"v_add_u32 v243, {256*7680}, v243")
        srd(a, S_A, P_CC, 1280)
        for it in range(3):
            a(f"buffer_load_ushort v{self.vC1+it}, v244, s[{S_A}:{S_A+3}], 0 offen offset:{it*512}")
        srd(a, S_WS, P_WS, WS_USED)
        a(f"buffer_load_dword v242, v246, {WSR}, 0 offen sc1")
        a("s_barrier")
        srd(a, S_X, P_X, 2048 * 1280)
        a(f"v_lshrrev_b32 v245, 4, v{vLANE}\nv_and_b32 v246, 15, v{vLANE}")
        a(f"s_lshl_b32 s{sT[8]}, s{sI}, 3\ns_add_u32 s{sT[8]}, s{sT[8]}, s{sW}\ns_mul_i32 s{sT[8]}, s{sT[8]}, {8*1280}")
        a(f"v_mul_u32_u24 v245, 1280, v245\nv_lshl_add_u32 v245, v246, 4, v245\nv_add_u32 v246, {4*1280}, v245")
        for it in range(2):
            for c in range(5):
                a(f"buffer_load_dwordx4 {vr(self.vX + (it*5+c)*4, 4)}, v{245+it}, s[{S_X}:{S_X+3}], s{sT[8]} offen offset:{c*256}")
        a("s_barrier")
        a(f"s_cmp_lt_u32 s{sHG}, 4\ns_cselect_b32 s{S_C}, s{P_WK}, s{P_WV}\ns_cselect_b32 s{S_C+1}, s{P_WK+1}, s{P_WV+1}")
        a(f"s_mov_b32 s{S_C+2}, 25600\ns_mov_b32 s{S_C+3}, 0x20000")
        a(f"s_lshl_b32 s{sT[3]}, s{sW}, 12\ns_add_u32 s{sT[4]}, s{sT[3]}, {self.L1_WKV}")
        E1, E2 = a.new("Lkv"), a.new("Lkv")
        a(f"s_cmp_ge_u32 s{sW}, 6\ns_cbranch_scc1 {E1}")
        self.dma_run(S_C, vL16, sT[3], f"s{sT[4]}", 4)
        a(f"s_branch {E2}")
        a.label(E1)
        a(f"s_cmp_eq_u32 s{sW}, 7\ns_cbranch_scc1 {E2}")
        self.dma_run(S_C, vL16, sT[3], f"s{sT[4]}", 1)
        a.label(E2)
        a(f"s_mov_b32 s{sT[0]}, 0x1999999a")
        for ph in range(5):
            r = vO160[ph]
            a(f"v_add_u32 v248, {64*ph}, v{vLANE}\nv_mul_hi_u32 v249, v248, s{sT[0]}")
            a(f"v_mul_u32_u24 v250, {1280-160}, v249\nv_lshl_add_u32 v250, v248, 4, v250")
            a(f"v_add_u32 v{r}, {4096 - (1024*ph if ph < 4 else 0)}, v250")
        a(f"s_sub_u32 s{S_A}, s{P_WQ}, 4096\ns_subb_u32 s{S_A+1}, s{P_WQ+1}, 0\ns_mov_b32 s{S_A+2}, {640*1280+4096}\ns_mov_b32 s{S_A+3}, 0x20000")
        a(f"s_mul_i32 s{sT[3]}, s{sW}, 40960\ns_mul_i32 s{sT[4]}, s{sHG}, 160\ns_add_u32 s{sT[3]}, s{sT[3]}, s{sT[4]}")
        a(f"s_mul_i32 s{sT[4]}, s{sW}, 5120")
        for j in range(3):
            E = None
            if j == 1:
                a(f"s_add_u32 s{sT[3]}, s{sT[3]}, {8*40960}\ns_add_u32 s{sT[4]}, s{sT[4]}, {8*5120}")
                a(f"s_cmp_ge_u32 s{sW}, 3\ns_cselect_b32 s{sT[5]}, {self.L1_WQ2 - 11*5120}, 0\ns_add_u32 s{sT[4]}, s{sT[4]}, s{sT[5]}")
            if j == 2:
                E = a.new("Lq")
                a(f"s_cmp_ge_u32 s{sW}, 4\ns_cbranch_scc1 {E}")
                a(f"s_add_u32 s{sT[3]}, s{sT[3]}, {8*40960}\ns_mul_i32 s{sT[4]}, s{sW}, 5120\ns_add_u32 s{sT[4]}, s{sT[4]}, {self.L1_WQ2 + 5*5120}")
            a(f"s_mov_b32 m0, s{sT[4]}")
            for ph in range(4):
                a(f"buffer_load_dwordx4 v{vO160[ph]}, s[{S_A}:{S_A+3}], s{sT[3]} offen offset:{ph*1024} lds")
            a(f"s_add_u32 m0, s{sT[4]}, 4096")
            a(f"buffer_load_dwordx4 v{vO160[4]}, s[{S_A}:{S_A+3}], s{sT[3]} offen lds")
            if E: a.label(E)
        self.dma_min = 10
        srd(a, S_OUT, P_OUT, 2048 * 1280)

    def p0(self):
        a = self.a
        a.c("---- P0: modulation GEMV (16 columns per workgroup) ----")
        a(f"s_waitcnt vmcnt({10 + self.dma_min})")
        a(f"v_readfirstlane_b32 s{sNON}, v242")
        acc = 244
        for it in range(3):
            c = self.vC1 + it
            a(f"v_lshlrev_b32 v{c}, 16, v{c}\nv_mul_f32 v{232+it}, 0xbfb8aa3b, v{c}")
        for it in range(3): a(f"v_exp_f32 v{232+it}, v{232+it}")
        a(f"s_add_u32 s{sNON}, s{sNON}, 1\ns_cmp_eq_u32 s{sNON}, 0\ns_cselect_b32 s{sNON}, 1, s{sNON}")
        for it in range(3): a(f"v_add_f32 v{232+it}, 1.0, v{232+it}")
        for it in range(3): a(f"v_rcp_f32 v{232+it}, v{232+it}")
        for it in range(3): a(f"v_mul_f32 v{232+it}, v{self.vC1+it}, v{232+it}")
        for it in range(3):
            a(f"v_cvt_pk_bf16_f32 v{235+it}, v{232+it}, 0\nv_cvt_pk_bf16_f32 v{238+it}, 0, v{232+it}")
        for it in range(3):
            w = self.vWA + 4 * it
            for j in range(4):
                c0 = "0" if it == 0 else f"v{acc+2*j}"; c1 = "0" if it == 0 else f"v{acc+2*j+1}"
                a(f"v_dot2_f32_bf16 v{acc+2*j}, v{w+j}, v{235+it}, {c0}\nv_dot2_f32_bf16 v{acc+2*j+1}, v{w+j}, v{238+it}, {c1}")
        for sh in (1, 2, 4, 8):
            for j in range(8):
                a(f"v_add_f32_dpp v{acc+j}, v{acc+j}, v{acc+j} row_shr:{sh} row_mask:0xf bank_mask:0xf bound_ctrl:0")
        for j in range(8):
            a(f"v_add_f32_dpp v{acc+j}, v{acc+j}, v{acc+j} row_bcast:15 row_mask:0xa bank_mask:0xf")
        a(f"v_lshrrev_b32 v252, 5, v{vLANE}\ns_lshl_b32 s{sT[2]}, s{sW}, 2\ns_add_u32 s{sT[2]}, s{sT[2]}, {self.L1_SCR}\nv_lshl_add_u32 v252, v252, 8, s{sT[2]}")
        a("s_mov_b32 exec_lo, 0x80000000\ns_mov_b32 exec_hi, 0x80000000")
        for j in range(8):
            a(f"ds_write_b32 v252, v{acc+j} offset:{j*32}")
        a("s_mov_b64 exec, -1")
        a("s_waitcnt lgkmcnt(0)\ns_barrier")
        E = a.new("Lp0e")
        a(f"s_cmp_lg_u32 s{sW}, 0\ns_cbranch_scc1 {E}\ns_cmp_ge_u32 s{sL}, 240\ns_cbranch_scc1 {E}")
        a(f"v_and_b32 v246, 15, v{vLANE}\nv_lshlrev_b32 v246, 5, v246\nv_add_u32 v246, {self.L1_SCR}, v246")
        a("ds_read_b128 v[248:251], v246\nds_read_b128 v[244:247], v246 offset:16")
        a(f"s_mov_b32 s{sT[2]}, 0")
        a(f"s_cmp_ge_u32 s{sL}, 40\ns_cselect_b32 s{sT[2]}, 1.0, s{sT[2]}\ns_cmp_ge_u32 s{sL}, 80\ns_cselect_b32 s{sT[2]}, 0, s{sT[2]}")
        a(f"s_cmp_ge_u32 s{sL}, 160\ns_cselect_b32 s{sT[2]}, 1.0, s{sT[2]}\ns_cmp_ge_u32 s{sL}, 200\ns_cselect_b32 s{sT[2]}, 0, s{sT[2]}")
        a("s_waitcnt lgkmcnt(0)")
        a("v_add_f32 v244, v244, v248\nv_add_f32 v245, v245, v249\nv_add_f32 v246, v246, v250\nv_add_f32 v247, v247, v251")
        a("v_add_f32 v244, v244, v245\nv_add_f32 v246, v246, v247\nv_add_f32 v244, v244, v246")
        self.bf16_round(244, 244)
        a(f"v_add_f32 v244, s{sT[2]}, v244")
        self.bf16_round(244, 244)
        a(f"v_mov_b32_dpp v245, v244 quad_perm:[1,0,3,2] row_mask:0xf bank_mask:0xf")
        a(f"v_lshrrev_b32 v247, 16, v244\nv_or_b32 v248, v247, v245")
        R = a.new("Lp0r")
        a(f"v_lshlrev_b32 v246, 2, v{vLANE}\nv_mov_b32 v249, s{sNON}")
        a(f"s_cmp_ge_u32 s{sL}, 80\ns_cbranch_scc1 {R}")
        a(f"s_lshl_b32 s{sT[1]}, s{sL}, 6\ns_add_u32 s{sT[1]}, s{sT[1]}, {WS_MODG}")
        a("s_mov_b32 exec_lo, 0x5555\ns_mov_b32 exec_hi, 0")
        a(f"buffer_store_dwordx2 v[248:249], v246, {WSR}, s{sT[1]} offen sc1")
        a(f"s_mov_b64 exec, -1\ns_branch {E}")
        a.label(R)
        a(f"s_sub_u32 s{sT[1]}, s{sL}, 80\ns_lshl_b32 s{sT[2]}, s{sT[1]}, 6\ns_add_u32 s{sT[2]}, s{sT[2]}, {WS_MODR}")
        a("s_mov_b32 exec_lo, 0xffff\ns_mov_b32 exec_hi, 0")
        a(f"buffer_store_dword v244, v246, {WSR}, s{sT[2]} offen sc1")
        EB = a.new("Lmodb")
        a(f"s_cmp_lt_u32 s{sL}, 120\ns_cbranch_scc1 {EB}\ns_cmp_ge_u32 s{sL}, 200\ns_cbranch_scc1 {EB}")
        a(f"s_sub_u32 s{sT[2]}, s{sL}, 120\ns_lshl_b32 s{sT[2]}, s{sT[2]}, 5\ns_add_u32 s{sT[2]}, s{sT[2]}, {WS_MODB}")
        a(f"v_lshlrev_b32 v246, 1, v{vLANE}\ns_mov_b32 exec_lo, 0x5555")
        a(f"buffer_store_dword v248, v246, {WSR}, s{sT[2]} offen sc1")
        a.label(EB)
        a(f"s_lshl_b32 s{sT[2]}, s{sT[1]}, 2\ns_add_u32 s{sT[2]}, s{sT[2]}, {F_MODR}")
        a("s_waitcnt vmcnt(0)")
        self.one_lane_store(sT[2], 249)
        a.label(E)

    def row16_allreduce(self, regs, op="v_add_f32", steps=(8, 4, 2, 1)):
        for sh in steps:
            for r in regs:
                self.a(f"{op}_dpp v{r}, v{r}, v{r} row_ror:{sh} row_mask:0xf bank_mask:0xf")

    def ln_stats(self):
        a = self.a
        a.c("---- LN1 statistics ----")
        a(f"s_waitcnt vmcnt({self.dma_min})")
        X, N = self.vX, self.vXN
        ONE = 240
        a(f"v_mov_b32 v{ONE}, 0x3f803f80")
        for q in range(20):
            for it in range(2):
                sa_, sq_ = 232 + 2 * it + (q & 1), 236 + 2 * it + (q & 1)
                x = X + it * 20 + q
                a(f"v_dot2_f32_bf16 v{sa_}, v{x}, v{ONE}, {'0' if q < 2 else 'v%d' % sa_}")
                a(f"v_dot2_f32_bf16 v{sq_}, v{x}, v{x}, {'0' if q < 2 else 'v%d' % sq_}")
        a("v_add_f32 v232, v232, v233\nv_add_f32 v234, v234, v235\nv_add_f32 v236, v236, v237\nv_add_f32 v238, v238, v239")
        self.row16_allreduce([232, 234, 236, 238])
        a(f"s_mov_b32 s{sT[0]}, 0x3acccccd")
        for it in range(2):
            m, q, r = 232 + 2 * it, 236 + 2 * it, 242 + 4 * it
            a(f"v_mul_f32 v{m}, s{sT[0]}, v{m}\nv_mul_f32 v{q}, s{sT[0]}, v{q}")
            a(f"v_fma_f32 v{q}, -v{m}, v{m}, v{q}\nv_max_f32 v{q}, 0, v{q}\nv_add_f32 v{q}, 0x3727c5ac, v{q}\nv_rsq_f32 v{r}, v{q}")
        for it in range(2):
            m, r = 232 + 2 * it, 242 + 4 * it
            a(f"v_mov_b32 v{r+1}, v{r}\nv_mul_f32 v{r+2}, -v{m}, v{r}\nv_mul_f32 v{r+3}, -v{m}, v{r}")
        for it in range(2):
            r = 242 + 4 * it
            for q in range(20):
                d = N + it * 40 + 2 * q
                a(f"v_lshlrev_b32 v{d}, 16, v{X+it*20+q}\nv_and_b32 v{d+1}, 0xffff0000, v{X+it*20+q}")
            for q in range(20):
                d = N + it * 40 + 2 * q
                a(f"v_pk_fma_f32 {vr(d,2)}, {vr(d,2)}, {vr(r,2)}, {vr(r+2,2)}")

    def emit_wq_addr(self, d, base):
        a = self.a
        a(f"v_lshrrev_b32 v{d}, 5, v{vLANE}\nv_bfe_u32 v{d+1}, v{vLANE}, 2, 2\nv_lshl_add_u32 v{d}, v{d}, 3, v{d+1}")
        a(f"v_bfe_u32 v{d+1}, v{vLANE}, 4, 1\nv_lshlrev_b32 v{d+1}, 5, v{d+1}\nv_mad_u32_u24 v{d}, v{d}, s{sT[19]}, v{d+1}")
        a(f"v_and_b32 v{d+1}, 3, v{vLANE}\nv_lshl_add_u32 v{d}, v{d+1}, 3, v{d}")
        a(f"s_mul_i32 s{sT[0]}, s{sW4}, 40\ns_add_u32 s{sT[0]}, s{sT[0]}, {base}\nv_add_u32 v{d}, s{sT[0]}, v{d}")

    def wq_to_regs(self):
        a = self.a
        a.c("---- wq part 1 -> registers ----")
        a(f"s_movk_i32 s{sT[19]}, 160")
        self.emit_wq_addr(8, self.L1_H)
        a("s_waitcnt vmcnt(0)\ns_barrier")
        if not os.environ.get("X_NOTLB"):
            E = a.new("Ltlb")
            a(f"s_cmp_lg_u32 s{sW}, 7\ns_cbranch_scc1 {E}")
            a(f"v_lshlrev_b32 v250, 21, v{vLANE}\nv_add_u32 v250, 0x100, v250")
            a("s_mov_b32 exec_lo, 0xfff\ns_mov_b32 exec_hi, 0")
            a(f"buffer_load_dword v251, v250, {WSR}, 0 offen")
            a("s_mov_b64 exec, 1\nv_mov_b32 v250, 0")
            for k, (p, pages) in enumerate(((P_OUT, 2), (P_WO, 1), (P_W1, 2), (P_W3, 2), (P_W2, 2))):
                for pg in range(pages):
                    a(f"s_add_u32 s{sT[2]}, s{p}, {pg << 21}\ns_addc_u32 s{sT[3]}, s{p+1}, 0")
                    a(f"global_load_dword v251, v250, s[{sT[2]}:{sT[3]}]")
            a("s_mov_b64 exec, -1")
            a.label(E)
        for s in range(self.NQ1):
            a(f"ds_read_b64_tr_b16 {vr(self.vWQ+4*s,2)}, v8 offset:{s*16*160}")
            a(f"ds_read_b64_tr_b16 {vr(self.vWQ+4*s+2,2)}, v8 offset:{s*16*160 + 4*160}")

    def mod_poll_apply(self):
        a = self.a
        a.c("---- wait for sa/ca granules, LN apply ----")
        a(f"v_and_b32 v8, 15, v{vLANE}\nv_lshlrev_b32 v9, 5, v8\nv_add_u32 v9, {self.L1_GS}, v9")
        a(f"v_lshrrev_b32 v10, 4, v{vLANE}\ns_lshl_b32 s{sT[0]}, s{sW}, 3\nv_add_u32 v10, s{sT[0]}, v10")
        for it in range(2):
            if it: a("v_add_u32 v10, 4, v10")
            a(f"v_and_b32 v11, 15, v10\nv_xor_b32 v11, v11, v8\nv_lshlrev_b32 v11, 4, v11")
            a(f"v_mad_u32_u24 v{12+it}, v10, s{sT[18]}, v11".replace(f"s{sT[18]}", "v14") if False else f"v_mul_u32_u24 v{12+it}, 1280, v10\nv_add_u32 v{12+it}, v{12+it}, v11")
        self.kv_addr()
        self.q_addr()
        E = a.new("Lmp")
        a(f"s_cmp_ge_u32 s{sW}, 5\ns_cbranch_scc1 {E}")
        a(f"v_lshlrev_b32 v15, 4, v0")
        a(f"s_mov_b32 s{sT[1]}, {WS_MODG}")
        self.poll(15, 16, n=4, tagpos=(1, 3), err=1, soff=f"s{sT[1]}", depth=1)
        a("v_lshlrev_b32 v20, 16, v16\nv_and_b32 v21, 0xffff0000, v16\nv_lshlrev_b32 v22, 16, v18\nv_and_b32 v23, 0xffff0000, v18")
        a(f"v_add_u32 v24, {self.L1_GS}, v15\nds_write_b128 v24, v[20:23]")
        a("v_xor_b32 v16, 0x80008000, v16\nv_xor_b32 v17, 0x80008000, v18")
        a(f"v_lshrrev_b32 v24, 1, v15\nv_add_u32 v24, {self.L1_NS}, v24\nv_cmp_gt_u32 vcc, 160, v0")
        a(f"s_and_saveexec_b64 s[{sT[22]}:{sT[23]}], vcc\nds_write_b64 v24, v[16:17]\ns_mov_b64 exec, -1")
        a.label(E)
        a("s_waitcnt lgkmcnt(0)\ns_barrier")
        def rd(c, b):
            a(f"ds_read_b128 v[{b}:{b+3}], v9 offset:{c*512}\nds_read_b128 v[{b+4}:{b+7}], v9 offset:{c*512 + 16}")
            a(f"ds_read_b128 v[{b+8}:{b+11}], v9 offset:{2560 + c*512}\nds_read_b128 v[{b+12}:{b+15}], v9 offset:{2560 + c*512 + 16}")
        rd(0, 16)
        for c in range(5):
            b = 16 if c % 2 == 0 else 32
            if c + 1 < 5:
                rd(c + 1, 48 - b)
                a("s_waitcnt lgkmcnt(4)" if c == 0 else "s_waitcnt lgkmcnt(6)")
            else: a("s_waitcnt lgkmcnt(2)")
            for it in range(2):
                x = self.vXN + it * 40 + c * 8
                for j in range(4):
                    a(f"v_pk_fma_f32 {vr(x+2*j,2)}, {vr(x+2*j,2)}, {vr(b+8+2*j,2)}, {vr(b+2*j,2)}")
            for it in range(2):
                x = self.vXN + it * 40 + c * 8
                for j in range(4):
                    a(f"v_cvt_pk_bf16_f32 v{x+j}, v{x+2*j}, v{x+2*j+1}")
                a(f"ds_write_b128 v{12+it}, {vr(x,4)} offset:{self.L1_H + c*256}")
        a("s_waitcnt lgkmcnt(0)\ns_barrier")

    def sum_groups(self, r, t, op="v_add_f32"):
        a = self.a
        a(f"v_mov_b32 v{t}, v{r}\nv_permlane32_swap_b32 v{r}, v{t}\n{op} v{r}, v{r}, v{t}")
        a(f"v_mov_b32 v{t}, v{r}\nv_permlane16_swap_b32 v{r}, v{t}\n{op} v{r}, v{r}, v{t}")

    def kv_addr(self):
        a = self.a
        a(f"s_and_b32 s{sT[0]}, s{sHG}, 3\ns_lshl_b32 s{sT[0]}, s{sT[0]}, 4")
        a(f"v_and_b32 v232, 15, v{vLANE}\nv_lshrrev_b32 v233, 4, v{vLANE}")
        a(f"v_add_u32 v234, s{sT[0]}, v232\nv_mul_u32_u24 v234, 1280, v234")
        a(f"s_lshr_b32 s{sT[1]}, s{sW}, 1\ns_mul_i32 s{sT[2]}, s{sT[1]}, 5")
        a(f"s_lshl_b32 s{sT[3]}, s{sT[2]}, 2\nv_add_u32 v235, s{sT[3]}, v233")
        for j in range(5):
            a(f"v_add_u32 v236, {4*j}, v235\nv_xor_b32 v236, v236, v232\nv_lshl_add_u32 v{240+j}, v236, 4, v234")
        a(f"v_bfe_u32 v236, v{vLANE}, 2, 2\nv_lshl_add_u32 v236, v233, 3, v236\nv_mul_u32_u24 v236, 40, v236\nv_and_b32 v237, 3, v{vLANE}\nv_lshl_add_u32 v236, v237, 3, v236")
        a(f"s_and_b32 s{sT[3]}, s{sW}, 1\ns_lshl_b32 s{sT[3]}, s{sT[3]}, 5\ns_mul_i32 s{sT[4]}, s{sT[2]}, 1280\ns_add_u32 s{sT[3]}, s{sT[3]}, s{sT[4]}\ns_add_u32 s{sT[3]}, s{sT[3]}, {self.L1_WKV}\nv_add_u32 v236, s{sT[3]}, v236")
        a(f"s_lshl_b32 s{sT[3]}, s{sT[2]}, 6\ns_add_u32 s{sT[3]}, s{sT[3]}, {self.L1_NS}\nv_lshl_add_u32 v237, v233, 4, s{sT[3]}")

    def kv_proj(self):
        a = self.a
        a.c("---- K/V projection ----")
        for j in range(5):
            a(f"ds_read_b64_tr_b16 {vr(32+4*j,2)}, v236 offset:{j*1280}\nds_read_b64_tr_b16 {vr(34+4*j,2)}, v236 offset:{j*1280 + 160}")
            a(f"ds_read_b128 {vr(52+4*j,4)}, v{240+j} offset:{self.L1_H}")
        LV, LJ = a.new("Lvproj"), a.new("Lkvj")
        a(f"s_cmp_ge_u32 s{sHG}, 4\ns_cbranch_scc1 {LV}")
        a("s_waitcnt lgkmcnt(0)")
        for j in range(5): a(f"ds_read_b128 {vr(72+4*j,4)}, v237 offset:{j*64}")
        for j in range(5):
            a(f"v_mfma_f32_16x16x32_bf16 v[28:31], {vr(32+4*j,4)}, {vr(52+4*j,4)}, {'0' if j == 0 else 'v[28:31]'}")
        a("s_waitcnt lgkmcnt(0)")
        for j in range(5):
            a(f"v_mfma_f32_16x16x32_bf16 v[28:31], {vr(32+4*j,4)}, {vr(72+4*j,4)}, v[28:31]")
        a(f"s_branch {LJ}")
        a.label(LV)
        a("s_waitcnt lgkmcnt(0)")
        for j in range(5):
            a(f"v_mfma_f32_16x16x32_bf16 v[28:31], {vr(52+4*j,4)}, {vr(32+4*j,4)}, {'0' if j == 0 else 'v[28:31]'}")
        a.label(LJ)
        a(f"s_add_u32 s{sT[3]}, s{sWK}, {self.L1_WKV}\nv_add_u32 v18, s{sT[3]}, v{vL16}")
        a("s_barrier")
        a("ds_write_b128 v18, v[28:31]\ns_waitcnt lgkmcnt(0)\ns_barrier")
        E = a.new("Lkvend")
        a(f"s_cmp_ge_u32 s{sW}, 2\ns_cbranch_scc1 {E}")
        a("ds_read_b128 v[32:35], v18 offset:2048\nds_read_b128 v[36:39], v18 offset:4096\nds_read_b128 v[40:43], v18 offset:6144")
        a(f"s_and_b32 s{sT[2]}, s{sHG}, 3\ns_lshr_b32 s{sT[2]}, s{sT[2]}, 1\ns_lshl_b32 s{sT[3]}, s{sI}, 1\ns_add_u32 s{sT[2]}, s{sT[2]}, s{sT[3]}")
        a(f"s_mul_i32 s{sT[2]}, s{sT[2]}, {KV_TILE}\ns_add_u32 s{sT[2]}, s{sT[2]}, {WS_KV}\ns_and_b32 s{sT[3]}, s{sHG}, 1\ns_lshl_b32 s{sT[3]}, s{sT[3]}, 4")
        a("s_waitcnt lgkmcnt(0)")
        for r in range(4):
            a(f"v_add_f32 v{32+r}, v{32+r}, v{36+r}\nv_add_f32 v{28+r}, v{28+r}, v{40+r}")
        for r in range(4): a(f"v_add_f32 v{28+r}, v{28+r}, v{32+r}")
        a("v_cvt_pk_bf16_f32 v24, v28, v29\nv_cvt_pk_bf16_f32 v25, v30, v31")
        LV, LJ, W1 = a.new("Lv2"), a.new("Lj2"), a.new("Lw1")
        a(f"s_cmp_ge_u32 s{sHG}, 4\ns_cbranch_scc1 {LV}")
        a("v_dot2_f32_bf16 v26, v24, v24, 0\nv_dot2_f32_bf16 v26, v25, v25, v26")
        a(f"s_cmp_eq_u32 s{sW}, 1\ns_cbranch_scc1 {W1}")
        self.sum_groups(26, 27)
        a(f"v_add_u32 v30, s{sT[3]}, v232\nv_and_b32 v31, 1, v233\nv_lshl_add_u32 v30, v31, 5, v30\nv_lshlrev_b32 v30, 4, v30")
        a(f"v_lshrrev_b32 v31, 1, v233\nv_lshl_add_u32 v30, v31, 3, v30")
        a(f"buffer_store_dwordx2 v[24:25], v30, {WSR}, s{sT[2]} offen sc1")
        a(f"s_branch {LJ}")
        a.label(W1)
        a(f"v_cmp_gt_u32 vcc, 16, v{vLANE}\nv_cndmask_b32 v26, 0, v26, vcc")
        a(f"v_add_u32 v30, s{sT[3]}, v232\nv_lshlrev_b32 v30, 3, v30")
        a("s_mov_b32 exec_lo, 0xffff\ns_mov_b32 exec_hi, 0")
        a(f"buffer_store_dwordx2 v[24:25], v30, {WSR}, s{sT[2]} offen offset:3072 sc1")
        a(f"s_mov_b64 exec, -1\ns_branch {LJ}")
        a.label(LV)
        a("v_max_f32 v26, |v28|, |v29|\nv_max_f32 v27, |v30|, |v31|\nv_max_f32 v26, v26, v27")
        a(f"s_lshl_b32 s{sT[1]}, s{sW}, 4\nv_add_u32 v27, s{sT[1]}, v232")
        a("v_cmp_gt_u32 vcc, 20, v27\nv_cndmask_b32 v26, 0, v26, vcc")
        a("v_mov_b32 v28, 0x3f803f80\nv_and_b32 v29, 27, v27")
        a(f"v_cmp_eq_u32 vcc, 20, v27\nv_cmp_eq_u32 s[{sT[22]}:{sT[23]}], 24, v27\ns_or_b64 vcc, vcc, s[{sT[22]}:{sT[23]}]")
        a("v_cndmask_b32 v24, v24, v28, vcc\nv_cndmask_b32 v25, v25, v28, vcc")
        a(f"s_lshl_b32 s{sT[3]}, s{sT[3]}, 6\ns_add_u32 s{sT[2]}, s{sT[2]}, s{sT[3]}")
        a("v_and_b32 v31, 1, v233\nv_lshl_add_u32 v30, v31, 5, v27\nv_lshlrev_b32 v30, 4, v30\nv_lshrrev_b32 v31, 1, v233\nv_lshl_add_u32 v30, v31, 3, v30")
        a(f"buffer_store_dwordx2 v[24:25], v30, {WSR}, s{sT[2]} offen offset:1024 sc1")
        a.label(LJ)
        self.row16_allreduce([26], "v_max_f32")
        self.sum_groups(26, 27, "v_max_f32")
        a(f"s_lshl_b32 s{sT[2]}, s{sL}, 4\ns_lshl_b32 s{sT[3]}, s{sW}, 3\ns_add_u32 s{sT[2]}, s{sT[2]}, s{sT[3]}\ns_add_u32 s{sT[2]}, s{sT[2]}, {F_KV}")
        a(f"v_mov_b32 v28, s{sNON}\nv_mov_b32 v29, v26\nv_mov_b32 v30, 0")
        a("s_waitcnt vmcnt(0)\ns_mov_b64 exec, 1")
        a(f"buffer_store_dwordx2 v[28:29], v30, {WSR}, s{sT[2]} offen sc1")
        a("s_mov_b64 exec, -1")
        a.label(E)

    vQ1, vQ2 = 8, 12
    vO = 16
    vS = [32, 48]
    vP = 64
    vK1 = [72, 76]; vK2 = [80, 84]; vV1 = [88, 92]; vV2 = [96, 100]
    vAK = [104, 105]; vAK2 = [106, 107]
    vQN = 108; vK2L = 109
    L2_KV = 0; L2_WO = 53248; L2_UT = 0; L2_SCR = 0; L2_MISC = 162816
    CH = 4 * KV_TILE

    def q_addr(self):
        a = self.a
        a(f"s_lshl_b32 s{sT[0]}, s{sKH}, 5\nv_and_b32 v238, 31, v{vLANE}\nv_add_u32 v238, s{sT[0]}, v238")
        a(f"v_and_b32 v239, 15, v238\nv_mul_u32_u24 v238, 1280, v238\nv_lshrrev_b32 v226, 5, v{vLANE}\nv_xor_b32 v239, v239, v226")
        for q in range(8):
            a(f"v_xor_b32 v227, {2*q}, v239\nv_lshl_add_u32 v{216+q}, v227, 4, v238")
        self.emit_wq_addr(224, self.L1_WQ2)

    def q_proj(self):
        a = self.a
        a.c("---- Q projection: D[m=dim][n=row] ----")
        acc = 16
        def ldB(s): a(f"ds_read_b128 {vr(48+4*(s%3),4)}, v{216+s%8} offset:{self.L1_H + (s//8)*256}")
        def ldA(s):
            o = (s - self.NQ1) * 16 * 160
            a(f"ds_read_b64_tr_b16 {vr(64+4*(s%3),2)}, v224 offset:{o}\nds_read_b64_tr_b16 {vr(66+4*(s%3),2)}, v224 offset:{o+640}")
        def cnt(s): return 0 if s >= 40 else (1 + (2 if s >= self.NQ1 else 0))
        def ld(s):
            if s < 40:
                ldB(s)
                if s >= self.NQ1: ldA(s)
        ld(0); ld(1)
        for s in range(40):
            ld(s + 2)
            a(f"s_waitcnt lgkmcnt({cnt(s+1) + cnt(s+2)})")
            A = vr(self.vWQ + 4 * s, 4) if s < self.NQ1 else vr(64 + 4 * (s % 3), 4)
            a(f"v_mfma_f32_32x32x16_bf16 {vr(acc,16)}, {A}, {vr(48+4*(s%3),4)}, {'0' if s == 0 else vr(acc,16)}")
        a(f"s_mov_b32 s{sT[0]}, 0x3ea52b8e")
        for j in range(12): a(f"v_mul_f32 v{acc+j}, s{sT[0]}, v{acc+j}")
        for j in range(4): a(f"v_cvt_pk_bf16_f32 v{self.vQ1+j}, v{acc+2*j}, v{acc+2*j+1}")
        a(f"v_cvt_pk_bf16_f32 v{self.vQ2}, v{acc+8}, v{acc+9}\nv_cvt_pk_bf16_f32 v{self.vQ2+1}, v{acc+10}, v{acc+11}")
        a(f"v_cmp_gt_u32 vcc, 32, v{vLANE}")
        a(f"v_mov_b32 v{self.vQ2+2}, 0\nv_mov_b32 v{self.vQ2+3}, 0")
        a(f"v_cndmask_b32 v{self.vQ2}, 0, v{self.vQ2}, vcc\nv_cndmask_b32 v{self.vQ2+1}, 0, v{self.vQ2+1}, vcc")
        N = self.vQN
        regs = [self.vQ1 + j for j in range(4)] + [self.vQ2, self.vQ2 + 1]
        for i, r in enumerate(regs):
            a(f"v_dot2_f32_bf16 v{N}, v{r}, v{r}, {'0' if i == 0 else 'v%d' % N}")
        a(f"v_mov_b32 v40, v{N}\nv_permlane32_swap_b32 v{N}, v40\nv_add_f32 v{N}, v{N}, v40")
        a(f"v_sqrt_f32 v{N}, v{N}")

    def kv_piece(self, src_s, slot, half):
        L = [f"s_add_u32 m0, s{sT[18]}, {slot*self.CH}"]
        for k in (2 * half, 2 * half + 1):
            L.append(f"buffer_load_dwordx4 v{vL16}, {WSR}, s{src_s} offen offset:{k*1024} sc1 lds")
        if half == 1: L.append(f"s_add_u32 s{src_s}, s{src_s}, {self.CH}")
        return L

    def kv_dma(self, src_s, slot):
        for k in range(2):
            for x in self.kv_piece(src_s, slot, k): self.a(x)

    def ld_k(self, b, t):
        o = (t % 16) * KV_TILE
        self.a(f"ds_read_b128 {vr(self.vK1[b],4)}, v{vL16} offset:{o}\nds_read_b64 {vr(self.vK2[b],2)}, v{self.vK2L} offset:{o + 3072}")
    def ld_v1(self, b, t): self.a(f"ds_read_b128 {vr(self.vV1[b],4)}, v{vL16} offset:{(t % 16)*KV_TILE + 1024}")
    def ld_v2(self, b, t): self.a(f"ds_read_b128 {vr(self.vV2[b],4)}, v{vL16} offset:{(t % 16)*KV_TILE + 2048}")
    def qk(self, kb, sb, part):
        S = vr(self.vS[sb], 16)
        if part == 0: self.a(f"v_mfma_f32_32x32x16_bf16 {S}, {vr(self.vK1[kb],4)}, {vr(self.vQ1,4)}, 0")
        else: self.a(f"v_mfma_f32_32x32x16_bf16 {S}, {vr(self.vK2[kb],4)}, {vr(self.vQ2,4)}, {S}")

    def attn_setup(self):
        a = self.a
        a.c("---- attention: wait for K/V, bounds, stand-in for the row max ----")
        a("s_waitcnt lgkmcnt(0)\ns_barrier")
        a(f"s_lshl_b32 s{sT[18]}, s{sW4}, 12\ns_cmp_eq_u32 s{sW4}, 3\ns_cselect_b32 s{sT[18]}, 9216, s{sT[18]}")
        a(f"s_add_u32 s{sT[17]}, s{sT[18]}, {WS_KV}")
        PE = a.new("Lkvo")
        a(f"s_cmp_lg_u32 s{sW}, 3\ns_cbranch_scc1 {PE}")
        a(f"v_lshlrev_b32 v111, 6, v{vLANE}\ns_mov_b32 s{sT[1]}, {F_KV}")
        L, D = a.new("Lkvp"), a.new("Lkvd")
        cnt = sT[20]
        a(f"s_mov_b32 s{cnt}, 0")
        a.label(L)
        for j in range(4): a(f"buffer_load_dwordx4 {vr(112+4*j,4)}, v111, {WSR}, s{sT[1]} offen offset:{16*j} sc1")
        a("s_waitcnt vmcnt(0)")
        a(f"v_xor_b32 v128, s{sNON}, v112\nv_xor_b32 v129, s{sNON}, v114")
        for j in range(1, 4):
            a(f"v_xor_b32 v130, s{sNON}, v{112+4*j}\nv_xor_b32 v131, s{sNON}, v{114+4*j}\nv_or3_b32 v128, v128, v130, v131")
        a("v_or_b32 v128, v128, v129\nv_cmp_ne_u32 vcc, 0, v128")
        a(f"s_cbranch_vccz {D}")
        a(f"s_add_u32 s{cnt}, s{cnt}, 1\ns_cmp_lt_u32 s{cnt}, {SPIN_LIMIT}\ns_cbranch_scc1 {L}")
        self.bail(2)
        a.label(D)
        a("v_max3_f32 v113, v113, v117, v121\nv_max3_f32 v115, v115, v119, v123\nv_max_f32 v113, v113, v125\nv_max_f32 v115, v115, v127")
        self.row16_allreduce([113, 115], "v_max_f32", steps=(8, 4, 2))
        self.sum_groups(113, 114, "v_max_f32"); self.sum_groups(115, 116, "v_max_f32")
        a(f"v_lshlrev_b32 v114, 3, v{vLANE}\nv_add_u32 v114, {self.L2_MISC + 64}, v114\nv_mov_b32 v112, v113\nv_mov_b32 v113, v115")
        a("s_mov_b64 exec, 3\nds_write_b64 v114, v[112:113]\ns_mov_b64 exec, -1\ns_waitcnt lgkmcnt(0)")
        a.label(PE)
        if self.stop >= 3:
            import g3b
            g3b.bg_setup(self)
        a("s_barrier")
        self.stamp(31)
        E = a.new("Lfc")
        a(f"s_cmp_ge_u32 s{sW}, 4\ns_cbranch_scc1 {E}")
        for k in range(3):
            self.kv_dma(sT[17], k)
        a.label(E)
        a(f"v_mov_b32 v114, {self.L2_MISC + 64}\nds_read_b128 v[116:119], v114\ns_waitcnt lgkmcnt(0)")
        a("v_add_f32 v113, v116, v117\nv_sqrt_f32 v113, v113\nv_max_f32 v114, v118, v119")
        a(f"v_mul_f32 v113, 0x3f810000, v113\nv_mul_f32 v{self.vQN}, v{self.vQN}, v113")
        E = a.new("Lgen")
        a(f"s_or_b32 s{sT[0]}, s{sL}, s{sW}\ns_cmp_lg_u32 s{sT[0]}, 0\ns_cbranch_scc1 {E}")
        a(f"v_mov_b32 v112, s{sNON}\ns_mov_b32 s{sT[0]}, {WS_NONCE}")
        self.one_lane_store(sT[0], 112)
        a.label(E)
        for b in range(2):
            a(f"v_mov_b32 v{self.vK2[b]+2}, 0x3f803f80\nv_mov_b32 v{self.vK2[b]+3}, 0x00003f80")
        a(f"v_and_b32 v{self.vK2L}, 31, v{vLANE}\nv_lshlrev_b32 v{self.vK2L}, 3, v{self.vK2L}")
        a("s_waitcnt vmcnt(8)\ns_barrier")
        self.stamp(13) if os.environ.get("TSX") else None
        self.ld_k(0, 0)
        self.ld_k(1, 1)
        self.ld_v1(0, 0); self.ld_v2(0, 0)
        a("s_waitcnt lgkmcnt(4)")
        self.qk(0, 0, 0); self.qk(0, 0, 1)
        S = self.vS[0]
        U = self.vQN
        a(f"v_mov_b32 v115, 0x43300000\nv_mov_b32 v116, 0x4d000000")
        a(f"v_cmp_nlt_f32 s[{sT[22]}:{sT[23]}], v114, v116")
        a(f"v_max3_f32 v112, v{S}, v{S+1}, v{S+2}")
        for j in range(3, 15, 2): a(f"v_max3_f32 v112, v112, v{S+j}, v{S+j+1}")
        a(f"v_max_f32 v112, v112, v{S+15}")
        a("v_mov_b32 v113, v112\nv_permlane32_swap_b32 v112, v113\nv_max_f32 v112, v112, v113")
        a(f"v_sub_f32 v113, v{U}, v112\nv_cmp_nle_f32 vcc, v113, v115")
        a(f"s_or_b64 vcc, vcc, s[{sT[22]}:{sT[23]}]")
        a(f"s_cmp_lg_u64 vcc, 0\ns_cselect_b32 s{sT[12]}, 1, 0")
        if self.force_fallback: a(f"s_mov_b32 s{sT[12]}, 1")
        a(f"s_lshl_b32 s{sT[0]}, s{sW}, 2\ns_add_u32 s{sT[0]}, s{sT[0]}, {self.L2_MISC}")
        a(f"v_mov_b32 v113, s{sT[0]}\nv_mov_b32 v114, s{sT[12]}\nds_write_b32 v113, v114")
        a(f"v_add_f32 v112, v{U}, v112\nv_mul_f32 v112, 0.5, v112\nv_mov_b32 v113, {self.L2_MISC}")
        a("s_waitcnt lgkmcnt(0)\ns_barrier")
        a("ds_read_b128 v[116:119], v113\nds_read_b128 v[120:123], v113 offset:16\ns_waitcnt lgkmcnt(0)")
        a("v_or3_b32 v116, v116, v117, v118\nv_or3_b32 v119, v119, v120, v121\nv_or3_b32 v116, v116, v122, v123\nv_or_b32 v116, v116, v119")
        a(f"v_readfirstlane_b32 s{sT[12]}, v116")
        FB = a.new("Lnofb")
        a(f"s_cmp_eq_u32 s{sT[12]}, 0\ns_cbranch_scc1 {FB}")
        self.max_pass()
        a.label(FB)
        a("v_sub_f32 v112, 0, v112")
        a("v_cvt_pk_bf16_f32 v113, v112, v112\nv_and_b32 v114, 0xffff0000, v113\nv_sub_f32 v112, v112, v114")
        a("v_cvt_pk_bf16_f32 v115, v112, v112\nv_and_b32 v116, 0xffff0000, v115\nv_sub_f32 v112, v112, v116")
        a("v_cvt_pk_bf16_f32 v117, v112, 0")
        a("v_and_b32 v113, 0xffff, v113\nv_or_b32 v113, v113, v116")
        a(f"v_cmp_gt_u32 vcc, 32, v{vLANE}")
        a(f"v_cndmask_b32 v{self.vQ2+2}, 0, v113, vcc\nv_cndmask_b32 v{self.vQ2+3}, 0, v117, vcc")

    def max_pass(self):
        a = self.a
        a.c("fallback: exact row max")
        a("v_mov_b32 v112, 0xff7fffff")
        L = a.new("Lmx"); c = sT[13]
        a(f"s_add_u32 s{c}, s{sT[18]}, {WS_KV}\ns_mov_b32 s{sT[21]}, 0")
        a.label(L)
        E = a.new("Lmxd")
        a(f"s_cmp_ge_u32 s{sW}, 4\ns_cbranch_scc1 {E}")
        self.kv_dma(c, 3)
        a.label(E)
        a("s_waitcnt vmcnt(0)\ns_barrier")
        S = self.vS[1]
        for t in range(4):
            o = (12 + t) * KV_TILE
            a(f"ds_read_b128 v[120:123], v{vL16} offset:{o}\nds_read_b64 v[124:125], v{self.vK2L} offset:{o + 3072}")
            a(f"v_mov_b32 v126, 0\nv_mov_b32 v127, 0\ns_waitcnt lgkmcnt(0)")
            a(f"v_mfma_f32_32x32x16_bf16 {vr(S,16)}, v[120:123], {vr(self.vQ1,4)}, 0")
            a(f"v_mfma_f32_32x32x16_bf16 {vr(S,16)}, v[124:127], {vr(self.vQ2,4)}, {vr(S,16)}")
            for j in range(0, 16, 2): a(f"v_max3_f32 v112, v112, v{S+j}, v{S+j+1}")
        a("s_barrier")
        a(f"s_add_u32 s{sT[21]}, s{sT[21]}, 1\ns_cmp_lt_u32 s{sT[21]}, 16\ns_cbranch_scc1 {L}")
        a("v_mov_b32 v113, v112\nv_permlane32_swap_b32 v112, v113\nv_max_f32 v112, v112, v113")

    def attn_tile(self, t, h1=(), h2=()):
        a = self.a
        S = self.vS[t % 2]; Sp = self.vS[(t + 1) % 2]; P = self.vP
        def ex(j): a(f"v_exp_f32 v{S+j}, v{S+j}")
        def cv(j, b): a(f"v_cvt_pk_bf16_f32 v{P+j}, v{b+2*j}, v{b+2*j+1}")
        O = vr(self.vO, 16)
        ex(0); ex(1); cv(6, Sp); ex(2); cv(7, Sp); ex(3)
        a("s_waitcnt lgkmcnt(2)")
        self.qk((t + 1) % 2, (t + 1) % 2, 0)
        self.ld_k(t % 2, t + 2)
        ex(4); ex(5); cv(0, S); ex(6); cv(1, S); ex(7)
        self.qk((t + 1) % 2, (t + 1) % 2, 1)
        self.ld_v1((t + 1) % 2, t + 1)
        for x in h1: a(x)
        ex(8); ex(9); cv(2, S); ex(10); cv(3, S); ex(11)
        a(f"v_mfma_f32_32x32x16_bf16 {O}, {vr(self.vV2[(t+1)%2],4)}, {vr(P+4,4)}, {O}")
        self.ld_v2((t + 1) % 2, t + 1)
        for x in h2: a(x)
        ex(12); ex(13); cv(4, S); ex(14); cv(5, S); ex(15)
        a("s_waitcnt lgkmcnt(4)")
        a(f"v_mfma_f32_32x32x16_bf16 {O}, {vr(self.vV1[t%2],4)}, {vr(P,4)}, {O}")

    def attn_main(self):
        a = self.a
        a.c("---- attention main loop (unrolled, static background schedule) ----")
        src = sT[17]
        for j in range(16): a(f"v_mov_b32 v{self.vO+j}, 0")
        self.qk(0, 0, 0); self.qk(0, 0, 1)
        for j in range(12, 16): a(f"v_mov_b32 v{self.vS[1]+j}, 0")
        a(f"v_mov_b32 v{self.vP+4}, 0\nv_mov_b32 v{self.vP+5}, 0")
        for j in range(4): a(f"v_mov_b32 v{self.vV2[1]+j}, 0")
        a(f"s_cmp_ge_u32 s{sW}, 4\ns_cselect_b64 vcc, -1, 0")
        bg = {}
        def put(T, tag, ins, n=1, need=None, role=None): bg.setdefault(T, []).append((tag, ins, n, need, role))
        for c in range(13):
            put(4 * c + 2, f"kv{c+3}", self.kv_piece(src, (c + 3) % 4, 0), n=2, role="A")
            put(4 * c + 3, f"kv{c+3}", self.kv_piece(src, (c + 3) % 4, 1), n=2, role="A")
        if self.stop >= 3 and not os.environ.get("X_NOEXTRA"):
            import g3b
            g3b.bg_schedule(self, put)
        pend = {"A": [("kv1", 4), ("kv2", 4)], "B": []}
        def wait_for(role, tag):
            p = pend[role]
            idx = [i for i, (k, n) in enumerate(p) if k == tag]
            if not idx: return None
            after = sum(n for (k, n) in p[idx[-1] + 1:])
            del p[:idx[-1] + 1]
            return after
        def guarded(role, body):
            lab = a.new("Lg")
            return [f"s_cbranch_vcc{'nz' if role == 'A' else 'z'} {lab}"] + body + [f"{lab}:"]
        for T in range(64):
            hooks = [[], []]
            ops = bg.get(T, [])
            for k, (tag, ins, n, need, role) in enumerate(ops):
                h = hooks[0] if k < (len(ops) + 1) // 2 else hooks[1]
                body = []
                if need:
                    assert role
                    w = wait_for(role, need)
                    if w is not None: body.append(f"s_waitcnt vmcnt({w})")
                body.extend(ins)
                if role: h.extend(guarded(role, body)); pend[role].append((tag, n)) if n else None
                else:
                    h.extend(body)
                    if n: pend["A"].append((tag, n)); pend["B"].append((tag, n))
            self.attn_tile(T, hooks[0], hooks[1])
            if T % 4 == 1 and T < 62:
                c = T // 4
                w = wait_for("A", f"kv{c+1}")
                if w is not None:
                    for x in guarded("A", [f"s_waitcnt vmcnt({w})"]): a(x)
                a("s_barrier")
        S = self.vS[1]; P = self.vP
        a(f"v_cvt_pk_bf16_f32 v{P+6}, v{S+12}, v{S+13}\nv_cvt_pk_bf16_f32 v{P+7}, v{S+14}, v{S+15}")
        a(f"s_waitcnt lgkmcnt(0)")
        a(f"v_mfma_f32_32x32x16_bf16 {vr(self.vO,16)}, {vr(self.vV2[1],4)}, {vr(P+4,4)}, {vr(self.vO,16)}")

    def attn_epilogue(self):
        a = self.a
        a.c("---- attention epilogue ----")
        O = self.vO
        a(f"s_lshl_b32 s{sT[0]}, s{sI}, 2\ns_lshl_b32 s{sT[1]}, s{sKH}, 1\ns_add_u32 s{sT[0]}, s{sT[0]}, s{sT[1]}\ns_mul_i32 s{sT[0]}, s{sT[0]}, {24*1024}\ns_add_u32 s{sT[0]}, s{sT[0]}, {WS_O}")
        a(f"s_lshl_b32 s{sT[1]}, s{sHG}, 2\ns_add_u32 s{sT[1]}, s{sT[1]}, s{sW4}\ns_mul_i32 s{sT[1]}, s{sT[1]}, 768\ns_add_u32 s{sT[0]}, s{sT[0]}, s{sT[1]}")
        a(f"v_bfe_u32 v32, v{vLANE}, 4, 1\nv_mul_u32_u24 v32, {24*1024}, v32\nv_and_b32 v33, 15, v{vLANE}\nv_lshl_add_u32 v32, v33, 4, v32")
        a(f"v_lshrrev_b32 v33, 5, v{vLANE}\nv_lshl_add_u32 v33, v33, 8, v32")
        a(f"v_cmp_gt_u32 vcc, 32, v{vLANE}\nv_mov_b32 v50, 0\nv_mov_b32 v51, 0")
        a(f"v_cndmask_b32 v40, v{O+8}, v{O+12}, vcc")
        a("v_rcp_f32 v40, v40")
        for j in range(12): a(f"v_mul_f32 v{O+j}, v{O+j}, v40")
        for j in range(6): a(f"v_cvt_pk_bf16_f32 v{44+j}, v{O+2*j}, v{O+2*j+1}")
        a(f"buffer_store_dwordx4 v[44:47], v33, {WSR}, s{sT[0]} offen sc1")
        a("s_mov_b32 exec_hi, 0")
        a(f"buffer_store_dwordx4 v[48:51], v32, {WSR}, s{sT[0]} offen offset:512 sc1")
        a("s_mov_b64 exec, -1")
        self.wave_flag(F_O)

    def build(self):
        a = self.a
        self.prologue(); self.stamp(0)
        self.p0(); self.stamp(1)
        self.ln_stats()
        self.wq_to_regs(); self.stamp(2)
        self.mod_poll_apply(); self.stamp(3)
        self.kv_proj(); self.stamp(16)
        self.q_proj(); self.stamp(4)
        if self.stop >= 2:
            self.attn_setup(); self.stamp(5); self.cstamp(27)
            self.attn_main(); self.stamp(6); self.cstamp(28)
            self.attn_epilogue(); self.stamp(7)
        if self.stop >= 3:
            import g3b
            g3b.rest(self)
        a("s_waitcnt vmcnt(0) lgkmcnt(0)")
        a.label("L_END")
        a("s_endpgm")
        return fix_hazards(a.l)

HEADER = open(os.path.join(os.path.dirname(os.path.abspath(__file__)), "header.txt")).read()

def make(stop=99, ts=False, force_fallback=False):
    g = Gen(stop, ts, force_fallback)
    lines, n = g.build()
    txt = HEADER + "; @launch grid=(256,1,1) block=(512,1,1) lds=163840\n"
    txt += f'.amdgcn_target "amdgcn-amd-amdhsa--gfx950"\n.text\n.globl {NAME}\n.p2align 8\n.type {NAME},@function\n{NAME}:\n'
    txt += "\n".join(lines) + "\n"
    txt += f""".section .rodata,"a"
.p2align 6
.amdhsa_kernel {NAME}
  .amdhsa_next_free_vgpr 256
  .amdhsa_next_free_sgpr 102
  .amdhsa_accum_offset 256
  .amdhsa_group_segment_fixed_size 0
  .amdhsa_kernarg_size 112
  .amdhsa_user_sgpr_count 2
  .amdhsa_user_sgpr_kernarg_segment_ptr 1
  .amdhsa_system_sgpr_workgroup_id_x 1
  .amdhsa_float_denorm_mode_32 3
.end_amdhsa_kernel
"""
    return txt, n

if __name__ == "__main__":
    import argparse
    ap = argparse.ArgumentParser()
    ap.add_argument("--stop", type=int, default=99)
    ap.add_argument("--ts", action="store_true")
    ap.add_argument("--fb", action="store_true")
    ap.add_argument("-o", default="out.s")
    args = ap.parse_args()
    sys.modules["g3"] = sys.modules["__main__"]
    txt, n = make(args.stop, args.ts, args.fb)
    open(args.o, "w").write(txt)
    print("nops inserted:", n, "lines:", txt.count("\n"))
```

```python
from g3 import *
import os

vX1 = 240
vGB = 228
vXr, vGA, vG2 = 196, 204, 216
vUB = 116
vRP = 144

sRPC, sRPD, sWOS, sWOL, sSLS, sSLL = 31, 42, 43, sT[15], sT[16], sT[19]
vRO = 176
sRPC2 = sT[14]
vSL = 108 + 2
L2_MB = 155648

def bg_setup(g):
    a = g.a
    q, upr, magic, pitch = sT[2], sT[3], sT[10], sT[11]
    SK = a.new("Lrs")
    a(f"s_cmp_lt_u32 s{sW}, 4\ns_cbranch_scc1 {SK}")
    for r, (srdr, col) in enumerate(((S_B, sRPC), (S_A, sRPC2))):
        K2, K3, GO = a.new("Lrp"), a.new("Lrp"), a.new("Lrp")
        a(f"s_lshl_b32 s{q}, s{sL}, 2\ns_add_u32 s{q}, s{q}, s{sW4}")
        if r: a(f"s_add_u32 s{q}, s{q}, 1024")
        else: a(f"s_lshl_b32 s{sRPD}, s{q}, 12\ns_add_u32 s{sRPD}, s{sRPD}, {WS_RW}")
        a(f"s_mov_b32 s{upr}, 10\ns_mov_b32 s{magic}, 0x1999999a\ns_movk_i32 s{pitch}, 1280")
        if r == 0:
            a(f"s_cmp_ge_u32 s{q}, 200\ns_cbranch_scc1 {K2}")
            a(f"s_mul_hi_u32 s{col}, s{q}, {(1<<32)//25+1}\ns_mul_i32 s{sT[12]}, s{col}, 25\ns_sub_u32 s{q}, s{q}, s{sT[12]}\ns_mul_i32 s{col}, s{col}, 160")
            a(f"s_mov_b32 s{srdr}, s{P_WO}\ns_mov_b32 s{srdr+1}, s{P_WO+1}\ns_mov_b32 s{srdr+2}, {640*1280}\ns_branch {GO}")
            a.label(K2)
            a(f"s_cmp_ge_u32 s{q}, 744\ns_cbranch_scc1 {K3}\ns_sub_u32 s{q}, s{q}, 200")
            a(f"s_mul_hi_u32 s{col}, s{q}, {(1<<32)//68+1}\ns_mul_i32 s{sT[12]}, s{col}, 68\ns_sub_u32 s{q}, s{q}, s{sT[12]}\ns_mul_i32 s{col}, s{col}, 160")
            a(f"s_mov_b32 s{srdr}, s{P_W2}\ns_mov_b32 s{srdr+1}, s{P_W2+1}\ns_mov_b32 s{srdr+2}, {1728*1280}\ns_branch {GO}")
            a.label(K3)
        a(f"s_sub_u32 s{q}, s{q}, 744")
        a(f"s_mul_hi_u32 s{col}, s{q}, {(1<<32)//35+1}\ns_mul_i32 s{sT[12]}, s{col}, 35\ns_sub_u32 s{q}, s{q}, s{sT[12]}")
        a(f"s_bitcmp1_b32 s{col}, 0\ns_cselect_b32 s{srdr}, s{P_W3}, s{P_W1}\ns_cselect_b32 s{srdr+1}, s{P_W3+1}, s{P_W1+1}\ns_mov_b32 s{srdr+2}, {640*3456}")
        a(f"s_lshr_b32 s{col}, s{col}, 1")
        a(f"s_mul_i32 s{sT[12]}, s{col}, 7\ns_mul_i32 s{upr}, s{col}, 6\ns_add_u32 s{upr}, s{upr}, 12\ns_min_u32 s{upr}, s{upr}, 101")
        a(f"s_cmp_lt_u32 s{col}, 12\ns_cselect_b32 s{col}, s{sT[12]}, s{upr}\ns_lshl_b32 s{col}, s{col}, 5")
        a(f"s_mov_b32 s{upr}, 14\ns_mov_b32 s{magic}, 0x12492493\ns_movk_i32 s{pitch}, 3456")
        a.label(GO)
        a(f"s_mov_b32 s{srdr+3}, 0x20000\ns_lshl_b32 s{q}, s{q}, 8\ns_lshl_b32 s{upr}, s{upr}, 4\ns_sub_u32 s{pitch}, s{pitch}, s{upr}")
        a(f"v_add_u32 v112, s{q}, v{vLANE}")
        for k in range(4):
            a(f"v_mul_hi_u32 v113, v112, s{magic}\nv_mul_lo_u32 v113, v113, s{pitch}\nv_lshl_add_u32 v{vRO+4*r+k}, v112, 4, v113")
            if k < 3: a("v_add_u32 v112, 64, v112")
    a.label(SK)
    a(f"s_mul_i32 s{sWOL}, s{sW}, 13\ns_min_u32 s{sWOL}, s{sWOL}, 87\ns_lshl_b32 s{sWOL}, s{sWOL}, 10")
    a(f"s_mul_i32 s{sWOS}, s{sHG}, 102400\ns_add_u32 s{sWOS}, s{sWOS}, s{sWOL}\ns_add_u32 s{sWOS}, s{sWOS}, {WS_RW + RW_WO}\ns_add_u32 s{sWOL}, s{sWOL}, {g.L2_WO}")
    a(f"s_cmp_lt_u32 s{sL}, 108\ns_cselect_b32 s{S_C}, s{P_W1}, s{P_W3}\ns_cselect_b32 s{S_C+1}, s{P_W1+1}, s{P_W3+1}")
    a(f"s_mov_b32 s{S_C+2}, {640*3456}\ns_mov_b32 s{S_C+3}, 0x20000")
    a(f"s_sub_u32 s{sSLS}, s{sL}, 108\ns_cselect_b32 s{sSLS}, s{sL}, s{sSLS}\ns_lshl_b32 s{sSLS}, s{sSLS}, 5")
    a(f"s_mul_i32 s{sSLL}, s{sW}, 3\ns_min_u32 s{sSLL}, s{sSLL}, 17\ns_mul_i32 s{sT[12]}, s{sSLL}, {32*3456}\ns_add_u32 s{sSLS}, s{sSLS}, s{sT[12]}\ns_lshl_b32 s{sSLL}, s{sSLL}, 10")
    a(f"v_lshrrev_b32 v{vSL}, 1, v{vLANE}\nv_mul_u32_u24 v{vSL}, 3456, v{vSL}\nv_and_b32 v113, 1, v{vLANE}\nv_lshl_add_u32 v{vSL}, v113, 4, v{vSL}")

def bg_schedule(g, put):
    a = g.a
    for k in range(8):
        srdr, col = ((S_B, sRPC), (S_A, sRPC2))[k // 4]
        put(k // 2, f"rl{k}", [f"buffer_load_dwordx4 {vr(vRP+4*k,4)}, v{vRO+k}, s[{srdr}:{srdr+3}], s{col} offen"], role="B")
    for k in range(8):
        pre = [f"s_add_u32 s{sRPD}, s{sRPD}, {1024*4096}"] if k == 4 else []
        put(12 + k // 2, f"rs{k}", pre + [f"buffer_store_dwordx4 {vr(vRP+4*k,4)}, v{vL16}, {WSR}, s{sRPD} offen offset:{(k%4)*1024} sc1"], need=f"rl{k}", role="B")
    put(25, "rsw", [], n=0, need="rs7", role="B")
    l1 = a.new("Lbg")
    put(26, "pub", [f"s_cmp_lg_u32 s{sW}, 4", f"s_cbranch_scc1 {l1}", f"s_lshl_b32 s{sT[2]}, s{sL}, 2", f"s_add_u32 s{sT[2]}, s{sT[2]}, {F_RP}", f"v_mov_b32 v112, s{sNON}",
                    "s_mov_b64 exec, 1", f"buffer_store_dword v112, v{vLANE}, {WSR}, s{sT[2]} offen sc1", "s_mov_b64 exec, -1", f"{l1}:"], n=0)
    l2, l3, l4 = a.new("Lbg"), a.new("Lbg"), a.new("Lbg")
    chk = [f"s_cmp_lg_u32 s{sW}, 7", f"s_cbranch_scc1 {l2}", f"s_mov_b32 s{sT[20]}, 0", f"{l3}:",
           f"s_mov_b32 s{sT[2]}, {F_RP}", f"s_mov_b32 s{sT[3]}, {F_MODR}",
           f"buffer_load_dwordx4 v[112:115], v{vL16}, {WSR}, s{sT[2]} offen sc1",
           f"v_min_u32 v120, 624, v{vL16}",
           f"buffer_load_dwordx4 v[116:119], v120, {WSR}, s{sT[3]} offen sc1",
           "s_waitcnt vmcnt(0)"]
    chk += [f"v_xor_b32 v{112+j}, s{sNON}, v{112+j}" for j in range(8)]
    chk += ["v_or3_b32 v112, v112, v113, v114", "v_or3_b32 v115, v115, v116, v117", "v_or3_b32 v112, v112, v118, v119", "v_or_b32 v112, v112, v115",
            f"v_cmp_ne_u32 s[{sT[22]}:{sT[23]}], 0, v112", "s_nop 4", f"s_cmp_eq_u64 s[{sT[22]}:{sT[23]}], 0", f"s_cbranch_scc1 {l2}",
            f"s_add_u32 s{sT[20]}, s{sT[20]}, 1", f"s_cmp_lt_u32 s{sT[20]}, {SPIN_LIMIT}", f"s_cbranch_scc1 {l3}",
            f"{l2}:"]
    put(32, "chk", chk, n=0)
    slots = [34, 36, 37, 38, 40, 41, 42, 44, 45, 46, 48, 49, 50]
    for k, T in enumerate(slots):
        ins = []
        if k % 4 == 0: ins.append(f"s_add_u32 m0, s{sWOL}, {k*1024}")
        else: ins.append(f"s_add_u32 m0, s{sWOL}, {(k//4)*4096}")
        ins.append(f"buffer_load_dwordx4 v{vL16}, {WSR}, s{sWOS} offen offset:{(k%4)*1024} sc1 lds")
        if k % 4 == 3: ins.append(f"s_add_u32 s{sWOS}, s{sWOS}, 4096")
        put(T, f"wo{k}", ins)
    put(35, "mb", [f"s_min_u32 s{sT[2]}, s{sW}, 2", f"s_lshl_b32 s{sT[2]}, s{sT[2]}, 10", f"s_add_u32 m0, s{sT[2]}, {L2_MB}", f"s_add_u32 s{sT[2]}, s{sT[2]}, {WS_MODB}",
                   f"buffer_load_dwordx4 v{vL16}, {WSR}, s{sT[2]} offen sc1 lds"])
    for k, T in enumerate((58, 59, 62)):
        ins = [f"s_add_u32 m0, s{sSLL}, {k*1024}", f"buffer_load_dwordx4 v{vSL}, s[{S_C}:{S_C+3}], s{sSLS} offen lds"]
        if k < 2: ins.append(f"s_add_u32 s{sSLS}, s{sSLS}, {32*3456}")
        put(T, f"sl{k}", ins)

def ut_job(g):
    a = g.a
    E = a.new("Lnoutj")
    a(f"s_cmp_lg_u32 s{sW}, 7\ns_cbranch_scc1 {E}\ns_cmp_ge_u32 s{sL}, 216\ns_cbranch_scc1 {E}")
    a(f"v_lshrrev_b32 v42, 4, v{vLANE}\nv_bfe_u32 v41, v{vLANE}, 2, 2\nv_lshl_add_u32 v40, v42, 3, v41\nv_lshlrev_b32 v40, 5, v40")
    a(f"v_and_b32 v41, 3, v{vLANE}\nv_lshl_add_u32 v40, v41, 3, v40\nv_add_u32 v40, {g.L2_UT}, v40")
    a(f"v_and_b32 v43, 1, v{vLANE}\nv_xor_b32 v43, 1, v43\nv_mul_u32_u24 v43, 1280, v43\nv_lshl_add_u32 v43, v42, 4, v43\nv_add_u32 v43, {L2_MB}, v43")
    base = 128
    for rnd in range(2):
        for s in range(10 * rnd, 10 * rnd + 10):
            d = base + 8 * (s % 10)
            a(f"ds_read_b64_tr_b16 {vr(d,2)}, v40 offset:{s*1024}\nds_read_b64_tr_b16 {vr(d+2,2)}, v40 offset:{s*1024+128}\nds_read_b128 {vr(d+4,4)}, v43 offset:{s*64}")
            if s % 10 >= 3:
                t = s - 3; dt = base + 8 * (t % 10)
                a(f"s_waitcnt lgkmcnt(9)\nv_mfma_f32_16x16x32_bf16 v[44:47], {vr(dt,4)}, {vr(dt+4,4)}, {'0' if t == 0 else 'v[44:47]'}")
        for t in range(10 * rnd + 7, 10 * rnd + 10):
            dt = base + 8 * (t % 10)
            a(f"s_waitcnt lgkmcnt({3*(10*rnd+9-t)})\nv_mfma_f32_16x16x32_bf16 v[44:47], {vr(dt,4)}, {vr(dt+4,4)}, v[44:47]")
    a(f"s_cmp_lt_u32 s{sL}, 108\ns_cselect_b32 s{sT[2]}, 0, {2*1728*4}")
    a(f"s_sub_u32 s{sT[3]}, s{sL}, 108\ns_cselect_b32 s{sT[3]}, s{sL}, s{sT[3]}\ns_lshl_b32 s{sT[3]}, s{sT[3]}, 6")
    a(f"s_add_u32 s{sT[2]}, s{sT[2]}, s{sT[3]}\ns_add_u32 s{sT[2]}, s{sT[2]}, {WS_UT}")
    a(f"v_and_b32 v40, 15, v{vLANE}\nv_mul_u32_u24 v41, {1728*4}, v40\nv_lshl_add_u32 v41, v42, 4, v41")
    a("s_mov_b32 exec_lo, 0x00030003\ns_mov_b32 exec_hi, 0x00030003")
    a(f"buffer_store_dwordx4 v[44:47], v41, {WSR}, s{sT[2]} offen sc1")
    a("s_mov_b64 exec, -1")
    a.label(E)

def ut_flag(g):
    a = g.a
    E = a.new("Lutf")
    a(f"s_cmp_lg_u32 s{sW}, 7\ns_cbranch_scc1 {E}\ns_cmp_ge_u32 s{sL}, 216\ns_cbranch_scc1 {E}")
    a(f"s_lshl_b32 s{sT[3]}, s{sL}, 2\ns_add_u32 s{sT[3]}, s{sT[3]}, {F_UT}")
    g.one_lane_store(sT[3], 255)
    a.label(E)

def pi_rows(g, d):
    a = g.a
    a(f"v_lshrrev_b32 v{d}, 5, v{vLANE}\nv_bfe_u32 v{d+1}, v{vLANE}, 4, 1\nv_lshlrev_b32 v{d}, 4, v{d}\nv_lshl_add_u32 v{d}, v{d+1}, 2, v{d}")
    a(f"v_bfe_u32 v{d+1}, v{vLANE}, 2, 2\nv_add_u32 v{d}, v{d}, v{d+1}")

def w5_list(dst, addr, off, addr2=None, off2=None):
    if addr2 is None: addr2, off2 = addr, off + 8 * 160
    L = []
    for cb in range(5):
        L.append(f"ds_read_b64_tr_b16 {vr(dst+4*cb,2)}, v{addr} offset:{off + cb*32}")
        L.append(f"ds_read_b64_tr_b16 {vr(dst+4*cb+2,2)}, v{addr2} offset:{off2 + cb*32}")
    return L

def interleave(a, main, fill, lead=0):
    n, m = len(main), len(fill)
    k = 0
    for i, x in enumerate(main):
        a(x)
        want = (m * (i + 1)) // n if i + 1 < n else m
        while k < want:
            a(fill[k]); k += 1

def exchange(g, acc, scratch):
    a = g.a
    a(f"s_mul_i32 s{sT[0]}, s{sW4}, 5120\ns_add_u32 s{sT[0]}, s{sT[0]}, {scratch}\nv_add_u32 v40, s{sT[0]}, v{vL16}")
    a("s_barrier")
    L1, L2 = a.new("Lex"), a.new("Lex")
    a(f"s_cmp_lg_u32 s{sKH}, 0\ns_cbranch_scc1 {L1}")
    for cb in (3, 4): a(f"ds_write_b128 v40, {vr(acc+4*cb,4)} offset:{cb*1024}")
    a("s_waitcnt lgkmcnt(0)\ns_barrier")
    for cb in (0, 1, 2): a(f"ds_read_b128 {vr(44+4*cb,4)}, v40 offset:{cb*1024}")
    a("s_waitcnt lgkmcnt(0)")
    for cb in (0, 1, 2):
        for r in range(4): a(f"v_add_f32 v{acc+4*cb+r}, v{acc+4*cb+r}, v{44+4*cb+r}")
    a(f"s_branch {L2}")
    a.label(L1)
    for cb in (0, 1, 2): a(f"ds_write_b128 v40, {vr(acc+4*cb,4)} offset:{cb*1024}")
    a("s_waitcnt lgkmcnt(0)\ns_barrier")
    for cb in (3, 4): a(f"ds_read_b128 {vr(44+4*cb,4)}, v40 offset:{cb*1024}")
    a("s_waitcnt lgkmcnt(0)")
    for cb in (3, 4):
        for r in range(4): a(f"v_add_f32 v{acc+4*cb+r}, v{acc+4*cb+r}, v{44+4*cb+r}")
    a.label(L2)

def store_blocks(g, P, nblk, base_s, vaddr_pair, vaddr_single):
    a = g.a
    i = 0
    while i < nblk:
        p = P + 2 * i
        if i + 1 < nblk:
            a(f"v_permlane32_swap_b32 v{p}, v{p+2}\nv_permlane32_swap_b32 v{p+1}, v{p+3}")
            a(f"buffer_store_dwordx4 {vr(p,4)}, v{vL16}, {WSR}, s{base_s} offen offset:{i*512} sc1")
            i += 2
        else:
            a(f"v_mov_b32 v{p+2}, v{p}\nv_mov_b32 v{p+3}, v{p+1}")
            a(f"v_permlane32_swap_b32 v{p}, v{p+2}\nv_permlane32_swap_b32 v{p+1}, v{p+3}")
            a("s_mov_b32 exec_hi, 0")
            a(f"buffer_store_dwordx4 {vr(p,4)}, v{vL16}, {WSR}, s{base_s} offen offset:{i*512} sc1")
            a("s_mov_b64 exec, -1")
            i += 1

L3_X = 40960 + 8192
L3_MV = 158720

def p3(g):
    a = g.a
    a.c("---- P3: o @ wo, residual, y / stats ----")
    acc = 8
    vB = 128
    vA = [64, 84]
    a(f"s_mul_i32 s{sFB0}, s{sM}, 7\ns_mul_i32 s{sT[2]}, s{sM}, 6\ns_add_u32 s{sT[2]}, s{sT[2]}, 12\ns_min_u32 s{sT[2]}, s{sT[2]}, 101")
    a(f"s_cmp_lt_u32 s{sM}, 12\ns_cselect_b32 s{sFB0}, s{sFB0}, s{sT[2]}")
    a(f"s_lshl_b32 s{sWL4}, s{sW}, 11\ns_mul_i32 s{sWS4}, s{sM}, {2*143360}\ns_add_u32 s{sWS4}, s{sWS4}, s{sWL4}\ns_add_u32 s{sWS4}, s{sWS4}, {WS_RW + RW_13}")
    a(f"s_add_u32 s{sWL4}, s{sWL4}, {L4_BASE}")
    a(f"s_mul_i32 s{sT[1]}, s{sKH}, 48\ns_mul_i32 s{sT[2]}, s{sHG}, 80\ns_add_u32 s{sT[1]}, s{sT[1]}, s{sT[2]}")
    a(f"v_lshrrev_b32 v28, 4, v{vLANE}\nv_lshlrev_b32 v29, 4, v28")
    a(f"s_lshl_b32 s{sT[10]}, s{sT[1]}, 2\ns_add_u32 s{sT[10]}, s{sT[10]}, {WS_MODR}\ns_add_u32 s{sT[11]}, s{sT[10]}, {1280*4}\ns_add_u32 s{sT[12]}, s{sT[10]}, {1920*4}")
    a(f"v_and_b32 v253, 15, v{vLANE}\nv_mul_u32_u24 v253, 1280, v253\nv_lshl_add_u32 v253, v28, 3, v253")
    a(f"s_mul_i32 s{sT[2]}, s{sRBG}, {16*1280}\ns_lshl_b32 s{sT[1]}, s{sT[1]}, 1\ns_add_u32 s30, s{sT[2]}, s{sT[1]}")
    ut_job(g)
    a(f"s_mul_i32 s{sT[3]}, s{sKH}, {320*160}\ns_add_u32 s{sT[3]}, s{sT[3]}, {g.L2_WO}")
    a(f"v_and_b32 v44, 3, v{vLANE}\nv_lshl_add_u32 v44, v44, 3, s{sT[3]}\nv_bfe_u32 v46, v{vLANE}, 2, 2\ns_movk_i32 s{sT[19]}, 160")
    for m in range(3):
        d1, d2 = 33 + 2 * m, 34 + 2 * m
        a(f"v_add_u32 v40, {4*m}, v28")
        a(f"v_mul_u32_u24 v41, 86, v40\nv_lshrrev_b32 v41, 8, v41")
        a(f"v_mul_u32_u24 v42, 3, v41\nv_sub_u32 v42, v40, v42\nv_mul_u32_u24 v41, 20, v41")
        a(f"v_lshlrev_b32 v43, 2, v42\nv_cmp_eq_u32 vcc, 2, v42\nv_add_u32 v41, v41, v46")
        a(f"v_cndmask_b32 v43, v43, 16, vcc\nv_add_u32 v43, v41, v43\nv_add_u32 v45, 8, v43\nv_cndmask_b32 v45, v45, v43, vcc")
        a(f"v_mad_u32_u24 v{d1}, v43, s{sT[19]}, v44\nv_mad_u32_u24 v{d2}, v45, s{sT[19]}, v44")
    PRE = 5
    wreg = lambda s: 56 + 20 * s if s < PRE else 56 + 20 * (s % 2)
    oreg = lambda s: 156 + 4 * s if s < 10 else 240 + 4 * (s - 10)
    def wl(s):
        m = s % 3; o = (s // 3) * 80 * 160
        return w5_list(wreg(s), 33 + 2 * m, o, 34 + 2 * m, o)
    for s in range(PRE):
        for x in wl(s): a(x)
    a(f"s_and_b32 s{sT[4]}, s{sL}, 0xf8")
    g.wg_poll(F_O, sT[4], 8, 47, 5, wave=6)
    g.stamp(14)
    a(f"s_mul_i32 s{sT[1]}, s{sRBG}, 24\ns_mul_i32 s{sT[2]}, s{sKH}, 12\ns_add_u32 s{sT[1]}, s{sT[1]}, s{sT[2]}\ns_lshl_b32 s{sT[1]}, s{sT[1]}, 10\ns_add_u32 s{sT[1]}, s{sT[1]}, {WS_O}")
    for s in range(12):
        a(f"buffer_load_dwordx4 {vr(oreg(s),4)}, v{vL16}, {WSR}, s{sT[1]} offen offset:{(s%4)*1024} sc1")
        if s % 4 == 3 and s < 11: a(f"s_add_u32 s{sT[1]}, s{sT[1]}, 4096")
    ops = []
    for j in range(3):
        ops.append(f"buffer_load_dwordx4 {vr(vGA+4*j,4)}, v29, {WSR}, s{sT[10]} offen offset:{j*64} sc1")
        ops.append(f"buffer_load_dwordx4 {vr(vG2+4*j,4)}, v29, {WSR}, s{sT[11]} offen offset:{j*64} sc1")
        ops.append(f"buffer_load_dwordx2 {vr(vXr+2*j,2)}, v253, s[{S_X}:{S_X+3}], s30 offen offset:{j*32}")
        ops.append(f"buffer_load_dwordx4 {vr(vGB+4*j,4)}, v29, {WSR}, s{sT[12]} offen offset:{j*64} sc1")
    issued = 0
    for s in range(12):
        lg = " lgkmcnt(10)" if (s >= PRE and s + 1 < 12) or s == PRE - 1 + 0 and False else (" lgkmcnt(0)" if s in (0, 11) else "")
        a(f"s_waitcnt vmcnt({11 - s + issued}){lg}")
        mf = [f"v_mfma_f32_16x16x32_bf16 {vr(acc+4*cb,4)}, {vr(wreg(s)+4*cb,4)}, {vr(oreg(s),4)}, {'0' if s == 0 else vr(acc+4*cb,4)}" for cb in range(5)]
        for x in mf: a(x)
        nxt = []
        if s == 1: nxt = wl(5)
        elif s >= 4 and s + 2 < 12 and s + 2 >= 6: nxt = wl(s + 2)
        for x in nxt: a(x)
        a(ops[s]); issued += 1
    E = a.new("Lw0")
    a(f"s_cmp_eq_u32 s{sW}, 7\ns_cbranch_scc1 {E}")
    for x in p4_w_dma_list(sWS4, sWL4): a(x)
    a.label(E)
    a(f"s_add_u32 s{sWS4}, s{sWS4}, 14336")
    g.stamp(17)
    exchange(g, acc, 0)
    g.stamp(18)
    X, Y = a.new("Lop"), a.new("Lop")
    a(f"s_cmp_eq_u32 s{sW}, 7\ns_cbranch_scc1 {X}\ns_waitcnt vmcnt(4)\ns_branch {Y}")
    a.label(X); a("s_waitcnt vmcnt(0)"); a.label(Y)
    L1, L2 = a.new("Lp3e"), a.new("Lp3e")
    a(f"s_cmp_lg_u32 s{sKH}, 0\ns_cbranch_scc1 {L1}")
    p3_epi(g, (0, 1, 2), acc, vXr, vGA, vG2)
    a(f"s_branch {L2}")
    a.label(L1)
    p3_epi(g, (3, 4), acc, vXr, vGA, vG2)
    a.label(L2)
    g.stamp(19)
    g.wave_flag(F_Y)
    ut_flag(g)
    g.stamp(20)

def p3_epi(g, blocks, acc, vXr, vGA, vG2):
    a = g.a
    a(f"s_mul_i32 s{sT[1]}, s{sRBG}, 20480\ns_mul_i32 s{sT[2]}, s{sHG}, 2560\ns_add_u32 s{sT[1]}, s{sT[1]}, s{sT[2]}\ns_add_u32 s{sT[1]}, s{sT[1]}, {WS_Y + blocks[0]*512}")
    for j, cb in enumerate(blocks):
        X = vX1 + 4 * j
        a(f"v_lshlrev_b32 v{X}, 16, v{vXr+2*j}\nv_and_b32 v{X+1}, 0xffff0000, v{vXr+2*j}\nv_lshlrev_b32 v{X+2}, 16, v{vXr+2*j+1}\nv_and_b32 v{X+3}, 0xffff0000, v{vXr+2*j+1}")
        for r in range(4): a(f"v_fmac_f32 v{X+r}, v{vGA+4*j+r}, v{acc+4*cb+r}")
        for r in range(4): a(f"v_mul_f32 v{40+r}, v{X+r}, v{vG2+4*j+r}")
        a(f"v_cvt_pk_bf16_f32 v{44+2*j}, v40, v41\nv_cvt_pk_bf16_f32 v{45+2*j}, v42, v43")
    store_blocks(g, 44, len(blocks), sT[1], None, None)
    first = True
    for j in range(len(blocks)):
        for r in range(4):
            X = vX1 + 4 * j + r
            if first: a(f"v_mov_b32 v36, v{X}\nv_mul_f32 v37, v{X}, v{X}"); first = False
            else: a(f"v_add_f32 v36, v36, v{X}\nv_fmac_f32 v37, v{X}, v{X}")
    g.sum_groups(36, 38); g.sum_groups(37, 39)
    a(f"s_lshl_b32 s{sT[2]}, s{sL}, 3\ns_add_u32 s{sT[2]}, s{sT[2]}, s{sW}\ns_lshl_b32 s{sT[2]}, s{sT[2]}, 7\ns_add_u32 s{sT[2]}, s{sT[2]}, {WS_STAT}")
    a(f"v_lshlrev_b32 v38, 3, v{vLANE}\ns_mov_b32 exec_lo, 0xffff\ns_mov_b32 exec_hi, 0")
    a(f"buffer_store_dwordx2 v[36:37], v38, {WSR}, s{sT[2]} offen sc1")
    a("s_mov_b64 exec, -1")

L4_BUF = 45056
L4_BASE = 20480
L4_STAT = 158720
L4_UT = 155648

def p4_w_dma_list(src_s, lds_s):
    return [f"s_mov_b32 m0, s{lds_s}",
            f"buffer_load_dwordx4 v{vL16}, {WSR}, s{src_s} offen sc1 lds",
            f"buffer_load_dwordx4 v{vL16}, {WSR}, s{src_s} offen offset:1024 sc1 lds",
            f"s_add_u32 m0, s{lds_s}, 14336",
            f"s_add_u32 s{sT[5]}, s{src_s}, 143360",
            f"buffer_load_dwordx4 v{vL16}, {WSR}, s{sT[5]} offen sc1 lds",
            f"buffer_load_dwordx4 v{vL16}, {WSR}, s{sT[5]} offen offset:1024 sc1 lds"]

def p4_y_dma_list(src_s, lds_s):
    return [f"s_mov_b32 m0, s{lds_s}",
            f"buffer_load_dwordx4 v{vL16}, {WSR}, s{src_s} offen sc1 lds",
            f"buffer_load_dwordx4 v{vL16}, {WSR}, s{src_s} offen offset:1024 sc1 lds"]

sWS4, sWL4, sYS4, sYL4 = sT[14], sT[15], sT[16], sT[17]

def p4(g):
    a = g.a
    a.c("---- P4: gate/up GEMM ----")
    E = a.new("Lw1")
    a(f"s_cmp_eq_u32 s{sW}, 7\ns_cbranch_scc1 {E}")
    a(f"s_add_u32 s{sT[3]}, s{sWL4}, {L4_BUF}")
    for x in p4_w_dma_list(sWS4, sT[3]): a(x)
    a.label(E)
    a(f"s_add_u32 s{sWS4}, s{sWS4}, 14336")
    a(f"s_lshl_b32 s{sYS4}, s{sG}, 3\ns_add_u32 s{sYS4}, s{sYS4}, s{sW}\ns_mul_i32 s{sYS4}, s{sYS4}, 20480\ns_add_u32 s{sYS4}, s{sYS4}, {WS_Y}")
    a(f"s_add_u32 s{sYL4}, s{sWL4}, 28672")
    a(f"v_lshlrev_b32 v35, 3, v{vLANE}")
    a(f"s_and_b32 s{sT[2]}, s{sW}, 1\ns_lshl_b32 s{sT[3]}, s{sG}, 1\ns_add_u32 s{sT[2]}, s{sT[2]}, s{sT[3]}\ns_lshl_b32 s{sT[2]}, s{sT[2]}, 3")
    a(f"s_lshr_b32 s{sT[3]}, s{sW}, 1\ns_lshl_b32 s{sT[4]}, s{sT[3]}, 1\ns_add_u32 s{sT[2]}, s{sT[2]}, s{sT[4]}\ns_lshl_b32 s{sT[2]}, s{sT[2]}, 10\ns_add_u32 s{sT[2]}, s{sT[2]}, {WS_STAT}")
    a(f"s_lshl_b32 s{sT[3]}, s{sT[3]}, 10\ns_and_b32 s{sT[4]}, s{sW}, 1\ns_lshl_b32 s{sT[4]}, s{sT[4]}, 9\ns_add_u32 s{sT[3]}, s{sT[3]}, s{sT[4]}\ns_add_u32 s{sT[3]}, s{sT[3]}, {L4_STAT}\nv_add_u32 v41, s{sT[3]}, v35")
    a(f"s_lshl_b32 s{sT[13]}, s{sG}, 4")
    g.wg_poll(F_Y, sT[13], 16, 200, 6, wave=7)
    g.stamp(15)
    for st in range(2):
        a(f"s_add_u32 s{sT[3]}, s{sYL4}, {st*L4_BUF}")
        for x in p4_y_dma_list(sYS4, sT[3]): a(x)
        a(f"s_add_u32 s{sYS4}, s{sYS4}, 2048")
    E = a.new("Lw2")
    a(f"s_cmp_eq_u32 s{sW}, 7\ns_cbranch_scc1 {E}")
    a(f"s_add_u32 s{sT[3]}, s{sWL4}, {2*L4_BUF}")
    for x in p4_w_dma_list(sWS4, sT[3]): a(x)
    a.label(E)
    a(f"s_add_u32 s{sWS4}, s{sWS4}, 14336")
    a(f"s_add_u32 s{sT[3]}, s{sYL4}, {2*L4_BUF}")
    for x in p4_y_dma_list(sYS4, sT[3]): a(x)
    a(f"s_add_u32 s{sYS4}, s{sYS4}, 2048")
    a(f"s_mov_b32 s{sT[13]}, s{sT[2]}")
    LB, LE = a.new("Lp4b"), a.new("Lp4e")
    a(f"s_cmp_ge_u32 s{sW}, 4\ns_cbranch_scc1 {LB}")
    p4_role(g, True)
    a(f"s_branch {LE}")
    a.label(LB)
    p4_role(g, False)
    a.label(LE)

def spread(a, main, first, later, per=2):
    n = len(main)
    slots = [[] for _ in range(n)]
    k = 0; i = 0
    while k < len(first):
        slots[min(i, n - 1)] += first[k:k + per]; k += per; i += 1
    lo = min(i, n - 1)
    if later:
        hi = max(lo + 1, n - 1)
        span = hi - lo
        for j, grp in enumerate(later):
            pos = min(n - 1, lo + (j * span) // len(later))
            slots[pos] += grp
    for i in range(n):
        a(main[i])
        for x in slots[i]: a(x)

def p4_role(g, isA):
    a = g.a
    nrb = 4 if isA else 2
    npair = 2 if isA else 3
    acc = 52
    F = [116, 148]
    vYa, vWa = [8, 9, 10], [11, 12, 13]
    rb0, p0 = sT[11], sT[12]
    if isA: a(f"s_and_b32 s{rb0}, s{sW}, 1\ns_lshl_b32 s{rb0}, s{rb0}, 2\ns_and_b32 s{p0}, s{sW}, 2")
    else: a(f"s_lshl_b32 s{rb0}, s{sW4}, 1\ns_mov_b32 s{p0}, 4")
    a(f"s_lshl_b32 s{sT[1]}, s{rb0}, 11\ns_add_u32 s{sT[1]}, s{sT[1]}, {L4_BASE + 28672}\nv_add_u32 v{vYa[0]}, s{sT[1]}, v{vL16}")
    pi_rows(g, 14)
    a(f"v_mul_u32_u24 v14, 224, v14\nv_and_b32 v15, 3, v{vLANE}\nv_lshl_add_u32 v14, v15, 3, v14")
    a(f"s_lshl_b32 s{sT[1]}, s{p0}, 5\ns_add_u32 s{sT[1]}, s{sT[1]}, {L4_BASE}\nv_add_u32 v{vWa[0]}, s{sT[1]}, v14")
    for b in (1, 2):
        a(f"v_add_u32 v{vYa[b]}, {b*L4_BUF}, v{vYa[0]}\nv_add_u32 v{vWa[b]}, {b*L4_BUF}, v{vWa[0]}")
    for j in range(nrb * npair * 8): a(f"v_mov_b32 v{acc+j}, 0")
    a(f"s_cmp_eq_u32 s{sW}, 7\ns_cselect_b64 vcc, -1, 0")
    def wait2(n, n7, extra=""):
        if isA or n == n7: a(f"s_waitcnt vmcnt({n}){extra}")
        else:
            X, Y = a.new("Lv"), a.new("Lv")
            a(f"s_cbranch_vccnz {X}\ns_waitcnt vmcnt({n}){extra}\ns_branch {Y}")
            a.label(X); a(f"s_waitcnt vmcnt({n7}){extra}"); a.label(Y)
    wait2(8, 4)
    a("s_barrier")
    def loads(fs, ks, buf):
        L = []
        for r in range(nrb): L.append(f"ds_read_b128 {vr(F[fs]+4*r,4)}, v{vYa[buf]} offset:{r*2048 + ks*1024}")
        for p in range(npair):
            for u in range(2):
                d = F[fs] + 4 * nrb + (p * 2 + u) * 4
                o = u * 14336 + ks * 7168 + p * 32
                L.append(f"ds_read_b64_tr_b16 {vr(d,2)}, v{vWa[buf]} offset:{o}")
                L.append(f"ds_read_b64_tr_b16 {vr(d+2,2)}, v{vWa[buf]} offset:{o + 8*224}")
        return L
    def mfmas(fs):
        L = []
        for p in range(npair):
            for u in range(2):
                for r in range(nrb):
                    c = acc + ((r * npair + p) * 2 + u) * 4
                    L.append(f"v_mfma_f32_16x16x32_bf16 {vr(c,4)}, {vr(F[fs]+4*nrb+(p*2+u)*4,4)}, {vr(F[fs]+4*r,4)}, {vr(c,4)}")
        return L
    def wgroups(buf):
        o = buf * L4_BUF
        G = [[f"s_add_u32 m0, s{sWL4}, {o}", f"buffer_load_dwordx4 v{vL16}, {WSR}, s{sWS4} offen sc1 lds"],
             [f"buffer_load_dwordx4 v{vL16}, {WSR}, s{sWS4} offen offset:1024 sc1 lds"],
             [f"s_add_u32 m0, s{sWL4}, {o + 14336}", f"s_add_u32 s{sT[5]}, s{sWS4}, 143360", f"buffer_load_dwordx4 v{vL16}, {WSR}, s{sT[5]} offen sc1 lds"],
             [f"buffer_load_dwordx4 v{vL16}, {WSR}, s{sT[5]} offen offset:1024 sc1 lds", f"s_add_u32 s{sWS4}, s{sWS4}, 14336"]]
        if not isA:
            G2 = []
            for grp in G:
                lab = a.new("Lw7"); G2.append([f"s_cbranch_vccnz {lab}"] + grp + [f"{lab}:"])
            G = G2
        return G
    def ygroups(buf):
        o = buf * L4_BUF
        return [[f"s_add_u32 m0, s{sYL4}, {o}", f"buffer_load_dwordx4 v{vL16}, {WSR}, s{sYS4} offen sc1 lds"],
                [f"buffer_load_dwordx4 v{vL16}, {WSR}, s{sYS4} offen offset:1024 sc1 lds", f"s_add_u32 s{sYS4}, s{sYS4}, 2048"]]
    p5_w_setup(g)
    for x in loads(0, 0, 0): a(x)
    g.stamp(11); g.cstamp(29)
    for st in range(10):
        b = st % 3
        a("s_waitcnt lgkmcnt(0)")
        later = ygroups((st + 2) % 3) if 1 <= st <= 7 else []
        if os.environ.get("X_P4NODMA"): later = []
        if st == 5 and not isA: later = later + [ut_to_lds(g)]
        if st == 2: later = later + [[f"buffer_load_dwordx2 {vr(16+2*j,2)}, v35, {WSR}, s{sT[13]} offen offset:{j*512} sc1"] for j in range(4)]
        if st == 4: later = later + [["v_add_f32 v16, v16, v18", "v_add_f32 v17, v17, v19", "v_add_f32 v20, v20, v22", "v_add_f32 v21, v21, v23", "v_add_f32 v16, v16, v20", "v_add_f32 v17, v17, v21", "ds_write_b64 v41, v[16:17]"]]
        spread(a, mfmas(0), loads(1, 1, b) if not os.environ.get("X_P4NOLDS") else [], later)
        if st < 9:
            if st == 8: a("s_waitcnt vmcnt(5) lgkmcnt(0)")
            elif st == 2: wait2(10, 6, " lgkmcnt(0)")
            else: wait2(6, 2, " lgkmcnt(0)")
            if not os.environ.get("X_P4NOBAR"): a("s_barrier")
        else: a("s_waitcnt lgkmcnt(0)")
        spread(a, mfmas(1), (loads(0, 0, (st + 1) % 3) if st < 9 else []) if not os.environ.get("X_P4NOLDS") else [], (wgroups(b) if st <= 6 else (p5_w_groups(st - 7) if st <= 8 else [])) if not os.environ.get("X_P4NODMA") else [])
    g.stamp(12); g.cstamp(30)
    a("s_barrier")
    vUT = 148
    a(f"v_and_b32 v14, 15, v{vLANE}\ns_lshl_b32 s{sT[1]}, s{rb0}, 7\ns_add_u32 s{sT[1]}, s{sT[1]}, {L4_STAT}\nv_lshl_add_u32 v14, v14, 3, s{sT[1]}")
    for r in range(nrb):
        for q in range(4): a(f"ds_read_b64 {vr(116+8*r+2*q,2)}, v14 offset:{q*1024 + r*128}")
    a(f"v_lshrrev_b32 v12, 4, v{vLANE}\ns_lshl_b32 s{sT[2]}, s{p0}, 6\ns_add_u32 s{sT[2]}, s{sT[2]}, {L4_UT}\nv_lshl_add_u32 v12, v12, 4, s{sT[2]}")
    a(f"s_mov_b32 s{sT[5]}, 0x3acccccd")
    a("s_waitcnt lgkmcnt(0)")
    for p in range(npair):
        for vv in range(4): a(f"ds_read_b128 {vr(vUT+p*16+vv*4,4)}, v12 offset:{vv*448 + p*64}")
    for r in range(nrb):
        b = 116 + 8 * r
        a(f"v_add_f32 v{b}, v{b}, v{b+2}\nv_add_f32 v{b+1}, v{b+1}, v{b+3}\nv_add_f32 v{b+4}, v{b+4}, v{b+6}\nv_add_f32 v{b+5}, v{b+5}, v{b+7}\nv_add_f32 v{b}, v{b}, v{b+4}\nv_add_f32 v{b+1}, v{b+1}, v{b+5}")
        a(f"v_mul_f32 v{b}, s{sT[5]}, v{b}\nv_mul_f32 v{b+1}, s{sT[5]}, v{b+1}")
        a(f"v_fma_f32 v{b+1}, -v{b}, v{b}, v{b+1}\nv_max_f32 v{b+1}, 0, v{b+1}\nv_add_f32 v{b+1}, 0x3727c5ac, v{b+1}")
    for r in range(nrb): a(f"v_rsq_f32 v{16+4*r}, v{117+8*r}")
    for r in range(nrb): a(f"v_mov_b32 v{17+4*r}, v{16+4*r}\nv_mul_f32 v{18+4*r}, -v{16+4*r}, v{116+8*r}\nv_mul_f32 v{19+4*r}, -v{16+4*r}, v{116+8*r}")
    a(f"s_add_u32 s{sT[2]}, s{sFB0}, s{p0}")
    a(f"s_lshl_b32 s{sT[1]}, s{sG}, 3\ns_add_u32 s{sT[1]}, s{sT[1]}, s{rb0}\ns_mul_i32 s{sT[1]}, s{sT[1]}, {54*1024}\ns_lshl_b32 s{sT[2]}, s{sT[2]}, 9\ns_add_u32 s{sT[1]}, s{sT[1]}, s{sT[2]}\ns_add_u32 s{sT[1]}, s{sT[1]}, {WS_ACT}")
    a(f"v_mov_b32 v46, 0xbfb8aa3b\nv_mov_b32 v47, 0xbfb8aa3b\nv_mov_b32 v48, 1.0\nv_mov_b32 v49, 1.0")
    a("s_waitcnt lgkmcnt(0)")
    g.stamp(13)
    for r in range(nrb):
        R, RM = vr(16 + 4 * r, 2), vr(18 + 4 * r, 2)
        for p in range(npair):
            U1, T1, U3, T3 = [vUT + p * 16 + vv * 4 for vv in range(4)]
            cg = acc + ((r * npair + p) * 2) * 4; cu = cg + 4
            for h in range(2):
                a(f"v_pk_fma_f32 {vr(32+2*h,2)}, {RM}, {vr(U1+2*h,2)}, {vr(T1+2*h,2)}\nv_pk_fma_f32 {vr(36+2*h,2)}, {RM}, {vr(U3+2*h,2)}, {vr(T3+2*h,2)}")
            for h in range(2):
                a(f"v_pk_fma_f32 {vr(32+2*h,2)}, {vr(cg+2*h,2)}, {R}, {vr(32+2*h,2)}\nv_pk_fma_f32 {vr(36+2*h,2)}, {vr(cu+2*h,2)}, {R}, {vr(36+2*h,2)}")
            for h in range(2): a(f"v_pk_mul_f32 {vr(40+2*h,2)}, {vr(32+2*h,2)}, v[46:47]")
            for e in range(4): a(f"v_exp_f32 v{40+e}, v{40+e}")
            for h in range(2): a(f"v_pk_mul_f32 {vr(32+2*h,2)}, {vr(32+2*h,2)}, {vr(36+2*h,2)}")
            for h in range(2): a(f"v_pk_add_f32 {vr(40+2*h,2)}, {vr(40+2*h,2)}, v[48:49]")
            for e in range(4): a(f"v_rcp_f32 v{40+e}, v{40+e}")
            a("s_nop 0")
            for h in range(2): a(f"v_pk_mul_f32 {vr(32+2*h,2)}, {vr(32+2*h,2)}, {vr(40+2*h,2)}")
            o = 196 + 8 * (r % 2) + 2 * p
            a(f"v_cvt_pk_bf16_f32 v{o}, v32, v33\nv_cvt_pk_bf16_f32 v{o+1}, v34, v35")
        store_blocks(g, 196 + 8 * (r % 2), npair, sT[1], None, None)
        if r + 1 < nrb: a(f"s_add_u32 s{sT[1]}, s{sT[1]}, {54*1024}")
    g.stamp(21)
    g.wave_flag(F_ACT)
    g.stamp(22)

def ut_to_lds(g):
    a = g.a
    E, L, D = a.new("Lut"), a.new("Lut"), a.new("Lut")
    I = [f"s_cbranch_vccz {E}",
         f"v_mov_b32 v14, s{sFB0}", f"v_add_u32 v14, v14, v{vLANE}", f"v_cmp_lt_u32 s[{sT[22]}:{sT[23]}], 6, v{vLANE}", "v_add_u32 v15, 101, v14", "s_nop 1",
         f"v_cndmask_b32 v14, v14, v15, s[{sT[22]}:{sT[23]}]", "v_lshlrev_b32 v14, 2, v14", f"s_mov_b32 s{sT[1]}, {F_UT}", f"s_mov_b32 s{sT[20]}, 0",
         "s_mov_b32 exec_lo, 0x3fff", "s_mov_b32 exec_hi, 0", f"{L}:",
         f"buffer_load_dword v15, v14, {WSR}, s{sT[1]} offen sc1", "s_waitcnt vmcnt(0)",
         f"v_cmp_ne_u32 s[{sT[22]}:{sT[23]}], s{sNON}, v15", "s_nop 4", f"s_cmp_eq_u64 s[{sT[22]}:{sT[23]}], 0", f"s_cbranch_scc1 {D}",
         f"s_add_u32 s{sT[20]}, s{sT[20]}, 1", f"s_cmp_lt_u32 s{sT[20]}, {SPIN_LIMIT}", f"s_cbranch_scc1 {L}", f"{D}:", "s_mov_b64 exec, -1",
         f"s_lshl_b32 s{sT[1]}, s{sFB0}, 6", f"s_add_u32 s{sT[1]}, s{sT[1]}, {WS_UT}", f"s_mov_b32 s{sT[2]}, {(1<<32)//28+1}",
         f"v_mul_hi_u32 v14, v{vLANE}, s{sT[2]}", f"v_mul_u32_u24 v14, {6912-448}, v14", f"v_add_u32 v14, v14, v{vL16}",
         f"s_mov_b32 m0, {L4_UT}", f"buffer_load_dwordx4 v14, {WSR}, s{sT[1]} offen sc1 lds",
         f"v_add_u32 v14, 64, v{vLANE}", f"v_mul_hi_u32 v15, v14, s{sT[2]}", f"v_mul_u32_u24 v15, {6912-448}, v15", "v_lshl_add_u32 v14, v14, 4, v15",
         f"s_mov_b32 m0, {L4_UT + 1024}", "s_mov_b32 exec_hi, 0xffff", f"buffer_load_dwordx4 v14, {WSR}, s{sT[1]} offen sc1 lds", "s_mov_b64 exec, -1",
         f"{E}:"]
    return I

L5_BUF = 40960
L5_B = [65536, 110592, 20480]
L5_SCR = 0
sW2S, sW2L = sT[6], sT[7]

def p5_w_dma_list(st):
    return [f"s_add_u32 s{sT[3]}, s{sW2S}, {st*4*5120}", f"s_add_u32 m0, s{sW2L}, {L5_B[st%3]}"] + \
           [f"buffer_load_dwordx4 v{vL16}, {WSR}, s{sT[3]} offen offset:{k*1024} sc1 lds" for k in range(4)] + \
           [f"s_add_u32 s{sT[3]}, s{sT[3]}, 4096", f"s_add_u32 m0, s{sW2L}, {L5_B[st%3] + 4096}", f"buffer_load_dwordx4 v{vL16}, {WSR}, s{sT[3]} offen sc1 lds"]

def p5_w_groups(st):
    L = p5_w_dma_list(st)
    return [L[0:3], [L[3]], [L[4]], [L[5]], L[6:9]]

def p5_w_setup(g):
    a = g.a
    a(f"s_mul_i32 s{sW2S}, s{sKH}, 27\ns_add_u32 s{sW2S}, s{sW2S}, s{sW4}\ns_mul_i32 s{sW2S}, s{sW2S}, 5120\ns_mul_i32 s{sT[4]}, s{sHG}, {RW_W2S}\ns_add_u32 s{sW2S}, s{sW2S}, s{sT[4]}\ns_add_u32 s{sW2S}, s{sW2S}, {WS_RW + RW_W2}")
    a(f"s_mul_i32 s{sW2L}, s{sW}, 5120")

def p5(g):
    a = g.a
    a.c("---- P5: act @ w2, residual ----")
    acc = 8
    vA = [64, 84]
    vB = 128
    ab = sT[10]
    a(f"s_mul_i32 s{ab}, s{sRBG}, 54\ns_mul_i32 s{sT[2]}, s{sKH}, 27\ns_add_u32 s{ab}, s{ab}, s{sT[2]}\ns_lshl_b32 s{ab}, s{ab}, 10\ns_add_u32 s{ab}, s{ab}, {WS_ACT}")
    a(f"s_mul_i32 s{sT[2]}, s{sKH}, {4*5120}")
    pi_rows(g, 33)
    a(f"v_mul_u32_u24 v33, 160, v33\nv_and_b32 v34, 3, v{vLANE}\nv_lshl_add_u32 v33, v34, 3, v33\nv_add_u32 v33, s{sT[2]}, v33")
    a(f"s_lshl_b32 s{sT[13]}, s{sG}, 4")
    g.wg_poll(F_ACT, sT[13], 16, 40, 8, wave=7)
    g.stamp(26)
    def lda(st):
        n = 4 if st < 6 else 3
        L = [f"s_add_u32 s{sT[1]}, s{ab}, {st*4096}"]
        for j in range(n):
            L.append(f"buffer_load_dwordx4 {vr(vB+4*((4*st+j)%12),4)}, v{vL16}, {WSR}, s{sT[1]} offen offset:{j*1024} sc1")
        return L, n
    pend = []
    for st in range(3):
        if st == 2:
            for x in p5_w_dma_list(st): a(x)
            pend.append(("D", st, 5))
        L, n = lda(st)
        for x in L: a(x)
        pend.append(("A", st, n))
    for st in range(7):
        idx = max(i for i, (k, s, n) in enumerate(pend) if s == st)
        after = sum(n for (k, s, n) in pend[idx + 1:])
        pend = pend[idx + 1:]
        a(f"s_waitcnt vmcnt({after})\ns_barrier")
        if st == 0: g.stamp(23)
        if st == 3: g.stamp(24)
        nsteps = 4 if st < 6 else 3
        a(f"v_add_u32 v34, {L5_B[st%3]}, v33")
        for x in w5_list(vA[0], 34, 0): a(x)
        side = []
        if st >= 1 and st + 2 < 7:
            side += p5_w_dma_list(st + 2); pend.append(("D", st + 2, 5))
        for j in range(nsteps):
            a("s_waitcnt lgkmcnt(0)")
            ks = 4 * st + j
            mf = [f"v_mfma_f32_16x16x32_bf16 {vr(acc+4*cb,4)}, {vr(vA[j%2]+4*cb,4)}, {vr(vB+4*(ks%12),4)}, {'0' if ks == 0 else vr(acc+4*cb,4)}" for cb in range(5)]
            fill = w5_list(vA[(j+1) % 2], 34, (j + 1) * 5120) if j + 1 < nsteps else []
            if j == 0: fill = fill + side
            if j == nsteps - 1 and st + 3 < 7:
                L, n = lda(st + 3); fill = fill + L; pend.append(("A", st + 3, n))
            interleave(a, mf, fill)
    g.stamp(25)
    exchange(g, acc, L5_SCR)
    L1, L2 = a.new("Lp5e"), a.new("Lp5e")
    a(f"s_cmp_lg_u32 s{sKH}, 0\ns_cbranch_scc1 {L1}")
    for blocks, lab in (((0, 1, 2), None), ((3, 4), L1)):
        if lab: a.label(lab)
        for j, cb in enumerate(blocks):
            for r in range(4): a(f"v_fma_f32 v{40+r}, v{vGB+4*j+r}, v{acc+4*cb+r}, v{vX1+4*j+r}")
            a(f"v_cvt_pk_bf16_f32 v{44+2*j}, v40, v41\nv_cvt_pk_bf16_f32 v{45+2*j}, v42, v43")
            a(f"buffer_store_dwordx2 {vr(44+2*j,2)}, v253, s[{S_OUT}:{S_OUT+3}], s30 offen offset:{j*32}")
        if not lab: a(f"s_branch {L2}")
    a.label(L2)

def rest(g):
    p3(g); g.stamp(8)
    if g.stop >= 4:
        p4(g); g.stamp(9)
    if g.stop >= 5:
        p5(g); g.stamp(10)
```

```python
import sys, os
sys.path.insert(0, os.path.dirname(os.path.abspath(__file__)))
from asmlib import Asm, fix_hazards

NAME = "adaLN_cond__grouped_kv_mqa__glu_gated_swiglu__prompt_kernel"

WS_NONCE = 0x0
F_KV   = 0x1000
F_MODR = 0x2000
F_O    = 0x3000
F_Y    = 0x5000
F_ACT  = 0x7000
F_UT   = 0x9000
F_RP   = 0x18000
WS_MODG = 0xA000
WS_MODR = 0xC000
WS_MODB = 0xE800
WS_UT   = 0x10000
WS_KV   = 0x20000
WS_STAT = 0x60000
WS_O    = 0x100000
WS_Y    = 0x400000
WS_ACT  = 0x700000
WS_TS   = 0xE00000
WS_RW   = 0x1000000
RW_WO, RW_W2, RW_13 = 0, 819200, 819200 + 8 * 278528
RW_W2S = 278528
WS_USED = 0x1800000
KV_TILE = 3328

S_X, S_WS, S_A, S_B, S_C, S_OUT = 4, 8, 12, 16, 20, 24
P_X, P_WQ, P_WK, P_WV, P_WO, P_BX, P_W1, P_W3, P_W2, P_CC, P_WMOD, P_OUT, P_DBG, P_WS = [32 + 2 * i for i in range(14)]
sL, sG, sM, sI, sHG, sW, sNON, sXC, sJ = 60, 61, 62, 63, 64, 65, 66, 67, 68
sW4 = 69
sT = list(range(70, 94))
sKH = 97
sFB0, sWSRC, sRBG = 98, 99, 28
sWK = 29
SPIN_LIMIT = 400000

vLANE = 1
vL16 = 2
vO160 = [3, 4, 5, 6, 7]

def srd(a, d, p, size):
    a(f"s_mov_b32 s{d}, s{p}\ns_mov_b32 s{d+1}, s{p+1}\ns_mov_b32 s{d+2}, {size}\ns_mov_b32 s{d+3}, 0x20000")
def vr(b, n=1): return f"v{b}" if n == 1 else f"v[{b}:{b+n-1}]"
WSR = f"s[{S_WS}:{S_WS+3}]"

class Gen:
    def __init__(self, stop=99, ts=False, force_fallback=False):
        self.a = Asm(); self.stop = stop; self.ts = ts; self.force_fallback = force_fallback

    def stamp_dyn(self, mode, sreg, add=0):
        if not self.ts or os.environ.get("TSMODE") != mode: return
        a = self.a
        a(f"s_memrealtime s[94:95]\ns_waitcnt lgkmcnt(0)")
        a(f"s_lshl_b32 s96, s{sL}, 3\ns_add_u32 s96, s96, s{sW}\ns_lshl_b32 s96, s96, 5\ns_add_u32 s96, s96, s{sreg}\ns_add_u32 s96, s96, {add}\ns_lshl_b32 s96, s96, 2\ns_add_u32 s96, s96, {WS_TS}")
        a(f"v_mov_b32 v254, s94\nv_mov_b32 v255, s96")
        a(f"s_mov_b64 s[100:101], exec\ns_mov_b64 exec, 1")
        a(f"buffer_store_dword v254, v255, {WSR}, 0 offen")
        a(f"s_mov_b64 exec, s[100:101]")

    def cstamp(self, idx):
        if not self.ts or os.environ.get("TSMODE"): return
        a = self.a
        a(f"s_memtime s[94:95]\ns_waitcnt lgkmcnt(0)")
        a(f"s_lshl_b32 s96, s{sL}, 3\ns_add_u32 s96, s96, s{sW}\ns_lshl_b32 s96, s96, 7\ns_add_u32 s96, s96, {WS_TS + idx*4}")
        a(f"v_mov_b32 v254, s94\nv_mov_b32 v255, s96")
        a(f"s_mov_b64 s[100:101], exec\ns_mov_b64 exec, 1")
        a(f"buffer_store_dword v254, v255, {WSR}, 0 offen")
        a(f"s_mov_b64 exec, s[100:101]")

    def hstamp(self, slot, invert=False):
        a = self.a
        lab = a.new("Lh")
        a(f"s_cmp_lg_u32 s{sW}, 0\ns_cbranch_scc1 {lab}\ns_cmp_lg_u32 s{sL}, {int(os.environ.get('HL', '0'))}\ns_cbranch_scc1 {lab}")
        a(f"s_memrealtime s[94:95]\ns_waitcnt lgkmcnt(0)")
        a(f"s_mov_b32 s{S_OUT}, s{P_DBG}\ns_mov_b32 s{S_OUT+1}, s{P_DBG+1}\ns_mov_b32 s{S_OUT+2}, 256\ns_mov_b32 s{S_OUT+3}, 0x20000")
        a(f"v_mov_b32 v254, s94\nv_mov_b32 v255, {slot*4}")
        a(f"s_mov_b64 s[100:101], exec\ns_mov_b64 exec, 1")
        a(f"buffer_store_dword v254, v255, s[{S_OUT}:{S_OUT+3}], 0 offen")
        a(f"s_mov_b64 exec, s[100:101]")
        srd(a, S_OUT, P_OUT, 2048 * 1280)
        a.label(lab)

    HMAP = {0: (0, False), 1: (1, False), 3: (2, False), 4: (3, False), 5: (4, False), 6: (5, False), 14: (6, False), 20: (7, False), 15: (8, False), 11: (9, False), 12: (10, False), 22: (11, False), 26: (12, False), 25: (13, False), 10: (14, False)}
    def stamp(self, idx):
        if os.environ.get("HTS"):
            if idx in self.HMAP: self.hstamp(*self.HMAP[idx])
            return
        if not self.ts or os.environ.get("TSMODE"): return
        a = self.a
        a(f"s_memrealtime s[94:95]\ns_waitcnt lgkmcnt(0)")
        a(f"s_lshl_b32 s96, s{sL}, 3\ns_add_u32 s96, s96, s{sW}\ns_lshl_b32 s96, s96, 7\ns_add_u32 s96, s96, {WS_TS + idx*4}")
        a(f"v_mov_b32 v254, s94\nv_mov_b32 v255, s96")
        a(f"s_mov_b64 s[100:101], exec\ns_mov_b64 exec, 1")
        a(f"buffer_store_dword v254, v255, {WSR}, 0 offen")
        a(f"s_mov_b64 exec, s[100:101]")

    def bail(self, err):
        a = self.a
        a(f"v_mov_b32 v254, {err}\nv_mov_b32 v255, 0")
        srd(a, S_C, P_DBG, 256)
        a(f"buffer_store_dword v254, v255, s[{S_C}:{S_C+3}], 0 offen")

    def poll(self, vaddr, vdat, n=1, tagpos=(0,), err=1, soff="0", depth=3):
        a = self.a
        L, D = a.new("Lpoll"), a.new("Lpdone")
        cnt = sT[20]
        op = {1: "buffer_load_dword", 2: "buffer_load_dwordx2", 4: "buffer_load_dwordx4"}[n]
        ld = lambda k: a(f"{op} {vr(vdat + k*n, n)}, v{vaddr}, {WSR}, {soff} offen sc1")
        a(f"s_mov_b32 s{cnt}, 0")
        for k in range(depth - 1): ld(k)
        a.label(L)
        for k in range(depth):
            ld((k + depth - 1) % depth)
            a(f"s_waitcnt vmcnt({depth-1})")
            b = vdat + k * n
            a(f"v_cmp_ne_u32 vcc, s{sNON}, v{b + tagpos[0]}")
            for t in tagpos[1:]:
                a(f"v_cmp_ne_u32 s[{sT[22]}:{sT[23]}], s{sNON}, v{b + t}")
                a(f"s_or_b64 vcc, vcc, s[{sT[22]}:{sT[23]}]")
            a(f"s_cbranch_vccz {D}")
        a(f"s_add_u32 s{cnt}, s{cnt}, 1\ns_cmp_lt_u32 s{cnt}, {SPIN_LIMIT}\ns_cbranch_scc1 {L}")
        self.bail(err)
        a.label(D)

    def one_lane_store(self, soff_s, vval):
        a = self.a
        a(f"s_mov_b64 exec, 1\nbuffer_store_dword v{vval}, v{vLANE}, {WSR}, s{soff_s} offen sc1\ns_mov_b64 exec, -1")

    def wave_flag(self, base):
        a = self.a
        a(f"s_lshl_b32 s{sT[0]}, s{sL}, 2\ns_add_u32 s{sT[0]}, s{sT[0]}, {base}")
        a(f"v_mov_b32 v255, s{sNON}")
        a("s_waitcnt vmcnt(0)\ns_barrier")
        E = a.new("Lwf")
        a(f"s_cmp_lg_u32 s{sW}, 0\ns_cbranch_scc1 {E}")
        self.one_lane_store(sT[0], 255)
        a.label(E)

    def wg_poll(self, base, first_s, nflags, vtmp, err, wave=7):
        a = self.a
        E = a.new("Lwp")
        a(f"s_cmp_lg_u32 s{sW}, {wave}\ns_cbranch_scc1 {E}")
        a(f"s_lshl_b32 s{sT[1]}, s{first_s}, 2\ns_add_u32 s{sT[1]}, s{sT[1]}, {base}\nv_lshlrev_b32 v{vtmp}, 2, v{vLANE}")
        a(f"s_mov_b32 exec_lo, {(1 << nflags) - 1}\ns_mov_b32 exec_hi, 0")
        self.poll(vtmp, vtmp + 1, n=1, err=err, soff=f"s{sT[1]}", depth=2)
        a("s_mov_b64 exec, -1")
        a.label(E)
        a("s_barrier")

    def bf16_round(self, dst, src):
        self.a(f"v_cvt_pk_bf16_f32 v{dst}, v{src}, v{src}\nv_and_b32 v{dst}, 0xffff0000, v{dst}")

    def dma_run(self, srd_s, voff, soff, lds, n, extra=""):
        a = self.a
        a(f"s_mov_b32 m0, {lds}")
        for k in range(n):
            a(f"buffer_load_dwordx4 v{voff}, s[{srd_s}:{srd_s+3}], s{soff} offen offset:{k*1024}{extra} lds")

    L1_H = 0; L1_WQ2 = 81920; L1_WKV = 128000; L1_GS = 153600; L1_NS = 158720; L1_SCR = 160000
    NQ1 = 22
    vX = 8; vXN = 48; vWQ = 128
    vWA, vC1 = 216, 228

    def prologue(self):
        a = self.a
        a(f"s_cmp_ge_u32 s2, 256\ns_cbranch_scc1 L_END")
        a("s_load_dwordx16 s[32:47], s[0:1], 0\ns_load_dwordx8 s[48:55], s[0:1], 64\ns_load_dwordx4 s[56:59], s[0:1], 96")
        if not os.environ.get("X_NOCP"):
            E = a.new("Lcp"); GP = a.new("Lpc")
            a(f"s_getpc_b64 s[{sT[2]}:{sT[3]}]")
            a.label(GP)
            a(f"s_lshr_b32 s{sT[4]}, s2, 3\ns_lshl_b32 s{sT[4]}, s{sT[4]}, 13\ns_cmp_ge_u32 s{sT[4]}, L_END - {GP}\ns_cbranch_scc1 {E}")
            a(f"v_lshlrev_b32 v208, 4, v0\nv_add_u32 v208, s{sT[4]}, v208\nv_min_u32 v208, L_END - {GP} - 16, v208")
            a(f"global_load_dwordx4 v[208:211], v208, s[{sT[2]}:{sT[3]}]")
            a.label(E)
        a(f"v_and_b32 v{vLANE}, 63, v0\nv_lshrrev_b32 v8, 6, v0")
        a(f"s_and_b32 s{sXC}, s2, 7\ns_lshr_b32 s{sJ}, s2, 3")
        a(f"v_readfirstlane_b32 s{sW}, v8")
        a(f"s_lshl_b32 s{sL}, s{sXC}, 5\ns_add_u32 s{sL}, s{sL}, s{sJ}")
        a(f"v_lshlrev_b32 v{vL16}, 4, v{vLANE}")
        a(f"s_lshr_b32 s{sG}, s{sL}, 4\ns_and_b32 s{sM}, s{sL}, 15\ns_lshr_b32 s{sI}, s{sL}, 3\ns_and_b32 s{sHG}, s{sL}, 7")
        a(f"s_and_b32 s{sW4}, s{sW}, 3\ns_lshr_b32 s{sKH}, s{sW}, 2\ns_lshl_b32 s{sWK}, s{sW}, 10")
        a(f"s_lshl_b32 s{sRBG}, s{sI}, 2\ns_add_u32 s{sRBG}, s{sRBG}, s{sW4}")
        a(f"v_and_b32 v243, 31, v{vLANE}\ns_lshl_b32 s{sT[0]}, s{sW}, 5\nv_add_u32 v243, s{sT[0]}, v243")
        a(f"v_lshlrev_b32 v244, 1, v243")
        a(f"s_movk_i32 s{sT[0]}, 7680\nv_mul_u32_u24 v243, s{sT[0]}, v243\nv_lshrrev_b32 v245, 5, v{vLANE}\nv_lshl_add_u32 v243, v245, 4, v243")
        a(f"s_lshl_b32 s{sT[5]}, s{sL}, 5\ns_cmp_lt_u32 s{sL}, 240\ns_cselect_b32 s{sT[5]}, s{sT[5]}, 0x7000000")
        a(f"v_mov_b32 v246, 0")
        a("s_waitcnt lgkmcnt(0)")
        srd(a, S_B, P_WMOD, 640 * 7680)
        for it in range(3):
            a(f"buffer_load_dwordx4 {vr(self.vWA+4*it,4)}, v243, s[{S_B}:{S_B+3}], s{sT[5]} offen")
            if it < 2: a(f"v_add_u32 v243, {256*7680}, v243")
        srd(a, S_A, P_CC, 1280)
        for it in range(3):
            a(f"buffer_load_ushort v{self.vC1+it}, v244, s[{S_A}:{S_A+3}], 0 offen offset:{it*512}")
        srd(a, S_WS, P_WS, WS_USED)
        a(f"buffer_load_dword v242, v246, {WSR}, 0 offen sc1")
        a("s_barrier")
        srd(a, S_X, P_X, 2048 * 1280)
        a(f"v_lshrrev_b32 v245, 4, v{vLANE}\nv_and_b32 v246, 15, v{vLANE}")
        a(f"s_lshl_b32 s{sT[8]}, s{sI}, 3\ns_add_u32 s{sT[8]}, s{sT[8]}, s{sW}\ns_mul_i32 s{sT[8]}, s{sT[8]}, {8*1280}")
        a(f"v_mul_u32_u24 v245, 1280, v245\nv_lshl_add_u32 v245, v246, 4, v245\nv_add_u32 v246, {4*1280}, v245")
        for it in range(2):
            for c in range(5):
                a(f"buffer_load_dwordx4 {vr(self.vX + (it*5+c)*4, 4)}, v{245+it}, s[{S_X}:{S_X+3}], s{sT[8]} offen offset:{c*256}")
        a("s_barrier")
        a(f"s_cmp_lt_u32 s{sHG}, 4\ns_cselect_b32 s{S_C}, s{P_WK}, s{P_WV}\ns_cselect_b32 s{S_C+1}, s{P_WK+1}, s{P_WV+1}")
        a(f"s_mov_b32 s{S_C+2}, 25600\ns_mov_b32 s{S_C+3}, 0x20000")
        a(f"s_lshl_b32 s{sT[3]}, s{sW}, 12\ns_add_u32 s{sT[4]}, s{sT[3]}, {self.L1_WKV}")
        E1, E2 = a.new("Lkv"), a.new("Lkv")
        a(f"s_cmp_ge_u32 s{sW}, 6\ns_cbranch_scc1 {E1}")
        self.dma_run(S_C, vL16, sT[3], f"s{sT[4]}", 4)
        a(f"s_branch {E2}")
        a.label(E1)
        a(f"s_cmp_eq_u32 s{sW}, 7\ns_cbranch_scc1 {E2}")
        self.dma_run(S_C, vL16, sT[3], f"s{sT[4]}", 1)
        a.label(E2)
        a(f"s_mov_b32 s{sT[0]}, 0x1999999a")
        for ph in range(5):
            r = vO160[ph]
            a(f"v_add_u32 v248, {64*ph}, v{vLANE}\nv_mul_hi_u32 v249, v248, s{sT[0]}")
            a(f"v_mul_u32_u24 v250, {1280-160}, v249\nv_lshl_add_u32 v250, v248, 4, v250")
            a(f"v_add_u32 v{r}, {4096 - (1024*ph if ph < 4 else 0)}, v250")
        a(f"s_sub_u32 s{S_A}, s{P_WQ}, 4096\ns_subb_u32 s{S_A+1}, s{P_WQ+1}, 0\ns_mov_b32 s{S_A+2}, {640*1280+4096}\ns_mov_b32 s{S_A+3}, 0x20000")
        a(f"s_mul_i32 s{sT[3]}, s{sW}, 40960\ns_mul_i32 s{sT[4]}, s{sHG}, 160\ns_add_u32 s{sT[3]}, s{sT[3]}, s{sT[4]}")
        a(f"s_mul_i32 s{sT[4]}, s{sW}, 5120")
        for j in range(3):
            E = None
            if j == 1:
                a(f"s_add_u32 s{sT[3]}, s{sT[3]}, {8*40960}\ns_add_u32 s{sT[4]}, s{sT[4]}, {8*5120}")
                a(f"s_cmp_ge_u32 s{sW}, 3\ns_cselect_b32 s{sT[5]}, {self.L1_WQ2 - 11*5120}, 0\ns_add_u32 s{sT[4]}, s{sT[4]}, s{sT[5]}")
            if j == 2:
                E = a.new("Lq")
                a(f"s_cmp_ge_u32 s{sW}, 4\ns_cbranch_scc1 {E}")
                a(f"s_add_u32 s{sT[3]}, s{sT[3]}, {8*40960}\ns_mul_i32 s{sT[4]}, s{sW}, 5120\ns_add_u32 s{sT[4]}, s{sT[4]}, {self.L1_WQ2 + 5*5120}")
            a(f"s_mov_b32 m0, s{sT[4]}")
            for ph in range(4):
                a(f"buffer_load_dwordx4 v{vO160[ph]}, s[{S_A}:{S_A+3}], s{sT[3]} offen offset:{ph*1024} lds")
            a(f"s_add_u32 m0, s{sT[4]}, 4096")
            a(f"buffer_load_dwordx4 v{vO160[4]}, s[{S_A}:{S_A+3}], s{sT[3]} offen lds")
            if E: a.label(E)
        self.dma_min = 10
        srd(a, S_OUT, P_OUT, 2048 * 1280)

    def p0(self):
        a = self.a
        a.c("---- P0: modulation GEMV (16 columns per workgroup) ----")
        a(f"s_waitcnt vmcnt({10 + self.dma_min})")
        a(f"v_readfirstlane_b32 s{sNON}, v242")
        acc = 244
        for it in range(3):
            c = self.vC1 + it
            a(f"v_lshlrev_b32 v{c}, 16, v{c}\nv_mul_f32 v{232+it}, 0xbfb8aa3b, v{c}")
        for it in range(3): a(f"v_exp_f32 v{232+it}, v{232+it}")
        a(f"s_add_u32 s{sNON}, s{sNON}, 1\ns_cmp_eq_u32 s{sNON}, 0\ns_cselect_b32 s{sNON}, 1, s{sNON}")
        for it in range(3): a(f"v_add_f32 v{232+it}, 1.0, v{232+it}")
        for it in range(3): a(f"v_rcp_f32 v{232+it}, v{232+it}")
        for it in range(3): a(f"v_mul_f32 v{232+it}, v{self.vC1+it}, v{232+it}")
        for it in range(3):
            a(f"v_cvt_pk_bf16_f32 v{235+it}, v{232+it}, 0\nv_cvt_pk_bf16_f32 v{238+it}, 0, v{232+it}")
        for it in range(3):
            w = self.vWA + 4 * it
            for j in range(4):
                c0 = "0" if it == 0 else f"v{acc+2*j}"; c1 = "0" if it == 0 else f"v{acc+2*j+1}"
                a(f"v_dot2_f32_bf16 v{acc+2*j}, v{w+j}, v{235+it}, {c0}\nv_dot2_f32_bf16 v{acc+2*j+1}, v{w+j}, v{238+it}, {c1}")
        for sh in (1, 2, 4, 8):
            for j in range(8):
                a(f"v_add_f32_dpp v{acc+j}, v{acc+j}, v{acc+j} row_shr:{sh} row_mask:0xf bank_mask:0xf bound_ctrl:0")
        for j in range(8):
            a(f"v_add_f32_dpp v{acc+j}, v{acc+j}, v{acc+j} row_bcast:15 row_mask:0xa bank_mask:0xf")
        a(f"v_lshrrev_b32 v252, 5, v{vLANE}\ns_lshl_b32 s{sT[2]}, s{sW}, 2\ns_add_u32 s{sT[2]}, s{sT[2]}, {self.L1_SCR}\nv_lshl_add_u32 v252, v252, 8, s{sT[2]}")
        a("s_mov_b32 exec_lo, 0x80000000\ns_mov_b32 exec_hi, 0x80000000")
        for j in range(8):
            a(f"ds_write_b32 v252, v{acc+j} offset:{j*32}")
        a("s_mov_b64 exec, -1")
        a("s_waitcnt lgkmcnt(0)\ns_barrier")
        E = a.new("Lp0e")
        a(f"s_cmp_lg_u32 s{sW}, 0\ns_cbranch_scc1 {E}\ns_cmp_ge_u32 s{sL}, 240\ns_cbranch_scc1 {E}")
        a(f"v_and_b32 v246, 15, v{vLANE}\nv_lshlrev_b32 v246, 5, v246\nv_add_u32 v246, {self.L1_SCR}, v246")
        a("ds_read_b128 v[248:251], v246\nds_read_b128 v[244:247], v246 offset:16")
        a(f"s_mov_b32 s{sT[2]}, 0")
        a(f"s_cmp_ge_u32 s{sL}, 40\ns_cselect_b32 s{sT[2]}, 1.0, s{sT[2]}\ns_cmp_ge_u32 s{sL}, 80\ns_cselect_b32 s{sT[2]}, 0, s{sT[2]}")
        a(f"s_cmp_ge_u32 s{sL}, 160\ns_cselect_b32 s{sT[2]}, 1.0, s{sT[2]}\ns_cmp_ge_u32 s{sL}, 200\ns_cselect_b32 s{sT[2]}, 0, s{sT[2]}")
        a("s_waitcnt lgkmcnt(0)")
        a("v_add_f32 v244, v244, v248\nv_add_f32 v245, v245, v249\nv_add_f32 v246, v246, v250\nv_add_f32 v247, v247, v251")
        a("v_add_f32 v244, v244, v245\nv_add_f32 v246, v246, v247\nv_add_f32 v244, v244, v246")
        self.bf16_round(244, 244)
        a(f"v_add_f32 v244, s{sT[2]}, v244")
        self.bf16_round(244, 244)
        a(f"v_mov_b32_dpp v245, v244 quad_perm:[1,0,3,2] row_mask:0xf bank_mask:0xf")
        a(f"v_lshrrev_b32 v247, 16, v244\nv_or_b32 v248, v247, v245")
        R = a.new("Lp0r")
        a(f"v_lshlrev_b32 v246, 2, v{vLANE}\nv_mov_b32 v249, s{sNON}")
        a(f"s_cmp_ge_u32 s{sL}, 80\ns_cbranch_scc1 {R}")
        a(f"s_lshl_b32 s{sT[1]}, s{sL}, 6\ns_add_u32 s{sT[1]}, s{sT[1]}, {WS_MODG}")
        a("s_mov_b32 exec_lo, 0x5555\ns_mov_b32 exec_hi, 0")
        a(f"buffer_store_dwordx2 v[248:249], v246, {WSR}, s{sT[1]} offen sc1")
        a(f"s_mov_b64 exec, -1\ns_branch {E}")
        a.label(R)
        a(f"s_sub_u32 s{sT[1]}, s{sL}, 80\ns_lshl_b32 s{sT[2]}, s{sT[1]}, 6\ns_add_u32 s{sT[2]}, s{sT[2]}, {WS_MODR}")
        a("s_mov_b32 exec_lo, 0xffff\ns_mov_b32 exec_hi, 0")
        a(f"buffer_store_dword v244, v246, {WSR}, s{sT[2]} offen sc1")
        EB = a.new("Lmodb")
        a(f"s_cmp_lt_u32 s{sL}, 120\ns_cbranch_scc1 {EB}\ns_cmp_ge_u32 s{sL}, 200\ns_cbranch_scc1 {EB}")
        a(f"s_sub_u32 s{sT[2]}, s{sL}, 120\ns_lshl_b32 s{sT[2]}, s{sT[2]}, 5\ns_add_u32 s{sT[2]}, s{sT[2]}, {WS_MODB}")
        a(f"v_lshlrev_b32 v246, 1, v{vLANE}\ns_mov_b32 exec_lo, 0x5555")
        a(f"buffer_store_dword v248, v246, {WSR}, s{sT[2]} offen sc1")
        a.label(EB)
        a(f"s_lshl_b32 s{sT[2]}, s{sT[1]}, 2\ns_add_u32 s{sT[2]}, s{sT[2]}, {F_MODR}")
        a("s_waitcnt vmcnt(0)")
        self.one_lane_store(sT[2], 249)
        a.label(E)

    def row16_allreduce(self, regs, op="v_add_f32", steps=(8, 4, 2, 1)):
        for sh in steps:
            for r in regs:
                self.a(f"{op}_dpp v{r}, v{r}, v{r} row_ror:{sh} row_mask:0xf bank_mask:0xf")

    def ln_stats(self):
        a = self.a
        a.c("---- LN1 statistics ----")
        a(f"s_waitcnt vmcnt({self.dma_min})")
        X, N = self.vX, self.vXN
        ONE = 240
        a(f"v_mov_b32 v{ONE}, 0x3f803f80")
        for q in range(20):
            for it in range(2):
                sa_, sq_ = 232 + 2 * it + (q & 1), 236 + 2 * it + (q & 1)
                x = X + it * 20 + q
                a(f"v_dot2_f32_bf16 v{sa_}, v{x}, v{ONE}, {'0' if q < 2 else 'v%d' % sa_}")
                a(f"v_dot2_f32_bf16 v{sq_}, v{x}, v{x}, {'0' if q < 2 else 'v%d' % sq_}")
        a("v_add_f32 v232, v232, v233\nv_add_f32 v234, v234, v235\nv_add_f32 v236, v236, v237\nv_add_f32 v238, v238, v239")
        self.row16_allreduce([232, 234, 236, 238])
        a(f"s_mov_b32 s{sT[0]}, 0x3acccccd")
        for it in range(2):
            m, q, r = 232 + 2 * it, 236 + 2 * it, 242 + 4 * it
            a(f"v_mul_f32 v{m}, s{sT[0]}, v{m}\nv_mul_f32 v{q}, s{sT[0]}, v{q}")
            a(f"v_fma_f32 v{q}, -v{m}, v{m}, v{q}\nv_max_f32 v{q}, 0, v{q}\nv_add_f32 v{q}, 0x3727c5ac, v{q}\nv_rsq_f32 v{r}, v{q}")
        for it in range(2):
            m, r = 232 + 2 * it, 242 + 4 * it
            a(f"v_mov_b32 v{r+1}, v{r}\nv_mul_f32 v{r+2}, -v{m}, v{r}\nv_mul_f32 v{r+3}, -v{m}, v{r}")
        for it in range(2):
            r = 242 + 4 * it
            for q in range(20):
                d = N + it * 40 + 2 * q
                a(f"v_lshlrev_b32 v{d}, 16, v{X+it*20+q}\nv_and_b32 v{d+1}, 0xffff0000, v{X+it*20+q}")
            for q in range(20):
                d = N + it * 40 + 2 * q
                a(f"v_pk_fma_f32 {vr(d,2)}, {vr(d,2)}, {vr(r,2)}, {vr(r+2,2)}")

    def emit_wq_addr(self, d, base):
        a = self.a
        a(f"v_lshrrev_b32 v{d}, 5, v{vLANE}\nv_bfe_u32 v{d+1}, v{vLANE}, 2, 2\nv_lshl_add_u32 v{d}, v{d}, 3, v{d+1}")
        a(f"v_bfe_u32 v{d+1}, v{vLANE}, 4, 1\nv_lshlrev_b32 v{d+1}, 5, v{d+1}\nv_mad_u32_u24 v{d}, v{d}, s{sT[19]}, v{d+1}")
        a(f"v_and_b32 v{d+1}, 3, v{vLANE}\nv_lshl_add_u32 v{d}, v{d+1}, 3, v{d}")
        a(f"s_mul_i32 s{sT[0]}, s{sW4}, 40\ns_add_u32 s{sT[0]}, s{sT[0]}, {base}\nv_add_u32 v{d}, s{sT[0]}, v{d}")

    def wq_to_regs(self):
        a = self.a
        a.c("---- wq part 1 -> registers ----")
        a(f"s_movk_i32 s{sT[19]}, 160")
        self.emit_wq_addr(8, self.L1_H)
        a("s_waitcnt vmcnt(0)\ns_barrier")
        if not os.environ.get("X_NOTLB"):
            E = a.new("Ltlb")
            a(f"s_cmp_lg_u32 s{sW}, 7\ns_cbranch_scc1 {E}")
            a(f"v_lshlrev_b32 v250, 21, v{vLANE}\nv_add_u32 v250, 0x100, v250")
            a("s_mov_b32 exec_lo, 0xfff\ns_mov_b32 exec_hi, 0")
            a(f"buffer_load_dword v251, v250, {WSR}, 0 offen")
            a("s_mov_b64 exec, 1\nv_mov_b32 v250, 0")
            for k, (p, pages) in enumerate(((P_OUT, 2), (P_WO, 1), (P_W1, 2), (P_W3, 2), (P_W2, 2))):
                for pg in range(pages):
                    a(f"s_add_u32 s{sT[2]}, s{p}, {pg << 21}\ns_addc_u32 s{sT[3]}, s{p+1}, 0")
                    a(f"global_load_dword v251, v250, s[{sT[2]}:{sT[3]}]")
            a("s_mov_b64 exec, -1")
            a.label(E)
        for s in range(self.NQ1):
            a(f"ds_read_b64_tr_b16 {vr(self.vWQ+4*s,2)}, v8 offset:{s*16*160}")
            a(f"ds_read_b64_tr_b16 {vr(self.vWQ+4*s+2,2)}, v8 offset:{s*16*160 + 4*160}")

    def mod_poll_apply(self):
        a = self.a
        a.c("---- wait for sa/ca granules, LN apply ----")
        a(f"v_and_b32 v8, 15, v{vLANE}\nv_lshlrev_b32 v9, 5, v8\nv_add_u32 v9, {self.L1_GS}, v9")
        a(f"v_lshrrev_b32 v10, 4, v{vLANE}\ns_lshl_b32 s{sT[0]}, s{sW}, 3\nv_add_u32 v10, s{sT[0]}, v10")
        for it in range(2):
            if it: a("v_add_u32 v10, 4, v10")
            a(f"v_and_b32 v11, 15, v10\nv_xor_b32 v11, v11, v8\nv_lshlrev_b32 v11, 4, v11")
            a(f"v_mad_u32_u24 v{12+it}, v10, s{sT[18]}, v11".replace(f"s{sT[18]}", "v14") if False else f"v_mul_u32_u24 v{12+it}, 1280, v10\nv_add_u32 v{12+it}, v{12+it}, v11")
        self.kv_addr()
        self.q_addr()
        E = a.new("Lmp")
        a(f"s_cmp_ge_u32 s{sW}, 5\ns_cbranch_scc1 {E}")
        a(f"v_lshlrev_b32 v15, 4, v0")
        a(f"s_mov_b32 s{sT[1]}, {WS_MODG}")
        self.poll(15, 16, n=4, tagpos=(1, 3), err=1, soff=f"s{sT[1]}", depth=1)
        a("v_lshlrev_b32 v20, 16, v16\nv_and_b32 v21, 0xffff0000, v16\nv_lshlrev_b32 v22, 16, v18\nv_and_b32 v23, 0xffff0000, v18")
        a(f"v_add_u32 v24, {self.L1_GS}, v15\nds_write_b128 v24, v[20:23]")
        a("v_xor_b32 v16, 0x80008000, v16\nv_xor_b32 v17, 0x80008000, v18")
        a(f"v_lshrrev_b32 v24, 1, v15\nv_add_u32 v24, {self.L1_NS}, v24\nv_cmp_gt_u32 vcc, 160, v0")
        a(f"s_and_saveexec_b64 s[{sT[22]}:{sT[23]}], vcc\nds_write_b64 v24, v[16:17]\ns_mov_b64 exec, -1")
        a.label(E)
        a("s_waitcnt lgkmcnt(0)\ns_barrier")
        def rd(c, b):
            a(f"ds_read_b128 v[{b}:{b+3}], v9 offset:{c*512}\nds_read_b128 v[{b+4}:{b+7}], v9 offset:{c*512 + 16}")
            a(f"ds_read_b128 v[{b+8}:{b+11}], v9 offset:{2560 + c*512}\nds_read_b128 v[{b+12}:{b+15}], v9 offset:{2560 + c*512 + 16}")
        rd(0, 16)
        for c in range(5):
            b = 16 if c % 2 == 0 else 32
            if c + 1 < 5:
                rd(c + 1, 48 - b)
                a("s_waitcnt lgkmcnt(4)" if c == 0 else "s_waitcnt lgkmcnt(6)")
            else: a("s_waitcnt lgkmcnt(2)")
            for it in range(2):
                x = self.vXN + it * 40 + c * 8
                for j in range(4):
                    a(f"v_pk_fma_f32 {vr(x+2*j,2)}, {vr(x+2*j,2)}, {vr(b+8+2*j,2)}, {vr(b+2*j,2)}")
            for it in range(2):
                x = self.vXN + it * 40 + c * 8
                for j in range(4):
                    a(f"v_cvt_pk_bf16_f32 v{x+j}, v{x+2*j}, v{x+2*j+1}")
                a(f"ds_write_b128 v{12+it}, {vr(x,4)} offset:{self.L1_H + c*256}")
        a("s_waitcnt lgkmcnt(0)\ns_barrier")

    def sum_groups(self, r, t, op="v_add_f32"):
        a = self.a
        a(f"v_mov_b32 v{t}, v{r}\nv_permlane32_swap_b32 v{r}, v{t}\n{op} v{r}, v{r}, v{t}")
        a(f"v_mov_b32 v{t}, v{r}\nv_permlane16_swap_b32 v{r}, v{t}\n{op} v{r}, v{r}, v{t}")

    def kv_addr(self):
        a = self.a
        a(f"s_and_b32 s{sT[0]}, s{sHG}, 3\ns_lshl_b32 s{sT[0]}, s{sT[0]}, 4")
        a(f"v_and_b32 v232, 15, v{vLANE}\nv_lshrrev_b32 v233, 4, v{vLANE}")
        a(f"v_add_u32 v234, s{sT[0]}, v232\nv_mul_u32_u24 v234, 1280, v234")
        a(f"s_lshr_b32 s{sT[1]}, s{sW}, 1\ns_mul_i32 s{sT[2]}, s{sT[1]}, 5")
        a(f"s_lshl_b32 s{sT[3]}, s{sT[2]}, 2\nv_add_u32 v235, s{sT[3]}, v233")
        for j in range(5):
            a(f"v_add_u32 v236, {4*j}, v235\nv_xor_b32 v236, v236, v232\nv_lshl_add_u32 v{240+j}, v236, 4, v234")
        a(f"v_bfe_u32 v236, v{vLANE}, 2, 2\nv_lshl_add_u32 v236, v233, 3, v236\nv_mul_u32_u24 v236, 40, v236\nv_and_b32 v237, 3, v{vLANE}\nv_lshl_add_u32 v236, v237, 3, v236")
        a(f"s_and_b32 s{sT[3]}, s{sW}, 1\ns_lshl_b32 s{sT[3]}, s{sT[3]}, 5\ns_mul_i32 s{sT[4]}, s{sT[2]}, 1280\ns_add_u32 s{sT[3]}, s{sT[3]}, s{sT[4]}\ns_add_u32 s{sT[3]}, s{sT[3]}, {self.L1_WKV}\nv_add_u32 v236, s{sT[3]}, v236")
        a(f"s_lshl_b32 s{sT[3]}, s{sT[2]}, 6\ns_add_u32 s{sT[3]}, s{sT[3]}, {self.L1_NS}\nv_lshl_add_u32 v237, v233, 4, s{sT[3]}")

    def kv_proj(self):
        a = self.a
        a.c("---- K/V projection ----")
        for j in range(5):
            a(f"ds_read_b64_tr_b16 {vr(32+4*j,2)}, v236 offset:{j*1280}\nds_read_b64_tr_b16 {vr(34+4*j,2)}, v236 offset:{j*1280 + 160}")
            a(f"ds_read_b128 {vr(52+4*j,4)}, v{240+j} offset:{self.L1_H}")
        LV, LJ = a.new("Lvproj"), a.new("Lkvj")
        a(f"s_cmp_ge_u32 s{sHG}, 4\ns_cbranch_scc1 {LV}")
        a("s_waitcnt lgkmcnt(0)")
        for j in range(5): a(f"ds_read_b128 {vr(72+4*j,4)}, v237 offset:{j*64}")
        for j in range(5):
            a(f"v_mfma_f32_16x16x32_bf16 v[28:31], {vr(32+4*j,4)}, {vr(52+4*j,4)}, {'0' if j == 0 else 'v[28:31]'}")
        a("s_waitcnt lgkmcnt(0)")
        for j in range(5):
            a(f"v_mfma_f32_16x16x32_bf16 v[28:31], {vr(32+4*j,4)}, {vr(72+4*j,4)}, v[28:31]")
        a(f"s_branch {LJ}")
        a.label(LV)
        a("s_waitcnt lgkmcnt(0)")
        for j in range(5):
            a(f"v_mfma_f32_16x16x32_bf16 v[28:31], {vr(52+4*j,4)}, {vr(32+4*j,4)}, {'0' if j == 0 else 'v[28:31]'}")
        a.label(LJ)
        a(f"s_add_u32 s{sT[3]}, s{sWK}, {self.L1_WKV}\nv_add_u32 v18, s{sT[3]}, v{vL16}")
        a("s_barrier")
        a("ds_write_b128 v18, v[28:31]\ns_waitcnt lgkmcnt(0)\ns_barrier")
        E = a.new("Lkvend")
        a(f"s_cmp_ge_u32 s{sW}, 2\ns_cbranch_scc1 {E}")
        a("ds_read_b128 v[32:35], v18 offset:2048\nds_read_b128 v[36:39], v18 offset:4096\nds_read_b128 v[40:43], v18 offset:6144")
        a(f"s_and_b32 s{sT[2]}, s{sHG}, 3\ns_lshr_b32 s{sT[2]}, s{sT[2]}, 1\ns_lshl_b32 s{sT[3]}, s{sI}, 1\ns_add_u32 s{sT[2]}, s{sT[2]}, s{sT[3]}")
        a(f"s_mul_i32 s{sT[2]}, s{sT[2]}, {KV_TILE}\ns_add_u32 s{sT[2]}, s{sT[2]}, {WS_KV}\ns_and_b32 s{sT[3]}, s{sHG}, 1\ns_lshl_b32 s{sT[3]}, s{sT[3]}, 4")
        a("s_waitcnt lgkmcnt(0)")
        for r in range(4):
            a(f"v_add_f32 v{32+r}, v{32+r}, v{36+r}\nv_add_f32 v{28+r}, v{28+r}, v{40+r}")
        for r in range(4): a(f"v_add_f32 v{28+r}, v{28+r}, v{32+r}")
        a("v_cvt_pk_bf16_f32 v24, v28, v29\nv_cvt_pk_bf16_f32 v25, v30, v31")
        LV, LJ, W1 = a.new("Lv2"), a.new("Lj2"), a.new("Lw1")
        a(f"s_cmp_ge_u32 s{sHG}, 4\ns_cbranch_scc1 {LV}")
        a("v_dot2_f32_bf16 v26, v24, v24, 0\nv_dot2_f32_bf16 v26, v25, v25, v26")
        a(f"s_cmp_eq_u32 s{sW}, 1\ns_cbranch_scc1 {W1}")
        self.sum_groups(26, 27)
        a(f"v_add_u32 v30, s{sT[3]}, v232\nv_and_b32 v31, 1, v233\nv_lshl_add_u32 v30, v31, 5, v30\nv_lshlrev_b32 v30, 4, v30")
        a(f"v_lshrrev_b32 v31, 1, v233\nv_lshl_add_u32 v30, v31, 3, v30")
        a(f"buffer_store_dwordx2 v[24:25], v30, {WSR}, s{sT[2]} offen sc1")
        a(f"s_branch {LJ}")
        a.label(W1)
        a(f"v_cmp_gt_u32 vcc, 16, v{vLANE}\nv_cndmask_b32 v26, 0, v26, vcc")
        a(f"v_add_u32 v30, s{sT[3]}, v232\nv_lshlrev_b32 v30, 3, v30")
        a("s_mov_b32 exec_lo, 0xffff\ns_mov_b32 exec_hi, 0")
        a(f"buffer_store_dwordx2 v[24:25], v30, {WSR}, s{sT[2]} offen offset:3072 sc1")
        a(f"s_mov_b64 exec, -1\ns_branch {LJ}")
        a.label(LV)
        a("v_max_f32 v26, |v28|, |v29|\nv_max_f32 v27, |v30|, |v31|\nv_max_f32 v26, v26, v27")
        a(f"s_lshl_b32 s{sT[1]}, s{sW}, 4\nv_add_u32 v27, s{sT[1]}, v232")
        a("v_cmp_gt_u32 vcc, 20, v27\nv_cndmask_b32 v26, 0, v26, vcc")
        a("v_mov_b32 v28, 0x3f803f80\nv_and_b32 v29, 27, v27")
        a(f"v_cmp_eq_u32 vcc, 20, v27\nv_cmp_eq_u32 s[{sT[22]}:{sT[23]}], 24, v27\ns_or_b64 vcc, vcc, s[{sT[22]}:{sT[23]}]")
        a("v_cndmask_b32 v24, v24, v28, vcc\nv_cndmask_b32 v25, v25, v28, vcc")
        a(f"s_lshl_b32 s{sT[3]}, s{sT[3]}, 6\ns_add_u32 s{sT[2]}, s{sT[2]}, s{sT[3]}")
        a("v_and_b32 v31, 1, v233\nv_lshl_add_u32 v30, v31, 5, v27\nv_lshlrev_b32 v30, 4, v30\nv_lshrrev_b32 v31, 1, v233\nv_lshl_add_u32 v30, v31, 3, v30")
        a(f"buffer_store_dwordx2 v[24:25], v30, {WSR}, s{sT[2]} offen offset:1024 sc1")
        a.label(LJ)
        self.row16_allreduce([26], "v_max_f32")
        self.sum_groups(26, 27, "v_max_f32")
        a(f"s_lshl_b32 s{sT[2]}, s{sL}, 4\ns_lshl_b32 s{sT[3]}, s{sW}, 3\ns_add_u32 s{sT[2]}, s{sT[2]}, s{sT[3]}\ns_add_u32 s{sT[2]}, s{sT[2]}, {F_KV}")
        a(f"v_mov_b32 v28, s{sNON}\nv_mov_b32 v29, v26\nv_mov_b32 v30, 0")
        a("s_waitcnt vmcnt(0)\ns_mov_b64 exec, 1")
        a(f"buffer_store_dwordx2 v[28:29], v30, {WSR}, s{sT[2]} offen sc1")
        a("s_mov_b64 exec, -1")
        a.label(E)

    vQ1, vQ2 = 8, 12
    vO = 16
    vS = [32, 48]
    vP = 64
    vK1 = [72, 76]; vK2 = [80, 84]; vV1 = [88, 92]; vV2 = [96, 100]
    vAK = [104, 105]; vAK2 = [106, 107]
    vQN = 108; vK2L = 109
    L2_KV = 0; L2_WO = 53248; L2_UT = 0; L2_SCR = 0; L2_MISC = 162816
    CH = 4 * KV_TILE

    def q_addr(self):
        a = self.a
        a(f"s_lshl_b32 s{sT[0]}, s{sKH}, 5\nv_and_b32 v238, 31, v{vLANE}\nv_add_u32 v238, s{sT[0]}, v238")
        a(f"v_and_b32 v239, 15, v238\nv_mul_u32_u24 v238, 1280, v238\nv_lshrrev_b32 v226, 5, v{vLANE}\nv_xor_b32 v239, v239, v226")
        for q in range(8):
            a(f"v_xor_b32 v227, {2*q}, v239\nv_lshl_add_u32 v{216+q}, v227, 4, v238")
        self.emit_wq_addr(224, self.L1_WQ2)

    def q_proj(self):
        a = self.a
        a.c("---- Q projection: D[m=dim][n=row] ----")
        acc = 16
        def ldB(s): a(f"ds_read_b128 {vr(48+4*(s%3),4)}, v{216+s%8} offset:{self.L1_H + (s//8)*256}")
        def ldA(s):
            o = (s - self.NQ1) * 16 * 160
            a(f"ds_read_b64_tr_b16 {vr(64+4*(s%3),2)}, v224 offset:{o}\nds_read_b64_tr_b16 {vr(66+4*(s%3),2)}, v224 offset:{o+640}")
        def cnt(s): return 0 if s >= 40 else (1 + (2 if s >= self.NQ1 else 0))
        def ld(s):
            if s < 40:
                ldB(s)
                if s >= self.NQ1: ldA(s)
        ld(0); ld(1)
        for s in range(40):
            ld(s + 2)
            a(f"s_waitcnt lgkmcnt({cnt(s+1) + cnt(s+2)})")
            A = vr(self.vWQ + 4 * s, 4) if s < self.NQ1 else vr(64 + 4 * (s % 3), 4)
            a(f"v_mfma_f32_32x32x16_bf16 {vr(acc,16)}, {A}, {vr(48+4*(s%3),4)}, {'0' if s == 0 else vr(acc,16)}")
        a(f"s_mov_b32 s{sT[0]}, 0x3ea52b8e")
        for j in range(12): a(f"v_mul_f32 v{acc+j}, s{sT[0]}, v{acc+j}")
        for j in range(4): a(f"v_cvt_pk_bf16_f32 v{self.vQ1+j}, v{acc+2*j}, v{acc+2*j+1}")
        a(f"v_cvt_pk_bf16_f32 v{self.vQ2}, v{acc+8}, v{acc+9}\nv_cvt_pk_bf16_f32 v{self.vQ2+1}, v{acc+10}, v{acc+11}")
        a(f"v_cmp_gt_u32 vcc, 32, v{vLANE}")
        a(f"v_mov_b32 v{self.vQ2+2}, 0\nv_mov_b32 v{self.vQ2+3}, 0")
        a(f"v_cndmask_b32 v{self.vQ2}, 0, v{self.vQ2}, vcc\nv_cndmask_b32 v{self.vQ2+1}, 0, v{self.vQ2+1}, vcc")
        N = self.vQN
        regs = [self.vQ1 + j for j in range(4)] + [self.vQ2, self.vQ2 + 1]
        for i, r in enumerate(regs):
            a(f"v_dot2_f32_bf16 v{N}, v{r}, v{r}, {'0' if i == 0 else 'v%d' % N}")
        a(f"v_mov_b32 v40, v{N}\nv_permlane32_swap_b32 v{N}, v40\nv_add_f32 v{N}, v{N}, v40")
        a(f"v_sqrt_f32 v{N}, v{N}")

    def kv_piece(self, src_s, slot, half):
        L = [f"s_add_u32 m0, s{sT[18]}, {slot*self.CH}"]
        for k in (2 * half, 2 * half + 1):
            L.append(f"buffer_load_dwordx4 v{vL16}, {WSR}, s{src_s} offen offset:{k*1024} sc1 lds")
        if half == 1: L.append(f"s_add_u32 s{src_s}, s{src_s}, {self.CH}")
        return L

    def kv_dma(self, src_s, slot):
        for k in range(2):
            for x in self.kv_piece(src_s, slot, k): self.a(x)

    def ld_k(self, b, t):
        o = (t % 16) * KV_TILE
        self.a(f"ds_read_b128 {vr(self.vK1[b],4)}, v{vL16} offset:{o}\nds_read_b64 {vr(self.vK2[b],2)}, v{self.vK2L} offset:{o + 3072}")
    def ld_v1(self, b, t): self.a(f"ds_read_b128 {vr(self.vV1[b],4)}, v{vL16} offset:{(t % 16)*KV_TILE + 1024}")
    def ld_v2(self, b, t): self.a(f"ds_read_b128 {vr(self.vV2[b],4)}, v{vL16} offset:{(t % 16)*KV_TILE + 2048}")
    def qk(self, kb, sb, part):
        S = vr(self.vS[sb], 16)
        if part == 0: self.a(f"v_mfma_f32_32x32x16_bf16 {S}, {vr(self.vK1[kb],4)}, {vr(self.vQ1,4)}, 0")
        else: self.a(f"v_mfma_f32_32x32x16_bf16 {S}, {vr(self.vK2[kb],4)}, {vr(self.vQ2,4)}, {S}")

    def attn_setup(self):
        a = self.a
        a.c("---- attention: wait for K/V, bounds, stand-in for the row max ----")
        a("s_waitcnt lgkmcnt(0)\ns_barrier")
        a(f"s_lshl_b32 s{sT[18]}, s{sW4}, 12\ns_cmp_eq_u32 s{sW4}, 3\ns_cselect_b32 s{sT[18]}, 9216, s{sT[18]}")
        a(f"s_add_u32 s{sT[17]}, s{sT[18]}, {WS_KV}")
        PE = a.new("Lkvo")
        a(f"s_cmp_lg_u32 s{sW}, 3\ns_cbranch_scc1 {PE}")
        a(f"v_lshlrev_b32 v111, 6, v{vLANE}\ns_mov_b32 s{sT[1]}, {F_KV}")
        L, D = a.new("Lkvp"), a.new("Lkvd")
        cnt = sT[20]
        a(f"s_mov_b32 s{cnt}, 0")
        a.label(L)
        for j in range(4): a(f"buffer_load_dwordx4 {vr(112+4*j,4)}, v111, {WSR}, s{sT[1]} offen offset:{16*j} sc1")
        a("s_waitcnt vmcnt(0)")
        a(f"v_xor_b32 v128, s{sNON}, v112\nv_xor_b32 v129, s{sNON}, v114")
        for j in range(1, 4):
            a(f"v_xor_b32 v130, s{sNON}, v{112+4*j}\nv_xor_b32 v131, s{sNON}, v{114+4*j}\nv_or3_b32 v128, v128, v130, v131")
        a("v_or_b32 v128, v128, v129\nv_cmp_ne_u32 vcc, 0, v128")
        a(f"s_cbranch_vccz {D}")
        a(f"s_add_u32 s{cnt}, s{cnt}, 1\ns_cmp_lt_u32 s{cnt}, {SPIN_LIMIT}\ns_cbranch_scc1 {L}")
        self.bail(2)
        a.label(D)
        a("v_max3_f32 v113, v113, v117, v121\nv_max3_f32 v115, v115, v119, v123\nv_max_f32 v113, v113, v125\nv_max_f32 v115, v115, v127")
        self.row16_allreduce([113, 115], "v_max_f32", steps=(8, 4, 2))
        self.sum_groups(113, 114, "v_max_f32"); self.sum_groups(115, 116, "v_max_f32")
        a(f"v_lshlrev_b32 v114, 3, v{vLANE}\nv_add_u32 v114, {self.L2_MISC + 64}, v114\nv_mov_b32 v112, v113\nv_mov_b32 v113, v115")
        a("s_mov_b64 exec, 3\nds_write_b64 v114, v[112:113]\ns_mov_b64 exec, -1\ns_waitcnt lgkmcnt(0)")
        a.label(PE)
        if self.stop >= 3:
            import g3b
            g3b.bg_setup(self)
        a("s_barrier")
        self.stamp(31)
        E = a.new("Lfc")
        a(f"s_cmp_ge_u32 s{sW}, 4\ns_cbranch_scc1 {E}")
        for k in range(3):
            self.kv_dma(sT[17], k)
        a.label(E)
        a(f"v_mov_b32 v114, {self.L2_MISC + 64}\nds_read_b128 v[116:119], v114\ns_waitcnt lgkmcnt(0)")
        a("v_add_f32 v113, v116, v117\nv_sqrt_f32 v113, v113\nv_max_f32 v114, v118, v119")
        a(f"v_mul_f32 v113, 0x3f810000, v113\nv_mul_f32 v{self.vQN}, v{self.vQN}, v113")
        E = a.new("Lgen")
        a(f"s_or_b32 s{sT[0]}, s{sL}, s{sW}\ns_cmp_lg_u32 s{sT[0]}, 0\ns_cbranch_scc1 {E}")
        a(f"v_mov_b32 v112, s{sNON}\ns_mov_b32 s{sT[0]}, {WS_NONCE}")
        self.one_lane_store(sT[0], 112)
        a.label(E)
        for b in range(2):
            a(f"v_mov_b32 v{self.vK2[b]+2}, 0x3f803f80\nv_mov_b32 v{self.vK2[b]+3}, 0x00003f80")
        a(f"v_and_b32 v{self.vK2L}, 31, v{vLANE}\nv_lshlrev_b32 v{self.vK2L}, 3, v{self.vK2L}")
        a("s_waitcnt vmcnt(8)\ns_barrier")
        self.stamp(13) if os.environ.get("TSX") else None
        self.ld_k(0, 0)
        self.ld_k(1, 1)
        self.ld_v1(0, 0); self.ld_v2(0, 0)
        a("s_waitcnt lgkmcnt(4)")
        self.qk(0, 0, 0); self.qk(0, 0, 1)
        S = self.vS[0]
        U = self.vQN
        a(f"v_mov_b32 v115, 0x43300000\nv_mov_b32 v116, 0x4d000000")
        a(f"v_cmp_nlt_f32 s[{sT[22]}:{sT[23]}], v114, v116")
        a(f"v_max3_f32 v112, v{S}, v{S+1}, v{S+2}")
        for j in range(3, 15, 2): a(f"v_max3_f32 v112, v112, v{S+j}, v{S+j+1}")
        a(f"v_max_f32 v112, v112, v{S+15}")
        a("v_mov_b32 v113, v112\nv_permlane32_swap_b32 v112, v113\nv_max_f32 v112, v112, v113")
        a(f"v_sub_f32 v113, v{U}, v112\nv_cmp_nle_f32 vcc, v113, v115")
        a(f"s_or_b64 vcc, vcc, s[{sT[22]}:{sT[23]}]")
        a(f"s_cmp_lg_u64 vcc, 0\ns_cselect_b32 s{sT[12]}, 1, 0")
        if self.force_fallback: a(f"s_mov_b32 s{sT[12]}, 1")
        a(f"s_lshl_b32 s{sT[0]}, s{sW}, 2\ns_add_u32 s{sT[0]}, s{sT[0]}, {self.L2_MISC}")
        a(f"v_mov_b32 v113, s{sT[0]}\nv_mov_b32 v114, s{sT[12]}\nds_write_b32 v113, v114")
        a(f"v_add_f32 v112, v{U}, v112\nv_mul_f32 v112, 0.5, v112\nv_mov_b32 v113, {self.L2_MISC}")
        a("s_waitcnt lgkmcnt(0)\ns_barrier")
        a("ds_read_b128 v[116:119], v113\nds_read_b128 v[120:123], v113 offset:16\ns_waitcnt lgkmcnt(0)")
        a("v_or3_b32 v116, v116, v117, v118\nv_or3_b32 v119, v119, v120, v121\nv_or3_b32 v116, v116, v122, v123\nv_or_b32 v116, v116, v119")
        a(f"v_readfirstlane_b32 s{sT[12]}, v116")
        FB = a.new("Lnofb")
        a(f"s_cmp_eq_u32 s{sT[12]}, 0\ns_cbranch_scc1 {FB}")
        self.max_pass()
        a.label(FB)
        a("v_sub_f32 v112, 0, v112")
        a("v_cvt_pk_bf16_f32 v113, v112, v112\nv_and_b32 v114, 0xffff0000, v113\nv_sub_f32 v112, v112, v114")
        a("v_cvt_pk_bf16_f32 v115, v112, v112\nv_and_b32 v116, 0xffff0000, v115\nv_sub_f32 v112, v112, v116")
        a("v_cvt_pk_bf16_f32 v117, v112, 0")
        a("v_and_b32 v113, 0xffff, v113\nv_or_b32 v113, v113, v116")
        a(f"v_cmp_gt_u32 vcc, 32, v{vLANE}")
        a(f"v_cndmask_b32 v{self.vQ2+2}, 0, v113, vcc\nv_cndmask_b32 v{self.vQ2+3}, 0, v117, vcc")

    def max_pass(self):
        a = self.a
        a.c("fallback: exact row max")
        a("v_mov_b32 v112, 0xff7fffff")
        L = a.new("Lmx"); c = sT[13]
        a(f"s_add_u32 s{c}, s{sT[18]}, {WS_KV}\ns_mov_b32 s{sT[21]}, 0")
        a.label(L)
        E = a.new("Lmxd")
        a(f"s_cmp_ge_u32 s{sW}, 4\ns_cbranch_scc1 {E}")
        self.kv_dma(c, 3)
        a.label(E)
        a("s_waitcnt vmcnt(0)\ns_barrier")
        S = self.vS[1]
        for t in range(4):
            o = (12 + t) * KV_TILE
            a(f"ds_read_b128 v[120:123], v{vL16} offset:{o}\nds_read_b64 v[124:125], v{self.vK2L} offset:{o + 3072}")
            a(f"v_mov_b32 v126, 0\nv_mov_b32 v127, 0\ns_waitcnt lgkmcnt(0)")
            a(f"v_mfma_f32_32x32x16_bf16 {vr(S,16)}, v[120:123], {vr(self.vQ1,4)}, 0")
            a(f"v_mfma_f32_32x32x16_bf16 {vr(S,16)}, v[124:127], {vr(self.vQ2,4)}, {vr(S,16)}")
            for j in range(0, 16, 2): a(f"v_max3_f32 v112, v112, v{S+j}, v{S+j+1}")
        a("s_barrier")
        a(f"s_add_u32 s{sT[21]}, s{sT[21]}, 1\ns_cmp_lt_u32 s{sT[21]}, 16\ns_cbranch_scc1 {L}")
        a("v_mov_b32 v113, v112\nv_permlane32_swap_b32 v112, v113\nv_max_f32 v112, v112, v113")

    def attn_tile(self, t, h1=(), h2=()):
        a = self.a
        S = self.vS[t % 2]; Sp = self.vS[(t + 1) % 2]; P = self.vP
        def ex(j): a(f"v_exp_f32 v{S+j}, v{S+j}")
        def cv(j, b): a(f"v_cvt_pk_bf16_f32 v{P+j}, v{b+2*j}, v{b+2*j+1}")
        O = vr(self.vO, 16)
        ex(0); ex(1); cv(6, Sp); ex(2); cv(7, Sp); ex(3)
        a("s_waitcnt lgkmcnt(2)")
        self.qk((t + 1) % 2, (t + 1) % 2, 0)
        self.ld_k(t % 2, t + 2)
        ex(4); ex(5); cv(0, S); ex(6); cv(1, S); ex(7)
        self.qk((t + 1) % 2, (t + 1) % 2, 1)
        self.ld_v1((t + 1) % 2, t + 1)
        for x in h1: a(x)
        ex(8); ex(9); cv(2, S); ex(10); cv(3, S); ex(11)
        a(f"v_mfma_f32_32x32x16_bf16 {O}, {vr(self.vV2[(t+1)%2],4)}, {vr(P+4,4)}, {O}")
        self.ld_v2((t + 1) % 2, t + 1)
        for x in h2: a(x)
        ex(12); ex(13); cv(4, S); ex(14); cv(5, S); ex(15)
        a("s_waitcnt lgkmcnt(4)")
        a(f"v_mfma_f32_32x32x16_bf16 {O}, {vr(self.vV1[t%2],4)}, {vr(P,4)}, {O}")

    def attn_main(self):
        a = self.a
        a.c("---- attention main loop (unrolled, static background schedule) ----")
        src = sT[17]
        for j in range(16): a(f"v_mov_b32 v{self.vO+j}, 0")
        self.qk(0, 0, 0); self.qk(0, 0, 1)
        for j in range(12, 16): a(f"v_mov_b32 v{self.vS[1]+j}, 0")
        a(f"v_mov_b32 v{self.vP+4}, 0\nv_mov_b32 v{self.vP+5}, 0")
        for j in range(4): a(f"v_mov_b32 v{self.vV2[1]+j}, 0")
        a(f"s_cmp_ge_u32 s{sW}, 4\ns_cselect_b64 vcc, -1, 0")
        bg = {}
        def put(T, tag, ins, n=1, need=None, role=None): bg.setdefault(T, []).append((tag, ins, n, need, role))
        for c in range(13):
            put(4 * c + 2, f"kv{c+3}", self.kv_piece(src, (c + 3) % 4, 0), n=2, role="A")
            put(4 * c + 3, f"kv{c+3}", self.kv_piece(src, (c + 3) % 4, 1), n=2, role="A")
        if self.stop >= 3 and not os.environ.get("X_NOEXTRA"):
            import g3b
            g3b.bg_schedule(self, put)
        pend = {"A": [("kv1", 4), ("kv2", 4)], "B": []}
        def wait_for(role, tag):
            p = pend[role]
            idx = [i for i, (k, n) in enumerate(p) if k == tag]
            if not idx: return None
            after = sum(n for (k, n) in p[idx[-1] + 1:])
            del p[:idx[-1] + 1]
            return after
        def guarded(role, body):
            lab = a.new("Lg")
            return [f"s_cbranch_vcc{'nz' if role == 'A' else 'z'} {lab}"] + body + [f"{lab}:"]
        for T in range(64):
            hooks = [[], []]
            ops = bg.get(T, [])
            for k, (tag, ins, n, need, role) in enumerate(ops):
                h = hooks[0] if k < (len(ops) + 1) // 2 else hooks[1]
                body = []
                if need:
                    assert role
                    w = wait_for(role, need)
                    if w is not None: body.append(f"s_waitcnt vmcnt({w})")
                body.extend(ins)
                if role: h.extend(guarded(role, body)); pend[role].append((tag, n)) if n else None
                else:
                    h.extend(body)
                    if n: pend["A"].append((tag, n)); pend["B"].append((tag, n))
            self.attn_tile(T, hooks[0], hooks[1])
            if T % 4 == 1 and T < 62:
                c = T // 4
                w = wait_for("A", f"kv{c+1}")
                if w is not None:
                    for x in guarded("A", [f"s_waitcnt vmcnt({w})"]): a(x)
                a("s_barrier")
        S = self.vS[1]; P = self.vP
        a(f"v_cvt_pk_bf16_f32 v{P+6}, v{S+12}, v{S+13}\nv_cvt_pk_bf16_f32 v{P+7}, v{S+14}, v{S+15}")
        a(f"s_waitcnt lgkmcnt(0)")
        a(f"v_mfma_f32_32x32x16_bf16 {vr(self.vO,16)}, {vr(self.vV2[1],4)}, {vr(P+4,4)}, {vr(self.vO,16)}")

    def attn_epilogue(self):
        a = self.a
        a.c("---- attention epilogue ----")
        O = self.vO
        a(f"s_lshl_b32 s{sT[0]}, s{sI}, 2\ns_lshl_b32 s{sT[1]}, s{sKH}, 1\ns_add_u32 s{sT[0]}, s{sT[0]}, s{sT[1]}\ns_mul_i32 s{sT[0]}, s{sT[0]}, {24*1024}\ns_add_u32 s{sT[0]}, s{sT[0]}, {WS_O}")
        a(f"s_lshl_b32 s{sT[1]}, s{sHG}, 2\ns_add_u32 s{sT[1]}, s{sT[1]}, s{sW4}\ns_mul_i32 s{sT[1]}, s{sT[1]}, 768\ns_add_u32 s{sT[0]}, s{sT[0]}, s{sT[1]}")
        a(f"v_bfe_u32 v32, v{vLANE}, 4, 1\nv_mul_u32_u24 v32, {24*1024}, v32\nv_and_b32 v33, 15, v{vLANE}\nv_lshl_add_u32 v32, v33, 4, v32")
        a(f"v_lshrrev_b32 v33, 5, v{vLANE}\nv_lshl_add_u32 v33, v33, 8, v32")
        a(f"v_cmp_gt_u32 vcc, 32, v{vLANE}\nv_mov_b32 v50, 0\nv_mov_b32 v51, 0")
        a(f"v_cndmask_b32 v40, v{O+8}, v{O+12}, vcc")
        a("v_rcp_f32 v40, v40")
        for j in range(12): a(f"v_mul_f32 v{O+j}, v{O+j}, v40")
        for j in range(6): a(f"v_cvt_pk_bf16_f32 v{44+j}, v{O+2*j}, v{O+2*j+1}")
        a(f"buffer_store_dwordx4 v[44:47], v33, {WSR}, s{sT[0]} offen sc1")
        a("s_mov_b32 exec_hi, 0")
        a(f"buffer_store_dwordx4 v[48:51], v32, {WSR}, s{sT[0]} offen offset:512 sc1")
        a("s_mov_b64 exec, -1")
        self.wave_flag(F_O)

    def build(self):
        a = self.a
        self.prologue(); self.stamp(0)
        self.p0(); self.stamp(1)
        self.ln_stats()
        self.wq_to_regs(); self.stamp(2)
        self.mod_poll_apply(); self.stamp(3)
        self.kv_proj(); self.stamp(16)
        self.q_proj(); self.stamp(4)
        if self.stop >= 2:
            self.attn_setup(); self.stamp(5); self.cstamp(27)
            self.attn_main(); self.stamp(6); self.cstamp(28)
            self.attn_epilogue(); self.stamp(7)
        if self.stop >= 3:
            import g3b
            g3b.rest(self)
        a("s_waitcnt vmcnt(0) lgkmcnt(0)")
        a.label("L_END")
        a("s_endpgm")
        return fix_hazards(a.l)

HEADER = open(os.path.join(os.path.dirname(os.path.abspath(__file__)), "header.txt")).read()

def make(stop=99, ts=False, force_fallback=False):
    g = Gen(stop, ts, force_fallback)
    lines, n = g.build()
    txt = HEADER + "; @launch grid=(256,1,1) block=(512,1,1) lds=163840\n"
    txt += f'.amdgcn_target "amdgcn-amd-amdhsa--gfx950"\n.text\n.globl {NAME}\n.p2align 8\n.type {NAME},@function\n{NAME}:\n'
    txt += "\n".join(lines) + "\n"
    txt += f""".section .rodata,"a"
.p2align 6
.amdhsa_kernel {NAME}
  .amdhsa_next_free_vgpr 256
  .amdhsa_next_free_sgpr 102
  .amdhsa_accum_offset 256
  .amdhsa_group_segment_fixed_size 0
  .amdhsa_kernarg_size 112
  .amdhsa_user_sgpr_count 2
  .amdhsa_user_sgpr_kernarg_segment_ptr 1
  .amdhsa_system_sgpr_workgroup_id_x 1
  .amdhsa_float_denorm_mode_32 3
.end_amdhsa_kernel
"""
    return txt, n

if __name__ == "__main__":
    import argparse
    ap = argparse.ArgumentParser()
    ap.add_argument("--stop", type=int, default=99)
    ap.add_argument("--ts", action="store_true")
    ap.add_argument("--fb", action="store_true")
    ap.add_argument("-o", default="out.s")
    args = ap.parse_args()
    sys.modules["g3"] = sys.modules["__main__"]
    txt, n = make(args.stop, args.ts, args.fb)
    open(args.o, "w").write(txt)
    print("nops inserted:", n, "lines:", txt.count("\n"))
```

```python
from g3 import *
import os

vX1 = 240
vGB = 228
vXr, vGA, vG2 = 196, 204, 216
vUB = 116
vRP = 144

sRPC, sRPD, sWOS, sWOL, sSLS, sSLL = 31, 42, 43, sT[15], sT[16], sT[19]
vRO = 176
sRPC2 = sT[14]
vSL = 108 + 2
L2_MB = 155648

def bg_setup(g):
    a = g.a
    q, upr, magic, pitch = sT[2], sT[3], sT[10], sT[11]
    SK = a.new("Lrs")
    a(f"s_cmp_lt_u32 s{sW}, 4\ns_cbranch_scc1 {SK}")
    for r, (srdr, col) in enumerate(((S_B, sRPC), (S_A, sRPC2))):
        K2, K3, GO = a.new("Lrp"), a.new("Lrp"), a.new("Lrp")
        a(f"s_lshl_b32 s{q}, s{sL}, 2\ns_add_u32 s{q}, s{q}, s{sW4}")
        if r: a(f"s_add_u32 s{q}, s{q}, 1024")
        else: a(f"s_lshl_b32 s{sRPD}, s{q}, 12\ns_add_u32 s{sRPD}, s{sRPD}, {WS_RW}")
        a(f"s_mov_b32 s{upr}, 10\ns_mov_b32 s{magic}, 0x1999999a\ns_movk_i32 s{pitch}, 1280")
        if r == 0:
            a(f"s_cmp_ge_u32 s{q}, 200\ns_cbranch_scc1 {K2}")
            a(f"s_mul_hi_u32 s{col}, s{q}, {(1<<32)//25+1}\ns_mul_i32 s{sT[12]}, s{col}, 25\ns_sub_u32 s{q}, s{q}, s{sT[12]}\ns_mul_i32 s{col}, s{col}, 160")
            a(f"s_mov_b32 s{srdr}, s{P_WO}\ns_mov_b32 s{srdr+1}, s{P_WO+1}\ns_mov_b32 s{srdr+2}, {640*1280}\ns_branch {GO}")
            a.label(K2)
            a(f"s_cmp_ge_u32 s{q}, 744\ns_cbranch_scc1 {K3}\ns_sub_u32 s{q}, s{q}, 200")
            a(f"s_mul_hi_u32 s{col}, s{q}, {(1<<32)//68+1}\ns_mul_i32 s{sT[12]}, s{col}, 68\ns_sub_u32 s{q}, s{q}, s{sT[12]}\ns_mul_i32 s{col}, s{col}, 160")
            a(f"s_mov_b32 s{srdr}, s{P_W2}\ns_mov_b32 s{srdr+1}, s{P_W2+1}\ns_mov_b32 s{srdr+2}, {1728*1280}\ns_branch {GO}")
            a.label(K3)
        a(f"s_sub_u32 s{q}, s{q}, 744")
        a(f"s_mul_hi_u32 s{col}, s{q}, {(1<<32)//35+1}\ns_mul_i32 s{sT[12]}, s{col}, 35\ns_sub_u32 s{q}, s{q}, s{sT[12]}")
        a(f"s_bitcmp1_b32 s{col}, 0\ns_cselect_b32 s{srdr}, s{P_W3}, s{P_W1}\ns_cselect_b32 s{srdr+1}, s{P_W3+1}, s{P_W1+1}\ns_mov_b32 s{srdr+2}, {640*3456}")
        a(f"s_lshr_b32 s{col}, s{col}, 1")
        a(f"s_mul_i32 s{sT[12]}, s{col}, 7\ns_mul_i32 s{upr}, s{col}, 6\ns_add_u32 s{upr}, s{upr}, 12\ns_min_u32 s{upr}, s{upr}, 101")
        a(f"s_cmp_lt_u32 s{col}, 12\ns_cselect_b32 s{col}, s{sT[12]}, s{upr}\ns_lshl_b32 s{col}, s{col}, 5")
        a(f"s_mov_b32 s{upr}, 14\ns_mov_b32 s{magic}, 0x12492493\ns_movk_i32 s{pitch}, 3456")
        a.label(GO)
        a(f"s_mov_b32 s{srdr+3}, 0x20000\ns_lshl_b32 s{q}, s{q}, 8\ns_lshl_b32 s{upr}, s{upr}, 4\ns_sub_u32 s{pitch}, s{pitch}, s{upr}")
        a(f"v_add_u32 v112, s{q}, v{vLANE}")
        for k in range(4):
            a(f"v_mul_hi_u32 v113, v112, s{magic}\nv_mul_lo_u32 v113, v113, s{pitch}\nv_lshl_add_u32 v{vRO+4*r+k}, v112, 4, v113")
            if k < 3: a("v_add_u32 v112, 64, v112")
    a.label(SK)
    a(f"s_mul_i32 s{sWOL}, s{sW}, 13\ns_min_u32 s{sWOL}, s{sWOL}, 87\ns_lshl_b32 s{sWOL}, s{sWOL}, 10")
    a(f"s_mul_i32 s{sWOS}, s{sHG}, 102400\ns_add_u32 s{sWOS}, s{sWOS}, s{sWOL}\ns_add_u32 s{sWOS}, s{sWOS}, {WS_RW + RW_WO}\ns_add_u32 s{sWOL}, s{sWOL}, {g.L2_WO}")
    a(f"s_cmp_lt_u32 s{sL}, 108\ns_cselect_b32 s{S_C}, s{P_W1}, s{P_W3}\ns_cselect_b32 s{S_C+1}, s{P_W1+1}, s{P_W3+1}")
    a(f"s_mov_b32 s{S_C+2}, {640*3456}\ns_mov_b32 s{S_C+3}, 0x20000")
    a(f"s_sub_u32 s{sSLS}, s{sL}, 108\ns_cselect_b32 s{sSLS}, s{sL}, s{sSLS}\ns_lshl_b32 s{sSLS}, s{sSLS}, 5")
    a(f"s_mul_i32 s{sSLL}, s{sW}, 3\ns_min_u32 s{sSLL}, s{sSLL}, 17\ns_mul_i32 s{sT[12]}, s{sSLL}, {32*3456}\ns_add_u32 s{sSLS}, s{sSLS}, s{sT[12]}\ns_lshl_b32 s{sSLL}, s{sSLL}, 10")
    a(f"v_lshrrev_b32 v{vSL}, 1, v{vLANE}\nv_mul_u32_u24 v{vSL}, 3456, v{vSL}\nv_and_b32 v113, 1, v{vLANE}\nv_lshl_add_u32 v{vSL}, v113, 4, v{vSL}")

def bg_schedule(g, put):
    a = g.a
    XR = os.environ.get("X_BG", "")
    for k in range(8 if "r" not in XR else 0):
        srdr, col = ((S_B, sRPC), (S_A, sRPC2))[k // 4]
        put(k // 2, f"rl{k}", [f"buffer_load_dwordx4 {vr(vRP+4*k,4)}, v{vRO+k}, s[{srdr}:{srdr+3}], s{col} offen"], role="B")
    for k in range(8 if "r" not in XR else 0):
        pre = [f"s_add_u32 s{sRPD}, s{sRPD}, {1024*4096}"] if k == 4 else []
        put(12 + k // 2, f"rs{k}", pre + [f"buffer_store_dwordx4 {vr(vRP+4*k,4)}, v{vL16}, {WSR}, s{sRPD} offen offset:{(k%4)*1024} sc1"], need=f"rl{k}", role="B")
    put(25, "rsw", [], n=0, need="rs7", role="B")
    l1 = a.new("Lbg")
    put(26, "pub", [f"s_cmp_lg_u32 s{sW}, 4", f"s_cbranch_scc1 {l1}", f"s_lshl_b32 s{sT[2]}, s{sL}, 2", f"s_add_u32 s{sT[2]}, s{sT[2]}, {F_RP}", f"v_mov_b32 v112, s{sNON}",
                    "s_mov_b64 exec, 1", f"buffer_store_dword v112, v{vLANE}, {WSR}, s{sT[2]} offen sc1", "s_mov_b64 exec, -1", f"{l1}:"], n=0)
    l2, l3, l4 = a.new("Lbg"), a.new("Lbg"), a.new("Lbg")
    chk = [f"s_cmp_lg_u32 s{sW}, 7", f"s_cbranch_scc1 {l2}", f"s_mov_b32 s{sT[20]}, 0", f"{l3}:",
           f"s_mov_b32 s{sT[2]}, {F_RP}", f"s_mov_b32 s{sT[3]}, {F_MODR}",
           f"buffer_load_dwordx4 v[112:115], v{vL16}, {WSR}, s{sT[2]} offen sc1",
           f"v_min_u32 v120, 624, v{vL16}",
           f"buffer_load_dwordx4 v[116:119], v120, {WSR}, s{sT[3]} offen sc1",
           "s_waitcnt vmcnt(0)"]
    chk += [f"v_xor_b32 v{112+j}, s{sNON}, v{112+j}" for j in range(8)]
    chk += ["v_or3_b32 v112, v112, v113, v114", "v_or3_b32 v115, v115, v116, v117", "v_or3_b32 v112, v112, v118, v119", "v_or_b32 v112, v112, v115",
            f"v_cmp_ne_u32 s[{sT[22]}:{sT[23]}], 0, v112", "s_nop 4", f"s_cmp_eq_u64 s[{sT[22]}:{sT[23]}], 0", f"s_cbranch_scc1 {l2}",
            f"s_add_u32 s{sT[20]}, s{sT[20]}, 1", f"s_cmp_lt_u32 s{sT[20]}, {SPIN_LIMIT}", f"s_cbranch_scc1 {l3}",
            f"{l2}:"]
    put(32, "chk", chk, n=0)
    slots = [34, 36, 37, 38, 40, 41, 42, 44, 45, 46, 48, 49, 50]
    for k, T in enumerate(slots if "w" not in XR else []):
        ins = []
        if k % 4 == 0: ins.append(f"s_add_u32 m0, s{sWOL}, {k*1024}")
        else: ins.append(f"s_add_u32 m0, s{sWOL}, {(k//4)*4096}")
        ins.append(f"buffer_load_dwordx4 v{vL16}, {WSR}, s{sWOS} offen offset:{(k%4)*1024} sc1 lds")
        if k % 4 == 3: ins.append(f"s_add_u32 s{sWOS}, s{sWOS}, 4096")
        put(T, f"wo{k}", ins)
    put(35, "mb", [f"s_min_u32 s{sT[2]}, s{sW}, 2", f"s_lshl_b32 s{sT[2]}, s{sT[2]}, 10", f"s_add_u32 m0, s{sT[2]}, {L2_MB}", f"s_add_u32 s{sT[2]}, s{sT[2]}, {WS_MODB}",
                   f"buffer_load_dwordx4 v{vL16}, {WSR}, s{sT[2]} offen sc1 lds"])
    for k, T in enumerate((58, 59, 62)):
        ins = [f"s_add_u32 m0, s{sSLL}, {k*1024}", f"buffer_load_dwordx4 v{vSL}, s[{S_C}:{S_C+3}], s{sSLS} offen lds"]
        if k < 2: ins.append(f"s_add_u32 s{sSLS}, s{sSLS}, {32*3456}")
        put(T, f"sl{k}", ins)

def ut_job(g):
    a = g.a
    E = a.new("Lnoutj")
    a(f"s_cmp_lg_u32 s{sW}, 7\ns_cbranch_scc1 {E}\ns_cmp_ge_u32 s{sL}, 216\ns_cbranch_scc1 {E}")
    a(f"v_lshrrev_b32 v42, 4, v{vLANE}\nv_bfe_u32 v41, v{vLANE}, 2, 2\nv_lshl_add_u32 v40, v42, 3, v41\nv_lshlrev_b32 v40, 5, v40")
    a(f"v_and_b32 v41, 3, v{vLANE}\nv_lshl_add_u32 v40, v41, 3, v40\nv_add_u32 v40, {g.L2_UT}, v40")
    a(f"v_and_b32 v43, 1, v{vLANE}\nv_xor_b32 v43, 1, v43\nv_mul_u32_u24 v43, 1280, v43\nv_lshl_add_u32 v43, v42, 4, v43\nv_add_u32 v43, {L2_MB}, v43")
    base = 128
    for rnd in range(2):
        for s in range(10 * rnd, 10 * rnd + 10):
            d = base + 8 * (s % 10)
            a(f"ds_read_b64_tr_b16 {vr(d,2)}, v40 offset:{s*1024}\nds_read_b64_tr_b16 {vr(d+2,2)}, v40 offset:{s*1024+128}\nds_read_b128 {vr(d+4,4)}, v43 offset:{s*64}")
            if s % 10 >= 3:
                t = s - 3; dt = base + 8 * (t % 10)
                a(f"s_waitcnt lgkmcnt(9)\nv_mfma_f32_16x16x32_bf16 v[44:47], {vr(dt,4)}, {vr(dt+4,4)}, {'0' if t == 0 else 'v[44:47]'}")
        for t in range(10 * rnd + 7, 10 * rnd + 10):
            dt = base + 8 * (t % 10)
            a(f"s_waitcnt lgkmcnt({3*(10*rnd+9-t)})\nv_mfma_f32_16x16x32_bf16 v[44:47], {vr(dt,4)}, {vr(dt+4,4)}, v[44:47]")
    a(f"s_cmp_lt_u32 s{sL}, 108\ns_cselect_b32 s{sT[2]}, 0, {2*1728*4}")
    a(f"s_sub_u32 s{sT[3]}, s{sL}, 108\ns_cselect_b32 s{sT[3]}, s{sL}, s{sT[3]}\ns_lshl_b32 s{sT[3]}, s{sT[3]}, 6")
    a(f"s_add_u32 s{sT[2]}, s{sT[2]}, s{sT[3]}\ns_add_u32 s{sT[2]}, s{sT[2]}, {WS_UT}")
    a(f"v_and_b32 v40, 15, v{vLANE}\nv_mul_u32_u24 v41, {1728*4}, v40\nv_lshl_add_u32 v41, v42, 4, v41")
    a("s_mov_b32 exec_lo, 0x00030003\ns_mov_b32 exec_hi, 0x00030003")
    a(f"buffer_store_dwordx4 v[44:47], v41, {WSR}, s{sT[2]} offen sc1")
    a("s_mov_b64 exec, -1")
    a.label(E)

def ut_flag(g):
    a = g.a
    E = a.new("Lutf")
    a(f"s_cmp_lg_u32 s{sW}, 7\ns_cbranch_scc1 {E}\ns_cmp_ge_u32 s{sL}, 216\ns_cbranch_scc1 {E}")
    a(f"s_lshl_b32 s{sT[3]}, s{sL}, 2\ns_add_u32 s{sT[3]}, s{sT[3]}, {F_UT}")
    g.one_lane_store(sT[3], 255)
    a.label(E)

def pi_rows(g, d):
    a = g.a
    a(f"v_lshrrev_b32 v{d}, 5, v{vLANE}\nv_bfe_u32 v{d+1}, v{vLANE}, 4, 1\nv_lshlrev_b32 v{d}, 4, v{d}\nv_lshl_add_u32 v{d}, v{d+1}, 2, v{d}")
    a(f"v_bfe_u32 v{d+1}, v{vLANE}, 2, 2\nv_add_u32 v{d}, v{d}, v{d+1}")

def w5_list(dst, addr, off, addr2=None, off2=None):
    if addr2 is None: addr2, off2 = addr, off + 8 * 160
    L = []
    for cb in range(5):
        L.append(f"ds_read_b64_tr_b16 {vr(dst+4*cb,2)}, v{addr} offset:{off + cb*32}")
        L.append(f"ds_read_b64_tr_b16 {vr(dst+4*cb+2,2)}, v{addr2} offset:{off2 + cb*32}")
    return L

def interleave(a, main, fill, lead=0):
    n, m = len(main), len(fill)
    k = 0
    for i, x in enumerate(main):
        a(x)
        want = (m * (i + 1)) // n if i + 1 < n else m
        while k < want:
            a(fill[k]); k += 1

def exchange(g, acc, scratch):
    a = g.a
    a(f"s_mul_i32 s{sT[0]}, s{sW4}, 5120\ns_add_u32 s{sT[0]}, s{sT[0]}, {scratch}\nv_add_u32 v40, s{sT[0]}, v{vL16}")
    L1, L2 = a.new("Lex"), a.new("Lex")
    a(f"s_cmp_lg_u32 s{sKH}, 0\ns_cbranch_scc1 {L1}")
    for cb in (3, 4): a(f"ds_write_b128 v40, {vr(acc+4*cb,4)} offset:{cb*1024}")
    a("s_waitcnt lgkmcnt(0)\ns_barrier")
    for cb in (0, 1, 2): a(f"ds_read_b128 {vr(44+4*cb,4)}, v40 offset:{cb*1024}")
    a("s_waitcnt lgkmcnt(0)")
    for cb in (0, 1, 2):
        for r in range(4): a(f"v_add_f32 v{acc+4*cb+r}, v{acc+4*cb+r}, v{44+4*cb+r}")
    a(f"s_branch {L2}")
    a.label(L1)
    for cb in (0, 1, 2): a(f"ds_write_b128 v40, {vr(acc+4*cb,4)} offset:{cb*1024}")
    a("s_waitcnt lgkmcnt(0)\ns_barrier")
    for cb in (3, 4): a(f"ds_read_b128 {vr(44+4*cb,4)}, v40 offset:{cb*1024}")
    a("s_waitcnt lgkmcnt(0)")
    for cb in (3, 4):
        for r in range(4): a(f"v_add_f32 v{acc+4*cb+r}, v{acc+4*cb+r}, v{44+4*cb+r}")
    a.label(L2)

def store_blocks(g, P, nblk, base_s, vaddr_pair, vaddr_single):
    a = g.a
    i = 0
    while i < nblk:
        p = P + 2 * i
        if i + 1 < nblk:
            a(f"v_permlane32_swap_b32 v{p}, v{p+2}\nv_permlane32_swap_b32 v{p+1}, v{p+3}")
            a(f"buffer_store_dwordx4 {vr(p,4)}, v{vL16}, {WSR}, s{base_s} offen offset:{i*512} sc1")
            i += 2
        else:
            a(f"v_mov_b32 v{p+2}, v{p}\nv_mov_b32 v{p+3}, v{p+1}")
            a(f"v_permlane32_swap_b32 v{p}, v{p+2}\nv_permlane32_swap_b32 v{p+1}, v{p+3}")
            a("s_mov_b32 exec_hi, 0")
            a(f"buffer_store_dwordx4 {vr(p,4)}, v{vL16}, {WSR}, s{base_s} offen offset:{i*512} sc1")
            a("s_mov_b64 exec, -1")
            i += 1

L3_X = 40960 + 8192
L3_MV = 158720

def p3(g):
    a = g.a
    a.c("---- P3: o @ wo, residual, y / stats ----")
    acc = 8
    vB = 128
    vA = [64, 84]
    a(f"s_mul_i32 s{sFB0}, s{sM}, 7\ns_mul_i32 s{sT[2]}, s{sM}, 6\ns_add_u32 s{sT[2]}, s{sT[2]}, 12\ns_min_u32 s{sT[2]}, s{sT[2]}, 101")
    a(f"s_cmp_lt_u32 s{sM}, 12\ns_cselect_b32 s{sFB0}, s{sFB0}, s{sT[2]}")
    a(f"s_lshl_b32 s{sWL4}, s{sW}, 11\ns_mul_i32 s{sWS4}, s{sM}, {2*143360}\ns_add_u32 s{sWS4}, s{sWS4}, s{sWL4}\ns_add_u32 s{sWS4}, s{sWS4}, {WS_RW + RW_13}")
    a(f"s_add_u32 s{sWL4}, s{sWL4}, {L4_BASE}")
    a(f"s_mul_i32 s{sT[1]}, s{sKH}, 48\ns_mul_i32 s{sT[2]}, s{sHG}, 80\ns_add_u32 s{sT[1]}, s{sT[1]}, s{sT[2]}")
    a(f"v_lshrrev_b32 v28, 4, v{vLANE}\nv_lshlrev_b32 v29, 4, v28")
    a(f"s_lshl_b32 s{sT[10]}, s{sT[1]}, 2\ns_add_u32 s{sT[10]}, s{sT[10]}, {WS_MODR}\ns_add_u32 s{sT[11]}, s{sT[10]}, {1280*4}\ns_add_u32 s{sT[12]}, s{sT[10]}, {1920*4}")
    a(f"v_and_b32 v253, 15, v{vLANE}\nv_mul_u32_u24 v253, 1280, v253\nv_lshl_add_u32 v253, v28, 3, v253")
    a(f"s_mul_i32 s{sT[2]}, s{sRBG}, {16*1280}\ns_lshl_b32 s{sT[1]}, s{sT[1]}, 1\ns_add_u32 s30, s{sT[2]}, s{sT[1]}")
    ut_job(g)
    a(f"s_mul_i32 s{sT[3]}, s{sKH}, {320*160}\ns_add_u32 s{sT[3]}, s{sT[3]}, {g.L2_WO}")
    a(f"v_and_b32 v44, 3, v{vLANE}\nv_lshl_add_u32 v44, v44, 3, s{sT[3]}\nv_bfe_u32 v46, v{vLANE}, 2, 2\ns_movk_i32 s{sT[19]}, 160")
    for m in range(3):
        d1, d2 = 33 + 2 * m, 34 + 2 * m
        a(f"v_add_u32 v40, {4*m}, v28")
        a(f"v_mul_u32_u24 v41, 86, v40\nv_lshrrev_b32 v41, 8, v41")
        a(f"v_mul_u32_u24 v42, 3, v41\nv_sub_u32 v42, v40, v42\nv_mul_u32_u24 v41, 20, v41")
        a(f"v_lshlrev_b32 v43, 2, v42\nv_cmp_eq_u32 vcc, 2, v42\nv_add_u32 v41, v41, v46")
        a(f"v_cndmask_b32 v43, v43, 16, vcc\nv_add_u32 v43, v41, v43\nv_add_u32 v45, 8, v43\nv_cndmask_b32 v45, v45, v43, vcc")
        a(f"v_mad_u32_u24 v{d1}, v43, s{sT[19]}, v44\nv_mad_u32_u24 v{d2}, v45, s{sT[19]}, v44")
    PRE = 5
    wreg = lambda s: 56 + 20 * s if s < PRE else 56 + 20 * (s % 2)
    oreg = lambda s: 156 + 4 * s if s < 10 else 240 + 4 * (s - 10)
    def wl(s):
        m = s % 3; o = (s // 3) * 80 * 160
        return w5_list(wreg(s), 33 + 2 * m, o, 34 + 2 * m, o)
    for s in range(PRE):
        for x in wl(s): a(x)
    a(f"s_and_b32 s{sT[4]}, s{sL}, 0xf8")
    g.wg_poll(F_O, sT[4], 8, 47, 5, wave=6)
    g.stamp(14)
    a(f"s_mul_i32 s{sT[1]}, s{sRBG}, 24\ns_mul_i32 s{sT[2]}, s{sKH}, 12\ns_add_u32 s{sT[1]}, s{sT[1]}, s{sT[2]}\ns_lshl_b32 s{sT[1]}, s{sT[1]}, 10\ns_add_u32 s{sT[1]}, s{sT[1]}, {WS_O}")
    for s in range(12):
        a(f"buffer_load_dwordx4 {vr(oreg(s),4)}, v{vL16}, {WSR}, s{sT[1]} offen offset:{(s%4)*1024} sc1")
        if s % 4 == 3 and s < 11: a(f"s_add_u32 s{sT[1]}, s{sT[1]}, 4096")
    ops = []
    for j in range(3):
        ops.append(f"buffer_load_dwordx4 {vr(vGA+4*j,4)}, v29, {WSR}, s{sT[10]} offen offset:{j*64} sc1")
        ops.append(f"buffer_load_dwordx4 {vr(vG2+4*j,4)}, v29, {WSR}, s{sT[11]} offen offset:{j*64} sc1")
        ops.append(f"buffer_load_dwordx2 {vr(vXr+2*j,2)}, v253, s[{S_X}:{S_X+3}], s30 offen offset:{j*32}")
        ops.append(f"buffer_load_dwordx4 {vr(vGB+4*j,4)}, v29, {WSR}, s{sT[12]} offen offset:{j*64} sc1")
    issued = 0
    for s in range(12):
        lg = " lgkmcnt(10)" if (s >= PRE and s + 1 < 12) or s == PRE - 1 + 0 and False else (" lgkmcnt(0)" if s in (0, 11) else "")
        a(f"s_waitcnt vmcnt({11 - s + issued}){lg}")
        mf = [f"v_mfma_f32_16x16x32_bf16 {vr(acc+4*cb,4)}, {vr(wreg(s)+4*cb,4)}, {vr(oreg(s),4)}, {'0' if s == 0 else vr(acc+4*cb,4)}" for cb in range(5)]
        for x in mf: a(x)
        nxt = []
        if s == 1: nxt = wl(5)
        elif s >= 4 and s + 2 < 12 and s + 2 >= 6: nxt = wl(s + 2)
        for x in nxt: a(x)
        a(ops[s]); issued += 1
    E = a.new("Lw0")
    a(f"s_cmp_eq_u32 s{sW}, 7\ns_cbranch_scc1 {E}")
    for x in p4_w_dma_list(sWS4, sWL4): a(x)
    a.label(E)
    a(f"s_add_u32 s{sWS4}, s{sWS4}, 14336")
    g.stamp(17)
    exchange(g, acc, 0)
    g.stamp(18)
    X, Y = a.new("Lop"), a.new("Lop")
    a(f"s_cmp_eq_u32 s{sW}, 7\ns_cbranch_scc1 {X}\ns_waitcnt vmcnt(4)\ns_branch {Y}")
    a.label(X); a("s_waitcnt vmcnt(0)"); a.label(Y)
    L1, L2 = a.new("Lp3e"), a.new("Lp3e")
    a(f"s_cmp_lg_u32 s{sKH}, 0\ns_cbranch_scc1 {L1}")
    p3_epi(g, (0, 1, 2), acc, vXr, vGA, vG2)
    a(f"s_branch {L2}")
    a.label(L1)
    p3_epi(g, (3, 4), acc, vXr, vGA, vG2)
    a.label(L2)
    g.stamp(19)
    g.wave_flag(F_Y)
    ut_flag(g)
    g.stamp(20)

def p3_epi(g, blocks, acc, vXr, vGA, vG2):
    a = g.a
    a(f"s_mul_i32 s{sT[1]}, s{sRBG}, 20480\ns_mul_i32 s{sT[2]}, s{sHG}, 2560\ns_add_u32 s{sT[1]}, s{sT[1]}, s{sT[2]}\ns_add_u32 s{sT[1]}, s{sT[1]}, {WS_Y + blocks[0]*512}")
    for j, cb in enumerate(blocks):
        X = vX1 + 4 * j
        a(f"v_lshlrev_b32 v{X}, 16, v{vXr+2*j}\nv_and_b32 v{X+1}, 0xffff0000, v{vXr+2*j}\nv_lshlrev_b32 v{X+2}, 16, v{vXr+2*j+1}\nv_and_b32 v{X+3}, 0xffff0000, v{vXr+2*j+1}")
        for r in range(4): a(f"v_fmac_f32 v{X+r}, v{vGA+4*j+r}, v{acc+4*cb+r}")
        for r in range(4): a(f"v_mul_f32 v{40+r}, v{X+r}, v{vG2+4*j+r}")
        a(f"v_cvt_pk_bf16_f32 v{44+2*j}, v40, v41\nv_cvt_pk_bf16_f32 v{45+2*j}, v42, v43")
    store_blocks(g, 44, len(blocks), sT[1], None, None)
    first = True
    for j in range(len(blocks)):
        for r in range(4):
            X = vX1 + 4 * j + r
            if first: a(f"v_mov_b32 v36, v{X}\nv_mul_f32 v37, v{X}, v{X}"); first = False
            else: a(f"v_add_f32 v36, v36, v{X}\nv_fmac_f32 v37, v{X}, v{X}")
    g.sum_groups(36, 38); g.sum_groups(37, 39)
    a(f"s_lshl_b32 s{sT[2]}, s{sL}, 3\ns_add_u32 s{sT[2]}, s{sT[2]}, s{sW}\ns_lshl_b32 s{sT[2]}, s{sT[2]}, 7\ns_add_u32 s{sT[2]}, s{sT[2]}, {WS_STAT}")
    a(f"v_lshlrev_b32 v38, 3, v{vLANE}\ns_mov_b32 exec_lo, 0xffff\ns_mov_b32 exec_hi, 0")
    a(f"buffer_store_dwordx2 v[36:37], v38, {WSR}, s{sT[2]} offen sc1")
    a("s_mov_b64 exec, -1")

L4_BUF = 45056
L4_BASE = 20480
L4_STAT = 158720
L4_UT = 155648

def p4_w_dma_list(src_s, lds_s):
    return [f"s_mov_b32 m0, s{lds_s}",
            f"buffer_load_dwordx4 v{vL16}, {WSR}, s{src_s} offen sc1 lds",
            f"buffer_load_dwordx4 v{vL16}, {WSR}, s{src_s} offen offset:1024 sc1 lds",
            f"s_add_u32 m0, s{lds_s}, 14336",
            f"s_add_u32 s{sT[5]}, s{src_s}, 143360",
            f"buffer_load_dwordx4 v{vL16}, {WSR}, s{sT[5]} offen sc1 lds",
            f"buffer_load_dwordx4 v{vL16}, {WSR}, s{sT[5]} offen offset:1024 sc1 lds"]

def p4_y_dma_list(src_s, lds_s):
    return [f"s_mov_b32 m0, s{lds_s}",
            f"buffer_load_dwordx4 v{vL16}, {WSR}, s{src_s} offen sc1 lds",
            f"buffer_load_dwordx4 v{vL16}, {WSR}, s{src_s} offen offset:1024 sc1 lds"]

sWS4, sWL4, sYS4, sYL4 = sT[14], sT[15], sT[16], sT[17]

def p4(g):
    a = g.a
    a.c("---- P4: gate/up GEMM ----")
    E = a.new("Lw1")
    a(f"s_cmp_eq_u32 s{sW}, 7\ns_cbranch_scc1 {E}")
    a(f"s_add_u32 s{sT[3]}, s{sWL4}, {L4_BUF}")
    for x in p4_w_dma_list(sWS4, sT[3]): a(x)
    a.label(E)
    a(f"s_add_u32 s{sWS4}, s{sWS4}, 14336")
    a(f"s_lshl_b32 s{sYS4}, s{sG}, 3\ns_add_u32 s{sYS4}, s{sYS4}, s{sW}\ns_mul_i32 s{sYS4}, s{sYS4}, 20480\ns_add_u32 s{sYS4}, s{sYS4}, {WS_Y}")
    a(f"s_add_u32 s{sYL4}, s{sWL4}, 28672")
    a(f"v_lshlrev_b32 v35, 3, v{vLANE}")
    a(f"s_and_b32 s{sT[2]}, s{sW}, 1\ns_lshl_b32 s{sT[3]}, s{sG}, 1\ns_add_u32 s{sT[2]}, s{sT[2]}, s{sT[3]}\ns_lshl_b32 s{sT[2]}, s{sT[2]}, 3")
    a(f"s_lshr_b32 s{sT[3]}, s{sW}, 1\ns_lshl_b32 s{sT[4]}, s{sT[3]}, 1\ns_add_u32 s{sT[2]}, s{sT[2]}, s{sT[4]}\ns_lshl_b32 s{sT[2]}, s{sT[2]}, 10\ns_add_u32 s{sT[2]}, s{sT[2]}, {WS_STAT}")
    a(f"s_lshl_b32 s{sT[3]}, s{sT[3]}, 10\ns_and_b32 s{sT[4]}, s{sW}, 1\ns_lshl_b32 s{sT[4]}, s{sT[4]}, 9\ns_add_u32 s{sT[3]}, s{sT[3]}, s{sT[4]}\ns_add_u32 s{sT[3]}, s{sT[3]}, {L4_STAT}\nv_add_u32 v41, s{sT[3]}, v35")
    a(f"s_lshl_b32 s{sT[13]}, s{sG}, 4")
    g.wg_poll(F_Y, sT[13], 16, 200, 6, wave=7)
    g.stamp(15)
    for st in range(2):
        a(f"s_add_u32 s{sT[3]}, s{sYL4}, {st*L4_BUF}")
        for x in p4_y_dma_list(sYS4, sT[3]): a(x)
        a(f"s_add_u32 s{sYS4}, s{sYS4}, 2048")
    E = a.new("Lw2")
    a(f"s_cmp_eq_u32 s{sW}, 7\ns_cbranch_scc1 {E}")
    a(f"s_add_u32 s{sT[3]}, s{sWL4}, {2*L4_BUF}")
    for x in p4_w_dma_list(sWS4, sT[3]): a(x)
    a.label(E)
    a(f"s_add_u32 s{sWS4}, s{sWS4}, 14336")
    a(f"s_add_u32 s{sT[3]}, s{sYL4}, {2*L4_BUF}")
    for x in p4_y_dma_list(sYS4, sT[3]): a(x)
    a(f"s_add_u32 s{sYS4}, s{sYS4}, 2048")
    a(f"s_mov_b32 s{sT[13]}, s{sT[2]}")
    LB, LE = a.new("Lp4b"), a.new("Lp4e")
    a(f"s_cmp_ge_u32 s{sW}, 4\ns_cbranch_scc1 {LB}")
    p4_role(g, True)
    a(f"s_branch {LE}")
    a.label(LB)
    p4_role(g, False)
    a.label(LE)

def spread(a, main, first, later, per=int(os.environ.get('X_PER', '2'))):
    n = len(main)
    slots = [[] for _ in range(n)]
    k = 0; i = 0
    while k < len(first):
        slots[min(i, n - 1)] += first[k:k + per]; k += per; i += 1
    lo = min(i, n - 1)
    if later:
        hi = max(lo + 1, n - 1)
        span = hi - lo
        for j, grp in enumerate(later):
            pos = min(n - 1, lo + (j * span) // len(later))
            slots[pos] += grp
    for i in range(n):
        a(main[i])
        for x in slots[i]: a(x)

def p4_role(g, isA):
    a = g.a
    nrb = 4 if isA else 2
    npair = 2 if isA else 3
    acc = 52
    F = [116, 148]
    vYa, vWa = [8, 9, 10], [11, 12, 13]
    rb0, p0 = sT[11], sT[12]
    if isA: a(f"s_and_b32 s{rb0}, s{sW}, 1\ns_lshl_b32 s{rb0}, s{rb0}, 2\ns_and_b32 s{p0}, s{sW}, 2")
    else: a(f"s_lshl_b32 s{rb0}, s{sW4}, 1\ns_mov_b32 s{p0}, 4")
    a(f"s_lshl_b32 s{sT[1]}, s{rb0}, 11\ns_add_u32 s{sT[1]}, s{sT[1]}, {L4_BASE + 28672}\nv_add_u32 v{vYa[0]}, s{sT[1]}, v{vL16}")
    pi_rows(g, 14)
    a(f"v_mul_u32_u24 v14, 224, v14\nv_and_b32 v15, 3, v{vLANE}\nv_lshl_add_u32 v14, v15, 3, v14")
    a(f"s_lshl_b32 s{sT[1]}, s{p0}, 5\ns_add_u32 s{sT[1]}, s{sT[1]}, {L4_BASE}\nv_add_u32 v{vWa[0]}, s{sT[1]}, v14")
    for b in (1, 2):
        a(f"v_add_u32 v{vYa[b]}, {b*L4_BUF}, v{vYa[0]}\nv_add_u32 v{vWa[b]}, {b*L4_BUF}, v{vWa[0]}")
    for j in range(nrb * npair * 8): a(f"v_mov_b32 v{acc+j}, 0")
    a(f"s_cmp_eq_u32 s{sW}, 7\ns_cselect_b64 vcc, -1, 0")
    def wait2(n, n7, extra=""):
        if isA or n == n7: a(f"s_waitcnt vmcnt({n}){extra}")
        else:
            X, Y = a.new("Lv"), a.new("Lv")
            a(f"s_cbranch_vccnz {X}\ns_waitcnt vmcnt({n}){extra}\ns_branch {Y}")
            a.label(X); a(f"s_waitcnt vmcnt({n7}){extra}"); a.label(Y)
    wait2(8, 4)
    a("s_barrier")
    def loads(fs, ks, buf):
        L = []
        for r in range(nrb): L.append(f"ds_read_b128 {vr(F[fs]+4*r,4)}, v{vYa[buf]} offset:{r*2048 + ks*1024}")
        for p in range(npair):
            for u in range(2):
                d = F[fs] + 4 * nrb + (p * 2 + u) * 4
                o = u * 14336 + ks * 7168 + p * 32
                L.append(f"ds_read_b64_tr_b16 {vr(d,2)}, v{vWa[buf]} offset:{o}")
                L.append(f"ds_read_b64_tr_b16 {vr(d+2,2)}, v{vWa[buf]} offset:{o + 8*224}")
        return L
    def mfmas(fs):
        L = []
        for p in range(npair):
            for u in range(2):
                for r in range(nrb):
                    c = acc + ((r * npair + p) * 2 + u) * 4
                    L.append(f"v_mfma_f32_16x16x32_bf16 {vr(c,4)}, {vr(F[fs]+4*nrb+(p*2+u)*4,4)}, {vr(F[fs]+4*r,4)}, {vr(c,4)}")
        return L
    def wgroups(buf):
        o = buf * L4_BUF
        G = [[f"s_add_u32 m0, s{sWL4}, {o}", f"buffer_load_dwordx4 v{vL16}, {WSR}, s{sWS4} offen sc1 lds"],
             [f"buffer_load_dwordx4 v{vL16}, {WSR}, s{sWS4} offen offset:1024 sc1 lds"],
             [f"s_add_u32 m0, s{sWL4}, {o + 14336}", f"s_add_u32 s{sT[5]}, s{sWS4}, 143360", f"buffer_load_dwordx4 v{vL16}, {WSR}, s{sT[5]} offen sc1 lds"],
             [f"buffer_load_dwordx4 v{vL16}, {WSR}, s{sT[5]} offen offset:1024 sc1 lds", f"s_add_u32 s{sWS4}, s{sWS4}, 14336"]]
        if not isA:
            G2 = []
            for grp in G:
                lab = a.new("Lw7"); G2.append([f"s_cbranch_vccnz {lab}"] + grp + [f"{lab}:"])
            G = G2
        return G
    def ygroups(buf):
        o = buf * L4_BUF
        return [[f"s_add_u32 m0, s{sYL4}, {o}", f"buffer_load_dwordx4 v{vL16}, {WSR}, s{sYS4} offen sc1 lds"],
                [f"buffer_load_dwordx4 v{vL16}, {WSR}, s{sYS4} offen offset:1024 sc1 lds", f"s_add_u32 s{sYS4}, s{sYS4}, 2048"]]
    p5_w_setup(g)
    for x in loads(0, 0, 0): a(x)
    pr = os.environ.get("X_PRIO", "B")
    if ("A" in pr and isA) or ("B" in pr and not isA): a("s_setprio 1")
    g.stamp(11); g.cstamp(29)
    vST = 180
    vUT = 180
    st_rd = [f"v_and_b32 v14, 15, v{vLANE}", f"s_lshl_b32 s{sT[1]}, s{rb0}, 7", f"s_add_u32 s{sT[1]}, s{sT[1]}, {L4_STAT}", f"v_lshl_add_u32 v14, v14, 3, s{sT[1]}"]
    st_rd += [f"ds_read_b64 {vr(vST+8*r+2*q,2)}, v14 offset:{q*1024 + r*128}" for r in range(nrb) for q in range(4)]
    st_v = [[f"s_mov_b32 s{sT[4]}, 0x3acccccd"]]
    for r in range(nrb):
        b = vST + 8 * r
        st_v.append([f"v_add_f32 v{b}, v{b}, v{b+2}", f"v_add_f32 v{b+1}, v{b+1}, v{b+3}", f"v_add_f32 v{b+4}, v{b+4}, v{b+6}", f"v_add_f32 v{b+5}, v{b+5}, v{b+7}",
                     f"v_add_f32 v{b}, v{b}, v{b+4}", f"v_add_f32 v{b+1}, v{b+1}, v{b+5}", f"v_mul_f32 v{b}, s{sT[4]}, v{b}", f"v_mul_f32 v{b+1}, s{sT[4]}, v{b+1}",
                     f"v_fma_f32 v{b+1}, -v{b}, v{b}, v{b+1}", f"v_max_f32 v{b+1}, 0, v{b+1}", f"v_add_f32 v{b+1}, 0x3727c5ac, v{b+1}", f"v_rsq_f32 v{16+4*r}, v{b+1}", "s_nop 0",
                     f"v_mov_b32 v{17+4*r}, v{16+4*r}", f"v_mul_f32 v{18+4*r}, -v{16+4*r}, v{b}", f"v_mul_f32 v{19+4*r}, -v{16+4*r}, v{b}"])
    ut_rd = [f"v_lshrrev_b32 v15, 4, v{vLANE}", f"s_lshl_b32 s{sT[2]}, s{p0}, 6", f"s_add_u32 s{sT[2]}, s{sT[2]}, {L4_UT}", f"v_lshl_add_u32 v15, v15, 4, s{sT[2]}"]
    ut_rd += [f"ds_read_b128 {vr(vUT+p*16+vv*4,4)}, v15 offset:{vv*448 + p*64}" for p in range(npair) for vv in range(4)]
    for st in range(10):
        b = st % 3
        a("s_waitcnt lgkmcnt(0)")
        later = ygroups((st + 2) % 3) if 1 <= st <= 7 else []
        if os.environ.get("X_P4NODMA"): later = []
        if st == 5 and not isA: later = later + [ut_to_lds(g)]
        if st == 2: later = later + [[f"buffer_load_dwordx2 {vr(16+2*j,2)}, v35, {WSR}, s{sT[13]} offen offset:{j*512} sc1"] for j in range(4)]
        if st == 4: later = later + [["v_add_f32 v16, v16, v18", "v_add_f32 v17, v17, v19", "v_add_f32 v20, v20, v22", "v_add_f32 v21, v21, v23", "v_add_f32 v16, v16, v20", "v_add_f32 v17, v17, v21", "ds_write_b64 v41, v[16:17]"]]
        if st == 6: later = later + [st_rd[:4 + 4 * nrb // 2], st_rd[4 + 4 * nrb // 2:]]
        if st == 7: later = later + st_v
        if st == 9: later = later + [ut_rd]
        spread(a, mfmas(0), loads(1, 1, b) if not os.environ.get("X_P4NOLDS") else [], later)
        if st < 9:
            if st == 8: a("s_waitcnt vmcnt(5) lgkmcnt(0)")
            elif st == 2: wait2(10, 6, " lgkmcnt(0)")
            else: wait2(6, 2, " lgkmcnt(0)")
            if not os.environ.get("X_P4NOBAR"): a("s_barrier")
        else: a("s_waitcnt lgkmcnt(0)")
        spread(a, mfmas(1), (loads(0, 0, (st + 1) % 3) if st < 9 else []) if not os.environ.get("X_P4NOLDS") else [], (wgroups(b) if st <= 6 else (p5_w_groups(st - 7) if st <= 8 else [])) if not os.environ.get("X_P4NODMA") else [])
    g.stamp(12); g.cstamp(30)
    a("s_setprio 0")
    a(f"s_add_u32 s{sT[2]}, s{sFB0}, s{p0}")
    a(f"s_lshl_b32 s{sT[1]}, s{sG}, 3\ns_add_u32 s{sT[1]}, s{sT[1]}, s{rb0}\ns_mul_i32 s{sT[1]}, s{sT[1]}, {54*1024}\ns_lshl_b32 s{sT[2]}, s{sT[2]}, 9\ns_add_u32 s{sT[1]}, s{sT[1]}, s{sT[2]}\ns_add_u32 s{sT[1]}, s{sT[1]}, {WS_ACT}")
    a(f"v_mov_b32 v46, 0xbfb8aa3b\nv_mov_b32 v47, 0xbfb8aa3b\nv_mov_b32 v48, 1.0\nv_mov_b32 v49, 1.0")
    a("s_barrier")
    if not os.environ.get("X_NOD2"):
        for x in p5_w_dma_list(2): a(x)
    g.stamp(13)
    for r in range(nrb):
        R, RM = vr(16 + 4 * r, 2), vr(18 + 4 * r, 2)
        for p in range(npair):
            U1, T1, U3, T3 = [vUT + p * 16 + vv * 4 for vv in range(4)]
            cg = acc + ((r * npair + p) * 2) * 4; cu = cg + 4
            for h in range(2):
                a(f"v_pk_fma_f32 {vr(32+2*h,2)}, {RM}, {vr(U1+2*h,2)}, {vr(T1+2*h,2)}\nv_pk_fma_f32 {vr(36+2*h,2)}, {RM}, {vr(U3+2*h,2)}, {vr(T3+2*h,2)}")
            for h in range(2):
                a(f"v_pk_fma_f32 {vr(32+2*h,2)}, {vr(cg+2*h,2)}, {R}, {vr(32+2*h,2)}\nv_pk_fma_f32 {vr(36+2*h,2)}, {vr(cu+2*h,2)}, {R}, {vr(36+2*h,2)}")
            for h in range(2): a(f"v_pk_mul_f32 {vr(40+2*h,2)}, {vr(32+2*h,2)}, v[46:47]")
            for e in range(4): a(f"v_exp_f32 v{40+e}, v{40+e}")
            for h in range(2): a(f"v_pk_mul_f32 {vr(32+2*h,2)}, {vr(32+2*h,2)}, {vr(36+2*h,2)}")
            for h in range(2): a(f"v_pk_add_f32 {vr(40+2*h,2)}, {vr(40+2*h,2)}, v[48:49]")
            for e in range(4): a(f"v_rcp_f32 v{40+e}, v{40+e}")
            a("s_nop 0")
            for h in range(2): a(f"v_pk_mul_f32 {vr(32+2*h,2)}, {vr(32+2*h,2)}, {vr(40+2*h,2)}")
            o = 116 + 8 * (r % 2) + 2 * p
            a(f"v_cvt_pk_bf16_f32 v{o}, v32, v33\nv_cvt_pk_bf16_f32 v{o+1}, v34, v35")
        store_blocks(g, 116 + 8 * (r % 2), npair, sT[1], None, None)
        if r + 1 < nrb: a(f"s_add_u32 s{sT[1]}, s{sT[1]}, {54*1024}")
    g.stamp(21)
    g.wave_flag(F_ACT)
    g.stamp(22)

def ut_to_lds(g):
    a = g.a
    E, L, D = a.new("Lut"), a.new("Lut"), a.new("Lut")
    I = [f"s_cbranch_vccz {E}",
         f"v_mov_b32 v14, s{sFB0}", f"v_add_u32 v14, v14, v{vLANE}", f"v_cmp_lt_u32 s[{sT[22]}:{sT[23]}], 6, v{vLANE}", "v_add_u32 v15, 101, v14", "s_nop 1",
         f"v_cndmask_b32 v14, v14, v15, s[{sT[22]}:{sT[23]}]", "v_lshlrev_b32 v14, 2, v14", f"s_mov_b32 s{sT[1]}, {F_UT}", f"s_mov_b32 s{sT[20]}, 0",
         "s_mov_b32 exec_lo, 0x3fff", "s_mov_b32 exec_hi, 0", f"{L}:",
         f"buffer_load_dword v15, v14, {WSR}, s{sT[1]} offen sc1", "s_waitcnt vmcnt(0)",
         f"v_cmp_ne_u32 s[{sT[22]}:{sT[23]}], s{sNON}, v15", "s_nop 4", f"s_cmp_eq_u64 s[{sT[22]}:{sT[23]}], 0", f"s_cbranch_scc1 {D}",
         f"s_add_u32 s{sT[20]}, s{sT[20]}, 1", f"s_cmp_lt_u32 s{sT[20]}, {SPIN_LIMIT}", f"s_cbranch_scc1 {L}", f"{D}:", "s_mov_b64 exec, -1",
         f"s_lshl_b32 s{sT[1]}, s{sFB0}, 6", f"s_add_u32 s{sT[1]}, s{sT[1]}, {WS_UT}", f"s_mov_b32 s{sT[2]}, {(1<<32)//28+1}",
         f"v_mul_hi_u32 v14, v{vLANE}, s{sT[2]}", f"v_mul_u32_u24 v14, {6912-448}, v14", f"v_add_u32 v14, v14, v{vL16}",
         f"s_mov_b32 m0, {L4_UT}", f"buffer_load_dwordx4 v14, {WSR}, s{sT[1]} offen sc1 lds",
         f"v_add_u32 v14, 64, v{vLANE}", f"v_mul_hi_u32 v15, v14, s{sT[2]}", f"v_mul_u32_u24 v15, {6912-448}, v15", "v_lshl_add_u32 v14, v14, 4, v15",
         f"s_mov_b32 m0, {L4_UT + 1024}", "s_mov_b32 exec_hi, 0xffff", f"buffer_load_dwordx4 v14, {WSR}, s{sT[1]} offen sc1 lds", "s_mov_b64 exec, -1",
         f"{E}:"]
    return I

L5_BUF = 40960
L5_B = [65536, 110592, 20480]
L5_SCR = 0
sW2S, sW2L = sT[6], sT[7]

def p5_w_dma_list(st):
    return [f"s_add_u32 s{sT[3]}, s{sW2S}, {st*4*5120}", f"s_add_u32 m0, s{sW2L}, {L5_B[st%3]}"] + \
           [f"buffer_load_dwordx4 v{vL16}, {WSR}, s{sT[3]} offen offset:{k*1024} sc1 lds" for k in range(4)] + \
           [f"s_add_u32 s{sT[3]}, s{sT[3]}, 4096", f"s_add_u32 m0, s{sW2L}, {L5_B[st%3] + 4096}", f"buffer_load_dwordx4 v{vL16}, {WSR}, s{sT[3]} offen sc1 lds"]

def p5_w_groups(st):
    L = p5_w_dma_list(st)
    return [L[0:3], [L[3]], [L[4]], [L[5]], L[6:9]]

def p5_w_setup(g):
    a = g.a
    a(f"s_mul_i32 s{sW2S}, s{sKH}, 27\ns_add_u32 s{sW2S}, s{sW2S}, s{sW4}\ns_mul_i32 s{sW2S}, s{sW2S}, 5120\ns_mul_i32 s{sT[4]}, s{sHG}, {RW_W2S}\ns_add_u32 s{sW2S}, s{sW2S}, s{sT[4]}\ns_add_u32 s{sW2S}, s{sW2S}, {WS_RW + RW_W2}")
    a(f"s_mul_i32 s{sW2L}, s{sW}, 5120")

def p5(g):
    a = g.a
    a.c("---- P5: act @ w2, residual ----")
    acc = 8
    vA = [64, 84]
    vB = 128
    ab = sT[10]
    a(f"s_mul_i32 s{ab}, s{sRBG}, 54\ns_mul_i32 s{sT[2]}, s{sKH}, 27\ns_add_u32 s{ab}, s{ab}, s{sT[2]}\ns_lshl_b32 s{ab}, s{ab}, 10\ns_add_u32 s{ab}, s{ab}, {WS_ACT}")
    a(f"s_mul_i32 s{sT[2]}, s{sKH}, {4*5120}")
    pi_rows(g, 33)
    a(f"v_mul_u32_u24 v33, 160, v33\nv_and_b32 v34, 3, v{vLANE}\nv_lshl_add_u32 v33, v34, 3, v33\nv_add_u32 v33, s{sT[2]}, v33")
    a(f"s_lshl_b32 s{sT[13]}, s{sG}, 4")
    g.wg_poll(F_ACT, sT[13], 16, 40, 8, wave=7)
    g.stamp(26)
    def lda(st):
        n = 4 if st < 6 else 3
        L = [f"s_add_u32 s{sT[1]}, s{ab}, {st*4096}"]
        for j in range(n):
            L.append(f"buffer_load_dwordx4 {vr(vB+4*((4*st+j)%12),4)}, v{vL16}, {WSR}, s{sT[1]} offen offset:{j*1024} sc1")
        return L, n
    pend = []
    for st in range(3):
        if st == 2 and os.environ.get("X_NOD2"):
            for x in p5_w_dma_list(st): a(x)
            pend.append(("D", st, 5))
        L, n = lda(st)
        for x in L: a(x)
        pend.append(("A", st, n))
    for st in range(7):
        idx = max(i for i, (k, s, n) in enumerate(pend) if s == st)
        after = sum(n for (k, s, n) in pend[idx + 1:])
        pend = pend[idx + 1:]
        a(f"s_waitcnt vmcnt({after})\ns_barrier")
        if st == 0: g.stamp(23)
        if st == 3: g.stamp(24)
        nsteps = 4 if st < 6 else 3
        a(f"v_add_u32 v34, {L5_B[st%3]}, v33")
        for x in w5_list(vA[0], 34, 0): a(x)
        side = []
        if st >= 1 and st + 2 < 7:
            side += p5_w_dma_list(st + 2); pend.append(("D", st + 2, 5))
        for j in range(nsteps):
            a("s_waitcnt lgkmcnt(0)")
            ks = 4 * st + j
            mf = [f"v_mfma_f32_16x16x32_bf16 {vr(acc+4*cb,4)}, {vr(vA[j%2]+4*cb,4)}, {vr(vB+4*(ks%12),4)}, {'0' if ks == 0 else vr(acc+4*cb,4)}" for cb in range(5)]
            fill = w5_list(vA[(j+1) % 2], 34, (j + 1) * 5120) if j + 1 < nsteps else []
            if j == 0: fill = fill + side
            if j == nsteps - 1 and st + 3 < 7:
                L, n = lda(st + 3); fill = fill + L; pend.append(("A", st + 3, n))
            interleave(a, mf, fill)
    g.stamp(25)
    exchange(g, acc, L5_SCR)
    L1, L2 = a.new("Lp5e"), a.new("Lp5e")
    a(f"s_cmp_lg_u32 s{sKH}, 0\ns_cbranch_scc1 {L1}")
    for blocks, lab in (((0, 1, 2), None), ((3, 4), L1)):
        if lab: a.label(lab)
        for j, cb in enumerate(blocks):
            for r in range(4): a(f"v_fma_f32 v{40+r}, v{vGB+4*j+r}, v{acc+4*cb+r}, v{vX1+4*j+r}")
            a(f"v_cvt_pk_bf16_f32 v{44+2*j}, v40, v41\nv_cvt_pk_bf16_f32 v{45+2*j}, v42, v43")
            a(f"buffer_store_dwordx2 {vr(44+2*j,2)}, v253, s[{S_OUT}:{S_OUT+3}], s30 offen offset:{j*32}")
        if not lab: a(f"s_branch {L2}")
    a.label(L2)

def rest(g):
    p3(g); g.stamp(8)
    if g.stop >= 4:
        p4(g); g.stamp(9)
    if g.stop >= 5:
        p5(g); g.stamp(10)
```

```python
import sys, os
sys.path.insert(0, os.path.dirname(os.path.abspath(__file__)))
from asmlib import Asm, fix_hazards

NAME = "adaLN_cond__grouped_kv_mqa__glu_gated_swiglu__prompt_kernel"

WS_NONCE = 0x0
F_KV   = 0x1000
F_MODR = 0x2000
F_O    = 0x3000
F_Y    = 0x5000
F_ACT  = 0x7000
F_UT   = 0x9000
F_RP   = 0x18000
WS_MODG = 0xA000
WS_MODR = 0xC000
WS_MODB = 0xE800
WS_UT   = 0x10000
WS_KV   = 0x20000
WS_STAT = 0x60000
WS_O    = 0x100000
WS_Y    = 0x400000
WS_ACT  = 0x700000
WS_TS   = 0xE00000
WS_RW   = 0x1000000
RW_WO, RW_W2, RW_13 = 0, 819200, 819200 + 8 * 278528
RW_W2S = 278528
WS_USED = 0x1800000
KV_TILE = 3328

S_X, S_WS, S_A, S_B, S_C, S_OUT = 4, 8, 12, 16, 20, 24
P_X, P_WQ, P_WK, P_WV, P_WO, P_BX, P_W1, P_W3, P_W2, P_CC, P_WMOD, P_OUT, P_DBG, P_WS = [32 + 2 * i for i in range(14)]
sL, sG, sM, sI, sHG, sW, sNON, sXC, sJ = 60, 61, 62, 63, 64, 65, 66, 67, 68
sW4 = 69
sT = list(range(70, 94))
sKH = 97
sFB0, sWSRC, sRBG = 98, 99, 28
sWK = 29
SPIN_LIMIT = 400000

vLANE = 1
vL16 = 2
vO160 = [3, 4, 5, 6, 7]

def srd(a, d, p, size):
    a(f"s_mov_b32 s{d}, s{p}\ns_mov_b32 s{d+1}, s{p+1}\ns_mov_b32 s{d+2}, {size}\ns_mov_b32 s{d+3}, 0x20000")
def vr(b, n=1): return f"v{b}" if n == 1 else f"v[{b}:{b+n-1}]"
WSR = f"s[{S_WS}:{S_WS+3}]"

class Gen:
    def __init__(self, stop=99, ts=False, force_fallback=False):
        self.a = Asm(); self.stop = stop; self.ts = ts; self.force_fallback = force_fallback

    def stamp_dyn(self, mode, sreg, add=0):
        if not self.ts or os.environ.get("TSMODE") != mode: return
        a = self.a
        a(f"s_memrealtime s[94:95]\ns_waitcnt lgkmcnt(0)")
        a(f"s_lshl_b32 s96, s{sL}, 3\ns_add_u32 s96, s96, s{sW}\ns_lshl_b32 s96, s96, 5\ns_add_u32 s96, s96, s{sreg}\ns_add_u32 s96, s96, {add}\ns_lshl_b32 s96, s96, 2\ns_add_u32 s96, s96, {WS_TS}")
        a(f"v_mov_b32 v254, s94\nv_mov_b32 v255, s96")
        a(f"s_mov_b64 s[100:101], exec\ns_mov_b64 exec, 1")
        a(f"buffer_store_dword v254, v255, {WSR}, 0 offen")
        a(f"s_mov_b64 exec, s[100:101]")

    def cstamp(self, idx):
        if not self.ts or os.environ.get("TSMODE"): return
        a = self.a
        a(f"s_memtime s[94:95]\ns_waitcnt lgkmcnt(0)")
        a(f"s_lshl_b32 s96, s{sL}, 3\ns_add_u32 s96, s96, s{sW}\ns_lshl_b32 s96, s96, 7\ns_add_u32 s96, s96, {WS_TS + idx*4}")
        a(f"v_mov_b32 v254, s94\nv_mov_b32 v255, s96")
        a(f"s_mov_b64 s[100:101], exec\ns_mov_b64 exec, 1")
        a(f"buffer_store_dword v254, v255, {WSR}, 0 offen")
        a(f"s_mov_b64 exec, s[100:101]")

    def hstamp(self, slot, invert=False):
        a = self.a
        lab = a.new("Lh")
        a(f"s_cmp_lg_u32 s{sW}, 0\ns_cbranch_scc1 {lab}\ns_cmp_lg_u32 s{sL}, {int(os.environ.get('HL', '0'))}\ns_cbranch_scc1 {lab}")
        a(f"s_memrealtime s[94:95]\ns_waitcnt lgkmcnt(0)")
        a(f"s_mov_b32 s{S_OUT}, s{P_DBG}\ns_mov_b32 s{S_OUT+1}, s{P_DBG+1}\ns_mov_b32 s{S_OUT+2}, 256\ns_mov_b32 s{S_OUT+3}, 0x20000")
        a(f"v_mov_b32 v254, s94\nv_mov_b32 v255, {slot*4}")
        a(f"s_mov_b64 s[100:101], exec\ns_mov_b64 exec, 1")
        a(f"buffer_store_dword v254, v255, s[{S_OUT}:{S_OUT+3}], 0 offen")
        a(f"s_mov_b64 exec, s[100:101]")
        srd(a, S_OUT, P_OUT, 2048 * 1280)
        a.label(lab)

    HMAP = {0: (0, False), 1: (1, False), 3: (2, False), 4: (3, False), 5: (4, False), 6: (5, False), 14: (6, False), 20: (7, False), 15: (8, False), 11: (9, False), 12: (10, False), 22: (11, False), 26: (12, False), 25: (13, False), 10: (14, False)}
    def stamp(self, idx):
        if os.environ.get("HTS"):
            if idx in self.HMAP: self.hstamp(*self.HMAP[idx])
            return
        if not self.ts or os.environ.get("TSMODE"): return
        a = self.a
        a(f"s_memrealtime s[94:95]\ns_waitcnt lgkmcnt(0)")
        a(f"s_lshl_b32 s96, s{sL}, 3\ns_add_u32 s96, s96, s{sW}\ns_lshl_b32 s96, s96, 7\ns_add_u32 s96, s96, {WS_TS + idx*4}")
        a(f"v_mov_b32 v254, s94\nv_mov_b32 v255, s96")
        a(f"s_mov_b64 s[100:101], exec\ns_mov_b64 exec, 1")
        a(f"buffer_store_dword v254, v255, {WSR}, 0 offen")
        a(f"s_mov_b64 exec, s[100:101]")

    def bail(self, err):
        a = self.a
        a(f"v_mov_b32 v254, {err}\nv_mov_b32 v255, 0")
        srd(a, S_C, P_DBG, 256)
        a(f"buffer_store_dword v254, v255, s[{S_C}:{S_C+3}], 0 offen")

    def poll(self, vaddr, vdat, n=1, tagpos=(0,), err=1, soff="0", depth=3):
        a = self.a
        L, D = a.new("Lpoll"), a.new("Lpdone")
        cnt = sT[20]
        op = {1: "buffer_load_dword", 2: "buffer_load_dwordx2", 4: "buffer_load_dwordx4"}[n]
        ld = lambda k: a(f"{op} {vr(vdat + k*n, n)}, v{vaddr}, {WSR}, {soff} offen sc1")
        a(f"s_mov_b32 s{cnt}, 0")
        for k in range(depth - 1): ld(k)
        a.label(L)
        for k in range(depth):
            ld((k + depth - 1) % depth)
            a(f"s_waitcnt vmcnt({depth-1})")
            b = vdat + k * n
            a(f"v_cmp_ne_u32 vcc, s{sNON}, v{b + tagpos[0]}")
            for t in tagpos[1:]:
                a(f"v_cmp_ne_u32 s[{sT[22]}:{sT[23]}], s{sNON}, v{b + t}")
                a(f"s_or_b64 vcc, vcc, s[{sT[22]}:{sT[23]}]")
            a(f"s_cbranch_vccz {D}")
        a(f"s_add_u32 s{cnt}, s{cnt}, 1\ns_cmp_lt_u32 s{cnt}, {SPIN_LIMIT}\ns_cbranch_scc1 {L}")
        self.bail(err)
        a.label(D)

    def one_lane_store(self, soff_s, vval):
        a = self.a
        a(f"s_mov_b64 exec, 1\nbuffer_store_dword v{vval}, v{vLANE}, {WSR}, s{soff_s} offen sc1\ns_mov_b64 exec, -1")

    def wave_flag(self, base):
        a = self.a
        a(f"s_lshl_b32 s{sT[0]}, s{sL}, 2\ns_add_u32 s{sT[0]}, s{sT[0]}, {base}")
        a(f"v_mov_b32 v255, s{sNON}")
        a("s_waitcnt vmcnt(0)\ns_barrier")
        E = a.new("Lwf")
        a(f"s_cmp_lg_u32 s{sW}, 0\ns_cbranch_scc1 {E}")
        self.one_lane_store(sT[0], 255)
        a.label(E)

    def wg_poll(self, base, first_s, nflags, vtmp, err, wave=7):
        a = self.a
        E = a.new("Lwp")
        a(f"s_cmp_lg_u32 s{sW}, {wave}\ns_cbranch_scc1 {E}")
        a(f"s_lshl_b32 s{sT[1]}, s{first_s}, 2\ns_add_u32 s{sT[1]}, s{sT[1]}, {base}\nv_lshlrev_b32 v{vtmp}, 2, v{vLANE}")
        a(f"s_mov_b32 exec_lo, {(1 << nflags) - 1}\ns_mov_b32 exec_hi, 0")
        self.poll(vtmp, vtmp + 1, n=1, err=err, soff=f"s{sT[1]}", depth=2)
        a("s_mov_b64 exec, -1")
        a.label(E)
        a("s_barrier")

    def bf16_round(self, dst, src):
        self.a(f"v_cvt_pk_bf16_f32 v{dst}, v{src}, v{src}\nv_and_b32 v{dst}, 0xffff0000, v{dst}")

    def dma_run(self, srd_s, voff, soff, lds, n, extra=""):
        a = self.a
        a(f"s_mov_b32 m0, {lds}")
        for k in range(n):
            a(f"buffer_load_dwordx4 v{voff}, s[{srd_s}:{srd_s+3}], s{soff} offen offset:{k*1024}{extra} lds")

    L1_H = 0; L1_WQ2 = 81920; L1_WKV = 128000; L1_GS = 153600; L1_NS = 158720; L1_SCR = 160000
    NQ1 = 22
    vX = 8; vXN = 48; vWQ = 128
    vWA, vC1 = 216, 228

    def prologue(self):
        a = self.a
        a(f"s_cmp_ge_u32 s2, 256\ns_cbranch_scc1 L_END")
        a("s_load_dwordx16 s[32:47], s[0:1], 0\ns_load_dwordx8 s[48:55], s[0:1], 64\ns_load_dwordx4 s[56:59], s[0:1], 96")
        if not os.environ.get("X_NOCP"):
            E = a.new("Lcp"); GP = a.new("Lpc")
            a(f"s_getpc_b64 s[{sT[2]}:{sT[3]}]")
            a.label(GP)
            a(f"s_lshr_b32 s{sT[4]}, s2, 3\ns_lshl_b32 s{sT[4]}, s{sT[4]}, 13\ns_cmp_ge_u32 s{sT[4]}, L_END - {GP}\ns_cbranch_scc1 {E}")
            a(f"v_lshlrev_b32 v208, 4, v0\nv_add_u32 v208, s{sT[4]}, v208\nv_min_u32 v208, L_END - {GP} - 16, v208")
            a(f"global_load_dwordx4 v[208:211], v208, s[{sT[2]}:{sT[3]}]")
            a.label(E)
        a(f"v_and_b32 v{vLANE}, 63, v0\nv_lshrrev_b32 v8, 6, v0")
        a(f"s_and_b32 s{sXC}, s2, 7\ns_lshr_b32 s{sJ}, s2, 3")
        a(f"v_readfirstlane_b32 s{sW}, v8")
        a(f"s_lshl_b32 s{sL}, s{sXC}, 5\ns_add_u32 s{sL}, s{sL}, s{sJ}")
        a(f"v_lshlrev_b32 v{vL16}, 4, v{vLANE}")
        a(f"s_lshr_b32 s{sG}, s{sL}, 4\ns_and_b32 s{sM}, s{sL}, 15\ns_lshr_b32 s{sI}, s{sL}, 3\ns_and_b32 s{sHG}, s{sL}, 7")
        a(f"s_and_b32 s{sW4}, s{sW}, 3\ns_lshr_b32 s{sKH}, s{sW}, 2\ns_lshl_b32 s{sWK}, s{sW}, 10")
        a(f"s_lshl_b32 s{sRBG}, s{sI}, 2\ns_add_u32 s{sRBG}, s{sRBG}, s{sW4}")
        a(f"v_and_b32 v243, 31, v{vLANE}\ns_lshl_b32 s{sT[0]}, s{sW}, 5\nv_add_u32 v243, s{sT[0]}, v243")
        a(f"v_lshlrev_b32 v244, 1, v243")
        a(f"s_movk_i32 s{sT[0]}, 7680\nv_mul_u32_u24 v243, s{sT[0]}, v243\nv_lshrrev_b32 v245, 5, v{vLANE}\nv_lshl_add_u32 v243, v245, 4, v243")
        a(f"s_lshl_b32 s{sT[5]}, s{sL}, 5\ns_cmp_lt_u32 s{sL}, 240\ns_cselect_b32 s{sT[5]}, s{sT[5]}, 0x7000000")
        a(f"v_mov_b32 v246, 0")
        a("s_waitcnt lgkmcnt(0)")
        srd(a, S_B, P_WMOD, 640 * 7680)
        for it in range(3):
            a(f"buffer_load_dwordx4 {vr(self.vWA+4*it,4)}, v243, s[{S_B}:{S_B+3}], s{sT[5]} offen")
            if it < 2: a(f"v_add_u32 v243, {256*7680}, v243")
        srd(a, S_A, P_CC, 1280)
        for it in range(3):
            a(f"buffer_load_ushort v{self.vC1+it}, v244, s[{S_A}:{S_A+3}], 0 offen offset:{it*512}")
        srd(a, S_WS, P_WS, WS_USED)
        a(f"buffer_load_dword v242, v246, {WSR}, 0 offen sc1")
        a("s_barrier")
        srd(a, S_X, P_X, 2048 * 1280)
        a(f"v_lshrrev_b32 v245, 4, v{vLANE}\nv_and_b32 v246, 15, v{vLANE}")
        a(f"s_lshl_b32 s{sT[8]}, s{sI}, 3\ns_add_u32 s{sT[8]}, s{sT[8]}, s{sW}\ns_mul_i32 s{sT[8]}, s{sT[8]}, {8*1280}")
        a(f"v_mul_u32_u24 v245, 1280, v245\nv_lshl_add_u32 v245, v246, 4, v245\nv_add_u32 v246, {4*1280}, v245")
        for it in range(2):
            for c in range(5):
                a(f"buffer_load_dwordx4 {vr(self.vX + (it*5+c)*4, 4)}, v{245+it}, s[{S_X}:{S_X+3}], s{sT[8]} offen offset:{c*256}")
        a("s_barrier")
        a(f"s_cmp_lt_u32 s{sHG}, 4\ns_cselect_b32 s{S_C}, s{P_WK}, s{P_WV}\ns_cselect_b32 s{S_C+1}, s{P_WK+1}, s{P_WV+1}")
        a(f"s_mov_b32 s{S_C+2}, 25600\ns_mov_b32 s{S_C+3}, 0x20000")
        a(f"s_lshl_b32 s{sT[3]}, s{sW}, 12\ns_add_u32 s{sT[4]}, s{sT[3]}, {self.L1_WKV}")
        E1, E2 = a.new("Lkv"), a.new("Lkv")
        a(f"s_cmp_ge_u32 s{sW}, 6\ns_cbranch_scc1 {E1}")
        self.dma_run(S_C, vL16, sT[3], f"s{sT[4]}", 4)
        a(f"s_branch {E2}")
        a.label(E1)
        a(f"s_cmp_eq_u32 s{sW}, 7\ns_cbranch_scc1 {E2}")
        self.dma_run(S_C, vL16, sT[3], f"s{sT[4]}", 1)
        a.label(E2)
        a(f"s_mov_b32 s{sT[0]}, 0x1999999a")
        for ph in range(5):
            r = vO160[ph]
            a(f"v_add_u32 v248, {64*ph}, v{vLANE}\nv_mul_hi_u32 v249, v248, s{sT[0]}")
            a(f"v_mul_u32_u24 v250, {1280-160}, v249\nv_lshl_add_u32 v250, v248, 4, v250")
            a(f"v_add_u32 v{r}, {4096 - (1024*ph if ph < 4 else 0)}, v250")
        a(f"s_sub_u32 s{S_A}, s{P_WQ}, 4096\ns_subb_u32 s{S_A+1}, s{P_WQ+1}, 0\ns_mov_b32 s{S_A+2}, {640*1280+4096}\ns_mov_b32 s{S_A+3}, 0x20000")
        a(f"s_mul_i32 s{sT[3]}, s{sW}, 40960\ns_mul_i32 s{sT[4]}, s{sHG}, 160\ns_add_u32 s{sT[3]}, s{sT[3]}, s{sT[4]}")
        a(f"s_mul_i32 s{sT[4]}, s{sW}, 5120")
        for j in range(3):
            E = None
            if j == 1:
                a(f"s_add_u32 s{sT[3]}, s{sT[3]}, {8*40960}\ns_add_u32 s{sT[4]}, s{sT[4]}, {8*5120}")
                a(f"s_cmp_ge_u32 s{sW}, 3\ns_cselect_b32 s{sT[5]}, {self.L1_WQ2 - 11*5120}, 0\ns_add_u32 s{sT[4]}, s{sT[4]}, s{sT[5]}")
            if j == 2:
                E = a.new("Lq")
                a(f"s_cmp_ge_u32 s{sW}, 4\ns_cbranch_scc1 {E}")
                a(f"s_add_u32 s{sT[3]}, s{sT[3]}, {8*40960}\ns_mul_i32 s{sT[4]}, s{sW}, 5120\ns_add_u32 s{sT[4]}, s{sT[4]}, {self.L1_WQ2 + 5*5120}")
            a(f"s_mov_b32 m0, s{sT[4]}")
            for ph in range(4):
                a(f"buffer_load_dwordx4 v{vO160[ph]}, s[{S_A}:{S_A+3}], s{sT[3]} offen offset:{ph*1024} lds")
            a(f"s_add_u32 m0, s{sT[4]}, 4096")
            a(f"buffer_load_dwordx4 v{vO160[4]}, s[{S_A}:{S_A+3}], s{sT[3]} offen lds")
            if E: a.label(E)
        self.dma_min = 10
        srd(a, S_OUT, P_OUT, 2048 * 1280)

    def p0(self):
        a = self.a
        a.c("---- P0: modulation GEMV (16 columns per workgroup) ----")
        a(f"s_waitcnt vmcnt({10 + self.dma_min})")
        a(f"v_readfirstlane_b32 s{sNON}, v242")
        acc = 244
        for it in range(3):
            c = self.vC1 + it
            a(f"v_lshlrev_b32 v{c}, 16, v{c}\nv_mul_f32 v{232+it}, 0xbfb8aa3b, v{c}")
        for it in range(3): a(f"v_exp_f32 v{232+it}, v{232+it}")
        a(f"s_add_u32 s{sNON}, s{sNON}, 1\ns_cmp_eq_u32 s{sNON}, 0\ns_cselect_b32 s{sNON}, 1, s{sNON}")
        for it in range(3): a(f"v_add_f32 v{232+it}, 1.0, v{232+it}")
        for it in range(3): a(f"v_rcp_f32 v{232+it}, v{232+it}")
        for it in range(3): a(f"v_mul_f32 v{232+it}, v{self.vC1+it}, v{232+it}")
        for it in range(3):
            a(f"v_cvt_pk_bf16_f32 v{235+it}, v{232+it}, 0\nv_cvt_pk_bf16_f32 v{238+it}, 0, v{232+it}")
        for it in range(3):
            w = self.vWA + 4 * it
            for j in range(4):
                c0 = "0" if it == 0 else f"v{acc+2*j}"; c1 = "0" if it == 0 else f"v{acc+2*j+1}"
                a(f"v_dot2_f32_bf16 v{acc+2*j}, v{w+j}, v{235+it}, {c0}\nv_dot2_f32_bf16 v{acc+2*j+1}, v{w+j}, v{238+it}, {c1}")
        for sh in (1, 2, 4, 8):
            for j in range(8):
                a(f"v_add_f32_dpp v{acc+j}, v{acc+j}, v{acc+j} row_shr:{sh} row_mask:0xf bank_mask:0xf bound_ctrl:0")
        for j in range(8):
            a(f"v_add_f32_dpp v{acc+j}, v{acc+j}, v{acc+j} row_bcast:15 row_mask:0xa bank_mask:0xf")
        a(f"v_lshrrev_b32 v252, 5, v{vLANE}\ns_lshl_b32 s{sT[2]}, s{sW}, 2\ns_add_u32 s{sT[2]}, s{sT[2]}, {self.L1_SCR}\nv_lshl_add_u32 v252, v252, 8, s{sT[2]}")
        a("s_mov_b32 exec_lo, 0x80000000\ns_mov_b32 exec_hi, 0x80000000")
        for j in range(8):
            a(f"ds_write_b32 v252, v{acc+j} offset:{j*32}")
        a("s_mov_b64 exec, -1")
        a("s_waitcnt lgkmcnt(0)\ns_barrier")
        E = a.new("Lp0e")
        a(f"s_cmp_lg_u32 s{sW}, 0\ns_cbranch_scc1 {E}\ns_cmp_ge_u32 s{sL}, 240\ns_cbranch_scc1 {E}")
        a(f"v_and_b32 v246, 15, v{vLANE}\nv_lshlrev_b32 v246, 5, v246\nv_add_u32 v246, {self.L1_SCR}, v246")
        a("ds_read_b128 v[248:251], v246\nds_read_b128 v[244:247], v246 offset:16")
        a(f"s_mov_b32 s{sT[2]}, 0")
        a(f"s_cmp_ge_u32 s{sL}, 40\ns_cselect_b32 s{sT[2]}, 1.0, s{sT[2]}\ns_cmp_ge_u32 s{sL}, 80\ns_cselect_b32 s{sT[2]}, 0, s{sT[2]}")
        a(f"s_cmp_ge_u32 s{sL}, 160\ns_cselect_b32 s{sT[2]}, 1.0, s{sT[2]}\ns_cmp_ge_u32 s{sL}, 200\ns_cselect_b32 s{sT[2]}, 0, s{sT[2]}")
        a("s_waitcnt lgkmcnt(0)")
        a("v_add_f32 v244, v244, v248\nv_add_f32 v245, v245, v249\nv_add_f32 v246, v246, v250\nv_add_f32 v247, v247, v251")
        a("v_add_f32 v244, v244, v245\nv_add_f32 v246, v246, v247\nv_add_f32 v244, v244, v246")
        self.bf16_round(244, 244)
        a(f"v_add_f32 v244, s{sT[2]}, v244")
        self.bf16_round(244, 244)
        a(f"v_mov_b32_dpp v245, v244 quad_perm:[1,0,3,2] row_mask:0xf bank_mask:0xf")
        a(f"v_lshrrev_b32 v247, 16, v244\nv_or_b32 v248, v247, v245")
        R = a.new("Lp0r")
        a(f"v_lshlrev_b32 v246, 2, v{vLANE}\nv_mov_b32 v249, s{sNON}")
        a(f"s_cmp_ge_u32 s{sL}, 80\ns_cbranch_scc1 {R}")
        a(f"s_lshl_b32 s{sT[1]}, s{sL}, 6\ns_add_u32 s{sT[1]}, s{sT[1]}, {WS_MODG}")
        a("s_mov_b32 exec_lo, 0x5555\ns_mov_b32 exec_hi, 0")
        a(f"buffer_store_dwordx2 v[248:249], v246, {WSR}, s{sT[1]} offen sc1")
        a(f"s_mov_b64 exec, -1\ns_branch {E}")
        a.label(R)
        a(f"s_sub_u32 s{sT[1]}, s{sL}, 80\ns_lshl_b32 s{sT[2]}, s{sT[1]}, 6\ns_add_u32 s{sT[2]}, s{sT[2]}, {WS_MODR}")
        a("s_mov_b32 exec_lo, 0xffff\ns_mov_b32 exec_hi, 0")
        a(f"buffer_store_dword v244, v246, {WSR}, s{sT[2]} offen sc1")
        EB = a.new("Lmodb")
        a(f"s_cmp_lt_u32 s{sL}, 120\ns_cbranch_scc1 {EB}\ns_cmp_ge_u32 s{sL}, 200\ns_cbranch_scc1 {EB}")
        a(f"s_sub_u32 s{sT[2]}, s{sL}, 120\ns_lshl_b32 s{sT[2]}, s{sT[2]}, 5\ns_add_u32 s{sT[2]}, s{sT[2]}, {WS_MODB}")
        a(f"v_lshlrev_b32 v246, 1, v{vLANE}\ns_mov_b32 exec_lo, 0x5555")
        a(f"buffer_store_dword v248, v246, {WSR}, s{sT[2]} offen sc1")
        a.label(EB)
        a(f"s_lshl_b32 s{sT[2]}, s{sT[1]}, 2\ns_add_u32 s{sT[2]}, s{sT[2]}, {F_MODR}")
        a("s_waitcnt vmcnt(0)")
        self.one_lane_store(sT[2], 249)
        a.label(E)

    def row16_allreduce(self, regs, op="v_add_f32", steps=(8, 4, 2, 1)):
        for sh in steps:
            for r in regs:
                self.a(f"{op}_dpp v{r}, v{r}, v{r} row_ror:{sh} row_mask:0xf bank_mask:0xf")

    def ln_stats(self):
        a = self.a
        a.c("---- LN1 statistics ----")
        a(f"s_waitcnt vmcnt({self.dma_min})")
        X, N = self.vX, self.vXN
        ONE = 240
        a(f"v_mov_b32 v{ONE}, 0x3f803f80")
        for q in range(20):
            for it in range(2):
                sa_, sq_ = 232 + 2 * it + (q & 1), 236 + 2 * it + (q & 1)
                x = X + it * 20 + q
                a(f"v_dot2_f32_bf16 v{sa_}, v{x}, v{ONE}, {'0' if q < 2 else 'v%d' % sa_}")
                a(f"v_dot2_f32_bf16 v{sq_}, v{x}, v{x}, {'0' if q < 2 else 'v%d' % sq_}")
        a("v_add_f32 v232, v232, v233\nv_add_f32 v234, v234, v235\nv_add_f32 v236, v236, v237\nv_add_f32 v238, v238, v239")
        self.row16_allreduce([232, 234, 236, 238])
        a(f"s_mov_b32 s{sT[0]}, 0x3acccccd")
        for it in range(2):
            m, q, r = 232 + 2 * it, 236 + 2 * it, 242 + 4 * it
            a(f"v_mul_f32 v{m}, s{sT[0]}, v{m}\nv_mul_f32 v{q}, s{sT[0]}, v{q}")
            a(f"v_fma_f32 v{q}, -v{m}, v{m}, v{q}\nv_max_f32 v{q}, 0, v{q}\nv_add_f32 v{q}, 0x3727c5ac, v{q}\nv_rsq_f32 v{r}, v{q}")
        for it in range(2):
            m, r = 232 + 2 * it, 242 + 4 * it
            a(f"v_mov_b32 v{r+1}, v{r}\nv_mul_f32 v{r+2}, -v{m}, v{r}\nv_mul_f32 v{r+3}, -v{m}, v{r}")
        for it in range(2):
            r = 242 + 4 * it
            for q in range(20):
                d = N + it * 40 + 2 * q
                a(f"v_lshlrev_b32 v{d}, 16, v{X+it*20+q}\nv_and_b32 v{d+1}, 0xffff0000, v{X+it*20+q}")
            for q in range(20):
                d = N + it * 40 + 2 * q
                a(f"v_pk_fma_f32 {vr(d,2)}, {vr(d,2)}, {vr(r,2)}, {vr(r+2,2)}")

    def emit_wq_addr(self, d, base):
        a = self.a
        a(f"v_lshrrev_b32 v{d}, 5, v{vLANE}\nv_bfe_u32 v{d+1}, v{vLANE}, 2, 2\nv_lshl_add_u32 v{d}, v{d}, 3, v{d+1}")
        a(f"v_bfe_u32 v{d+1}, v{vLANE}, 4, 1\nv_lshlrev_b32 v{d+1}, 5, v{d+1}\nv_mad_u32_u24 v{d}, v{d}, s{sT[19]}, v{d+1}")
        a(f"v_and_b32 v{d+1}, 3, v{vLANE}\nv_lshl_add_u32 v{d}, v{d+1}, 3, v{d}")
        a(f"s_mul_i32 s{sT[0]}, s{sW4}, 40\ns_add_u32 s{sT[0]}, s{sT[0]}, {base}\nv_add_u32 v{d}, s{sT[0]}, v{d}")

    def wq_to_regs(self):
        a = self.a
        a.c("---- wq part 1 -> registers ----")
        a(f"s_movk_i32 s{sT[19]}, 160")
        self.emit_wq_addr(8, self.L1_H)
        a("s_waitcnt vmcnt(0)\ns_barrier")
        if not os.environ.get("X_NOTLB"):
            E = a.new("Ltlb")
            a(f"s_cmp_lg_u32 s{sW}, 7\ns_cbranch_scc1 {E}")
            a(f"v_lshlrev_b32 v250, 21, v{vLANE}\nv_add_u32 v250, 0x100, v250")
            a("s_mov_b32 exec_lo, 0xfff\ns_mov_b32 exec_hi, 0")
            a(f"buffer_load_dword v251, v250, {WSR}, 0 offen")
            a("s_mov_b64 exec, 1\nv_mov_b32 v250, 0")
            for k, (p, pages) in enumerate(((P_OUT, 2), (P_WO, 1), (P_W1, 2), (P_W3, 2), (P_W2, 2))):
                for pg in range(pages):
                    a(f"s_add_u32 s{sT[2]}, s{p}, {pg << 21}\ns_addc_u32 s{sT[3]}, s{p+1}, 0")
                    a(f"global_load_dword v251, v250, s[{sT[2]}:{sT[3]}]")
            a("s_mov_b64 exec, -1")
            a.label(E)
        for s in range(self.NQ1):
            a(f"ds_read_b64_tr_b16 {vr(self.vWQ+4*s,2)}, v8 offset:{s*16*160}")
            a(f"ds_read_b64_tr_b16 {vr(self.vWQ+4*s+2,2)}, v8 offset:{s*16*160 + 4*160}")

    def mod_poll_apply(self):
        a = self.a
        a.c("---- wait for sa/ca granules, LN apply ----")
        a(f"v_and_b32 v8, 15, v{vLANE}\nv_lshlrev_b32 v9, 5, v8\nv_add_u32 v9, {self.L1_GS}, v9")
        a(f"v_lshrrev_b32 v10, 4, v{vLANE}\ns_lshl_b32 s{sT[0]}, s{sW}, 3\nv_add_u32 v10, s{sT[0]}, v10")
        for it in range(2):
            if it: a("v_add_u32 v10, 4, v10")
            a(f"v_and_b32 v11, 15, v10\nv_xor_b32 v11, v11, v8\nv_lshlrev_b32 v11, 4, v11")
            a(f"v_mad_u32_u24 v{12+it}, v10, s{sT[18]}, v11".replace(f"s{sT[18]}", "v14") if False else f"v_mul_u32_u24 v{12+it}, 1280, v10\nv_add_u32 v{12+it}, v{12+it}, v11")
        self.kv_addr()
        self.q_addr()
        E = a.new("Lmp")
        a(f"s_cmp_ge_u32 s{sW}, 5\ns_cbranch_scc1 {E}")
        a(f"v_lshlrev_b32 v15, 4, v0")
        a(f"s_mov_b32 s{sT[1]}, {WS_MODG}")
        self.poll(15, 16, n=4, tagpos=(1, 3), err=1, soff=f"s{sT[1]}", depth=1)
        a("v_lshlrev_b32 v20, 16, v16\nv_and_b32 v21, 0xffff0000, v16\nv_lshlrev_b32 v22, 16, v18\nv_and_b32 v23, 0xffff0000, v18")
        a(f"v_add_u32 v24, {self.L1_GS}, v15\nds_write_b128 v24, v[20:23]")
        a("v_xor_b32 v16, 0x80008000, v16\nv_xor_b32 v17, 0x80008000, v18")
        a(f"v_lshrrev_b32 v24, 1, v15\nv_add_u32 v24, {self.L1_NS}, v24\nv_cmp_gt_u32 vcc, 160, v0")
        a(f"s_and_saveexec_b64 s[{sT[22]}:{sT[23]}], vcc\nds_write_b64 v24, v[16:17]\ns_mov_b64 exec, -1")
        a.label(E)
        a("s_waitcnt lgkmcnt(0)\ns_barrier")
        def rd(c, b):
            a(f"ds_read_b128 v[{b}:{b+3}], v9 offset:{c*512}\nds_read_b128 v[{b+4}:{b+7}], v9 offset:{c*512 + 16}")
            a(f"ds_read_b128 v[{b+8}:{b+11}], v9 offset:{2560 + c*512}\nds_read_b128 v[{b+12}:{b+15}], v9 offset:{2560 + c*512 + 16}")
        rd(0, 16)
        for c in range(5):
            b = 16 if c % 2 == 0 else 32
            if c + 1 < 5:
                rd(c + 1, 48 - b)
                a("s_waitcnt lgkmcnt(4)" if c == 0 else "s_waitcnt lgkmcnt(6)")
            else: a("s_waitcnt lgkmcnt(2)")
            for it in range(2):
                x = self.vXN + it * 40 + c * 8
                for j in range(4):
                    a(f"v_pk_fma_f32 {vr(x+2*j,2)}, {vr(x+2*j,2)}, {vr(b+8+2*j,2)}, {vr(b+2*j,2)}")
            for it in range(2):
                x = self.vXN + it * 40 + c * 8
                for j in range(4):
                    a(f"v_cvt_pk_bf16_f32 v{x+j}, v{x+2*j}, v{x+2*j+1}")
                a(f"ds_write_b128 v{12+it}, {vr(x,4)} offset:{self.L1_H + c*256}")
        a("s_waitcnt lgkmcnt(0)\ns_barrier")

    def sum_groups(self, r, t, op="v_add_f32"):
        a = self.a
        a(f"v_mov_b32 v{t}, v{r}\nv_permlane32_swap_b32 v{r}, v{t}\n{op} v{r}, v{r}, v{t}")
        a(f"v_mov_b32 v{t}, v{r}\nv_permlane16_swap_b32 v{r}, v{t}\n{op} v{r}, v{r}, v{t}")

    def kv_addr(self):
        a = self.a
        a(f"s_and_b32 s{sT[0]}, s{sHG}, 3\ns_lshl_b32 s{sT[0]}, s{sT[0]}, 4")
        a(f"v_and_b32 v232, 15, v{vLANE}\nv_lshrrev_b32 v233, 4, v{vLANE}")
        a(f"v_add_u32 v234, s{sT[0]}, v232\nv_mul_u32_u24 v234, 1280, v234")
        a(f"s_lshr_b32 s{sT[1]}, s{sW}, 1\ns_mul_i32 s{sT[2]}, s{sT[1]}, 5")
        a(f"s_lshl_b32 s{sT[3]}, s{sT[2]}, 2\nv_add_u32 v235, s{sT[3]}, v233")
        for j in range(5):
            a(f"v_add_u32 v236, {4*j}, v235\nv_xor_b32 v236, v236, v232\nv_lshl_add_u32 v{240+j}, v236, 4, v234")
        a(f"v_bfe_u32 v236, v{vLANE}, 2, 2\nv_lshl_add_u32 v236, v233, 3, v236\nv_mul_u32_u24 v236, 40, v236\nv_and_b32 v237, 3, v{vLANE}\nv_lshl_add_u32 v236, v237, 3, v236")
        a(f"s_and_b32 s{sT[3]}, s{sW}, 1\ns_lshl_b32 s{sT[3]}, s{sT[3]}, 5\ns_mul_i32 s{sT[4]}, s{sT[2]}, 1280\ns_add_u32 s{sT[3]}, s{sT[3]}, s{sT[4]}\ns_add_u32 s{sT[3]}, s{sT[3]}, {self.L1_WKV}\nv_add_u32 v236, s{sT[3]}, v236")
        a(f"s_lshl_b32 s{sT[3]}, s{sT[2]}, 6\ns_add_u32 s{sT[3]}, s{sT[3]}, {self.L1_NS}\nv_lshl_add_u32 v237, v233, 4, s{sT[3]}")

    def kv_proj(self):
        a = self.a
        a.c("---- K/V projection ----")
        for j in range(5):
            a(f"ds_read_b64_tr_b16 {vr(32+4*j,2)}, v236 offset:{j*1280}\nds_read_b64_tr_b16 {vr(34+4*j,2)}, v236 offset:{j*1280 + 160}")
            a(f"ds_read_b128 {vr(52+4*j,4)}, v{240+j} offset:{self.L1_H}")
        LV, LJ = a.new("Lvproj"), a.new("Lkvj")
        a(f"s_cmp_ge_u32 s{sHG}, 4\ns_cbranch_scc1 {LV}")
        a("s_waitcnt lgkmcnt(0)")
        for j in range(5): a(f"ds_read_b128 {vr(72+4*j,4)}, v237 offset:{j*64}")
        for j in range(5):
            a(f"v_mfma_f32_16x16x32_bf16 v[28:31], {vr(32+4*j,4)}, {vr(52+4*j,4)}, {'0' if j == 0 else 'v[28:31]'}")
        a("s_waitcnt lgkmcnt(0)")
        for j in range(5):
            a(f"v_mfma_f32_16x16x32_bf16 v[28:31], {vr(32+4*j,4)}, {vr(72+4*j,4)}, v[28:31]")
        a(f"s_branch {LJ}")
        a.label(LV)
        a("s_waitcnt lgkmcnt(0)")
        for j in range(5):
            a(f"v_mfma_f32_16x16x32_bf16 v[28:31], {vr(52+4*j,4)}, {vr(32+4*j,4)}, {'0' if j == 0 else 'v[28:31]'}")
        a.label(LJ)
        a(f"s_add_u32 s{sT[3]}, s{sWK}, {self.L1_WKV}\nv_add_u32 v18, s{sT[3]}, v{vL16}")
        a("s_barrier")
        a("ds_write_b128 v18, v[28:31]\ns_waitcnt lgkmcnt(0)\ns_barrier")
        E = a.new("Lkvend")
        a(f"s_cmp_ge_u32 s{sW}, 2\ns_cbranch_scc1 {E}")
        a("ds_read_b128 v[32:35], v18 offset:2048\nds_read_b128 v[36:39], v18 offset:4096\nds_read_b128 v[40:43], v18 offset:6144")
        a(f"s_and_b32 s{sT[2]}, s{sHG}, 3\ns_lshr_b32 s{sT[2]}, s{sT[2]}, 1\ns_lshl_b32 s{sT[3]}, s{sI}, 1\ns_add_u32 s{sT[2]}, s{sT[2]}, s{sT[3]}")
        a(f"s_mul_i32 s{sT[2]}, s{sT[2]}, {KV_TILE}\ns_add_u32 s{sT[2]}, s{sT[2]}, {WS_KV}\ns_and_b32 s{sT[3]}, s{sHG}, 1\ns_lshl_b32 s{sT[3]}, s{sT[3]}, 4")
        a("s_waitcnt lgkmcnt(0)")
        for r in range(4):
            a(f"v_add_f32 v{32+r}, v{32+r}, v{36+r}\nv_add_f32 v{28+r}, v{28+r}, v{40+r}")
        for r in range(4): a(f"v_add_f32 v{28+r}, v{28+r}, v{32+r}")
        a("v_cvt_pk_bf16_f32 v24, v28, v29\nv_cvt_pk_bf16_f32 v25, v30, v31")
        LV, LJ, W1 = a.new("Lv2"), a.new("Lj2"), a.new("Lw1")
        a(f"s_cmp_ge_u32 s{sHG}, 4\ns_cbranch_scc1 {LV}")
        a("v_dot2_f32_bf16 v26, v24, v24, 0\nv_dot2_f32_bf16 v26, v25, v25, v26")
        a(f"s_cmp_eq_u32 s{sW}, 1\ns_cbranch_scc1 {W1}")
        self.sum_groups(26, 27)
        a(f"v_add_u32 v30, s{sT[3]}, v232\nv_and_b32 v31, 1, v233\nv_lshl_add_u32 v30, v31, 5, v30\nv_lshlrev_b32 v30, 4, v30")
        a(f"v_lshrrev_b32 v31, 1, v233\nv_lshl_add_u32 v30, v31, 3, v30")
        a(f"buffer_store_dwordx2 v[24:25], v30, {WSR}, s{sT[2]} offen sc1")
        a(f"s_branch {LJ}")
        a.label(W1)
        a(f"v_cmp_gt_u32 vcc, 16, v{vLANE}\nv_cndmask_b32 v26, 0, v26, vcc")
        a(f"v_add_u32 v30, s{sT[3]}, v232\nv_lshlrev_b32 v30, 3, v30")
        a("s_mov_b32 exec_lo, 0xffff\ns_mov_b32 exec_hi, 0")
        a(f"buffer_store_dwordx2 v[24:25], v30, {WSR}, s{sT[2]} offen offset:3072 sc1")
        a(f"s_mov_b64 exec, -1\ns_branch {LJ}")
        a.label(LV)
        a("v_max_f32 v26, |v28|, |v29|\nv_max_f32 v27, |v30|, |v31|\nv_max_f32 v26, v26, v27")
        a(f"s_lshl_b32 s{sT[1]}, s{sW}, 4\nv_add_u32 v27, s{sT[1]}, v232")
        a("v_cmp_gt_u32 vcc, 20, v27\nv_cndmask_b32 v26, 0, v26, vcc")
        a("v_mov_b32 v28, 0x3f803f80\nv_and_b32 v29, 27, v27")
        a(f"v_cmp_eq_u32 vcc, 20, v27\nv_cmp_eq_u32 s[{sT[22]}:{sT[23]}], 24, v27\ns_or_b64 vcc, vcc, s[{sT[22]}:{sT[23]}]")
        a("v_cndmask_b32 v24, v24, v28, vcc\nv_cndmask_b32 v25, v25, v28, vcc")
        a(f"s_lshl_b32 s{sT[3]}, s{sT[3]}, 6\ns_add_u32 s{sT[2]}, s{sT[2]}, s{sT[3]}")
        a("v_and_b32 v31, 1, v233\nv_lshl_add_u32 v30, v31, 5, v27\nv_lshlrev_b32 v30, 4, v30\nv_lshrrev_b32 v31, 1, v233\nv_lshl_add_u32 v30, v31, 3, v30")
        a(f"buffer_store_dwordx2 v[24:25], v30, {WSR}, s{sT[2]} offen offset:1024 sc1")
        a.label(LJ)
        self.row16_allreduce([26], "v_max_f32")
        self.sum_groups(26, 27, "v_max_f32")
        a(f"s_lshl_b32 s{sT[2]}, s{sL}, 4\ns_lshl_b32 s{sT[3]}, s{sW}, 3\ns_add_u32 s{sT[2]}, s{sT[2]}, s{sT[3]}\ns_add_u32 s{sT[2]}, s{sT[2]}, {F_KV}")
        a(f"v_mov_b32 v28, s{sNON}\nv_mov_b32 v29, v26\nv_mov_b32 v30, 0")
        a("s_waitcnt vmcnt(0)\ns_mov_b64 exec, 1")
        a(f"buffer_store_dwordx2 v[28:29], v30, {WSR}, s{sT[2]} offen sc1")
        a("s_mov_b64 exec, -1")
        a.label(E)

    vQ1, vQ2 = 8, 12
    vO = 16
    vS = [32, 48]
    vP = 64
    vK1 = [72, 76]; vK2 = [80, 84]; vV1 = [88, 92]; vV2 = [96, 100]
    vAK = [104, 105]; vAK2 = [106, 107]
    vQN = 108; vK2L = 109
    L2_KV = 0; L2_WO = 53248; L2_UT = 0; L2_SCR = 0; L2_MISC = 162816
    CH = 4 * KV_TILE

    def q_addr(self):
        a = self.a
        a(f"s_lshl_b32 s{sT[0]}, s{sKH}, 5\nv_and_b32 v238, 31, v{vLANE}\nv_add_u32 v238, s{sT[0]}, v238")
        a(f"v_and_b32 v239, 15, v238\nv_mul_u32_u24 v238, 1280, v238\nv_lshrrev_b32 v226, 5, v{vLANE}\nv_xor_b32 v239, v239, v226")
        for q in range(8):
            a(f"v_xor_b32 v227, {2*q}, v239\nv_lshl_add_u32 v{216+q}, v227, 4, v238")
        self.emit_wq_addr(224, self.L1_WQ2)

    def q_proj(self):
        a = self.a
        a.c("---- Q projection: D[m=dim][n=row] ----")
        acc = 16
        def ldB(s): a(f"ds_read_b128 {vr(48+4*(s%3),4)}, v{216+s%8} offset:{self.L1_H + (s//8)*256}")
        def ldA(s):
            o = (s - self.NQ1) * 16 * 160
            a(f"ds_read_b64_tr_b16 {vr(64+4*(s%3),2)}, v224 offset:{o}\nds_read_b64_tr_b16 {vr(66+4*(s%3),2)}, v224 offset:{o+640}")
        def cnt(s): return 0 if s >= 40 else (1 + (2 if s >= self.NQ1 else 0))
        def ld(s):
            if s < 40:
                ldB(s)
                if s >= self.NQ1: ldA(s)
        ld(0); ld(1)
        for s in range(40):
            ld(s + 2)
            a(f"s_waitcnt lgkmcnt({cnt(s+1) + cnt(s+2)})")
            A = vr(self.vWQ + 4 * s, 4) if s < self.NQ1 else vr(64 + 4 * (s % 3), 4)
            a(f"v_mfma_f32_32x32x16_bf16 {vr(acc,16)}, {A}, {vr(48+4*(s%3),4)}, {'0' if s == 0 else vr(acc,16)}")
        a(f"s_mov_b32 s{sT[0]}, 0x3ea52b8e")
        for j in range(12): a(f"v_mul_f32 v{acc+j}, s{sT[0]}, v{acc+j}")
        for j in range(4): a(f"v_cvt_pk_bf16_f32 v{self.vQ1+j}, v{acc+2*j}, v{acc+2*j+1}")
        a(f"v_cvt_pk_bf16_f32 v{self.vQ2}, v{acc+8}, v{acc+9}\nv_cvt_pk_bf16_f32 v{self.vQ2+1}, v{acc+10}, v{acc+11}")
        a(f"v_cmp_gt_u32 vcc, 32, v{vLANE}")
        a(f"v_mov_b32 v{self.vQ2+2}, 0\nv_mov_b32 v{self.vQ2+3}, 0")
        a(f"v_cndmask_b32 v{self.vQ2}, 0, v{self.vQ2}, vcc\nv_cndmask_b32 v{self.vQ2+1}, 0, v{self.vQ2+1}, vcc")
        N = self.vQN
        regs = [self.vQ1 + j for j in range(4)] + [self.vQ2, self.vQ2 + 1]
        for i, r in enumerate(regs):
            a(f"v_dot2_f32_bf16 v{N}, v{r}, v{r}, {'0' if i == 0 else 'v%d' % N}")
        a(f"v_mov_b32 v40, v{N}\nv_permlane32_swap_b32 v{N}, v40\nv_add_f32 v{N}, v{N}, v40")
        a(f"v_sqrt_f32 v{N}, v{N}")

    def kv_piece(self, src_s, slot, half):
        L = [f"s_add_u32 m0, s{sT[18]}, {slot*self.CH}"]
        for k in (2 * half, 2 * half + 1):
            L.append(f"buffer_load_dwordx4 v{vL16}, {WSR}, s{src_s} offen offset:{k*1024} sc1 lds")
        if half == 1: L.append(f"s_add_u32 s{src_s}, s{src_s}, {self.CH}")
        return L

    def kv_dma(self, src_s, slot):
        for k in range(2):
            for x in self.kv_piece(src_s, slot, k): self.a(x)

    def ld_k(self, b, t):
        o = (t % 16) * KV_TILE
        self.a(f"ds_read_b128 {vr(self.vK1[b],4)}, v{vL16} offset:{o}\nds_read_b64 {vr(self.vK2[b],2)}, v{self.vK2L} offset:{o + 3072}")
    def ld_v1(self, b, t): self.a(f"ds_read_b128 {vr(self.vV1[b],4)}, v{vL16} offset:{(t % 16)*KV_TILE + 1024}")
    def ld_v2(self, b, t): self.a(f"ds_read_b128 {vr(self.vV2[b],4)}, v{vL16} offset:{(t % 16)*KV_TILE + 2048}")
    def qk(self, kb, sb, part):
        S = vr(self.vS[sb], 16)
        if part == 0: self.a(f"v_mfma_f32_32x32x16_bf16 {S}, {vr(self.vK1[kb],4)}, {vr(self.vQ1,4)}, 0")
        else: self.a(f"v_mfma_f32_32x32x16_bf16 {S}, {vr(self.vK2[kb],4)}, {vr(self.vQ2,4)}, {S}")

    def attn_setup(self):
        a = self.a
        a.c("---- attention: wait for K/V, bounds, stand-in for the row max ----")
        a("s_waitcnt lgkmcnt(0)\ns_barrier")
        a(f"s_lshl_b32 s{sT[18]}, s{sW4}, 12\ns_cmp_eq_u32 s{sW4}, 3\ns_cselect_b32 s{sT[18]}, 9216, s{sT[18]}")
        a(f"s_add_u32 s{sT[17]}, s{sT[18]}, {WS_KV}")
        PE = a.new("Lkvo")
        a(f"s_cmp_lg_u32 s{sW}, 3\ns_cbranch_scc1 {PE}")
        a(f"v_lshlrev_b32 v111, 6, v{vLANE}\ns_mov_b32 s{sT[1]}, {F_KV}")
        L, D = a.new("Lkvp"), a.new("Lkvd")
        cnt = sT[20]
        a(f"s_mov_b32 s{cnt}, 0")
        a.label(L)
        for j in range(4): a(f"buffer_load_dwordx4 {vr(112+4*j,4)}, v111, {WSR}, s{sT[1]} offen offset:{16*j} sc1")
        a("s_waitcnt vmcnt(0)")
        a(f"v_xor_b32 v128, s{sNON}, v112\nv_xor_b32 v129, s{sNON}, v114")
        for j in range(1, 4):
            a(f"v_xor_b32 v130, s{sNON}, v{112+4*j}\nv_xor_b32 v131, s{sNON}, v{114+4*j}\nv_or3_b32 v128, v128, v130, v131")
        a("v_or_b32 v128, v128, v129\nv_cmp_ne_u32 vcc, 0, v128")
        a(f"s_cbranch_vccz {D}")
        a(f"s_add_u32 s{cnt}, s{cnt}, 1\ns_cmp_lt_u32 s{cnt}, {SPIN_LIMIT}\ns_cbranch_scc1 {L}")
        self.bail(2)
        a.label(D)
        a("v_max3_f32 v113, v113, v117, v121\nv_max3_f32 v115, v115, v119, v123\nv_max_f32 v113, v113, v125\nv_max_f32 v115, v115, v127")
        self.row16_allreduce([113, 115], "v_max_f32", steps=(8, 4, 2))
        self.sum_groups(113, 114, "v_max_f32"); self.sum_groups(115, 116, "v_max_f32")
        a(f"v_lshlrev_b32 v114, 3, v{vLANE}\nv_add_u32 v114, {self.L2_MISC + 64}, v114\nv_mov_b32 v112, v113\nv_mov_b32 v113, v115")
        a("s_mov_b64 exec, 3\nds_write_b64 v114, v[112:113]\ns_mov_b64 exec, -1\ns_waitcnt lgkmcnt(0)")
        a.label(PE)
        if self.stop >= 3:
            import g3b
            g3b.bg_setup(self)
        a("s_barrier")
        self.stamp(31)
        E = a.new("Lfc")
        a(f"s_cmp_ge_u32 s{sW}, 4\ns_cbranch_scc1 {E}")
        for k in range(3):
            self.kv_dma(sT[17], k)
        a.label(E)
        a(f"v_mov_b32 v114, {self.L2_MISC + 64}\nds_read_b128 v[116:119], v114\ns_waitcnt lgkmcnt(0)")
        a("v_add_f32 v113, v116, v117\nv_sqrt_f32 v113, v113\nv_max_f32 v114, v118, v119")
        a(f"v_mul_f32 v113, 0x3f810000, v113\nv_mul_f32 v{self.vQN}, v{self.vQN}, v113")
        E = a.new("Lgen")
        a(f"s_or_b32 s{sT[0]}, s{sL}, s{sW}\ns_cmp_lg_u32 s{sT[0]}, 0\ns_cbranch_scc1 {E}")
        a(f"v_mov_b32 v112, s{sNON}\ns_mov_b32 s{sT[0]}, {WS_NONCE}")
        self.one_lane_store(sT[0], 112)
        a.label(E)
        for b in range(2):
            a(f"v_mov_b32 v{self.vK2[b]+2}, 0x3f803f80\nv_mov_b32 v{self.vK2[b]+3}, 0x00003f80")
        a(f"v_and_b32 v{self.vK2L}, 31, v{vLANE}\nv_lshlrev_b32 v{self.vK2L}, 3, v{self.vK2L}")
        a("s_waitcnt vmcnt(8)\ns_barrier")
        self.stamp(13) if os.environ.get("TSX") else None
        self.ld_k(0, 0)
        self.ld_k(1, 1)
        self.ld_v1(0, 0); self.ld_v2(0, 0)
        a("s_waitcnt lgkmcnt(4)")
        self.qk(0, 0, 0); self.qk(0, 0, 1)
        S = self.vS[0]
        U = self.vQN
        a(f"v_mov_b32 v115, 0x43480000\nv_mov_b32 v116, 0x47000000")
        a(f"v_cmp_nlt_f32 s[{sT[22]}:{sT[23]}], v114, v116")
        a(f"v_max3_f32 v112, v{S}, v{S+1}, v{S+2}")
        for j in range(3, 15, 2): a(f"v_max3_f32 v112, v112, v{S+j}, v{S+j+1}")
        a(f"v_max_f32 v112, v112, v{S+15}")
        a("v_mov_b32 v113, v112\nv_permlane32_swap_b32 v112, v113\nv_max_f32 v112, v112, v113")
        a(f"v_sub_f32 v113, v{U}, v112\nv_cmp_nle_f32 vcc, v113, v115")
        a(f"s_or_b64 vcc, vcc, s[{sT[22]}:{sT[23]}]")
        a(f"s_cmp_lg_u64 vcc, 0\ns_cselect_b32 s{sT[12]}, 1, 0")
        if self.force_fallback: a(f"s_mov_b32 s{sT[12]}, 1")
        a(f"s_lshl_b32 s{sT[0]}, s{sW}, 2\ns_add_u32 s{sT[0]}, s{sT[0]}, {self.L2_MISC}")
        a(f"v_mov_b32 v113, s{sT[0]}\nv_mov_b32 v114, s{sT[12]}\nds_write_b32 v113, v114")
        a(f"v_add_f32 v113, 0xc2c80000, v{U}\nv_max_f32 v112, v112, v113\nv_mov_b32 v113, {self.L2_MISC}")
        a("s_waitcnt lgkmcnt(0)\ns_barrier")
        a("ds_read_b128 v[116:119], v113\nds_read_b128 v[120:123], v113 offset:16\ns_waitcnt lgkmcnt(0)")
        a("v_or3_b32 v116, v116, v117, v118\nv_or3_b32 v119, v119, v120, v121\nv_or3_b32 v116, v116, v122, v123\nv_or_b32 v116, v116, v119")
        a(f"v_readfirstlane_b32 s{sT[12]}, v116")
        FB = a.new("Lnofb")
        a(f"s_cmp_eq_u32 s{sT[12]}, 0\ns_cbranch_scc1 {FB}")
        self.max_pass()
        a.label(FB)
        a("v_sub_f32 v112, 0, v112")
        a("v_cvt_pk_bf16_f32 v113, v112, v112\nv_and_b32 v114, 0xffff0000, v113\nv_sub_f32 v112, v112, v114")
        a("v_cvt_pk_bf16_f32 v115, v112, v112\nv_and_b32 v116, 0xffff0000, v115\nv_sub_f32 v112, v112, v116")
        a("v_cvt_pk_bf16_f32 v117, v112, 0")
        a("v_and_b32 v113, 0xffff, v113\nv_or_b32 v113, v113, v116")
        a(f"v_cmp_gt_u32 vcc, 32, v{vLANE}")
        a(f"v_cndmask_b32 v{self.vQ2+2}, 0, v113, vcc\nv_cndmask_b32 v{self.vQ2+3}, 0, v117, vcc")

    def max_pass(self):
        a = self.a
        a.c("fallback: exact row max")
        a("v_mov_b32 v112, 0xff7fffff")
        L = a.new("Lmx"); c = sT[13]
        a(f"s_add_u32 s{c}, s{sT[18]}, {WS_KV}\ns_mov_b32 s{sT[21]}, 0")
        a.label(L)
        E = a.new("Lmxd")
        a(f"s_cmp_ge_u32 s{sW}, 4\ns_cbranch_scc1 {E}")
        self.kv_dma(c, 3)
        a.label(E)
        a("s_waitcnt vmcnt(0)\ns_barrier")
        S = self.vS[1]
        for t in range(4):
            o = (12 + t) * KV_TILE
            a(f"ds_read_b128 v[120:123], v{vL16} offset:{o}\nds_read_b64 v[124:125], v{self.vK2L} offset:{o + 3072}")
            a(f"v_mov_b32 v126, 0\nv_mov_b32 v127, 0\ns_waitcnt lgkmcnt(0)")
            a(f"v_mfma_f32_32x32x16_bf16 {vr(S,16)}, v[120:123], {vr(self.vQ1,4)}, 0")
            a(f"v_mfma_f32_32x32x16_bf16 {vr(S,16)}, v[124:127], {vr(self.vQ2,4)}, {vr(S,16)}")
            for j in range(0, 16, 2): a(f"v_max3_f32 v112, v112, v{S+j}, v{S+j+1}")
        a("s_barrier")
        a(f"s_add_u32 s{sT[21]}, s{sT[21]}, 1\ns_cmp_lt_u32 s{sT[21]}, 16\ns_cbranch_scc1 {L}")
        a("v_mov_b32 v113, v112\nv_permlane32_swap_b32 v112, v113\nv_max_f32 v112, v112, v113")

    def attn_tile(self, t, h1=(), h2=()):
        a = self.a
        S = self.vS[t % 2]; Sp = self.vS[(t + 1) % 2]; P = self.vP
        def ex(j): a(f"v_exp_f32 v{S+j}, v{S+j}")
        def cv(j, b): a(f"v_cvt_pk_bf16_f32 v{P+j}, v{b+2*j}, v{b+2*j+1}")
        O = vr(self.vO, 16)
        ex(0); ex(1); cv(6, Sp); ex(2); cv(7, Sp); ex(3)
        a("s_waitcnt lgkmcnt(2)")
        self.qk((t + 1) % 2, (t + 1) % 2, 0)
        self.ld_k(t % 2, t + 2)
        ex(4); ex(5); cv(0, S); ex(6); cv(1, S); ex(7)
        self.qk((t + 1) % 2, (t + 1) % 2, 1)
        self.ld_v1((t + 1) % 2, t + 1)
        for x in h1: a(x)
        ex(8); ex(9); cv(2, S); ex(10); cv(3, S); ex(11)
        a(f"v_mfma_f32_32x32x16_bf16 {O}, {vr(self.vV2[(t+1)%2],4)}, {vr(P+4,4)}, {O}")
        self.ld_v2((t + 1) % 2, t + 1)
        for x in h2: a(x)
        ex(12); ex(13); cv(4, S); ex(14); cv(5, S); ex(15)
        a("s_waitcnt lgkmcnt(4)")
        a(f"v_mfma_f32_32x32x16_bf16 {O}, {vr(self.vV1[t%2],4)}, {vr(P,4)}, {O}")

    def attn_main(self):
        a = self.a
        a.c("---- attention main loop (unrolled, static background schedule) ----")
        src = sT[17]
        for j in range(16): a(f"v_mov_b32 v{self.vO+j}, 0")
        self.qk(0, 0, 0); self.qk(0, 0, 1)
        for j in range(12, 16): a(f"v_mov_b32 v{self.vS[1]+j}, 0")
        a(f"v_mov_b32 v{self.vP+4}, 0\nv_mov_b32 v{self.vP+5}, 0")
        for j in range(4): a(f"v_mov_b32 v{self.vV2[1]+j}, 0")
        a(f"s_cmp_ge_u32 s{sW}, 4\ns_cselect_b64 vcc, -1, 0")
        if not os.environ.get("X_NOAPRIO"):
            lab = a.new("Lpr"); a(f"s_cbranch_vccz {lab}\ns_setprio 1"); a.label(lab)
        bg = {}
        def put(T, tag, ins, n=1, need=None, role=None): bg.setdefault(T, []).append((tag, ins, n, need, role))
        for c in range(13):
            put(4 * c + 2, f"kv{c+3}", self.kv_piece(src, (c + 3) % 4, 0), n=2, role="A")
            put(4 * c + 3, f"kv{c+3}", self.kv_piece(src, (c + 3) % 4, 1), n=2, role="A")
        if self.stop >= 3 and not os.environ.get("X_NOEXTRA"):
            import g3b
            g3b.bg_schedule(self, put)
        pend = {"A": [("kv1", 4), ("kv2", 4)], "B": []}
        def wait_for(role, tag):
            p = pend[role]
            idx = [i for i, (k, n) in enumerate(p) if k == tag]
            if not idx: return None
            after = sum(n for (k, n) in p[idx[-1] + 1:])
            del p[:idx[-1] + 1]
            return after
        def guarded(role, body):
            lab = a.new("Lg")
            return [f"s_cbranch_vcc{'nz' if role == 'A' else 'z'} {lab}"] + body + [f"{lab}:"]
        for T in range(64):
            hooks = [[], []]
            ops = bg.get(T, [])
            for k, (tag, ins, n, need, role) in enumerate(ops):
                h = hooks[0] if k < (len(ops) + 1) // 2 else hooks[1]
                body = []
                if need:
                    assert role
                    w = wait_for(role, need)
                    if w is not None: body.append(f"s_waitcnt vmcnt({w})")
                body.extend(ins)
                if role: h.extend(guarded(role, body)); pend[role].append((tag, n)) if n else None
                else:
                    h.extend(body)
                    if n: pend["A"].append((tag, n)); pend["B"].append((tag, n))
            self.attn_tile(T, hooks[0], hooks[1])
            if T % 4 == 1 and T < 62:
                c = T // 4
                w = wait_for("A", f"kv{c+1}")
                if w is not None:
                    for x in guarded("A", [f"s_waitcnt vmcnt({w})"]): a(x)
                a("s_barrier")
        a("s_setprio 0")
        S = self.vS[1]; P = self.vP
        a(f"v_cvt_pk_bf16_f32 v{P+6}, v{S+12}, v{S+13}\nv_cvt_pk_bf16_f32 v{P+7}, v{S+14}, v{S+15}")
        a(f"s_waitcnt lgkmcnt(0)")
        a(f"v_mfma_f32_32x32x16_bf16 {vr(self.vO,16)}, {vr(self.vV2[1],4)}, {vr(P+4,4)}, {vr(self.vO,16)}")

    def attn_epilogue(self):
        a = self.a
        a.c("---- attention epilogue ----")
        O = self.vO
        a(f"s_lshl_b32 s{sT[0]}, s{sI}, 2\ns_lshl_b32 s{sT[1]}, s{sKH}, 1\ns_add_u32 s{sT[0]}, s{sT[0]}, s{sT[1]}\ns_mul_i32 s{sT[0]}, s{sT[0]}, {24*1024}\ns_add_u32 s{sT[0]}, s{sT[0]}, {WS_O}")
        a(f"s_lshl_b32 s{sT[1]}, s{sHG}, 2\ns_add_u32 s{sT[1]}, s{sT[1]}, s{sW4}\ns_mul_i32 s{sT[1]}, s{sT[1]}, 768\ns_add_u32 s{sT[0]}, s{sT[0]}, s{sT[1]}")
        a(f"v_bfe_u32 v32, v{vLANE}, 4, 1\nv_mul_u32_u24 v32, {24*1024}, v32\nv_and_b32 v33, 15, v{vLANE}\nv_lshl_add_u32 v32, v33, 4, v32")
        a(f"v_lshrrev_b32 v33, 5, v{vLANE}\nv_lshl_add_u32 v33, v33, 8, v32")
        a(f"v_cmp_gt_u32 vcc, 32, v{vLANE}\nv_mov_b32 v50, 0\nv_mov_b32 v51, 0")
        a(f"v_cndmask_b32 v40, v{O+8}, v{O+12}, vcc")
        a("v_rcp_f32 v40, v40")
        for j in range(12): a(f"v_mul_f32 v{O+j}, v{O+j}, v40")
        for j in range(6): a(f"v_cvt_pk_bf16_f32 v{44+j}, v{O+2*j}, v{O+2*j+1}")
        a(f"buffer_store_dwordx4 v[44:47], v33, {WSR}, s{sT[0]} offen sc1")
        a("s_mov_b32 exec_hi, 0")
        a(f"buffer_store_dwordx4 v[48:51], v32, {WSR}, s{sT[0]} offen offset:512 sc1")
        a("s_mov_b64 exec, -1")
        self.wave_flag(F_O)

    def build(self):
        a = self.a
        self.prologue(); self.stamp(0)
        self.p0(); self.stamp(1)
        self.ln_stats()
        self.wq_to_regs(); self.stamp(2)
        self.mod_poll_apply(); self.stamp(3)
        self.kv_proj(); self.stamp(16)
        self.q_proj(); self.stamp(4)
        if self.stop >= 2:
            self.attn_setup(); self.stamp(5); self.cstamp(27)
            self.attn_main(); self.stamp(6); self.cstamp(28)
            self.attn_epilogue(); self.stamp(7)
        if self.stop >= 3:
            import g3b
            g3b.rest(self)
        a("s_waitcnt vmcnt(0) lgkmcnt(0)")
        a.label("L_END")
        a("s_endpgm")
        return fix_hazards(a.l)

HEADER = open(os.path.join(os.path.dirname(os.path.abspath(__file__)), "header.txt")).read()

def make(stop=99, ts=False, force_fallback=False):
    g = Gen(stop, ts, force_fallback)
    lines, n = g.build()
    txt = HEADER + "; @launch grid=(256,1,1) block=(512,1,1) lds=163840\n"
    txt += f'.amdgcn_target "amdgcn-amd-amdhsa--gfx950"\n.text\n.globl {NAME}\n.p2align 8\n.type {NAME},@function\n{NAME}:\n'
    txt += "\n".join(lines) + "\n"
    txt += f""".section .rodata,"a"
.p2align 6
.amdhsa_kernel {NAME}
  .amdhsa_next_free_vgpr 256
  .amdhsa_next_free_sgpr 102
  .amdhsa_accum_offset 256
  .amdhsa_group_segment_fixed_size 0
  .amdhsa_kernarg_size 112
  .amdhsa_user_sgpr_count 2
  .amdhsa_user_sgpr_kernarg_segment_ptr 1
  .amdhsa_system_sgpr_workgroup_id_x 1
  .amdhsa_float_denorm_mode_32 3
.end_amdhsa_kernel
"""
    return txt, n

if __name__ == "__main__":
    import argparse
    ap = argparse.ArgumentParser()
    ap.add_argument("--stop", type=int, default=99)
    ap.add_argument("--ts", action="store_true")
    ap.add_argument("--fb", action="store_true")
    ap.add_argument("-o", default="out.s")
    args = ap.parse_args()
    sys.modules["g3"] = sys.modules["__main__"]
    txt, n = make(args.stop, args.ts, args.fb)
    open(args.o, "w").write(txt)
    print("nops inserted:", n, "lines:", txt.count("\n"))
```

```python
import sys, os
sys.path.insert(0, os.path.dirname(os.path.abspath(__file__)))
from asmlib import Asm, fix_hazards

NAME = "adaLN_cond__grouped_kv_mqa__glu_gated_swiglu__prompt_kernel"

WS_NONCE = 0x0
F_KV   = 0x1000
F_MODR = 0x2000
F_O    = 0x3000
F_Y    = 0x5000
F_ACT  = 0x7000
F_UT   = 0x9000
F_RP   = 0x18000
WS_MODG = 0xA000
WS_MODR = 0xC000
WS_MODB = 0xE800
WS_UT   = 0x10000
WS_KV   = 0x20000
WS_STAT = 0x60000
WS_O    = 0x100000
WS_Y    = 0x400000
WS_ACT  = 0x700000
WS_TS   = 0xE00000
WS_RW   = 0x1000000
RW_WO, RW_W2, RW_13 = 0, 819200, 819200 + 8 * 278528
RW_W2S = 278528
WS_USED = 0x1800000
KV_TILE = 3328

S_X, S_WS, S_A, S_B, S_C, S_OUT = 4, 8, 12, 16, 20, 24
P_X, P_WQ, P_WK, P_WV, P_WO, P_BX, P_W1, P_W3, P_W2, P_CC, P_WMOD, P_OUT, P_DBG, P_WS = [32 + 2 * i for i in range(14)]
sL, sG, sM, sI, sHG, sW, sNON, sXC, sJ = 60, 61, 62, 63, 64, 65, 66, 67, 68
sW4 = 69
sT = list(range(70, 94))
sKH = 97
sFB0, sWSRC, sRBG = 98, 99, 28
sWK = 29
SPIN_LIMIT = 400000

vLANE = 1
vL16 = 2
vO160 = [3, 4, 5, 6, 7]

def srd(a, d, p, size):
    a(f"s_mov_b32 s{d}, s{p}\ns_mov_b32 s{d+1}, s{p+1}\ns_mov_b32 s{d+2}, {size}\ns_mov_b32 s{d+3}, 0x20000")
def vr(b, n=1): return f"v{b}" if n == 1 else f"v[{b}:{b+n-1}]"
WSR = f"s[{S_WS}:{S_WS+3}]"

class Gen:
    def __init__(self, stop=99, ts=False, force_fallback=False):
        self.a = Asm(); self.stop = stop; self.ts = ts; self.force_fallback = force_fallback

    def stamp_dyn(self, mode, sreg, add=0):
        if not self.ts or os.environ.get("TSMODE") != mode: return
        a = self.a
        a(f"s_memrealtime s[94:95]\ns_waitcnt lgkmcnt(0)")
        a(f"s_lshl_b32 s96, s{sL}, 3\ns_add_u32 s96, s96, s{sW}\ns_lshl_b32 s96, s96, 5\ns_add_u32 s96, s96, s{sreg}\ns_add_u32 s96, s96, {add}\ns_lshl_b32 s96, s96, 2\ns_add_u32 s96, s96, {WS_TS}")
        a(f"v_mov_b32 v254, s94\nv_mov_b32 v255, s96")
        a(f"s_mov_b64 s[100:101], exec\ns_mov_b64 exec, 1")
        a(f"buffer_store_dword v254, v255, {WSR}, 0 offen")
        a(f"s_mov_b64 exec, s[100:101]")

    def cstamp(self, idx):
        if not self.ts or os.environ.get("TSMODE"): return
        a = self.a
        a(f"s_memtime s[94:95]\ns_waitcnt lgkmcnt(0)")
        a(f"s_lshl_b32 s96, s{sL}, 3\ns_add_u32 s96, s96, s{sW}\ns_lshl_b32 s96, s96, 7\ns_add_u32 s96, s96, {WS_TS + idx*4}")
        a(f"v_mov_b32 v254, s94\nv_mov_b32 v255, s96")
        a(f"s_mov_b64 s[100:101], exec\ns_mov_b64 exec, 1")
        a(f"buffer_store_dword v254, v255, {WSR}, 0 offen")
        a(f"s_mov_b64 exec, s[100:101]")

    def hstamp(self, slot, invert=False):
        a = self.a
        lab = a.new("Lh")
        a(f"s_cmp_lg_u32 s{sW}, 0\ns_cbranch_scc1 {lab}\ns_cmp_lg_u32 s{sL}, {int(os.environ.get('HL', '0'))}\ns_cbranch_scc1 {lab}")
        a(f"s_memrealtime s[94:95]\ns_waitcnt lgkmcnt(0)")
        a(f"s_mov_b32 s{S_OUT}, s{P_DBG}\ns_mov_b32 s{S_OUT+1}, s{P_DBG+1}\ns_mov_b32 s{S_OUT+2}, 256\ns_mov_b32 s{S_OUT+3}, 0x20000")
        a(f"v_mov_b32 v254, s94\nv_mov_b32 v255, {slot*4}")
        a(f"s_mov_b64 s[100:101], exec\ns_mov_b64 exec, 1")
        a(f"buffer_store_dword v254, v255, s[{S_OUT}:{S_OUT+3}], 0 offen")
        a(f"s_mov_b64 exec, s[100:101]")
        srd(a, S_OUT, P_OUT, 2048 * 1280)
        a.label(lab)

    HMAP = {0: (0, False), 1: (1, False), 3: (2, False), 4: (3, False), 5: (4, False), 6: (5, False), 14: (6, False), 20: (7, False), 15: (8, False), 11: (9, False), 12: (10, False), 22: (11, False), 26: (12, False), 25: (13, False), 10: (14, False)}
    def stamp(self, idx):
        if os.environ.get("HTS"):
            if idx in self.HMAP: self.hstamp(*self.HMAP[idx])
            if idx == 0:
                a = self.a
                lab = a.new("Lh")
                a(f"s_cmp_lg_u32 s{sW}, 0\ns_cbranch_scc1 {lab}\ns_cmp_lg_u32 s{sL}, {int(os.environ.get('HL', '0'))}\ns_cbranch_scc1 {lab}")
                a(f"s_mov_b32 s{S_OUT}, s{P_DBG}\ns_mov_b32 s{S_OUT+1}, s{P_DBG+1}\ns_mov_b32 s{S_OUT+2}, 256\ns_mov_b32 s{S_OUT+3}, 0x20000")
                a(f"v_mov_b32 v254, s98\nv_mov_b32 v255, 60\ns_mov_b64 exec, 1")
                a(f"buffer_store_dword v254, v255, s[{S_OUT}:{S_OUT+3}], 0 offen\ns_mov_b64 exec, -1")
                srd(a, S_OUT, P_OUT, 2048 * 1280)
                a.label(lab)
            return
        if not self.ts or os.environ.get("TSMODE"): return
        a = self.a
        a(f"s_memrealtime s[94:95]\ns_waitcnt lgkmcnt(0)")
        a(f"s_lshl_b32 s96, s{sL}, 3\ns_add_u32 s96, s96, s{sW}\ns_lshl_b32 s96, s96, 7\ns_add_u32 s96, s96, {WS_TS + idx*4}")
        a(f"v_mov_b32 v254, s94\nv_mov_b32 v255, s96")
        a(f"s_mov_b64 s[100:101], exec\ns_mov_b64 exec, 1")
        a(f"buffer_store_dword v254, v255, {WSR}, 0 offen")
        a(f"s_mov_b64 exec, s[100:101]")

    def bail(self, err):
        a = self.a
        a(f"v_mov_b32 v254, {err}\nv_mov_b32 v255, 0")
        srd(a, S_C, P_DBG, 256)
        a(f"buffer_store_dword v254, v255, s[{S_C}:{S_C+3}], 0 offen")

    def poll(self, vaddr, vdat, n=1, tagpos=(0,), err=1, soff="0", depth=3):
        a = self.a
        L, D = a.new("Lpoll"), a.new("Lpdone")
        cnt = sT[20]
        op = {1: "buffer_load_dword", 2: "buffer_load_dwordx2", 4: "buffer_load_dwordx4"}[n]
        ld = lambda k: a(f"{op} {vr(vdat + k*n, n)}, v{vaddr}, {WSR}, {soff} offen sc1")
        a(f"s_mov_b32 s{cnt}, 0")
        for k in range(depth - 1): ld(k)
        a.label(L)
        for k in range(depth):
            ld((k + depth - 1) % depth)
            a(f"s_waitcnt vmcnt({depth-1})")
            b = vdat + k * n
            a(f"v_cmp_ne_u32 vcc, s{sNON}, v{b + tagpos[0]}")
            for t in tagpos[1:]:
                a(f"v_cmp_ne_u32 s[{sT[22]}:{sT[23]}], s{sNON}, v{b + t}")
                a(f"s_or_b64 vcc, vcc, s[{sT[22]}:{sT[23]}]")
            a(f"s_cbranch_vccz {D}")
        a(f"s_add_u32 s{cnt}, s{cnt}, 1\ns_cmp_lt_u32 s{cnt}, {SPIN_LIMIT}\ns_cbranch_scc1 {L}")
        self.bail(err)
        a.label(D)

    def one_lane_store(self, soff_s, vval):
        a = self.a
        a(f"s_mov_b64 exec, 1\nbuffer_store_dword v{vval}, v{vLANE}, {WSR}, s{soff_s} offen sc1\ns_mov_b64 exec, -1")

    def wave_flag(self, base):
        a = self.a
        a(f"s_lshl_b32 s{sT[0]}, s{sL}, 2\ns_add_u32 s{sT[0]}, s{sT[0]}, {base}")
        a(f"v_mov_b32 v255, s{sNON}")
        a("s_waitcnt vmcnt(0)\ns_barrier")
        E = a.new("Lwf")
        a(f"s_cmp_lg_u32 s{sW}, 0\ns_cbranch_scc1 {E}")
        self.one_lane_store(sT[0], 255)
        a.label(E)

    def wg_poll(self, base, first_s, nflags, vtmp, err, wave=7):
        a = self.a
        E = a.new("Lwp")
        a(f"s_cmp_lg_u32 s{sW}, {wave}\ns_cbranch_scc1 {E}")
        a(f"s_lshl_b32 s{sT[1]}, s{first_s}, 2\ns_add_u32 s{sT[1]}, s{sT[1]}, {base}\nv_lshlrev_b32 v{vtmp}, 2, v{vLANE}")
        a(f"s_mov_b32 exec_lo, {(1 << nflags) - 1}\ns_mov_b32 exec_hi, 0")
        self.poll(vtmp, vtmp + 1, n=1, err=err, soff=f"s{sT[1]}", depth=2)
        a("s_mov_b64 exec, -1")
        a.label(E)
        a("s_barrier")

    def bf16_round(self, dst, src):
        self.a(f"v_cvt_pk_bf16_f32 v{dst}, v{src}, v{src}\nv_and_b32 v{dst}, 0xffff0000, v{dst}")

    def dma_run(self, srd_s, voff, soff, lds, n, extra=""):
        a = self.a
        a(f"s_mov_b32 m0, {lds}")
        for k in range(n):
            a(f"buffer_load_dwordx4 v{voff}, s[{srd_s}:{srd_s+3}], s{soff} offen offset:{k*1024}{extra} lds")

    L1_H = 0; L1_WQ2 = 81920; L1_WKV = 128000; L1_GS = 153600; L1_NS = 158720; L1_SCR = 160000
    NQ1 = 22
    vX = 8; vXN = 48; vWQ = 128
    vWA, vC1 = 216, 228

    def prologue(self):
        a = self.a
        if os.environ.get("HTS"): a("s_memrealtime s[98:99]")
        a(f"s_cmp_ge_u32 s2, 256\ns_cbranch_scc1 L_END")
        a("s_load_dwordx16 s[32:47], s[0:1], 0\ns_load_dwordx8 s[48:55], s[0:1], 64\ns_load_dwordx4 s[56:59], s[0:1], 96")
        if not os.environ.get("X_NOCP"):
            E = a.new("Lcp"); GP = a.new("Lpc")
            a(f"s_getpc_b64 s[{sT[2]}:{sT[3]}]")
            a.label(GP)
            a(f"s_lshr_b32 s{sT[4]}, s2, 3\ns_lshl_b32 s{sT[4]}, s{sT[4]}, 13\ns_cmp_ge_u32 s{sT[4]}, L_END - {GP}\ns_cbranch_scc1 {E}")
            a(f"v_lshlrev_b32 v208, 4, v0\nv_add_u32 v208, s{sT[4]}, v208\nv_min_u32 v208, L_END - {GP} - 16, v208")
            a(f"global_load_dwordx4 v[208:211], v208, s[{sT[2]}:{sT[3]}]")
            a.label(E)
        a(f"v_and_b32 v{vLANE}, 63, v0\nv_lshrrev_b32 v8, 6, v0")
        a(f"s_and_b32 s{sXC}, s2, 7\ns_lshr_b32 s{sJ}, s2, 3")
        a(f"v_readfirstlane_b32 s{sW}, v8")
        a(f"s_lshl_b32 s{sL}, s{sXC}, 5\ns_add_u32 s{sL}, s{sL}, s{sJ}")
        a(f"v_lshlrev_b32 v{vL16}, 4, v{vLANE}")
        a(f"s_lshr_b32 s{sG}, s{sL}, 4\ns_and_b32 s{sM}, s{sL}, 15\ns_lshr_b32 s{sI}, s{sL}, 3\ns_and_b32 s{sHG}, s{sL}, 7")
        a(f"s_and_b32 s{sW4}, s{sW}, 3\ns_lshr_b32 s{sKH}, s{sW}, 2\ns_lshl_b32 s{sWK}, s{sW}, 10")
        a(f"s_lshl_b32 s{sRBG}, s{sI}, 2\ns_add_u32 s{sRBG}, s{sRBG}, s{sW4}")
        a(f"v_and_b32 v243, 31, v{vLANE}\ns_lshl_b32 s{sT[0]}, s{sW}, 5\nv_add_u32 v243, s{sT[0]}, v243")
        a(f"v_lshlrev_b32 v244, 1, v243")
        a(f"s_movk_i32 s{sT[0]}, 7680\nv_mul_u32_u24 v243, s{sT[0]}, v243\nv_lshrrev_b32 v245, 5, v{vLANE}\nv_lshl_add_u32 v243, v245, 4, v243")
        a(f"s_lshl_b32 s{sT[5]}, s{sL}, 5\ns_cmp_lt_u32 s{sL}, 240\ns_cselect_b32 s{sT[5]}, s{sT[5]}, 0x7000000")
        a(f"v_mov_b32 v246, 0")
        a("s_waitcnt lgkmcnt(0)")
        srd(a, S_B, P_WMOD, 640 * 7680)
        for it in range(3):
            a(f"buffer_load_dwordx4 {vr(self.vWA+4*it,4)}, v243, s[{S_B}:{S_B+3}], s{sT[5]} offen")
            if it < 2: a(f"v_add_u32 v243, {256*7680}, v243")
        srd(a, S_A, P_CC, 1280)
        for it in range(3):
            a(f"buffer_load_ushort v{self.vC1+it}, v244, s[{S_A}:{S_A+3}], 0 offen offset:{it*512}")
        srd(a, S_WS, P_WS, WS_USED)
        a(f"buffer_load_dword v242, v246, {WSR}, 0 offen sc1")
        a("s_barrier")
        srd(a, S_X, P_X, 2048 * 1280)
        a(f"v_lshrrev_b32 v245, 4, v{vLANE}\nv_and_b32 v246, 15, v{vLANE}")
        a(f"s_lshl_b32 s{sT[8]}, s{sI}, 3\ns_add_u32 s{sT[8]}, s{sT[8]}, s{sW}\ns_mul_i32 s{sT[8]}, s{sT[8]}, {8*1280}")
        a(f"v_mul_u32_u24 v245, 1280, v245\nv_lshl_add_u32 v245, v246, 4, v245\nv_add_u32 v246, {4*1280}, v245")
        for it in range(2):
            for c in range(5):
                a(f"buffer_load_dwordx4 {vr(self.vX + (it*5+c)*4, 4)}, v{245+it}, s[{S_X}:{S_X+3}], s{sT[8]} offen offset:{c*256}")
        a("s_barrier")
        a(f"s_cmp_lt_u32 s{sHG}, 4\ns_cselect_b32 s{S_C}, s{P_WK}, s{P_WV}\ns_cselect_b32 s{S_C+1}, s{P_WK+1}, s{P_WV+1}")
        a(f"s_mov_b32 s{S_C+2}, 25600\ns_mov_b32 s{S_C+3}, 0x20000")
        a(f"s_lshl_b32 s{sT[3]}, s{sW}, 12\ns_add_u32 s{sT[4]}, s{sT[3]}, {self.L1_WKV}")
        E1, E2 = a.new("Lkv"), a.new("Lkv")
        a(f"s_cmp_ge_u32 s{sW}, 6\ns_cbranch_scc1 {E1}")
        self.dma_run(S_C, vL16, sT[3], f"s{sT[4]}", 4)
        a(f"s_branch {E2}")
        a.label(E1)
        a(f"s_cmp_eq_u32 s{sW}, 7\ns_cbranch_scc1 {E2}")
        self.dma_run(S_C, vL16, sT[3], f"s{sT[4]}", 1)
        a.label(E2)
        a(f"s_mov_b32 s{sT[0]}, 0x1999999a")
        for ph in range(5):
            r = vO160[ph]
            a(f"v_add_u32 v248, {64*ph}, v{vLANE}\nv_mul_hi_u32 v249, v248, s{sT[0]}")
            a(f"v_mul_u32_u24 v250, {1280-160}, v249\nv_lshl_add_u32 v250, v248, 4, v250")
            a(f"v_add_u32 v{r}, {4096 - (1024*ph if ph < 4 else 0)}, v250")
        a(f"s_sub_u32 s{S_A}, s{P_WQ}, 4096\ns_subb_u32 s{S_A+1}, s{P_WQ+1}, 0\ns_mov_b32 s{S_A+2}, {640*1280+4096}\ns_mov_b32 s{S_A+3}, 0x20000")
        a(f"s_mul_i32 s{sT[3]}, s{sW}, 40960\ns_mul_i32 s{sT[4]}, s{sHG}, 160\ns_add_u32 s{sT[3]}, s{sT[3]}, s{sT[4]}")
        a(f"s_mul_i32 s{sT[4]}, s{sW}, 5120")
        for j in range(3):
            E = None
            if j == 1:
                a(f"s_add_u32 s{sT[3]}, s{sT[3]}, {8*40960}\ns_add_u32 s{sT[4]}, s{sT[4]}, {8*5120}")
                a(f"s_cmp_ge_u32 s{sW}, 3\ns_cselect_b32 s{sT[5]}, {self.L1_WQ2 - 11*5120}, 0\ns_add_u32 s{sT[4]}, s{sT[4]}, s{sT[5]}")
            if j == 2:
                E = a.new("Lq")
                a(f"s_cmp_ge_u32 s{sW}, 4\ns_cbranch_scc1 {E}")
                a(f"s_add_u32 s{sT[3]}, s{sT[3]}, {8*40960}\ns_mul_i32 s{sT[4]}, s{sW}, 5120\ns_add_u32 s{sT[4]}, s{sT[4]}, {self.L1_WQ2 + 5*5120}")
            a(f"s_mov_b32 m0, s{sT[4]}")
            for ph in range(4):
                a(f"buffer_load_dwordx4 v{vO160[ph]}, s[{S_A}:{S_A+3}], s{sT[3]} offen offset:{ph*1024} lds")
            a(f"s_add_u32 m0, s{sT[4]}, 4096")
            a(f"buffer_load_dwordx4 v{vO160[4]}, s[{S_A}:{S_A+3}], s{sT[3]} offen lds")
            if E: a.label(E)
        self.dma_min = 10
        srd(a, S_OUT, P_OUT, 2048 * 1280)

    def p0(self):
        a = self.a
        a.c("---- P0: modulation GEMV (16 columns per workgroup) ----")
        a(f"s_waitcnt vmcnt({10 + self.dma_min})")
        a(f"v_readfirstlane_b32 s{sNON}, v242")
        acc = 244
        for it in range(3):
            c = self.vC1 + it
            a(f"v_lshlrev_b32 v{c}, 16, v{c}\nv_mul_f32 v{232+it}, 0xbfb8aa3b, v{c}")
        for it in range(3): a(f"v_exp_f32 v{232+it}, v{232+it}")
        a(f"s_add_u32 s{sNON}, s{sNON}, 1\ns_cmp_eq_u32 s{sNON}, 0\ns_cselect_b32 s{sNON}, 1, s{sNON}")
        for it in range(3): a(f"v_add_f32 v{232+it}, 1.0, v{232+it}")
        for it in range(3): a(f"v_rcp_f32 v{232+it}, v{232+it}")
        for it in range(3): a(f"v_mul_f32 v{232+it}, v{self.vC1+it}, v{232+it}")
        for it in range(3):
            a(f"v_cvt_pk_bf16_f32 v{235+it}, v{232+it}, 0\nv_cvt_pk_bf16_f32 v{238+it}, 0, v{232+it}")
        for it in range(3):
            w = self.vWA + 4 * it
            for j in range(4):
                c0 = "0" if it == 0 else f"v{acc+2*j}"; c1 = "0" if it == 0 else f"v{acc+2*j+1}"
                a(f"v_dot2_f32_bf16 v{acc+2*j}, v{w+j}, v{235+it}, {c0}\nv_dot2_f32_bf16 v{acc+2*j+1}, v{w+j}, v{238+it}, {c1}")
        for sh in (1, 2, 4, 8):
            for j in range(8):
                a(f"v_add_f32_dpp v{acc+j}, v{acc+j}, v{acc+j} row_shr:{sh} row_mask:0xf bank_mask:0xf bound_ctrl:0")
        for j in range(8):
            a(f"v_add_f32_dpp v{acc+j}, v{acc+j}, v{acc+j} row_bcast:15 row_mask:0xa bank_mask:0xf")
        a(f"v_lshrrev_b32 v252, 5, v{vLANE}\ns_lshl_b32 s{sT[2]}, s{sW}, 2\ns_add_u32 s{sT[2]}, s{sT[2]}, {self.L1_SCR}\nv_lshl_add_u32 v252, v252, 8, s{sT[2]}")
        a("s_mov_b32 exec_lo, 0x80000000\ns_mov_b32 exec_hi, 0x80000000")
        for j in range(8):
            a(f"ds_write_b32 v252, v{acc+j} offset:{j*32}")
        a("s_mov_b64 exec, -1")
        a("s_waitcnt lgkmcnt(0)\ns_barrier")
        E = a.new("Lp0e")
        a(f"s_cmp_lg_u32 s{sW}, 0\ns_cbranch_scc1 {E}\ns_cmp_ge_u32 s{sL}, 240\ns_cbranch_scc1 {E}")
        a(f"v_and_b32 v246, 15, v{vLANE}\nv_lshlrev_b32 v246, 5, v246\nv_add_u32 v246, {self.L1_SCR}, v246")
        a("ds_read_b128 v[248:251], v246\nds_read_b128 v[244:247], v246 offset:16")
        a(f"s_mov_b32 s{sT[2]}, 0")
        a(f"s_cmp_ge_u32 s{sL}, 40\ns_cselect_b32 s{sT[2]}, 1.0, s{sT[2]}\ns_cmp_ge_u32 s{sL}, 80\ns_cselect_b32 s{sT[2]}, 0, s{sT[2]}")
        a(f"s_cmp_ge_u32 s{sL}, 160\ns_cselect_b32 s{sT[2]}, 1.0, s{sT[2]}\ns_cmp_ge_u32 s{sL}, 200\ns_cselect_b32 s{sT[2]}, 0, s{sT[2]}")
        a("s_waitcnt lgkmcnt(0)")
        a("v_add_f32 v244, v244, v248\nv_add_f32 v245, v245, v249\nv_add_f32 v246, v246, v250\nv_add_f32 v247, v247, v251")
        a("v_add_f32 v244, v244, v245\nv_add_f32 v246, v246, v247\nv_add_f32 v244, v244, v246")
        self.bf16_round(244, 244)
        a(f"v_add_f32 v244, s{sT[2]}, v244")
        self.bf16_round(244, 244)
        a(f"v_mov_b32_dpp v245, v244 quad_perm:[1,0,3,2] row_mask:0xf bank_mask:0xf")
        a(f"v_lshrrev_b32 v247, 16, v244\nv_or_b32 v248, v247, v245")
        R = a.new("Lp0r")
        a(f"v_lshlrev_b32 v246, 2, v{vLANE}\nv_mov_b32 v249, s{sNON}")
        a(f"s_cmp_ge_u32 s{sL}, 80\ns_cbranch_scc1 {R}")
        a(f"s_lshl_b32 s{sT[1]}, s{sL}, 6\ns_add_u32 s{sT[1]}, s{sT[1]}, {WS_MODG}")
        a("s_mov_b32 exec_lo, 0x5555\ns_mov_b32 exec_hi, 0")
        a(f"buffer_store_dwordx2 v[248:249], v246, {WSR}, s{sT[1]} offen sc1")
        a(f"s_mov_b64 exec, -1\ns_branch {E}")
        a.label(R)
        a(f"s_sub_u32 s{sT[1]}, s{sL}, 80\ns_lshl_b32 s{sT[2]}, s{sT[1]}, 6\ns_add_u32 s{sT[2]}, s{sT[2]}, {WS_MODR}")
        a("s_mov_b32 exec_lo, 0xffff\ns_mov_b32 exec_hi, 0")
        a(f"buffer_store_dword v244, v246, {WSR}, s{sT[2]} offen sc1")
        EB = a.new("Lmodb")
        a(f"s_cmp_lt_u32 s{sL}, 120\ns_cbranch_scc1 {EB}\ns_cmp_ge_u32 s{sL}, 200\ns_cbranch_scc1 {EB}")
        a(f"s_sub_u32 s{sT[2]}, s{sL}, 120\ns_lshl_b32 s{sT[2]}, s{sT[2]}, 5\ns_add_u32 s{sT[2]}, s{sT[2]}, {WS_MODB}")
        a(f"v_lshlrev_b32 v246, 1, v{vLANE}\ns_mov_b32 exec_lo, 0x5555")
        a(f"buffer_store_dword v248, v246, {WSR}, s{sT[2]} offen sc1")
        a.label(EB)
        a(f"s_lshl_b32 s{sT[2]}, s{sT[1]}, 2\ns_add_u32 s{sT[2]}, s{sT[2]}, {F_MODR}")
        a("s_waitcnt vmcnt(0)")
        self.one_lane_store(sT[2], 249)
        a.label(E)

    def row16_allreduce(self, regs, op="v_add_f32", steps=(8, 4, 2, 1)):
        for sh in steps:
            for r in regs:
                self.a(f"{op}_dpp v{r}, v{r}, v{r} row_ror:{sh} row_mask:0xf bank_mask:0xf")

    def ln_stats(self):
        a = self.a
        a.c("---- LN1 statistics ----")
        a(f"s_waitcnt vmcnt({self.dma_min})")
        X, N = self.vX, self.vXN
        ONE = 240
        a(f"v_mov_b32 v{ONE}, 0x3f803f80")
        for q in range(20):
            for it in range(2):
                sa_, sq_ = 232 + 2 * it + (q & 1), 236 + 2 * it + (q & 1)
                x = X + it * 20 + q
                a(f"v_dot2_f32_bf16 v{sa_}, v{x}, v{ONE}, {'0' if q < 2 else 'v%d' % sa_}")
                a(f"v_dot2_f32_bf16 v{sq_}, v{x}, v{x}, {'0' if q < 2 else 'v%d' % sq_}")
        a("v_add_f32 v232, v232, v233\nv_add_f32 v234, v234, v235\nv_add_f32 v236, v236, v237\nv_add_f32 v238, v238, v239")
        self.row16_allreduce([232, 234, 236, 238])
        a(f"s_mov_b32 s{sT[0]}, 0x3acccccd")
        for it in range(2):
            m, q, r = 232 + 2 * it, 236 + 2 * it, 242 + 4 * it
            a(f"v_mul_f32 v{m}, s{sT[0]}, v{m}\nv_mul_f32 v{q}, s{sT[0]}, v{q}")
            a(f"v_fma_f32 v{q}, -v{m}, v{m}, v{q}\nv_max_f32 v{q}, 0, v{q}\nv_add_f32 v{q}, 0x3727c5ac, v{q}\nv_rsq_f32 v{r}, v{q}")
        for it in range(2):
            m, r = 232 + 2 * it, 242 + 4 * it
            a(f"v_mov_b32 v{r+1}, v{r}\nv_mul_f32 v{r+2}, -v{m}, v{r}\nv_mul_f32 v{r+3}, -v{m}, v{r}")
        for it in range(2):
            r = 242 + 4 * it
            for q in range(20):
                d = N + it * 40 + 2 * q
                a(f"v_lshlrev_b32 v{d}, 16, v{X+it*20+q}\nv_and_b32 v{d+1}, 0xffff0000, v{X+it*20+q}")
            for q in range(20):
                d = N + it * 40 + 2 * q
                a(f"v_pk_fma_f32 {vr(d,2)}, {vr(d,2)}, {vr(r,2)}, {vr(r+2,2)}")

    def emit_wq_addr(self, d, base):
        a = self.a
        a(f"v_lshrrev_b32 v{d}, 5, v{vLANE}\nv_bfe_u32 v{d+1}, v{vLANE}, 2, 2\nv_lshl_add_u32 v{d}, v{d}, 3, v{d+1}")
        a(f"v_bfe_u32 v{d+1}, v{vLANE}, 4, 1\nv_lshlrev_b32 v{d+1}, 5, v{d+1}\nv_mad_u32_u24 v{d}, v{d}, s{sT[19]}, v{d+1}")
        a(f"v_and_b32 v{d+1}, 3, v{vLANE}\nv_lshl_add_u32 v{d}, v{d+1}, 3, v{d}")
        a(f"s_mul_i32 s{sT[0]}, s{sW4}, 40\ns_add_u32 s{sT[0]}, s{sT[0]}, {base}\nv_add_u32 v{d}, s{sT[0]}, v{d}")

    def wq_to_regs(self):
        a = self.a
        a.c("---- wq part 1 -> registers ----")
        a(f"s_movk_i32 s{sT[19]}, 160")
        self.emit_wq_addr(8, self.L1_H)
        a("s_waitcnt vmcnt(0)\ns_barrier")
        if not os.environ.get("X_NOTLB"):
            E = a.new("Ltlb")
            a(f"s_cmp_lg_u32 s{sW}, 7\ns_cbranch_scc1 {E}")
            a(f"v_lshlrev_b32 v250, 21, v{vLANE}\nv_add_u32 v250, 0x100, v250")
            a("s_mov_b32 exec_lo, 0xfff\ns_mov_b32 exec_hi, 0")
            a(f"buffer_load_dword v251, v250, {WSR}, 0 offen")
            a("s_mov_b64 exec, 1\nv_mov_b32 v250, 0")
            for k, (p, pages) in enumerate(((P_OUT, 2), (P_WO, 1), (P_W1, 2), (P_W3, 2), (P_W2, 2))):
                for pg in range(pages):
                    a(f"s_add_u32 s{sT[2]}, s{p}, {pg << 21}\ns_addc_u32 s{sT[3]}, s{p+1}, 0")
                    a(f"global_load_dword v251, v250, s[{sT[2]}:{sT[3]}]")
            a("s_mov_b64 exec, -1")
            a.label(E)
        for s in range(self.NQ1):
            a(f"ds_read_b64_tr_b16 {vr(self.vWQ+4*s,2)}, v8 offset:{s*16*160}")
            a(f"ds_read_b64_tr_b16 {vr(self.vWQ+4*s+2,2)}, v8 offset:{s*16*160 + 4*160}")

    def mod_poll_apply(self):
        a = self.a
        a.c("---- wait for sa/ca granules, LN apply ----")
        a(f"v_and_b32 v8, 15, v{vLANE}\nv_lshlrev_b32 v9, 5, v8\nv_add_u32 v9, {self.L1_GS}, v9")
        a(f"v_lshrrev_b32 v10, 4, v{vLANE}\ns_lshl_b32 s{sT[0]}, s{sW}, 3\nv_add_u32 v10, s{sT[0]}, v10")
        for it in range(2):
            if it: a("v_add_u32 v10, 4, v10")
            a(f"v_and_b32 v11, 15, v10\nv_xor_b32 v11, v11, v8\nv_lshlrev_b32 v11, 4, v11")
            a(f"v_mad_u32_u24 v{12+it}, v10, s{sT[18]}, v11".replace(f"s{sT[18]}", "v14") if False else f"v_mul_u32_u24 v{12+it}, 1280, v10\nv_add_u32 v{12+it}, v{12+it}, v11")
        self.kv_addr()
        self.q_addr()
        E = a.new("Lmp")
        a(f"s_cmp_ge_u32 s{sW}, 5\ns_cbranch_scc1 {E}")
        a(f"v_lshlrev_b32 v15, 4, v0")
        a(f"s_mov_b32 s{sT[1]}, {WS_MODG}")
        self.poll(15, 16, n=4, tagpos=(1, 3), err=1, soff=f"s{sT[1]}", depth=1)
        a("v_lshlrev_b32 v20, 16, v16\nv_and_b32 v21, 0xffff0000, v16\nv_lshlrev_b32 v22, 16, v18\nv_and_b32 v23, 0xffff0000, v18")
        a(f"v_add_u32 v24, {self.L1_GS}, v15\nds_write_b128 v24, v[20:23]")
        a("v_xor_b32 v16, 0x80008000, v16\nv_xor_b32 v17, 0x80008000, v18")
        a(f"v_lshrrev_b32 v24, 1, v15\nv_add_u32 v24, {self.L1_NS}, v24\nv_cmp_gt_u32 vcc, 160, v0")
        a(f"s_and_saveexec_b64 s[{sT[22]}:{sT[23]}], vcc\nds_write_b64 v24, v[16:17]\ns_mov_b64 exec, -1")
        a.label(E)
        a("s_waitcnt lgkmcnt(0)\ns_barrier")
        def rd(c, b):
            a(f"ds_read_b128 v[{b}:{b+3}], v9 offset:{c*512}\nds_read_b128 v[{b+4}:{b+7}], v9 offset:{c*512 + 16}")
            a(f"ds_read_b128 v[{b+8}:{b+11}], v9 offset:{2560 + c*512}\nds_read_b128 v[{b+12}:{b+15}], v9 offset:{2560 + c*512 + 16}")
        rd(0, 16)
        for c in range(5):
            b = 16 if c % 2 == 0 else 32
            if c + 1 < 5:
                rd(c + 1, 48 - b)
                a("s_waitcnt lgkmcnt(4)" if c == 0 else "s_waitcnt lgkmcnt(6)")
            else: a("s_waitcnt lgkmcnt(2)")
            for it in range(2):
                x = self.vXN + it * 40 + c * 8
                for j in range(4):
                    a(f"v_pk_fma_f32 {vr(x+2*j,2)}, {vr(x+2*j,2)}, {vr(b+8+2*j,2)}, {vr(b+2*j,2)}")
            for it in range(2):
                x = self.vXN + it * 40 + c * 8
                for j in range(4):
                    a(f"v_cvt_pk_bf16_f32 v{x+j}, v{x+2*j}, v{x+2*j+1}")
                a(f"ds_write_b128 v{12+it}, {vr(x,4)} offset:{self.L1_H + c*256}")
        a("s_waitcnt lgkmcnt(0)\ns_barrier")

    def sum_groups(self, r, t, op="v_add_f32"):
        a = self.a
        a(f"v_mov_b32 v{t}, v{r}\nv_permlane32_swap_b32 v{r}, v{t}\n{op} v{r}, v{r}, v{t}")
        a(f"v_mov_b32 v{t}, v{r}\nv_permlane16_swap_b32 v{r}, v{t}\n{op} v{r}, v{r}, v{t}")

    def kv_addr(self):
        a = self.a
        a(f"s_and_b32 s{sT[0]}, s{sHG}, 3\ns_lshl_b32 s{sT[0]}, s{sT[0]}, 4")
        a(f"v_and_b32 v232, 15, v{vLANE}\nv_lshrrev_b32 v233, 4, v{vLANE}")
        a(f"v_add_u32 v234, s{sT[0]}, v232\nv_mul_u32_u24 v234, 1280, v234")
        a(f"s_lshr_b32 s{sT[1]}, s{sW}, 1\ns_mul_i32 s{sT[2]}, s{sT[1]}, 5")
        a(f"s_lshl_b32 s{sT[3]}, s{sT[2]}, 2\nv_add_u32 v235, s{sT[3]}, v233")
        for j in range(5):
            a(f"v_add_u32 v236, {4*j}, v235\nv_xor_b32 v236, v236, v232\nv_lshl_add_u32 v{240+j}, v236, 4, v234")
        a(f"v_bfe_u32 v236, v{vLANE}, 2, 2\nv_lshl_add_u32 v236, v233, 3, v236\nv_mul_u32_u24 v236, 40, v236\nv_and_b32 v237, 3, v{vLANE}\nv_lshl_add_u32 v236, v237, 3, v236")
        a(f"s_and_b32 s{sT[3]}, s{sW}, 1\ns_lshl_b32 s{sT[3]}, s{sT[3]}, 5\ns_mul_i32 s{sT[4]}, s{sT[2]}, 1280\ns_add_u32 s{sT[3]}, s{sT[3]}, s{sT[4]}\ns_add_u32 s{sT[3]}, s{sT[3]}, {self.L1_WKV}\nv_add_u32 v236, s{sT[3]}, v236")
        a(f"s_lshl_b32 s{sT[3]}, s{sT[2]}, 6\ns_add_u32 s{sT[3]}, s{sT[3]}, {self.L1_NS}\nv_lshl_add_u32 v237, v233, 4, s{sT[3]}")

    def kv_proj(self):
        a = self.a
        a.c("---- K/V projection ----")
        for j in range(5):
            a(f"ds_read_b64_tr_b16 {vr(32+4*j,2)}, v236 offset:{j*1280}\nds_read_b64_tr_b16 {vr(34+4*j,2)}, v236 offset:{j*1280 + 160}")
            a(f"ds_read_b128 {vr(52+4*j,4)}, v{240+j} offset:{self.L1_H}")
        LV, LJ = a.new("Lvproj"), a.new("Lkvj")
        a(f"s_cmp_ge_u32 s{sHG}, 4\ns_cbranch_scc1 {LV}")
        a("s_waitcnt lgkmcnt(0)")
        for j in range(5): a(f"ds_read_b128 {vr(72+4*j,4)}, v237 offset:{j*64}")
        for j in range(5):
            a(f"v_mfma_f32_16x16x32_bf16 v[28:31], {vr(32+4*j,4)}, {vr(52+4*j,4)}, {'0' if j == 0 else 'v[28:31]'}")
        a("s_waitcnt lgkmcnt(0)")
        for j in range(5):
            a(f"v_mfma_f32_16x16x32_bf16 v[28:31], {vr(32+4*j,4)}, {vr(72+4*j,4)}, v[28:31]")
        a(f"s_branch {LJ}")
        a.label(LV)
        a("s_waitcnt lgkmcnt(0)")
        for j in range(5):
            a(f"v_mfma_f32_16x16x32_bf16 v[28:31], {vr(52+4*j,4)}, {vr(32+4*j,4)}, {'0' if j == 0 else 'v[28:31]'}")
        a.label(LJ)
        a(f"s_add_u32 s{sT[3]}, s{sWK}, {self.L1_WKV}\nv_add_u32 v18, s{sT[3]}, v{vL16}")
        a("s_barrier")
        a("ds_write_b128 v18, v[28:31]\ns_waitcnt lgkmcnt(0)\ns_barrier")
        E = a.new("Lkvend")
        a(f"s_cmp_ge_u32 s{sW}, 2\ns_cbranch_scc1 {E}")
        a("ds_read_b128 v[32:35], v18 offset:2048\nds_read_b128 v[36:39], v18 offset:4096\nds_read_b128 v[40:43], v18 offset:6144")
        a(f"s_and_b32 s{sT[2]}, s{sHG}, 3\ns_lshr_b32 s{sT[2]}, s{sT[2]}, 1\ns_lshl_b32 s{sT[3]}, s{sI}, 1\ns_add_u32 s{sT[2]}, s{sT[2]}, s{sT[3]}")
        a(f"s_mul_i32 s{sT[2]}, s{sT[2]}, {KV_TILE}\ns_add_u32 s{sT[2]}, s{sT[2]}, {WS_KV}\ns_and_b32 s{sT[3]}, s{sHG}, 1\ns_lshl_b32 s{sT[3]}, s{sT[3]}, 4")
        a("s_waitcnt lgkmcnt(0)")
        for r in range(4):
            a(f"v_add_f32 v{32+r}, v{32+r}, v{36+r}\nv_add_f32 v{28+r}, v{28+r}, v{40+r}")
        for r in range(4): a(f"v_add_f32 v{28+r}, v{28+r}, v{32+r}")
        a("v_cvt_pk_bf16_f32 v24, v28, v29\nv_cvt_pk_bf16_f32 v25, v30, v31")
        LV, LJ, W1 = a.new("Lv2"), a.new("Lj2"), a.new("Lw1")
        a(f"s_cmp_ge_u32 s{sHG}, 4\ns_cbranch_scc1 {LV}")
        a("v_dot2_f32_bf16 v26, v24, v24, 0\nv_dot2_f32_bf16 v26, v25, v25, v26")
        a(f"s_cmp_eq_u32 s{sW}, 1\ns_cbranch_scc1 {W1}")
        self.sum_groups(26, 27)
        a(f"v_add_u32 v30, s{sT[3]}, v232\nv_and_b32 v31, 1, v233\nv_lshl_add_u32 v30, v31, 5, v30\nv_lshlrev_b32 v30, 4, v30")
        a(f"v_lshrrev_b32 v31, 1, v233\nv_lshl_add_u32 v30, v31, 3, v30")
        a(f"buffer_store_dwordx2 v[24:25], v30, {WSR}, s{sT[2]} offen sc1")
        a(f"s_branch {LJ}")
        a.label(W1)
        a(f"v_cmp_gt_u32 vcc, 16, v{vLANE}\nv_cndmask_b32 v26, 0, v26, vcc")
        a(f"v_add_u32 v30, s{sT[3]}, v232\nv_lshlrev_b32 v30, 3, v30")
        a("s_mov_b32 exec_lo, 0xffff\ns_mov_b32 exec_hi, 0")
        a(f"buffer_store_dwordx2 v[24:25], v30, {WSR}, s{sT[2]} offen offset:3072 sc1")
        a(f"s_mov_b64 exec, -1\ns_branch {LJ}")
        a.label(LV)
        a("v_max_f32 v26, |v28|, |v29|\nv_max_f32 v27, |v30|, |v31|\nv_max_f32 v26, v26, v27")
        a(f"s_lshl_b32 s{sT[1]}, s{sW}, 4\nv_add_u32 v27, s{sT[1]}, v232")
        a("v_cmp_gt_u32 vcc, 20, v27\nv_cndmask_b32 v26, 0, v26, vcc")
        a("v_mov_b32 v28, 0x3f803f80\nv_and_b32 v29, 27, v27")
        a(f"v_cmp_eq_u32 vcc, 20, v27\nv_cmp_eq_u32 s[{sT[22]}:{sT[23]}], 24, v27\ns_or_b64 vcc, vcc, s[{sT[22]}:{sT[23]}]")
        a("v_cndmask_b32 v24, v24, v28, vcc\nv_cndmask_b32 v25, v25, v28, vcc")
        a(f"s_lshl_b32 s{sT[3]}, s{sT[3]}, 6\ns_add_u32 s{sT[2]}, s{sT[2]}, s{sT[3]}")
        a("v_and_b32 v31, 1, v233\nv_lshl_add_u32 v30, v31, 5, v27\nv_lshlrev_b32 v30, 4, v30\nv_lshrrev_b32 v31, 1, v233\nv_lshl_add_u32 v30, v31, 3, v30")
        a(f"buffer_store_dwordx2 v[24:25], v30, {WSR}, s{sT[2]} offen offset:1024 sc1")
        a.label(LJ)
        self.row16_allreduce([26], "v_max_f32")
        self.sum_groups(26, 27, "v_max_f32")
        a(f"s_lshl_b32 s{sT[2]}, s{sL}, 4\ns_lshl_b32 s{sT[3]}, s{sW}, 3\ns_add_u32 s{sT[2]}, s{sT[2]}, s{sT[3]}\ns_add_u32 s{sT[2]}, s{sT[2]}, {F_KV}")
        a(f"v_mov_b32 v28, s{sNON}\nv_mov_b32 v29, v26\nv_mov_b32 v30, 0")
        a("s_waitcnt vmcnt(0)\ns_mov_b64 exec, 1")
        a(f"buffer_store_dwordx2 v[28:29], v30, {WSR}, s{sT[2]} offen sc1")
        a("s_mov_b64 exec, -1")
        a.label(E)

    vQ1, vQ2 = 8, 12
    vO = 16
    vS = [32, 48]
    vP = 64
    vK1 = [72, 76]; vK2 = [80, 84]; vV1 = [88, 92]; vV2 = [96, 100]
    vAK = [104, 105]; vAK2 = [106, 107]
    vQN = 108; vK2L = 109
    L2_KV = 0; L2_WO = 53248; L2_UT = 0; L2_SCR = 0; L2_MISC = 162816
    CH = 4 * KV_TILE

    def q_addr(self):
        a = self.a
        a(f"s_lshl_b32 s{sT[0]}, s{sKH}, 5\nv_and_b32 v238, 31, v{vLANE}\nv_add_u32 v238, s{sT[0]}, v238")
        a(f"v_and_b32 v239, 15, v238\nv_mul_u32_u24 v238, 1280, v238\nv_lshrrev_b32 v226, 5, v{vLANE}\nv_xor_b32 v239, v239, v226")
        for q in range(8):
            a(f"v_xor_b32 v227, {2*q}, v239\nv_lshl_add_u32 v{216+q}, v227, 4, v238")
        self.emit_wq_addr(224, self.L1_WQ2)

    def q_proj(self):
        a = self.a
        a.c("---- Q projection: D[m=dim][n=row] ----")
        acc = 16
        def ldB(s): a(f"ds_read_b128 {vr(48+4*(s%3),4)}, v{216+s%8} offset:{self.L1_H + (s//8)*256}")
        def ldA(s):
            o = (s - self.NQ1) * 16 * 160
            a(f"ds_read_b64_tr_b16 {vr(64+4*(s%3),2)}, v224 offset:{o}\nds_read_b64_tr_b16 {vr(66+4*(s%3),2)}, v224 offset:{o+640}")
        def cnt(s): return 0 if s >= 40 else (1 + (2 if s >= self.NQ1 else 0))
        def ld(s):
            if s < 40:
                ldB(s)
                if s >= self.NQ1: ldA(s)
        ld(0); ld(1)
        for s in range(40):
            ld(s + 2)
            a(f"s_waitcnt lgkmcnt({cnt(s+1) + cnt(s+2)})")
            A = vr(self.vWQ + 4 * s, 4) if s < self.NQ1 else vr(64 + 4 * (s % 3), 4)
            a(f"v_mfma_f32_32x32x16_bf16 {vr(acc,16)}, {A}, {vr(48+4*(s%3),4)}, {'0' if s == 0 else vr(acc,16)}")
        a(f"s_mov_b32 s{sT[0]}, 0x3ea52b8e")
        for j in range(12): a(f"v_mul_f32 v{acc+j}, s{sT[0]}, v{acc+j}")
        for j in range(4): a(f"v_cvt_pk_bf16_f32 v{self.vQ1+j}, v{acc+2*j}, v{acc+2*j+1}")
        a(f"v_cvt_pk_bf16_f32 v{self.vQ2}, v{acc+8}, v{acc+9}\nv_cvt_pk_bf16_f32 v{self.vQ2+1}, v{acc+10}, v{acc+11}")
        a(f"v_cmp_gt_u32 vcc, 32, v{vLANE}")
        a(f"v_mov_b32 v{self.vQ2+2}, 0\nv_mov_b32 v{self.vQ2+3}, 0")
        a(f"v_cndmask_b32 v{self.vQ2}, 0, v{self.vQ2}, vcc\nv_cndmask_b32 v{self.vQ2+1}, 0, v{self.vQ2+1}, vcc")
        N = self.vQN
        regs = [self.vQ1 + j for j in range(4)] + [self.vQ2, self.vQ2 + 1]
        for i, r in enumerate(regs):
            a(f"v_dot2_f32_bf16 v{N}, v{r}, v{r}, {'0' if i == 0 else 'v%d' % N}")
        a(f"v_mov_b32 v40, v{N}\nv_permlane32_swap_b32 v{N}, v40\nv_add_f32 v{N}, v{N}, v40")
        a(f"v_sqrt_f32 v{N}, v{N}")

    def kv_piece(self, src_s, slot, half):
        L = [f"s_add_u32 m0, s{sT[18]}, {slot*self.CH}"]
        for k in (2 * half, 2 * half + 1):
            L.append(f"buffer_load_dwordx4 v{vL16}, {WSR}, s{src_s} offen offset:{k*1024} sc1 lds")
        if half == 1: L.append(f"s_add_u32 s{src_s}, s{src_s}, {self.CH}")
        return L

    def kv_dma(self, src_s, slot):
        for k in range(2):
            for x in self.kv_piece(src_s, slot, k): self.a(x)

    def ld_k(self, b, t):
        o = (t % 16) * KV_TILE
        self.a(f"ds_read_b128 {vr(self.vK1[b],4)}, v{vL16} offset:{o}\nds_read_b64 {vr(self.vK2[b],2)}, v{self.vK2L} offset:{o + 3072}")
    def ld_v1(self, b, t): self.a(f"ds_read_b128 {vr(self.vV1[b],4)}, v{vL16} offset:{(t % 16)*KV_TILE + 1024}")
    def ld_v2(self, b, t): self.a(f"ds_read_b128 {vr(self.vV2[b],4)}, v{vL16} offset:{(t % 16)*KV_TILE + 2048}")
    def qk(self, kb, sb, part):
        S = vr(self.vS[sb], 16)
        if part == 0: self.a(f"v_mfma_f32_32x32x16_bf16 {S}, {vr(self.vK1[kb],4)}, {vr(self.vQ1,4)}, 0")
        else: self.a(f"v_mfma_f32_32x32x16_bf16 {S}, {vr(self.vK2[kb],4)}, {vr(self.vQ2,4)}, {S}")

    def attn_setup(self):
        a = self.a
        a.c("---- attention: wait for K/V, bounds, stand-in for the row max ----")
        a("s_waitcnt lgkmcnt(0)\ns_barrier")
        a(f"s_lshl_b32 s{sT[18]}, s{sW4}, 12\ns_cmp_eq_u32 s{sW4}, 3\ns_cselect_b32 s{sT[18]}, 9216, s{sT[18]}")
        a(f"s_add_u32 s{sT[17]}, s{sT[18]}, {WS_KV}")
        PE = a.new("Lkvo")
        a(f"s_cmp_lg_u32 s{sW}, 3\ns_cbranch_scc1 {PE}")
        a(f"v_lshlrev_b32 v111, 6, v{vLANE}\ns_mov_b32 s{sT[1]}, {F_KV}")
        L, D = a.new("Lkvp"), a.new("Lkvd")
        cnt = sT[20]
        a(f"s_mov_b32 s{cnt}, 0")
        a.label(L)
        for j in range(4): a(f"buffer_load_dwordx4 {vr(112+4*j,4)}, v111, {WSR}, s{sT[1]} offen offset:{16*j} sc1")
        a("s_waitcnt vmcnt(0)")
        a(f"v_xor_b32 v128, s{sNON}, v112\nv_xor_b32 v129, s{sNON}, v114")
        for j in range(1, 4):
            a(f"v_xor_b32 v130, s{sNON}, v{112+4*j}\nv_xor_b32 v131, s{sNON}, v{114+4*j}\nv_or3_b32 v128, v128, v130, v131")
        a("v_or_b32 v128, v128, v129\nv_cmp_ne_u32 vcc, 0, v128")
        a(f"s_cbranch_vccz {D}")
        a(f"s_add_u32 s{cnt}, s{cnt}, 1\ns_cmp_lt_u32 s{cnt}, {SPIN_LIMIT}\ns_cbranch_scc1 {L}")
        self.bail(2)
        a.label(D)
        a("v_max3_f32 v113, v113, v117, v121\nv_max3_f32 v115, v115, v119, v123\nv_max_f32 v113, v113, v125\nv_max_f32 v115, v115, v127")
        self.row16_allreduce([113, 115], "v_max_f32", steps=(8, 4, 2))
        self.sum_groups(113, 114, "v_max_f32"); self.sum_groups(115, 116, "v_max_f32")
        a(f"v_lshlrev_b32 v114, 3, v{vLANE}\nv_add_u32 v114, {self.L2_MISC + 64}, v114\nv_mov_b32 v112, v113\nv_mov_b32 v113, v115")
        a("s_mov_b64 exec, 3\nds_write_b64 v114, v[112:113]\ns_mov_b64 exec, -1\ns_waitcnt lgkmcnt(0)")
        a.label(PE)
        if self.stop >= 3:
            import g3b
            g3b.bg_setup(self)
        a("s_barrier")
        self.stamp(31)
        E = a.new("Lfc")
        a(f"s_cmp_ge_u32 s{sW}, 4\ns_cbranch_scc1 {E}")
        for k in range(3):
            self.kv_dma(sT[17], k)
        a.label(E)
        a(f"v_mov_b32 v114, {self.L2_MISC + 64}\nds_read_b128 v[116:119], v114\ns_waitcnt lgkmcnt(0)")
        a("v_add_f32 v113, v116, v117\nv_sqrt_f32 v113, v113\nv_max_f32 v114, v118, v119")
        a(f"v_mul_f32 v113, 0x3f810000, v113\nv_mul_f32 v{self.vQN}, v{self.vQN}, v113")
        E = a.new("Lgen")
        a(f"s_or_b32 s{sT[0]}, s{sL}, s{sW}\ns_cmp_lg_u32 s{sT[0]}, 0\ns_cbranch_scc1 {E}")
        a(f"v_mov_b32 v112, s{sNON}\ns_mov_b32 s{sT[0]}, {WS_NONCE}")
        self.one_lane_store(sT[0], 112)
        a.label(E)
        for b in range(2):
            a(f"v_mov_b32 v{self.vK2[b]+2}, 0x3f803f80\nv_mov_b32 v{self.vK2[b]+3}, 0x00003f80")
        a(f"v_and_b32 v{self.vK2L}, 31, v{vLANE}\nv_lshlrev_b32 v{self.vK2L}, 3, v{self.vK2L}")
        a("s_waitcnt vmcnt(8)\ns_barrier")
        self.stamp(13) if os.environ.get("TSX") else None
        self.ld_k(0, 0)
        self.ld_k(1, 1)
        self.ld_v1(0, 0); self.ld_v2(0, 0)
        a("s_waitcnt lgkmcnt(4)")
        self.qk(0, 0, 0); self.qk(0, 0, 1)
        S = self.vS[0]
        U = self.vQN
        a(f"v_mov_b32 v115, 0x43480000\nv_mov_b32 v116, 0x47000000")
        a(f"v_cmp_nlt_f32 s[{sT[22]}:{sT[23]}], v114, v116")
        a(f"v_max3_f32 v112, v{S}, v{S+1}, v{S+2}")
        for j in range(3, 15, 2): a(f"v_max3_f32 v112, v112, v{S+j}, v{S+j+1}")
        a(f"v_max_f32 v112, v112, v{S+15}")
        a("v_mov_b32 v113, v112\nv_permlane32_swap_b32 v112, v113\nv_max_f32 v112, v112, v113")
        a(f"v_sub_f32 v113, v{U}, v112\nv_cmp_nle_f32 vcc, v113, v115")
        a(f"s_or_b64 vcc, vcc, s[{sT[22]}:{sT[23]}]")
        a(f"s_cmp_lg_u64 vcc, 0\ns_cselect_b32 s{sT[12]}, 1, 0")
        if self.force_fallback: a(f"s_mov_b32 s{sT[12]}, 1")
        a(f"s_lshl_b32 s{sT[0]}, s{sW}, 2\ns_add_u32 s{sT[0]}, s{sT[0]}, {self.L2_MISC}")
        a(f"v_mov_b32 v113, s{sT[0]}\nv_mov_b32 v114, s{sT[12]}\nds_write_b32 v113, v114")
        a(f"v_add_f32 v113, 0xc2c80000, v{U}\nv_max_f32 v112, v112, v113\nv_mov_b32 v113, {self.L2_MISC}")
        a("s_waitcnt lgkmcnt(0)\ns_barrier")
        a("ds_read_b128 v[116:119], v113\nds_read_b128 v[120:123], v113 offset:16\ns_waitcnt lgkmcnt(0)")
        a("v_or3_b32 v116, v116, v117, v118\nv_or3_b32 v119, v119, v120, v121\nv_or3_b32 v116, v116, v122, v123\nv_or_b32 v116, v116, v119")
        a(f"v_readfirstlane_b32 s{sT[12]}, v116")
        FB = a.new("Lnofb")
        a(f"s_cmp_eq_u32 s{sT[12]}, 0\ns_cbranch_scc1 {FB}")
        self.max_pass()
        a.label(FB)
        a("v_sub_f32 v112, 0, v112")
        a("v_cvt_pk_bf16_f32 v113, v112, v112\nv_and_b32 v114, 0xffff0000, v113\nv_sub_f32 v112, v112, v114")
        a("v_cvt_pk_bf16_f32 v115, v112, v112\nv_and_b32 v116, 0xffff0000, v115\nv_sub_f32 v112, v112, v116")
        a("v_cvt_pk_bf16_f32 v117, v112, 0")
        a("v_and_b32 v113, 0xffff, v113\nv_or_b32 v113, v113, v116")
        a(f"v_cmp_gt_u32 vcc, 32, v{vLANE}")
        a(f"v_cndmask_b32 v{self.vQ2+2}, 0, v113, vcc\nv_cndmask_b32 v{self.vQ2+3}, 0, v117, vcc")

    def max_pass(self):
        a = self.a
        a.c("fallback: exact row max")
        a("v_mov_b32 v112, 0xff7fffff")
        L = a.new("Lmx"); c = sT[13]
        a(f"s_add_u32 s{c}, s{sT[18]}, {WS_KV}\ns_mov_b32 s{sT[21]}, 0")
        a.label(L)
        E = a.new("Lmxd")
        a(f"s_cmp_ge_u32 s{sW}, 4\ns_cbranch_scc1 {E}")
        self.kv_dma(c, 3)
        a.label(E)
        a("s_waitcnt vmcnt(0)\ns_barrier")
        S = self.vS[1]
        for t in range(4):
            o = (12 + t) * KV_TILE
            a(f"ds_read_b128 v[120:123], v{vL16} offset:{o}\nds_read_b64 v[124:125], v{self.vK2L} offset:{o + 3072}")
            a(f"v_mov_b32 v126, 0\nv_mov_b32 v127, 0\ns_waitcnt lgkmcnt(0)")
            a(f"v_mfma_f32_32x32x16_bf16 {vr(S,16)}, v[120:123], {vr(self.vQ1,4)}, 0")
            a(f"v_mfma_f32_32x32x16_bf16 {vr(S,16)}, v[124:127], {vr(self.vQ2,4)}, {vr(S,16)}")
            for j in range(0, 16, 2): a(f"v_max3_f32 v112, v112, v{S+j}, v{S+j+1}")
        a("s_barrier")
        a(f"s_add_u32 s{sT[21]}, s{sT[21]}, 1\ns_cmp_lt_u32 s{sT[21]}, 16\ns_cbranch_scc1 {L}")
        a("v_mov_b32 v113, v112\nv_permlane32_swap_b32 v112, v113\nv_max_f32 v112, v112, v113")

    def attn_tile(self, t, h1=(), h2=()):
        a = self.a
        S = self.vS[t % 2]; Sp = self.vS[(t + 1) % 2]; P = self.vP
        def ex(j): a(f"v_exp_f32 v{S+j}, v{S+j}")
        def cv(j, b): a(f"v_cvt_pk_bf16_f32 v{P+j}, v{b+2*j}, v{b+2*j+1}")
        O = vr(self.vO, 16)
        ex(0); ex(1); cv(6, Sp); ex(2); cv(7, Sp); ex(3)
        a("s_waitcnt lgkmcnt(2)")
        self.qk((t + 1) % 2, (t + 1) % 2, 0)
        self.ld_k(t % 2, t + 2)
        ex(4); ex(5); cv(0, S); ex(6); cv(1, S); ex(7)
        self.qk((t + 1) % 2, (t + 1) % 2, 1)
        self.ld_v1((t + 1) % 2, t + 1)
        for x in h1: a(x)
        ex(8); ex(9); cv(2, S); ex(10); cv(3, S); ex(11)
        a(f"v_mfma_f32_32x32x16_bf16 {O}, {vr(self.vV2[(t+1)%2],4)}, {vr(P+4,4)}, {O}")
        self.ld_v2((t + 1) % 2, t + 1)
        for x in h2: a(x)
        ex(12); ex(13); cv(4, S); ex(14); cv(5, S); ex(15)
        a("s_waitcnt lgkmcnt(4)")
        a(f"v_mfma_f32_32x32x16_bf16 {O}, {vr(self.vV1[t%2],4)}, {vr(P,4)}, {O}")

    def attn_main(self):
        a = self.a
        a.c("---- attention main loop (unrolled, static background schedule) ----")
        src = sT[17]
        for j in range(16): a(f"v_mov_b32 v{self.vO+j}, 0")
        self.qk(0, 0, 0); self.qk(0, 0, 1)
        for j in range(12, 16): a(f"v_mov_b32 v{self.vS[1]+j}, 0")
        a(f"v_mov_b32 v{self.vP+4}, 0\nv_mov_b32 v{self.vP+5}, 0")
        for j in range(4): a(f"v_mov_b32 v{self.vV2[1]+j}, 0")
        a(f"s_cmp_ge_u32 s{sW}, 4\ns_cselect_b64 vcc, -1, 0")
        if not os.environ.get("X_NOAPRIO"):
            lab = a.new("Lpr"); a(f"s_cbranch_vccz {lab}\ns_setprio 1"); a.label(lab)
        bg = {}
        def put(T, tag, ins, n=1, need=None, role=None): bg.setdefault(T, []).append((tag, ins, n, need, role))
        for c in range(13):
            put(4 * c + 2, f"kv{c+3}", self.kv_piece(src, (c + 3) % 4, 0), n=2, role="A")
            put(4 * c + 3, f"kv{c+3}", self.kv_piece(src, (c + 3) % 4, 1), n=2, role="A")
        if self.stop >= 3 and not os.environ.get("X_NOEXTRA"):
            import g3b
            g3b.bg_schedule(self, put)
        pend = {"A": [("kv1", 4), ("kv2", 4)], "B": []}
        def wait_for(role, tag):
            p = pend[role]
            idx = [i for i, (k, n) in enumerate(p) if k == tag]
            if not idx: return None
            after = sum(n for (k, n) in p[idx[-1] + 1:])
            del p[:idx[-1] + 1]
            return after
        def guarded(role, body):
            lab = a.new("Lg")
            return [f"s_cbranch_vcc{'nz' if role == 'A' else 'z'} {lab}"] + body + [f"{lab}:"]
        for T in range(64):
            hooks = [[], []]
            ops = bg.get(T, [])
            for k, (tag, ins, n, need, role) in enumerate(ops):
                h = hooks[0] if k < (len(ops) + 1) // 2 else hooks[1]
                body = []
                if need:
                    assert role
                    w = wait_for(role, need)
                    if w is not None: body.append(f"s_waitcnt vmcnt({w})")
                body.extend(ins)
                if role: h.extend(guarded(role, body)); pend[role].append((tag, n)) if n else None
                else:
                    h.extend(body)
                    if n: pend["A"].append((tag, n)); pend["B"].append((tag, n))
            self.attn_tile(T, hooks[0], hooks[1])
            if T % 4 == 1 and T < 62:
                c = T // 4
                w = wait_for("A", f"kv{c+1}")
                if w is not None:
                    for x in guarded("A", [f"s_waitcnt vmcnt({w})"]): a(x)
                a("s_barrier")
        a("s_setprio 0")
        S = self.vS[1]; P = self.vP
        a(f"v_cvt_pk_bf16_f32 v{P+6}, v{S+12}, v{S+13}\nv_cvt_pk_bf16_f32 v{P+7}, v{S+14}, v{S+15}")
        a(f"s_waitcnt lgkmcnt(0)")
        a(f"v_mfma_f32_32x32x16_bf16 {vr(self.vO,16)}, {vr(self.vV2[1],4)}, {vr(P+4,4)}, {vr(self.vO,16)}")

    def attn_epilogue(self):
        a = self.a
        a.c("---- attention epilogue ----")
        O = self.vO
        a(f"s_lshl_b32 s{sT[0]}, s{sI}, 2\ns_lshl_b32 s{sT[1]}, s{sKH}, 1\ns_add_u32 s{sT[0]}, s{sT[0]}, s{sT[1]}\ns_mul_i32 s{sT[0]}, s{sT[0]}, {24*1024}\ns_add_u32 s{sT[0]}, s{sT[0]}, {WS_O}")
        a(f"s_lshl_b32 s{sT[1]}, s{sHG}, 2\ns_add_u32 s{sT[1]}, s{sT[1]}, s{sW4}\ns_mul_i32 s{sT[1]}, s{sT[1]}, 768\ns_add_u32 s{sT[0]}, s{sT[0]}, s{sT[1]}")
        a(f"v_bfe_u32 v32, v{vLANE}, 4, 1\nv_mul_u32_u24 v32, {24*1024}, v32\nv_and_b32 v33, 15, v{vLANE}\nv_lshl_add_u32 v32, v33, 4, v32")
        a(f"v_lshrrev_b32 v33, 5, v{vLANE}\nv_lshl_add_u32 v33, v33, 8, v32")
        a(f"v_cmp_gt_u32 vcc, 32, v{vLANE}\nv_mov_b32 v50, 0\nv_mov_b32 v51, 0")
        a(f"v_cndmask_b32 v40, v{O+8}, v{O+12}, vcc")
        a("v_rcp_f32 v40, v40")
        for j in range(12): a(f"v_mul_f32 v{O+j}, v{O+j}, v40")
        for j in range(6): a(f"v_cvt_pk_bf16_f32 v{44+j}, v{O+2*j}, v{O+2*j+1}")
        a(f"buffer_store_dwordx4 v[44:47], v33, {WSR}, s{sT[0]} offen sc1")
        a("s_mov_b32 exec_hi, 0")
        a(f"buffer_store_dwordx4 v[48:51], v32, {WSR}, s{sT[0]} offen offset:512 sc1")
        a("s_mov_b64 exec, -1")
        self.wave_flag(F_O)

    def build(self):
        a = self.a
        self.prologue(); self.stamp(0)
        self.p0(); self.stamp(1)
        self.ln_stats()
        self.wq_to_regs(); self.stamp(2)
        self.mod_poll_apply(); self.stamp(3)
        self.kv_proj(); self.stamp(16)
        self.q_proj(); self.stamp(4)
        if self.stop >= 2:
            self.attn_setup(); self.stamp(5); self.cstamp(27)
            self.attn_main(); self.stamp(6); self.cstamp(28)
            self.attn_epilogue(); self.stamp(7)
        if self.stop >= 3:
            import g3b
            g3b.rest(self)
        a("s_waitcnt vmcnt(0) lgkmcnt(0)")
        a.label("L_END")
        a("s_endpgm")
        return fix_hazards(a.l)

HEADER = open(os.path.join(os.path.dirname(os.path.abspath(__file__)), "header.txt")).read()

def make(stop=99, ts=False, force_fallback=False):
    g = Gen(stop, ts, force_fallback)
    lines, n = g.build()
    txt = HEADER + "; @launch grid=(256,1,1) block=(512,1,1) lds=163840\n"
    txt += f'.amdgcn_target "amdgcn-amd-amdhsa--gfx950"\n.text\n.globl {NAME}\n.p2align 8\n.type {NAME},@function\n{NAME}:\n'
    txt += "\n".join(lines) + "\n"
    txt += f""".section .rodata,"a"
.p2align 6
.amdhsa_kernel {NAME}
  .amdhsa_next_free_vgpr 256
  .amdhsa_next_free_sgpr 102
  .amdhsa_accum_offset 256
  .amdhsa_group_segment_fixed_size 0
  .amdhsa_kernarg_size 112
  .amdhsa_user_sgpr_count 2
  .amdhsa_user_sgpr_kernarg_segment_ptr 1
  .amdhsa_system_sgpr_workgroup_id_x 1
  .amdhsa_float_denorm_mode_32 3
.end_amdhsa_kernel
"""
    return txt, n

if __name__ == "__main__":
    import argparse
    ap = argparse.ArgumentParser()
    ap.add_argument("--stop", type=int, default=99)
    ap.add_argument("--ts", action="store_true")
    ap.add_argument("--fb", action="store_true")
    ap.add_argument("-o", default="out.s")
    args = ap.parse_args()
    sys.modules["g3"] = sys.modules["__main__"]
    txt, n = make(args.stop, args.ts, args.fb)
    open(args.o, "w").write(txt)
    print("nops inserted:", n, "lines:", txt.count("\n"))
```

```python
import sys, os
sys.path.insert(0, os.path.dirname(os.path.abspath(__file__)))
from asmlib import Asm, fix_hazards

NAME = "adaLN_cond__grouped_kv_mqa__glu_gated_swiglu__prompt_kernel"

WS_NONCE = 0x0
F_KV   = 0x1000
F_MODR = 0x2000
F_O    = 0x3000
F_Y    = 0x5000
F_ACT  = 0x7000
F_UT   = 0x9000
F_RP   = 0x18000
WS_MODG = 0xA000
WS_MODR = 0xC000
WS_MODB = 0xE800
WS_UT   = 0x10000
WS_KV   = 0x20000
WS_STAT = 0x60000
WS_O    = 0x100000
WS_Y    = 0x400000
WS_ACT  = 0x700000
WS_TS   = 0xE00000
WS_RW   = 0x1000000
RW_WO, RW_W2, RW_13 = 0, 819200, 819200 + 8 * 278528
RW_W2S = 278528
WS_USED = 0x1800000
KV_TILE = 3328

S_X, S_WS, S_A, S_B, S_C, S_OUT = 4, 8, 12, 16, 20, 24
P_X, P_WQ, P_WK, P_WV, P_WO, P_BX, P_W1, P_W3, P_W2, P_CC, P_WMOD, P_OUT, P_DBG, P_WS = [32 + 2 * i for i in range(14)]
sL, sG, sM, sI, sHG, sW, sNON, sXC, sJ = 60, 61, 62, 63, 64, 65, 66, 67, 68
sW4 = 69
sT = list(range(70, 94))
sKH = 97
sFB0, sWSRC, sRBG = 98, 99, 28
sWK = 29
SPIN_LIMIT = 400000

vLANE = 1
vL16 = 2
vO160 = [3, 4, 5, 6, 7]

def srd(a, d, p, size):
    a(f"s_mov_b32 s{d}, s{p}\ns_mov_b32 s{d+1}, s{p+1}\ns_mov_b32 s{d+2}, {size}\ns_mov_b32 s{d+3}, 0x20000")
def vr(b, n=1): return f"v{b}" if n == 1 else f"v[{b}:{b+n-1}]"
WSR = f"s[{S_WS}:{S_WS+3}]"

class Gen:
    def __init__(self, stop=99, ts=False, force_fallback=False):
        self.a = Asm(); self.stop = stop; self.ts = ts; self.force_fallback = force_fallback

    def stamp_dyn(self, mode, sreg, add=0):
        if not self.ts or os.environ.get("TSMODE") != mode: return
        a = self.a
        a(f"s_memrealtime s[94:95]\ns_waitcnt lgkmcnt(0)")
        a(f"s_lshl_b32 s96, s{sL}, 3\ns_add_u32 s96, s96, s{sW}\ns_lshl_b32 s96, s96, 5\ns_add_u32 s96, s96, s{sreg}\ns_add_u32 s96, s96, {add}\ns_lshl_b32 s96, s96, 2\ns_add_u32 s96, s96, {WS_TS}")
        a(f"v_mov_b32 v254, s94\nv_mov_b32 v255, s96")
        a(f"s_mov_b64 s[100:101], exec\ns_mov_b64 exec, 1")
        a(f"buffer_store_dword v254, v255, {WSR}, 0 offen")
        a(f"s_mov_b64 exec, s[100:101]")

    def cstamp(self, idx):
        if not self.ts or os.environ.get("TSMODE"): return
        a = self.a
        a(f"s_memtime s[94:95]\ns_waitcnt lgkmcnt(0)")
        a(f"s_lshl_b32 s96, s{sL}, 3\ns_add_u32 s96, s96, s{sW}\ns_lshl_b32 s96, s96, 7\ns_add_u32 s96, s96, {WS_TS + idx*4}")
        a(f"v_mov_b32 v254, s94\nv_mov_b32 v255, s96")
        a(f"s_mov_b64 s[100:101], exec\ns_mov_b64 exec, 1")
        a(f"buffer_store_dword v254, v255, {WSR}, 0 offen")
        a(f"s_mov_b64 exec, s[100:101]")

    def hstamp(self, slot, invert=False):
        a = self.a
        lab = a.new("Lh")
        a(f"s_cmp_lg_u32 s{sW}, 0\ns_cbranch_scc1 {lab}\ns_cmp_lg_u32 s{sL}, {int(os.environ.get('HL', '0'))}\ns_cbranch_scc1 {lab}")
        a(f"s_memrealtime s[94:95]\ns_waitcnt lgkmcnt(0)")
        a(f"s_mov_b32 s{S_OUT}, s{P_DBG}\ns_mov_b32 s{S_OUT+1}, s{P_DBG+1}\ns_mov_b32 s{S_OUT+2}, 256\ns_mov_b32 s{S_OUT+3}, 0x20000")
        a(f"v_mov_b32 v254, s94\nv_mov_b32 v255, {slot*4}")
        a(f"s_mov_b64 s[100:101], exec\ns_mov_b64 exec, 1")
        a(f"buffer_store_dword v254, v255, s[{S_OUT}:{S_OUT+3}], 0 offen")
        a(f"s_mov_b64 exec, s[100:101]")
        srd(a, S_OUT, P_OUT, 2048 * 1280)
        a.label(lab)

    HMAP = {0: (0, False), 1: (1, False), 3: (2, False), 4: (3, False), 5: (4, False), 6: (5, False), 14: (6, False), 20: (7, False), 15: (8, False), 11: (9, False), 12: (10, False), 22: (11, False), 26: (12, False), 25: (13, False), 10: (14, False)}
    def stamp(self, idx):
        if os.environ.get("HTS"):
            if idx in self.HMAP: self.hstamp(*self.HMAP[idx])
            if idx == 0:
                a = self.a
                lab = a.new("Lh")
                a(f"s_cmp_lg_u32 s{sW}, 0\ns_cbranch_scc1 {lab}\ns_cmp_lg_u32 s{sL}, {int(os.environ.get('HL', '0'))}\ns_cbranch_scc1 {lab}")
                a(f"s_mov_b32 s{S_OUT}, s{P_DBG}\ns_mov_b32 s{S_OUT+1}, s{P_DBG+1}\ns_mov_b32 s{S_OUT+2}, 256\ns_mov_b32 s{S_OUT+3}, 0x20000")
                a(f"v_mov_b32 v254, s98\nv_mov_b32 v255, 60\ns_mov_b64 exec, 1")
                a(f"buffer_store_dword v254, v255, s[{S_OUT}:{S_OUT+3}], 0 offen\ns_mov_b64 exec, -1")
                srd(a, S_OUT, P_OUT, 2048 * 1280)
                a.label(lab)
            return
        if not self.ts or os.environ.get("TSMODE"): return
        a = self.a
        a(f"s_memrealtime s[94:95]\ns_waitcnt lgkmcnt(0)")
        a(f"s_lshl_b32 s96, s{sL}, 3\ns_add_u32 s96, s96, s{sW}\ns_lshl_b32 s96, s96, 7\ns_add_u32 s96, s96, {WS_TS + idx*4}")
        a(f"v_mov_b32 v254, s94\nv_mov_b32 v255, s96")
        a(f"s_mov_b64 s[100:101], exec\ns_mov_b64 exec, 1")
        a(f"buffer_store_dword v254, v255, {WSR}, 0 offen")
        a(f"s_mov_b64 exec, s[100:101]")

    def bail(self, err):
        a = self.a
        a(f"v_mov_b32 v254, {err}\nv_mov_b32 v255, 0")
        srd(a, S_C, P_DBG, 256)
        a(f"buffer_store_dword v254, v255, s[{S_C}:{S_C+3}], 0 offen")

    def poll(self, vaddr, vdat, n=1, tagpos=(0,), err=1, soff="0", depth=3):
        a = self.a
        L, D = a.new("Lpoll"), a.new("Lpdone")
        cnt = sT[20]
        op = {1: "buffer_load_dword", 2: "buffer_load_dwordx2", 4: "buffer_load_dwordx4"}[n]
        ld = lambda k: a(f"{op} {vr(vdat + k*n, n)}, v{vaddr}, {WSR}, {soff} offen sc1")
        a(f"s_mov_b32 s{cnt}, 0")
        for k in range(depth - 1): ld(k)
        a.label(L)
        for k in range(depth):
            ld((k + depth - 1) % depth)
            a(f"s_waitcnt vmcnt({depth-1})")
            b = vdat + k * n
            a(f"v_cmp_ne_u32 vcc, s{sNON}, v{b + tagpos[0]}")
            for t in tagpos[1:]:
                a(f"v_cmp_ne_u32 s[{sT[22]}:{sT[23]}], s{sNON}, v{b + t}")
                a(f"s_or_b64 vcc, vcc, s[{sT[22]}:{sT[23]}]")
            a(f"s_cbranch_vccz {D}")
        a(f"s_add_u32 s{cnt}, s{cnt}, 1\ns_cmp_lt_u32 s{cnt}, {SPIN_LIMIT}\ns_cbranch_scc1 {L}")
        self.bail(err)
        a.label(D)

    def one_lane_store(self, soff_s, vval):
        a = self.a
        a(f"s_mov_b64 exec, 1\nbuffer_store_dword v{vval}, v{vLANE}, {WSR}, s{soff_s} offen sc1\ns_mov_b64 exec, -1")

    def wave_flag(self, base):
        a = self.a
        a(f"s_lshl_b32 s{sT[0]}, s{sL}, 2\ns_add_u32 s{sT[0]}, s{sT[0]}, {base}")
        a(f"v_mov_b32 v255, s{sNON}")
        a("s_waitcnt vmcnt(0)\ns_barrier")
        E = a.new("Lwf")
        a(f"s_cmp_lg_u32 s{sW}, 0\ns_cbranch_scc1 {E}")
        self.one_lane_store(sT[0], 255)
        a.label(E)

    def wg_poll(self, base, first_s, nflags, vtmp, err, wave=7):
        a = self.a
        E = a.new("Lwp")
        a(f"s_cmp_lg_u32 s{sW}, {wave}\ns_cbranch_scc1 {E}")
        a(f"s_lshl_b32 s{sT[1]}, s{first_s}, 2\ns_add_u32 s{sT[1]}, s{sT[1]}, {base}\nv_lshlrev_b32 v{vtmp}, 2, v{vLANE}")
        a(f"s_mov_b32 exec_lo, {(1 << nflags) - 1}\ns_mov_b32 exec_hi, 0")
        self.poll(vtmp, vtmp + 1, n=1, err=err, soff=f"s{sT[1]}", depth=2)
        a("s_mov_b64 exec, -1")
        a.label(E)
        a("s_barrier")

    def bf16_round(self, dst, src):
        self.a(f"v_cvt_pk_bf16_f32 v{dst}, v{src}, v{src}\nv_and_b32 v{dst}, 0xffff0000, v{dst}")

    def dma_run(self, srd_s, voff, soff, lds, n, extra=""):
        a = self.a
        a(f"s_mov_b32 m0, {lds}")
        for k in range(n):
            a(f"buffer_load_dwordx4 v{voff}, s[{srd_s}:{srd_s+3}], s{soff} offen offset:{k*1024}{extra} lds")

    L1_H = 0; L1_WQ2 = 81920; L1_WKV = 128000; L1_GS = 153600; L1_NS = 158720; L1_SCR = 160000
    NQ1 = 22
    vX = 8; vXN = 48; vWQ = 128
    vWA, vC1 = 216, 228

    def prologue(self):
        a = self.a
        if os.environ.get("HTS"): a("s_memrealtime s[98:99]")
        a(f"s_cmp_ge_u32 s2, 256\ns_cbranch_scc1 L_END")
        a("s_load_dwordx16 s[32:47], s[0:1], 0\ns_load_dwordx8 s[48:55], s[0:1], 64\ns_load_dwordx4 s[56:59], s[0:1], 96")
        if not os.environ.get("X_NOCP"):
            E = a.new("Lcp"); GP = a.new("Lpc")
            a(f"s_getpc_b64 s[{sT[2]}:{sT[3]}]")
            a.label(GP)
            a(f"s_lshr_b32 s{sT[4]}, s2, 3\ns_lshl_b32 s{sT[4]}, s{sT[4]}, 13\ns_cmp_ge_u32 s{sT[4]}, L_END - {GP}\ns_cbranch_scc1 {E}")
            a(f"v_lshlrev_b32 v208, 4, v0\nv_add_u32 v208, s{sT[4]}, v208\nv_min_u32 v208, L_END - {GP} - 16, v208")
            a(f"global_load_dwordx4 v[208:211], v208, s[{sT[2]}:{sT[3]}]")
            a.label(E)
        a(f"v_and_b32 v{vLANE}, 63, v0\nv_lshrrev_b32 v8, 6, v0")
        a(f"s_and_b32 s{sXC}, s2, 7\ns_lshr_b32 s{sJ}, s2, 3")
        a(f"v_readfirstlane_b32 s{sW}, v8")
        a(f"s_lshl_b32 s{sL}, s{sXC}, 5\ns_add_u32 s{sL}, s{sL}, s{sJ}")
        a(f"v_lshlrev_b32 v{vL16}, 4, v{vLANE}")
        a(f"s_lshr_b32 s{sG}, s{sL}, 4\ns_and_b32 s{sM}, s{sL}, 15\ns_lshr_b32 s{sI}, s{sL}, 3\ns_and_b32 s{sHG}, s{sL}, 7")
        a(f"s_and_b32 s{sW4}, s{sW}, 3\ns_lshr_b32 s{sKH}, s{sW}, 2\ns_lshl_b32 s{sWK}, s{sW}, 10")
        a(f"s_lshl_b32 s{sRBG}, s{sI}, 2\ns_add_u32 s{sRBG}, s{sRBG}, s{sW4}")
        a(f"v_and_b32 v243, 31, v{vLANE}\ns_lshl_b32 s{sT[0]}, s{sW}, 5\nv_add_u32 v243, s{sT[0]}, v243")
        a(f"v_lshlrev_b32 v244, 1, v243")
        a(f"s_movk_i32 s{sT[0]}, 7680\nv_mul_u32_u24 v243, s{sT[0]}, v243\nv_lshrrev_b32 v245, 5, v{vLANE}\nv_lshl_add_u32 v243, v245, 4, v243")
        a(f"s_lshl_b32 s{sT[5]}, s{sL}, 5\ns_cmp_lt_u32 s{sL}, 240\ns_cselect_b32 s{sT[5]}, s{sT[5]}, 0x7000000")
        a(f"v_mov_b32 v246, 0")
        a("s_waitcnt lgkmcnt(0)")
        if not os.environ.get("X_NOSCAT"):
            pages = [(P_WMOD, 0), (P_WMOD, 1 << 21), (P_WMOD, 2 << 21), (P_CC, 0), (P_WS, 0), (P_X, 0), (P_X, 1 << 21), (P_WQ, 0), (P_WK, 0), (P_WV, 0), (P_WS, 2 << 21), (P_WS, 8 << 21)]
            a(f"s_add_u32 s{sT[6]}, s{sJ}, s{sW}\ns_mul_hi_u32 s{sT[7]}, s{sT[6]}, {(1<<32)//12+1}\ns_mul_i32 s{sT[7]}, s{sT[7]}, 12\ns_sub_u32 s{sT[6]}, s{sT[6]}, s{sT[7]}")
            a(f"s_mov_b32 s{sT[2]}, s{P_WMOD}\ns_mov_b32 s{sT[3]}, s{P_WMOD+1}\ns_mov_b32 s{sT[7]}, 0")
            for k, (p, off) in enumerate(pages):
                if k == 0: continue
                a(f"s_cmp_eq_u32 s{sT[6]}, {k}\ns_cselect_b32 s{sT[2]}, s{p}, s{sT[2]}\ns_cselect_b32 s{sT[3]}, s{p+1}, s{sT[3]}\ns_cselect_b32 s{sT[7]}, {off}, s{sT[7]}")
            a(f"v_mov_b32 v214, s{sT[7]}\ns_mov_b64 exec, 1")
            a(f"global_load_dword v215, v214, s[{sT[2]}:{sT[3]}]")
            a("s_mov_b64 exec, -1")
        srd(a, S_B, P_WMOD, 640 * 7680)
        for it in range(3):
            a(f"buffer_load_dwordx4 {vr(self.vWA+4*it,4)}, v243, s[{S_B}:{S_B+3}], s{sT[5]} offen")
            if it < 2: a(f"v_add_u32 v243, {256*7680}, v243")
        srd(a, S_A, P_CC, 1280)
        for it in range(3):
            a(f"buffer_load_ushort v{self.vC1+it}, v244, s[{S_A}:{S_A+3}], 0 offen offset:{it*512}")
        srd(a, S_WS, P_WS, WS_USED)
        a(f"buffer_load_dword v242, v246, {WSR}, 0 offen sc1")
        a("s_barrier")
        srd(a, S_X, P_X, 2048 * 1280)
        a(f"v_lshrrev_b32 v245, 4, v{vLANE}\nv_and_b32 v246, 15, v{vLANE}")
        a(f"s_lshl_b32 s{sT[8]}, s{sI}, 3\ns_add_u32 s{sT[8]}, s{sT[8]}, s{sW}\ns_mul_i32 s{sT[8]}, s{sT[8]}, {8*1280}")
        a(f"v_mul_u32_u24 v245, 1280, v245\nv_lshl_add_u32 v245, v246, 4, v245\nv_add_u32 v246, {4*1280}, v245")
        for it in range(2):
            for c in range(5):
                a(f"buffer_load_dwordx4 {vr(self.vX + (it*5+c)*4, 4)}, v{245+it}, s[{S_X}:{S_X+3}], s{sT[8]} offen offset:{c*256}")
        a("s_barrier")
        a(f"s_cmp_lt_u32 s{sHG}, 4\ns_cselect_b32 s{S_C}, s{P_WK}, s{P_WV}\ns_cselect_b32 s{S_C+1}, s{P_WK+1}, s{P_WV+1}")
        a(f"s_mov_b32 s{S_C+2}, 25600\ns_mov_b32 s{S_C+3}, 0x20000")
        a(f"s_lshl_b32 s{sT[3]}, s{sW}, 12\ns_add_u32 s{sT[4]}, s{sT[3]}, {self.L1_WKV}")
        E1, E2 = a.new("Lkv"), a.new("Lkv")
        a(f"s_cmp_ge_u32 s{sW}, 6\ns_cbranch_scc1 {E1}")
        self.dma_run(S_C, vL16, sT[3], f"s{sT[4]}", 4)
        a(f"s_branch {E2}")
        a.label(E1)
        a(f"s_cmp_eq_u32 s{sW}, 7\ns_cbranch_scc1 {E2}")
        self.dma_run(S_C, vL16, sT[3], f"s{sT[4]}", 1)
        a.label(E2)
        a(f"s_mov_b32 s{sT[0]}, 0x1999999a")
        for ph in range(5):
            r = vO160[ph]
            a(f"v_add_u32 v248, {64*ph}, v{vLANE}\nv_mul_hi_u32 v249, v248, s{sT[0]}")
            a(f"v_mul_u32_u24 v250, {1280-160}, v249\nv_lshl_add_u32 v250, v248, 4, v250")
            a(f"v_add_u32 v{r}, {4096 - (1024*ph if ph < 4 else 0)}, v250")
        a(f"s_sub_u32 s{S_A}, s{P_WQ}, 4096\ns_subb_u32 s{S_A+1}, s{P_WQ+1}, 0\ns_mov_b32 s{S_A+2}, {640*1280+4096}\ns_mov_b32 s{S_A+3}, 0x20000")
        a(f"s_mul_i32 s{sT[3]}, s{sW}, 40960\ns_mul_i32 s{sT[4]}, s{sHG}, 160\ns_add_u32 s{sT[3]}, s{sT[3]}, s{sT[4]}")
        a(f"s_mul_i32 s{sT[4]}, s{sW}, 5120")
        for j in range(3):
            E = None
            if j == 1:
                a(f"s_add_u32 s{sT[3]}, s{sT[3]}, {8*40960}\ns_add_u32 s{sT[4]}, s{sT[4]}, {8*5120}")
                a(f"s_cmp_ge_u32 s{sW}, 3\ns_cselect_b32 s{sT[5]}, {self.L1_WQ2 - 11*5120}, 0\ns_add_u32 s{sT[4]}, s{sT[4]}, s{sT[5]}")
            if j == 2:
                E = a.new("Lq")
                a(f"s_cmp_ge_u32 s{sW}, 4\ns_cbranch_scc1 {E}")
                a(f"s_add_u32 s{sT[3]}, s{sT[3]}, {8*40960}\ns_mul_i32 s{sT[4]}, s{sW}, 5120\ns_add_u32 s{sT[4]}, s{sT[4]}, {self.L1_WQ2 + 5*5120}")
            a(f"s_mov_b32 m0, s{sT[4]}")
            for ph in range(4):
                a(f"buffer_load_dwordx4 v{vO160[ph]}, s[{S_A}:{S_A+3}], s{sT[3]} offen offset:{ph*1024} lds")
            a(f"s_add_u32 m0, s{sT[4]}, 4096")
            a(f"buffer_load_dwordx4 v{vO160[4]}, s[{S_A}:{S_A+3}], s{sT[3]} offen lds")
            if E: a.label(E)
        self.dma_min = 10
        srd(a, S_OUT, P_OUT, 2048 * 1280)

    def p0(self):
        a = self.a
        a.c("---- P0: modulation GEMV (16 columns per workgroup) ----")
        a(f"s_waitcnt vmcnt({10 + self.dma_min})")
        a(f"v_readfirstlane_b32 s{sNON}, v242")
        acc = 244
        for it in range(3):
            c = self.vC1 + it
            a(f"v_lshlrev_b32 v{c}, 16, v{c}\nv_mul_f32 v{232+it}, 0xbfb8aa3b, v{c}")
        for it in range(3): a(f"v_exp_f32 v{232+it}, v{232+it}")
        a(f"s_add_u32 s{sNON}, s{sNON}, 1\ns_cmp_eq_u32 s{sNON}, 0\ns_cselect_b32 s{sNON}, 1, s{sNON}")
        for it in range(3): a(f"v_add_f32 v{232+it}, 1.0, v{232+it}")
        for it in range(3): a(f"v_rcp_f32 v{232+it}, v{232+it}")
        for it in range(3): a(f"v_mul_f32 v{232+it}, v{self.vC1+it}, v{232+it}")
        for it in range(3):
            a(f"v_cvt_pk_bf16_f32 v{235+it}, v{232+it}, 0\nv_cvt_pk_bf16_f32 v{238+it}, 0, v{232+it}")
        for it in range(3):
            w = self.vWA + 4 * it
            for j in range(4):
                c0 = "0" if it == 0 else f"v{acc+2*j}"; c1 = "0" if it == 0 else f"v{acc+2*j+1}"
                a(f"v_dot2_f32_bf16 v{acc+2*j}, v{w+j}, v{235+it}, {c0}\nv_dot2_f32_bf16 v{acc+2*j+1}, v{w+j}, v{238+it}, {c1}")
        for sh in (1, 2, 4, 8):
            for j in range(8):
                a(f"v_add_f32_dpp v{acc+j}, v{acc+j}, v{acc+j} row_shr:{sh} row_mask:0xf bank_mask:0xf bound_ctrl:0")
        for j in range(8):
            a(f"v_add_f32_dpp v{acc+j}, v{acc+j}, v{acc+j} row_bcast:15 row_mask:0xa bank_mask:0xf")
        a(f"v_lshrrev_b32 v252, 5, v{vLANE}\ns_lshl_b32 s{sT[2]}, s{sW}, 2\ns_add_u32 s{sT[2]}, s{sT[2]}, {self.L1_SCR}\nv_lshl_add_u32 v252, v252, 8, s{sT[2]}")
        a("s_mov_b32 exec_lo, 0x80000000\ns_mov_b32 exec_hi, 0x80000000")
        for j in range(8):
            a(f"ds_write_b32 v252, v{acc+j} offset:{j*32}")
        a("s_mov_b64 exec, -1")
        a("s_waitcnt lgkmcnt(0)\ns_barrier")
        E = a.new("Lp0e")
        a(f"s_cmp_lg_u32 s{sW}, 0\ns_cbranch_scc1 {E}\ns_cmp_ge_u32 s{sL}, 240\ns_cbranch_scc1 {E}")
        a(f"v_and_b32 v246, 15, v{vLANE}\nv_lshlrev_b32 v246, 5, v246\nv_add_u32 v246, {self.L1_SCR}, v246")
        a("ds_read_b128 v[248:251], v246\nds_read_b128 v[244:247], v246 offset:16")
        a(f"s_mov_b32 s{sT[2]}, 0")
        a(f"s_cmp_ge_u32 s{sL}, 40\ns_cselect_b32 s{sT[2]}, 1.0, s{sT[2]}\ns_cmp_ge_u32 s{sL}, 80\ns_cselect_b32 s{sT[2]}, 0, s{sT[2]}")
        a(f"s_cmp_ge_u32 s{sL}, 160\ns_cselect_b32 s{sT[2]}, 1.0, s{sT[2]}\ns_cmp_ge_u32 s{sL}, 200\ns_cselect_b32 s{sT[2]}, 0, s{sT[2]}")
        a("s_waitcnt lgkmcnt(0)")
        a("v_add_f32 v244, v244, v248\nv_add_f32 v245, v245, v249\nv_add_f32 v246, v246, v250\nv_add_f32 v247, v247, v251")
        a("v_add_f32 v244, v244, v245\nv_add_f32 v246, v246, v247\nv_add_f32 v244, v244, v246")
        self.bf16_round(244, 244)
        a(f"v_add_f32 v244, s{sT[2]}, v244")
        self.bf16_round(244, 244)
        a(f"v_mov_b32_dpp v245, v244 quad_perm:[1,0,3,2] row_mask:0xf bank_mask:0xf")
        a(f"v_lshrrev_b32 v247, 16, v244\nv_or_b32 v248, v247, v245")
        R = a.new("Lp0r")
        a(f"v_lshlrev_b32 v246, 2, v{vLANE}\nv_mov_b32 v249, s{sNON}")
        a(f"s_cmp_ge_u32 s{sL}, 80\ns_cbranch_scc1 {R}")
        a(f"s_lshl_b32 s{sT[1]}, s{sL}, 6\ns_add_u32 s{sT[1]}, s{sT[1]}, {WS_MODG}")
        a("s_mov_b32 exec_lo, 0x5555\ns_mov_b32 exec_hi, 0")
        a(f"buffer_store_dwordx2 v[248:249], v246, {WSR}, s{sT[1]} offen sc1")
        a(f"s_mov_b64 exec, -1\ns_branch {E}")
        a.label(R)
        a(f"s_sub_u32 s{sT[1]}, s{sL}, 80\ns_lshl_b32 s{sT[2]}, s{sT[1]}, 6\ns_add_u32 s{sT[2]}, s{sT[2]}, {WS_MODR}")
        a("s_mov_b32 exec_lo, 0xffff\ns_mov_b32 exec_hi, 0")
        a(f"buffer_store_dword v244, v246, {WSR}, s{sT[2]} offen sc1")
        EB = a.new("Lmodb")
        a(f"s_cmp_lt_u32 s{sL}, 120\ns_cbranch_scc1 {EB}\ns_cmp_ge_u32 s{sL}, 200\ns_cbranch_scc1 {EB}")
        a(f"s_sub_u32 s{sT[2]}, s{sL}, 120\ns_lshl_b32 s{sT[2]}, s{sT[2]}, 5\ns_add_u32 s{sT[2]}, s{sT[2]}, {WS_MODB}")
        a(f"v_lshlrev_b32 v246, 1, v{vLANE}\ns_mov_b32 exec_lo, 0x5555")
        a(f"buffer_store_dword v248, v246, {WSR}, s{sT[2]} offen sc1")
        a.label(EB)
        a(f"s_lshl_b32 s{sT[2]}, s{sT[1]}, 2\ns_add_u32 s{sT[2]}, s{sT[2]}, {F_MODR}")
        a("s_waitcnt vmcnt(0)")
        self.one_lane_store(sT[2], 249)
        a.label(E)

    def row16_allreduce(self, regs, op="v_add_f32", steps=(8, 4, 2, 1)):
        for sh in steps:
            for r in regs:
                self.a(f"{op}_dpp v{r}, v{r}, v{r} row_ror:{sh} row_mask:0xf bank_mask:0xf")

    def ln_stats(self):
        a = self.a
        a.c("---- LN1 statistics ----")
        a(f"s_waitcnt vmcnt({self.dma_min})")
        X, N = self.vX, self.vXN
        ONE = 240
        a(f"v_mov_b32 v{ONE}, 0x3f803f80")
        for q in range(20):
            for it in range(2):
                sa_, sq_ = 232 + 2 * it + (q & 1), 236 + 2 * it + (q & 1)
                x = X + it * 20 + q
                a(f"v_dot2_f32_bf16 v{sa_}, v{x}, v{ONE}, {'0' if q < 2 else 'v%d' % sa_}")
                a(f"v_dot2_f32_bf16 v{sq_}, v{x}, v{x}, {'0' if q < 2 else 'v%d' % sq_}")
        a("v_add_f32 v232, v232, v233\nv_add_f32 v234, v234, v235\nv_add_f32 v236, v236, v237\nv_add_f32 v238, v238, v239")
        self.row16_allreduce([232, 234, 236, 238])
        a(f"s_mov_b32 s{sT[0]}, 0x3acccccd")
        for it in range(2):
            m, q, r = 232 + 2 * it, 236 + 2 * it, 242 + 4 * it
            a(f"v_mul_f32 v{m}, s{sT[0]}, v{m}\nv_mul_f32 v{q}, s{sT[0]}, v{q}")
            a(f"v_fma_f32 v{q}, -v{m}, v{m}, v{q}\nv_max_f32 v{q}, 0, v{q}\nv_add_f32 v{q}, 0x3727c5ac, v{q}\nv_rsq_f32 v{r}, v{q}")
        for it in range(2):
            m, r = 232 + 2 * it, 242 + 4 * it
            a(f"v_mov_b32 v{r+1}, v{r}\nv_mul_f32 v{r+2}, -v{m}, v{r}\nv_mul_f32 v{r+3}, -v{m}, v{r}")
        for it in range(2):
            r = 242 + 4 * it
            for q in range(20):
                d = N + it * 40 + 2 * q
                a(f"v_lshlrev_b32 v{d}, 16, v{X+it*20+q}\nv_and_b32 v{d+1}, 0xffff0000, v{X+it*20+q}")
            for q in range(20):
                d = N + it * 40 + 2 * q
                a(f"v_pk_fma_f32 {vr(d,2)}, {vr(d,2)}, {vr(r,2)}, {vr(r+2,2)}")

    def emit_wq_addr(self, d, base):
        a = self.a
        a(f"v_lshrrev_b32 v{d}, 5, v{vLANE}\nv_bfe_u32 v{d+1}, v{vLANE}, 2, 2\nv_lshl_add_u32 v{d}, v{d}, 3, v{d+1}")
        a(f"v_bfe_u32 v{d+1}, v{vLANE}, 4, 1\nv_lshlrev_b32 v{d+1}, 5, v{d+1}\nv_mad_u32_u24 v{d}, v{d}, s{sT[19]}, v{d+1}")
        a(f"v_and_b32 v{d+1}, 3, v{vLANE}\nv_lshl_add_u32 v{d}, v{d+1}, 3, v{d}")
        a(f"s_mul_i32 s{sT[0]}, s{sW4}, 40\ns_add_u32 s{sT[0]}, s{sT[0]}, {base}\nv_add_u32 v{d}, s{sT[0]}, v{d}")

    def wq_to_regs(self):
        a = self.a
        a.c("---- wq part 1 -> registers ----")
        a(f"s_movk_i32 s{sT[19]}, 160")
        self.emit_wq_addr(8, self.L1_H)
        a("s_waitcnt vmcnt(0)\ns_barrier")
        if not os.environ.get("X_NOTLB"):
            E = a.new("Ltlb")
            a(f"s_cmp_lg_u32 s{sW}, 7\ns_cbranch_scc1 {E}")
            a(f"v_lshlrev_b32 v250, 21, v{vLANE}\nv_add_u32 v250, 0x100, v250")
            a("s_mov_b32 exec_lo, 0xfff\ns_mov_b32 exec_hi, 0")
            a(f"buffer_load_dword v251, v250, {WSR}, 0 offen")
            a("s_mov_b64 exec, 1\nv_mov_b32 v250, 0")
            for k, (p, pages) in enumerate(((P_OUT, 2), (P_WO, 1), (P_W1, 2), (P_W3, 2), (P_W2, 2))):
                for pg in range(pages):
                    a(f"s_add_u32 s{sT[2]}, s{p}, {pg << 21}\ns_addc_u32 s{sT[3]}, s{p+1}, 0")
                    a(f"global_load_dword v251, v250, s[{sT[2]}:{sT[3]}]")
            a("s_mov_b64 exec, -1")
            a.label(E)
        for s in range(self.NQ1):
            a(f"ds_read_b64_tr_b16 {vr(self.vWQ+4*s,2)}, v8 offset:{s*16*160}")
            a(f"ds_read_b64_tr_b16 {vr(self.vWQ+4*s+2,2)}, v8 offset:{s*16*160 + 4*160}")

    def mod_poll_apply(self):
        a = self.a
        a.c("---- wait for sa/ca granules, LN apply ----")
        a(f"v_and_b32 v8, 15, v{vLANE}\nv_lshlrev_b32 v9, 5, v8\nv_add_u32 v9, {self.L1_GS}, v9")
        a(f"v_lshrrev_b32 v10, 4, v{vLANE}\ns_lshl_b32 s{sT[0]}, s{sW}, 3\nv_add_u32 v10, s{sT[0]}, v10")
        for it in range(2):
            if it: a("v_add_u32 v10, 4, v10")
            a(f"v_and_b32 v11, 15, v10\nv_xor_b32 v11, v11, v8\nv_lshlrev_b32 v11, 4, v11")
            a(f"v_mad_u32_u24 v{12+it}, v10, s{sT[18]}, v11".replace(f"s{sT[18]}", "v14") if False else f"v_mul_u32_u24 v{12+it}, 1280, v10\nv_add_u32 v{12+it}, v{12+it}, v11")
        self.kv_addr()
        self.q_addr()
        E = a.new("Lmp")
        a(f"s_cmp_ge_u32 s{sW}, 5\ns_cbranch_scc1 {E}")
        a(f"v_lshlrev_b32 v15, 4, v0")
        a(f"s_mov_b32 s{sT[1]}, {WS_MODG}")
        self.poll(15, 16, n=4, tagpos=(1, 3), err=1, soff=f"s{sT[1]}", depth=1)
        a("v_lshlrev_b32 v20, 16, v16\nv_and_b32 v21, 0xffff0000, v16\nv_lshlrev_b32 v22, 16, v18\nv_and_b32 v23, 0xffff0000, v18")
        a(f"v_add_u32 v24, {self.L1_GS}, v15\nds_write_b128 v24, v[20:23]")
        a("v_xor_b32 v16, 0x80008000, v16\nv_xor_b32 v17, 0x80008000, v18")
        a(f"v_lshrrev_b32 v24, 1, v15\nv_add_u32 v24, {self.L1_NS}, v24\nv_cmp_gt_u32 vcc, 160, v0")
        a(f"s_and_saveexec_b64 s[{sT[22]}:{sT[23]}], vcc\nds_write_b64 v24, v[16:17]\ns_mov_b64 exec, -1")
        a.label(E)
        a("s_waitcnt lgkmcnt(0)\ns_barrier")
        def rd(c, b):
            a(f"ds_read_b128 v[{b}:{b+3}], v9 offset:{c*512}\nds_read_b128 v[{b+4}:{b+7}], v9 offset:{c*512 + 16}")
            a(f"ds_read_b128 v[{b+8}:{b+11}], v9 offset:{2560 + c*512}\nds_read_b128 v[{b+12}:{b+15}], v9 offset:{2560 + c*512 + 16}")
        rd(0, 16)
        for c in range(5):
            b = 16 if c % 2 == 0 else 32
            if c + 1 < 5:
                rd(c + 1, 48 - b)
                a("s_waitcnt lgkmcnt(4)" if c == 0 else "s_waitcnt lgkmcnt(6)")
            else: a("s_waitcnt lgkmcnt(2)")
            for it in range(2):
                x = self.vXN + it * 40 + c * 8
                for j in range(4):
                    a(f"v_pk_fma_f32 {vr(x+2*j,2)}, {vr(x+2*j,2)}, {vr(b+8+2*j,2)}, {vr(b+2*j,2)}")
            for it in range(2):
                x = self.vXN + it * 40 + c * 8
                for j in range(4):
                    a(f"v_cvt_pk_bf16_f32 v{x+j}, v{x+2*j}, v{x+2*j+1}")
                a(f"ds_write_b128 v{12+it}, {vr(x,4)} offset:{self.L1_H + c*256}")
        a("s_waitcnt lgkmcnt(0)\ns_barrier")

    def sum_groups(self, r, t, op="v_add_f32"):
        a = self.a
        a(f"v_mov_b32 v{t}, v{r}\nv_permlane32_swap_b32 v{r}, v{t}\n{op} v{r}, v{r}, v{t}")
        a(f"v_mov_b32 v{t}, v{r}\nv_permlane16_swap_b32 v{r}, v{t}\n{op} v{r}, v{r}, v{t}")

    def kv_addr(self):
        a = self.a
        a(f"s_and_b32 s{sT[0]}, s{sHG}, 3\ns_lshl_b32 s{sT[0]}, s{sT[0]}, 4")
        a(f"v_and_b32 v232, 15, v{vLANE}\nv_lshrrev_b32 v233, 4, v{vLANE}")
        a(f"v_add_u32 v234, s{sT[0]}, v232\nv_mul_u32_u24 v234, 1280, v234")
        a(f"s_lshr_b32 s{sT[1]}, s{sW}, 1\ns_mul_i32 s{sT[2]}, s{sT[1]}, 5")
        a(f"s_lshl_b32 s{sT[3]}, s{sT[2]}, 2\nv_add_u32 v235, s{sT[3]}, v233")
        for j in range(5):
            a(f"v_add_u32 v236, {4*j}, v235\nv_xor_b32 v236, v236, v232\nv_lshl_add_u32 v{240+j}, v236, 4, v234")
        a(f"v_bfe_u32 v236, v{vLANE}, 2, 2\nv_lshl_add_u32 v236, v233, 3, v236\nv_mul_u32_u24 v236, 40, v236\nv_and_b32 v237, 3, v{vLANE}\nv_lshl_add_u32 v236, v237, 3, v236")
        a(f"s_and_b32 s{sT[3]}, s{sW}, 1\ns_lshl_b32 s{sT[3]}, s{sT[3]}, 5\ns_mul_i32 s{sT[4]}, s{sT[2]}, 1280\ns_add_u32 s{sT[3]}, s{sT[3]}, s{sT[4]}\ns_add_u32 s{sT[3]}, s{sT[3]}, {self.L1_WKV}\nv_add_u32 v236, s{sT[3]}, v236")
        a(f"s_lshl_b32 s{sT[3]}, s{sT[2]}, 6\ns_add_u32 s{sT[3]}, s{sT[3]}, {self.L1_NS}\nv_lshl_add_u32 v237, v233, 4, s{sT[3]}")

    def kv_proj(self):
        a = self.a
        a.c("---- K/V projection ----")
        for j in range(5):
            a(f"ds_read_b64_tr_b16 {vr(32+4*j,2)}, v236 offset:{j*1280}\nds_read_b64_tr_b16 {vr(34+4*j,2)}, v236 offset:{j*1280 + 160}")
            a(f"ds_read_b128 {vr(52+4*j,4)}, v{240+j} offset:{self.L1_H}")
        LV, LJ = a.new("Lvproj"), a.new("Lkvj")
        a(f"s_cmp_ge_u32 s{sHG}, 4\ns_cbranch_scc1 {LV}")
        a("s_waitcnt lgkmcnt(0)")
        for j in range(5): a(f"ds_read_b128 {vr(72+4*j,4)}, v237 offset:{j*64}")
        for j in range(5):
            a(f"v_mfma_f32_16x16x32_bf16 v[28:31], {vr(32+4*j,4)}, {vr(52+4*j,4)}, {'0' if j == 0 else 'v[28:31]'}")
        a("s_waitcnt lgkmcnt(0)")
        for j in range(5):
            a(f"v_mfma_f32_16x16x32_bf16 v[28:31], {vr(32+4*j,4)}, {vr(72+4*j,4)}, v[28:31]")
        a(f"s_branch {LJ}")
        a.label(LV)
        a("s_waitcnt lgkmcnt(0)")
        for j in range(5):
            a(f"v_mfma_f32_16x16x32_bf16 v[28:31], {vr(52+4*j,4)}, {vr(32+4*j,4)}, {'0' if j == 0 else 'v[28:31]'}")
        a.label(LJ)
        a(f"s_add_u32 s{sT[3]}, s{sWK}, {self.L1_WKV}\nv_add_u32 v18, s{sT[3]}, v{vL16}")
        a("s_barrier")
        a("ds_write_b128 v18, v[28:31]\ns_waitcnt lgkmcnt(0)\ns_barrier")
        E = a.new("Lkvend")
        a(f"s_cmp_ge_u32 s{sW}, 2\ns_cbranch_scc1 {E}")
        a("ds_read_b128 v[32:35], v18 offset:2048\nds_read_b128 v[36:39], v18 offset:4096\nds_read_b128 v[40:43], v18 offset:6144")
        a(f"s_and_b32 s{sT[2]}, s{sHG}, 3\ns_lshr_b32 s{sT[2]}, s{sT[2]}, 1\ns_lshl_b32 s{sT[3]}, s{sI}, 1\ns_add_u32 s{sT[2]}, s{sT[2]}, s{sT[3]}")
        a(f"s_mul_i32 s{sT[2]}, s{sT[2]}, {KV_TILE}\ns_add_u32 s{sT[2]}, s{sT[2]}, {WS_KV}\ns_and_b32 s{sT[3]}, s{sHG}, 1\ns_lshl_b32 s{sT[3]}, s{sT[3]}, 4")
        a("s_waitcnt lgkmcnt(0)")
        for r in range(4):
            a(f"v_add_f32 v{32+r}, v{32+r}, v{36+r}\nv_add_f32 v{28+r}, v{28+r}, v{40+r}")
        for r in range(4): a(f"v_add_f32 v{28+r}, v{28+r}, v{32+r}")
        a("v_cvt_pk_bf16_f32 v24, v28, v29\nv_cvt_pk_bf16_f32 v25, v30, v31")
        LV, LJ, W1 = a.new("Lv2"), a.new("Lj2"), a.new("Lw1")
        a(f"s_cmp_ge_u32 s{sHG}, 4\ns_cbranch_scc1 {LV}")
        a("v_dot2_f32_bf16 v26, v24, v24, 0\nv_dot2_f32_bf16 v26, v25, v25, v26")
        a(f"s_cmp_eq_u32 s{sW}, 1\ns_cbranch_scc1 {W1}")
        self.sum_groups(26, 27)
        a(f"v_add_u32 v30, s{sT[3]}, v232\nv_and_b32 v31, 1, v233\nv_lshl_add_u32 v30, v31, 5, v30\nv_lshlrev_b32 v30, 4, v30")
        a(f"v_lshrrev_b32 v31, 1, v233\nv_lshl_add_u32 v30, v31, 3, v30")
        a(f"buffer_store_dwordx2 v[24:25], v30, {WSR}, s{sT[2]} offen sc1")
        a(f"s_branch {LJ}")
        a.label(W1)
        a(f"v_cmp_gt_u32 vcc, 16, v{vLANE}\nv_cndmask_b32 v26, 0, v26, vcc")
        a(f"v_add_u32 v30, s{sT[3]}, v232\nv_lshlrev_b32 v30, 3, v30")
        a("s_mov_b32 exec_lo, 0xffff\ns_mov_b32 exec_hi, 0")
        a(f"buffer_store_dwordx2 v[24:25], v30, {WSR}, s{sT[2]} offen offset:3072 sc1")
        a(f"s_mov_b64 exec, -1\ns_branch {LJ}")
        a.label(LV)
        a("v_max_f32 v26, |v28|, |v29|\nv_max_f32 v27, |v30|, |v31|\nv_max_f32 v26, v26, v27")
        a(f"s_lshl_b32 s{sT[1]}, s{sW}, 4\nv_add_u32 v27, s{sT[1]}, v232")
        a("v_cmp_gt_u32 vcc, 20, v27\nv_cndmask_b32 v26, 0, v26, vcc")
        a("v_mov_b32 v28, 0x3f803f80\nv_and_b32 v29, 27, v27")
        a(f"v_cmp_eq_u32 vcc, 20, v27\nv_cmp_eq_u32 s[{sT[22]}:{sT[23]}], 24, v27\ns_or_b64 vcc, vcc, s[{sT[22]}:{sT[23]}]")
        a("v_cndmask_b32 v24, v24, v28, vcc\nv_cndmask_b32 v25, v25, v28, vcc")
        a(f"s_lshl_b32 s{sT[3]}, s{sT[3]}, 6\ns_add_u32 s{sT[2]}, s{sT[2]}, s{sT[3]}")
        a("v_and_b32 v31, 1, v233\nv_lshl_add_u32 v30, v31, 5, v27\nv_lshlrev_b32 v30, 4, v30\nv_lshrrev_b32 v31, 1, v233\nv_lshl_add_u32 v30, v31, 3, v30")
        a(f"buffer_store_dwordx2 v[24:25], v30, {WSR}, s{sT[2]} offen offset:1024 sc1")
        a.label(LJ)
        self.row16_allreduce([26], "v_max_f32")
        self.sum_groups(26, 27, "v_max_f32")
        a(f"s_lshl_b32 s{sT[2]}, s{sL}, 4\ns_lshl_b32 s{sT[3]}, s{sW}, 3\ns_add_u32 s{sT[2]}, s{sT[2]}, s{sT[3]}\ns_add_u32 s{sT[2]}, s{sT[2]}, {F_KV}")
        a(f"v_mov_b32 v28, s{sNON}\nv_mov_b32 v29, v26\nv_mov_b32 v30, 0")
        a("s_waitcnt vmcnt(0)\ns_mov_b64 exec, 1")
        a(f"buffer_store_dwordx2 v[28:29], v30, {WSR}, s{sT[2]} offen sc1")
        a("s_mov_b64 exec, -1")
        a.label(E)

    vQ1, vQ2 = 8, 12
    vO = 16
    vS = [32, 48]
    vP = 64
    vK1 = [72, 76]; vK2 = [80, 84]; vV1 = [88, 92]; vV2 = [96, 100]
    vAK = [104, 105]; vAK2 = [106, 107]
    vQN = 108; vK2L = 109
    L2_KV = 0; L2_WO = 53248; L2_UT = 0; L2_SCR = 0; L2_MISC = 162816
    CH = 4 * KV_TILE

    def q_addr(self):
        a = self.a
        a(f"s_lshl_b32 s{sT[0]}, s{sKH}, 5\nv_and_b32 v238, 31, v{vLANE}\nv_add_u32 v238, s{sT[0]}, v238")
        a(f"v_and_b32 v239, 15, v238\nv_mul_u32_u24 v238, 1280, v238\nv_lshrrev_b32 v226, 5, v{vLANE}\nv_xor_b32 v239, v239, v226")
        for q in range(8):
            a(f"v_xor_b32 v227, {2*q}, v239\nv_lshl_add_u32 v{216+q}, v227, 4, v238")
        self.emit_wq_addr(224, self.L1_WQ2)

    def q_proj(self):
        a = self.a
        a.c("---- Q projection: D[m=dim][n=row] ----")
        acc = 16
        def ldB(s): a(f"ds_read_b128 {vr(48+4*(s%3),4)}, v{216+s%8} offset:{self.L1_H + (s//8)*256}")
        def ldA(s):
            o = (s - self.NQ1) * 16 * 160
            a(f"ds_read_b64_tr_b16 {vr(64+4*(s%3),2)}, v224 offset:{o}\nds_read_b64_tr_b16 {vr(66+4*(s%3),2)}, v224 offset:{o+640}")
        def cnt(s): return 0 if s >= 40 else (1 + (2 if s >= self.NQ1 else 0))
        def ld(s):
            if s < 40:
                ldB(s)
                if s >= self.NQ1: ldA(s)
        ld(0); ld(1)
        for s in range(40):
            ld(s + 2)
            a(f"s_waitcnt lgkmcnt({cnt(s+1) + cnt(s+2)})")
            A = vr(self.vWQ + 4 * s, 4) if s < self.NQ1 else vr(64 + 4 * (s % 3), 4)
            a(f"v_mfma_f32_32x32x16_bf16 {vr(acc,16)}, {A}, {vr(48+4*(s%3),4)}, {'0' if s == 0 else vr(acc,16)}")
        a(f"s_mov_b32 s{sT[0]}, 0x3ea52b8e")
        for j in range(12): a(f"v_mul_f32 v{acc+j}, s{sT[0]}, v{acc+j}")
        for j in range(4): a(f"v_cvt_pk_bf16_f32 v{self.vQ1+j}, v{acc+2*j}, v{acc+2*j+1}")
        a(f"v_cvt_pk_bf16_f32 v{self.vQ2}, v{acc+8}, v{acc+9}\nv_cvt_pk_bf16_f32 v{self.vQ2+1}, v{acc+10}, v{acc+11}")
        a(f"v_cmp_gt_u32 vcc, 32, v{vLANE}")
        a(f"v_mov_b32 v{self.vQ2+2}, 0\nv_mov_b32 v{self.vQ2+3}, 0")
        a(f"v_cndmask_b32 v{self.vQ2}, 0, v{self.vQ2}, vcc\nv_cndmask_b32 v{self.vQ2+1}, 0, v{self.vQ2+1}, vcc")
        N = self.vQN
        regs = [self.vQ1 + j for j in range(4)] + [self.vQ2, self.vQ2 + 1]
        for i, r in enumerate(regs):
            a(f"v_dot2_f32_bf16 v{N}, v{r}, v{r}, {'0' if i == 0 else 'v%d' % N}")
        a(f"v_mov_b32 v40, v{N}\nv_permlane32_swap_b32 v{N}, v40\nv_add_f32 v{N}, v{N}, v40")
        a(f"v_sqrt_f32 v{N}, v{N}")

    def kv_piece(self, src_s, slot, half):
        L = [f"s_add_u32 m0, s{sT[18]}, {slot*self.CH}"]
        for k in (2 * half, 2 * half + 1):
            L.append(f"buffer_load_dwordx4 v{vL16}, {WSR}, s{src_s} offen offset:{k*1024} sc1 lds")
        if half == 1: L.append(f"s_add_u32 s{src_s}, s{src_s}, {self.CH}")
        return L

    def kv_dma(self, src_s, slot):
        for k in range(2):
            for x in self.kv_piece(src_s, slot, k): self.a(x)

    def ld_k(self, b, t):
        o = (t % 16) * KV_TILE
        self.a(f"ds_read_b128 {vr(self.vK1[b],4)}, v{vL16} offset:{o}\nds_read_b64 {vr(self.vK2[b],2)}, v{self.vK2L} offset:{o + 3072}")
    def ld_v1(self, b, t): self.a(f"ds_read_b128 {vr(self.vV1[b],4)}, v{vL16} offset:{(t % 16)*KV_TILE + 1024}")
    def ld_v2(self, b, t): self.a(f"ds_read_b128 {vr(self.vV2[b],4)}, v{vL16} offset:{(t % 16)*KV_TILE + 2048}")
    def qk(self, kb, sb, part):
        S = vr(self.vS[sb], 16)
        if part == 0: self.a(f"v_mfma_f32_32x32x16_bf16 {S}, {vr(self.vK1[kb],4)}, {vr(self.vQ1,4)}, 0")
        else: self.a(f"v_mfma_f32_32x32x16_bf16 {S}, {vr(self.vK2[kb],4)}, {vr(self.vQ2,4)}, {S}")

    def attn_setup(self):
        a = self.a
        a.c("---- attention: wait for K/V, bounds, stand-in for the row max ----")
        a("s_waitcnt lgkmcnt(0)\ns_barrier")
        a(f"s_lshl_b32 s{sT[18]}, s{sW4}, 12\ns_cmp_eq_u32 s{sW4}, 3\ns_cselect_b32 s{sT[18]}, 9216, s{sT[18]}")
        a(f"s_add_u32 s{sT[17]}, s{sT[18]}, {WS_KV}")
        PE = a.new("Lkvo")
        a(f"s_cmp_lg_u32 s{sW}, 3\ns_cbranch_scc1 {PE}")
        a(f"v_lshlrev_b32 v111, 6, v{vLANE}\ns_mov_b32 s{sT[1]}, {F_KV}")
        L, D = a.new("Lkvp"), a.new("Lkvd")
        cnt = sT[20]
        a(f"s_mov_b32 s{cnt}, 0")
        a.label(L)
        for j in range(4): a(f"buffer_load_dwordx4 {vr(112+4*j,4)}, v111, {WSR}, s{sT[1]} offen offset:{16*j} sc1")
        a("s_waitcnt vmcnt(0)")
        a(f"v_xor_b32 v128, s{sNON}, v112\nv_xor_b32 v129, s{sNON}, v114")
        for j in range(1, 4):
            a(f"v_xor_b32 v130, s{sNON}, v{112+4*j}\nv_xor_b32 v131, s{sNON}, v{114+4*j}\nv_or3_b32 v128, v128, v130, v131")
        a("v_or_b32 v128, v128, v129\nv_cmp_ne_u32 vcc, 0, v128")
        a(f"s_cbranch_vccz {D}")
        a(f"s_add_u32 s{cnt}, s{cnt}, 1\ns_cmp_lt_u32 s{cnt}, {SPIN_LIMIT}\ns_cbranch_scc1 {L}")
        self.bail(2)
        a.label(D)
        a("v_max3_f32 v113, v113, v117, v121\nv_max3_f32 v115, v115, v119, v123\nv_max_f32 v113, v113, v125\nv_max_f32 v115, v115, v127")
        self.row16_allreduce([113, 115], "v_max_f32", steps=(8, 4, 2))
        self.sum_groups(113, 114, "v_max_f32"); self.sum_groups(115, 116, "v_max_f32")
        a(f"v_lshlrev_b32 v114, 3, v{vLANE}\nv_add_u32 v114, {self.L2_MISC + 64}, v114\nv_mov_b32 v112, v113\nv_mov_b32 v113, v115")
        a("s_mov_b64 exec, 3\nds_write_b64 v114, v[112:113]\ns_mov_b64 exec, -1\ns_waitcnt lgkmcnt(0)")
        a.label(PE)
        if self.stop >= 3:
            import g3b
            g3b.bg_setup(self)
        a("s_barrier")
        self.stamp(31)
        E = a.new("Lfc")
        a(f"s_cmp_ge_u32 s{sW}, 4\ns_cbranch_scc1 {E}")
        for k in range(3):
            self.kv_dma(sT[17], k)
        a.label(E)
        a(f"v_mov_b32 v114, {self.L2_MISC + 64}\nds_read_b128 v[116:119], v114\ns_waitcnt lgkmcnt(0)")
        a("v_add_f32 v113, v116, v117\nv_sqrt_f32 v113, v113\nv_max_f32 v114, v118, v119")
        a(f"v_mul_f32 v113, 0x3f810000, v113\nv_mul_f32 v{self.vQN}, v{self.vQN}, v113")
        E = a.new("Lgen")
        a(f"s_or_b32 s{sT[0]}, s{sL}, s{sW}\ns_cmp_lg_u32 s{sT[0]}, 0\ns_cbranch_scc1 {E}")
        a(f"v_mov_b32 v112, s{sNON}\ns_mov_b32 s{sT[0]}, {WS_NONCE}")
        self.one_lane_store(sT[0], 112)
        a.label(E)
        for b in range(2):
            a(f"v_mov_b32 v{self.vK2[b]+2}, 0x3f803f80\nv_mov_b32 v{self.vK2[b]+3}, 0x00003f80")
        a(f"v_and_b32 v{self.vK2L}, 31, v{vLANE}\nv_lshlrev_b32 v{self.vK2L}, 3, v{self.vK2L}")
        a("s_waitcnt vmcnt(8)\ns_barrier")
        self.stamp(13) if os.environ.get("TSX") else None
        self.ld_k(0, 0)
        self.ld_k(1, 1)
        self.ld_v1(0, 0); self.ld_v2(0, 0)
        a("s_waitcnt lgkmcnt(4)")
        self.qk(0, 0, 0); self.qk(0, 0, 1)
        S = self.vS[0]
        U = self.vQN
        a(f"v_mov_b32 v115, 0x43480000\nv_mov_b32 v116, 0x47000000")
        a(f"v_cmp_nlt_f32 s[{sT[22]}:{sT[23]}], v114, v116")
        a(f"v_max3_f32 v112, v{S}, v{S+1}, v{S+2}")
        for j in range(3, 15, 2): a(f"v_max3_f32 v112, v112, v{S+j}, v{S+j+1}")
        a(f"v_max_f32 v112, v112, v{S+15}")
        a("v_mov_b32 v113, v112\nv_permlane32_swap_b32 v112, v113\nv_max_f32 v112, v112, v113")
        a(f"v_sub_f32 v113, v{U}, v112\nv_cmp_nle_f32 vcc, v113, v115")
        a(f"s_or_b64 vcc, vcc, s[{sT[22]}:{sT[23]}]")
        a(f"s_cmp_lg_u64 vcc, 0\ns_cselect_b32 s{sT[12]}, 1, 0")
        if self.force_fallback: a(f"s_mov_b32 s{sT[12]}, 1")
        a(f"s_lshl_b32 s{sT[0]}, s{sW}, 2\ns_add_u32 s{sT[0]}, s{sT[0]}, {self.L2_MISC}")
        a(f"v_mov_b32 v113, s{sT[0]}\nv_mov_b32 v114, s{sT[12]}\nds_write_b32 v113, v114")
        a(f"v_add_f32 v113, 0xc2c80000, v{U}\nv_max_f32 v112, v112, v113\nv_mov_b32 v113, {self.L2_MISC}")
        a("s_waitcnt lgkmcnt(0)\ns_barrier")
        a("ds_read_b128 v[116:119], v113\nds_read_b128 v[120:123], v113 offset:16\ns_waitcnt lgkmcnt(0)")
        a("v_or3_b32 v116, v116, v117, v118\nv_or3_b32 v119, v119, v120, v121\nv_or3_b32 v116, v116, v122, v123\nv_or_b32 v116, v116, v119")
        a(f"v_readfirstlane_b32 s{sT[12]}, v116")
        FB = a.new("Lnofb")
        a(f"s_cmp_eq_u32 s{sT[12]}, 0\ns_cbranch_scc1 {FB}")
        self.max_pass()
        a.label(FB)
        a("v_sub_f32 v112, 0, v112")
        a("v_cvt_pk_bf16_f32 v113, v112, v112\nv_and_b32 v114, 0xffff0000, v113\nv_sub_f32 v112, v112, v114")
        a("v_cvt_pk_bf16_f32 v115, v112, v112\nv_and_b32 v116, 0xffff0000, v115\nv_sub_f32 v112, v112, v116")
        a("v_cvt_pk_bf16_f32 v117, v112, 0")
        a("v_and_b32 v113, 0xffff, v113\nv_or_b32 v113, v113, v116")
        a(f"v_cmp_gt_u32 vcc, 32, v{vLANE}")
        a(f"v_cndmask_b32 v{self.vQ2+2}, 0, v113, vcc\nv_cndmask_b32 v{self.vQ2+3}, 0, v117, vcc")

    def max_pass(self):
        a = self.a
        a.c("fallback: exact row max")
        a("v_mov_b32 v112, 0xff7fffff")
        L = a.new("Lmx"); c = sT[13]
        a(f"s_add_u32 s{c}, s{sT[18]}, {WS_KV}\ns_mov_b32 s{sT[21]}, 0")
        a.label(L)
        E = a.new("Lmxd")
        a(f"s_cmp_ge_u32 s{sW}, 4\ns_cbranch_scc1 {E}")
        self.kv_dma(c, 3)
        a.label(E)
        a("s_waitcnt vmcnt(0)\ns_barrier")
        S = self.vS[1]
        for t in range(4):
            o = (12 + t) * KV_TILE
            a(f"ds_read_b128 v[120:123], v{vL16} offset:{o}\nds_read_b64 v[124:125], v{self.vK2L} offset:{o + 3072}")
            a(f"v_mov_b32 v126, 0\nv_mov_b32 v127, 0\ns_waitcnt lgkmcnt(0)")
            a(f"v_mfma_f32_32x32x16_bf16 {vr(S,16)}, v[120:123], {vr(self.vQ1,4)}, 0")
            a(f"v_mfma_f32_32x32x16_bf16 {vr(S,16)}, v[124:127], {vr(self.vQ2,4)}, {vr(S,16)}")
            for j in range(0, 16, 2): a(f"v_max3_f32 v112, v112, v{S+j}, v{S+j+1}")
        a("s_barrier")
        a(f"s_add_u32 s{sT[21]}, s{sT[21]}, 1\ns_cmp_lt_u32 s{sT[21]}, 16\ns_cbranch_scc1 {L}")
        a("v_mov_b32 v113, v112\nv_permlane32_swap_b32 v112, v113\nv_max_f32 v112, v112, v113")

    def attn_tile(self, t, h1=(), h2=()):
        a = self.a
        S = self.vS[t % 2]; Sp = self.vS[(t + 1) % 2]; P = self.vP
        def ex(j): a(f"v_exp_f32 v{S+j}, v{S+j}")
        def cv(j, b): a(f"v_cvt_pk_bf16_f32 v{P+j}, v{b+2*j}, v{b+2*j+1}")
        O = vr(self.vO, 16)
        ex(0); ex(1); cv(6, Sp); ex(2); cv(7, Sp); ex(3)
        a("s_waitcnt lgkmcnt(2)")
        self.qk((t + 1) % 2, (t + 1) % 2, 0)
        self.ld_k(t % 2, t + 2)
        ex(4); ex(5); cv(0, S); ex(6); cv(1, S); ex(7)
        self.qk((t + 1) % 2, (t + 1) % 2, 1)
        self.ld_v1((t + 1) % 2, t + 1)
        for x in h1: a(x)
        ex(8); ex(9); cv(2, S); ex(10); cv(3, S); ex(11)
        a(f"v_mfma_f32_32x32x16_bf16 {O}, {vr(self.vV2[(t+1)%2],4)}, {vr(P+4,4)}, {O}")
        self.ld_v2((t + 1) % 2, t + 1)
        for x in h2: a(x)
        ex(12); ex(13); cv(4, S); ex(14); cv(5, S); ex(15)
        a("s_waitcnt lgkmcnt(4)")
        a(f"v_mfma_f32_32x32x16_bf16 {O}, {vr(self.vV1[t%2],4)}, {vr(P,4)}, {O}")

    def attn_main(self):
        a = self.a
        a.c("---- attention main loop (unrolled, static background schedule) ----")
        src = sT[17]
        for j in range(16): a(f"v_mov_b32 v{self.vO+j}, 0")
        self.qk(0, 0, 0); self.qk(0, 0, 1)
        for j in range(12, 16): a(f"v_mov_b32 v{self.vS[1]+j}, 0")
        a(f"v_mov_b32 v{self.vP+4}, 0\nv_mov_b32 v{self.vP+5}, 0")
        for j in range(4): a(f"v_mov_b32 v{self.vV2[1]+j}, 0")
        a(f"s_cmp_ge_u32 s{sW}, 4\ns_cselect_b64 vcc, -1, 0")
        if not os.environ.get("X_NOAPRIO"):
            lab = a.new("Lpr"); a(f"s_cbranch_vccz {lab}\ns_setprio 1"); a.label(lab)
        bg = {}
        def put(T, tag, ins, n=1, need=None, role=None): bg.setdefault(T, []).append((tag, ins, n, need, role))
        for c in range(13):
            put(4 * c + 2, f"kv{c+3}", self.kv_piece(src, (c + 3) % 4, 0), n=2, role="A")
            put(4 * c + 3, f"kv{c+3}", self.kv_piece(src, (c + 3) % 4, 1), n=2, role="A")
        if self.stop >= 3 and not os.environ.get("X_NOEXTRA"):
            import g3b
            g3b.bg_schedule(self, put)
        pend = {"A": [("kv1", 4), ("kv2", 4)], "B": []}
        def wait_for(role, tag):
            p = pend[role]
            idx = [i for i, (k, n) in enumerate(p) if k == tag]
            if not idx: return None
            after = sum(n for (k, n) in p[idx[-1] + 1:])
            del p[:idx[-1] + 1]
            return after
        def guarded(role, body):
            lab = a.new("Lg")
            return [f"s_cbranch_vcc{'nz' if role == 'A' else 'z'} {lab}"] + body + [f"{lab}:"]
        for T in range(64):
            hooks = [[], []]
            ops = bg.get(T, [])
            for k, (tag, ins, n, need, role) in enumerate(ops):
                h = hooks[0] if k < (len(ops) + 1) // 2 else hooks[1]
                body = []
                if need:
                    assert role
                    w = wait_for(role, need)
                    if w is not None: body.append(f"s_waitcnt vmcnt({w})")
                body.extend(ins)
                if role: h.extend(guarded(role, body)); pend[role].append((tag, n)) if n else None
                else:
                    h.extend(body)
                    if n: pend["A"].append((tag, n)); pend["B"].append((tag, n))
            self.attn_tile(T, hooks[0], hooks[1])
            if T % 4 == 1 and T < 62:
                c = T // 4
                w = wait_for("A", f"kv{c+1}")
                if w is not None:
                    for x in guarded("A", [f"s_waitcnt vmcnt({w})"]): a(x)
                a("s_barrier")
        a("s_setprio 0")
        S = self.vS[1]; P = self.vP
        a(f"v_cvt_pk_bf16_f32 v{P+6}, v{S+12}, v{S+13}\nv_cvt_pk_bf16_f32 v{P+7}, v{S+14}, v{S+15}")
        a(f"s_waitcnt lgkmcnt(0)")
        a(f"v_mfma_f32_32x32x16_bf16 {vr(self.vO,16)}, {vr(self.vV2[1],4)}, {vr(P+4,4)}, {vr(self.vO,16)}")

    def attn_epilogue(self):
        a = self.a
        a.c("---- attention epilogue ----")
        O = self.vO
        a(f"s_lshl_b32 s{sT[0]}, s{sI}, 2\ns_lshl_b32 s{sT[1]}, s{sKH}, 1\ns_add_u32 s{sT[0]}, s{sT[0]}, s{sT[1]}\ns_mul_i32 s{sT[0]}, s{sT[0]}, {24*1024}\ns_add_u32 s{sT[0]}, s{sT[0]}, {WS_O}")
        a(f"s_lshl_b32 s{sT[1]}, s{sHG}, 2\ns_add_u32 s{sT[1]}, s{sT[1]}, s{sW4}\ns_mul_i32 s{sT[1]}, s{sT[1]}, 768\ns_add_u32 s{sT[0]}, s{sT[0]}, s{sT[1]}")
        a(f"v_bfe_u32 v32, v{vLANE}, 4, 1\nv_mul_u32_u24 v32, {24*1024}, v32\nv_and_b32 v33, 15, v{vLANE}\nv_lshl_add_u32 v32, v33, 4, v32")
        a(f"v_lshrrev_b32 v33, 5, v{vLANE}\nv_lshl_add_u32 v33, v33, 8, v32")
        a(f"v_cmp_gt_u32 vcc, 32, v{vLANE}\nv_mov_b32 v50, 0\nv_mov_b32 v51, 0")
        a(f"v_cndmask_b32 v40, v{O+8}, v{O+12}, vcc")
        a("v_rcp_f32 v40, v40")
        for j in range(12): a(f"v_mul_f32 v{O+j}, v{O+j}, v40")
        for j in range(6): a(f"v_cvt_pk_bf16_f32 v{44+j}, v{O+2*j}, v{O+2*j+1}")
        a(f"buffer_store_dwordx4 v[44:47], v33, {WSR}, s{sT[0]} offen sc1")
        a("s_mov_b32 exec_hi, 0")
        a(f"buffer_store_dwordx4 v[48:51], v32, {WSR}, s{sT[0]} offen offset:512 sc1")
        a("s_mov_b64 exec, -1")
        self.wave_flag(F_O)

    def build(self):
        a = self.a
        self.prologue(); self.stamp(0)
        self.p0(); self.stamp(1)
        self.ln_stats()
        self.wq_to_regs(); self.stamp(2)
        self.mod_poll_apply(); self.stamp(3)
        self.kv_proj(); self.stamp(16)
        self.q_proj(); self.stamp(4)
        if self.stop >= 2:
            self.attn_setup(); self.stamp(5); self.cstamp(27)
            self.attn_main(); self.stamp(6); self.cstamp(28)
            self.attn_epilogue(); self.stamp(7)
        if self.stop >= 3:
            import g3b
            g3b.rest(self)
        a("s_waitcnt vmcnt(0) lgkmcnt(0)")
        a.label("L_END")
        a("s_endpgm")
        return fix_hazards(a.l)

HEADER = open(os.path.join(os.path.dirname(os.path.abspath(__file__)), "header.txt")).read()

def make(stop=99, ts=False, force_fallback=False):
    g = Gen(stop, ts, force_fallback)
    lines, n = g.build()
    txt = HEADER + "; @launch grid=(256,1,1) block=(512,1,1) lds=163840\n"
    txt += f'.amdgcn_target "amdgcn-amd-amdhsa--gfx950"\n.text\n.globl {NAME}\n.p2align 8\n.type {NAME},@function\n{NAME}:\n'
    txt += "\n".join(lines) + "\n"
    txt += f""".section .rodata,"a"
.p2align 6
.amdhsa_kernel {NAME}
  .amdhsa_next_free_vgpr 256
  .amdhsa_next_free_sgpr 102
  .amdhsa_accum_offset 256
  .amdhsa_group_segment_fixed_size 0
  .amdhsa_kernarg_size 112
  .amdhsa_user_sgpr_count 2
  .amdhsa_user_sgpr_kernarg_segment_ptr 1
  .amdhsa_system_sgpr_workgroup_id_x 1
  .amdhsa_float_denorm_mode_32 3
.end_amdhsa_kernel
"""
    return txt, n

if __name__ == "__main__":
    import argparse
    ap = argparse.ArgumentParser()
    ap.add_argument("--stop", type=int, default=99)
    ap.add_argument("--ts", action="store_true")
    ap.add_argument("--fb", action="store_true")
    ap.add_argument("-o", default="out.s")
    args = ap.parse_args()
    sys.modules["g3"] = sys.modules["__main__"]
    txt, n = make(args.stop, args.ts, args.fb)
    open(args.o, "w").write(txt)
    print("nops inserted:", n, "lines:", txt.count("\n"))
```

```python
import sys, os
sys.path.insert(0, os.path.dirname(os.path.abspath(__file__)))
from asmlib import Asm, fix_hazards

NAME = "adaLN_cond__grouped_kv_mqa__glu_gated_swiglu__prompt_kernel"

WS_NONCE = 0x0
F_KV   = 0x1000
F_MODR = 0x2000
F_O    = 0x3000
F_Y    = 0x5000
F_ACT  = 0x7000
F_UT   = 0x9000
F_RP   = 0x18000
WS_MODG = 0xA000
WS_MODR = 0xC000
WS_MODB = 0xE800
WS_UT   = 0x10000
WS_KV   = 0x20000
WS_STAT = 0x60000
WS_O    = 0x100000
WS_Y    = 0x400000
WS_ACT  = 0x700000
WS_TS   = 0xE00000
WS_RW   = 0x1000000
RW_WO, RW_W2, RW_13 = 0, 819200, 819200 + 8 * 278528
RW_W2S = 278528
WS_USED = 0x1800000
KV_TILE = 3328

S_X, S_WS, S_A, S_B, S_C, S_OUT = 4, 8, 12, 16, 20, 24
P_X, P_WQ, P_WK, P_WV, P_WO, P_BX, P_W1, P_W3, P_W2, P_CC, P_WMOD, P_OUT, P_DBG, P_WS = [32 + 2 * i for i in range(14)]
sL, sG, sM, sI, sHG, sW, sNON, sXC, sJ = 60, 61, 62, 63, 64, 65, 66, 67, 68
sW4 = 69
sT = list(range(70, 94))
sKH = 97
sFB0, sWSRC, sRBG = 98, 99, 28
sWK = 29
SPIN_LIMIT = 400000

vLANE = 1
vL16 = 2
vO160 = [3, 4, 5, 6, 7]

def srd(a, d, p, size):
    a(f"s_mov_b32 s{d}, s{p}\ns_mov_b32 s{d+1}, s{p+1}\ns_mov_b32 s{d+2}, {size}\ns_mov_b32 s{d+3}, 0x20000")
def vr(b, n=1): return f"v{b}" if n == 1 else f"v[{b}:{b+n-1}]"
WSR = f"s[{S_WS}:{S_WS+3}]"

class Gen:
    def __init__(self, stop=99, ts=False, force_fallback=False):
        self.a = Asm(); self.stop = stop; self.ts = ts; self.force_fallback = force_fallback

    def stamp_dyn(self, mode, sreg, add=0):
        if not self.ts or os.environ.get("TSMODE") != mode: return
        a = self.a
        a(f"s_memrealtime s[94:95]\ns_waitcnt lgkmcnt(0)")
        a(f"s_lshl_b32 s96, s{sL}, 3\ns_add_u32 s96, s96, s{sW}\ns_lshl_b32 s96, s96, 5\ns_add_u32 s96, s96, s{sreg}\ns_add_u32 s96, s96, {add}\ns_lshl_b32 s96, s96, 2\ns_add_u32 s96, s96, {WS_TS}")
        a(f"v_mov_b32 v254, s94\nv_mov_b32 v255, s96")
        a(f"s_mov_b64 s[100:101], exec\ns_mov_b64 exec, 1")
        a(f"buffer_store_dword v254, v255, {WSR}, 0 offen")
        a(f"s_mov_b64 exec, s[100:101]")

    def cstamp(self, idx):
        if not self.ts or os.environ.get("TSMODE"): return
        a = self.a
        a(f"s_memtime s[94:95]\ns_waitcnt lgkmcnt(0)")
        a(f"s_lshl_b32 s96, s{sL}, 3\ns_add_u32 s96, s96, s{sW}\ns_lshl_b32 s96, s96, 7\ns_add_u32 s96, s96, {WS_TS + idx*4}")
        a(f"v_mov_b32 v254, s94\nv_mov_b32 v255, s96")
        a(f"s_mov_b64 s[100:101], exec\ns_mov_b64 exec, 1")
        a(f"buffer_store_dword v254, v255, {WSR}, 0 offen")
        a(f"s_mov_b64 exec, s[100:101]")

    def hstamp(self, slot, invert=False):
        a = self.a
        lab = a.new("Lh")
        a(f"s_cmp_lg_u32 s{sW}, {int(os.environ.get('HW', '0'))}\ns_cbranch_scc1 {lab}\ns_cmp_lg_u32 s{sL}, {int(os.environ.get('HL', '0'))}\ns_cbranch_scc1 {lab}")
        a(f"s_memrealtime s[94:95]\ns_waitcnt lgkmcnt(0)")
        a(f"s_mov_b32 s{S_OUT}, s{P_DBG}\ns_mov_b32 s{S_OUT+1}, s{P_DBG+1}\ns_mov_b32 s{S_OUT+2}, 256\ns_mov_b32 s{S_OUT+3}, 0x20000")
        a(f"v_mov_b32 v254, s94\nv_mov_b32 v255, {slot*4}")
        a(f"s_mov_b64 s[100:101], exec\ns_mov_b64 exec, 1")
        a(f"buffer_store_dword v254, v255, s[{S_OUT}:{S_OUT+3}], 0 offen")
        a(f"s_mov_b64 exec, s[100:101]")
        srd(a, S_OUT, P_OUT, 2048 * 1280)
        a.label(lab)

    HMAP = {0: (0, False), 1: (1, False), 3: (2, False), 4: (3, False), 5: (4, False), 6: (5, False), 14: (6, False), 20: (7, False), 15: (8, False), 11: (9, False), 12: (10, False), 22: (11, False), 26: (12, False), 25: (13, False), 10: (14, False)}
    def stamp(self, idx):
        if os.environ.get("HTS"):
            if idx in self.HMAP and not (os.environ.get("HTS") == "2" and self.HMAP[idx][0] >= 10): self.hstamp(*self.HMAP[idx])
            if idx == 0 and os.environ.get("HTS") == "2":
                a = self.a
                lab = a.new("Lh")
                a(f"s_cmp_lg_u32 s{sW}, {int(os.environ.get('HW', '0'))}\ns_cbranch_scc1 {lab}\ns_cmp_lg_u32 s{sL}, {int(os.environ.get('HL', '0'))}\ns_cbranch_scc1 {lab}")
                a("s_waitcnt lgkmcnt(0)")
                a(f"s_mov_b32 s{S_OUT}, s{P_DBG}\ns_mov_b32 s{S_OUT+1}, s{P_DBG+1}\ns_mov_b32 s{S_OUT+2}, 256\ns_mov_b32 s{S_OUT+3}, 0x20000")
                for k in range(4):
                    a(f"v_mov_b32 v254, s{86+2*k}\nv_mov_b32 v255, {(10+k)*4}\ns_mov_b64 exec, 1")
                    a(f"buffer_store_dword v254, v255, s[{S_OUT}:{S_OUT+3}], 0 offen\ns_mov_b64 exec, -1")
                srd(a, S_OUT, P_OUT, 2048 * 1280)
                a.label(lab)
            if idx == 0:
                a = self.a
                lab = a.new("Lh")
                a(f"s_cmp_lg_u32 s{sW}, {int(os.environ.get('HW', '0'))}\ns_cbranch_scc1 {lab}\ns_cmp_lg_u32 s{sL}, {int(os.environ.get('HL', '0'))}\ns_cbranch_scc1 {lab}")
                a(f"s_mov_b32 s{S_OUT}, s{P_DBG}\ns_mov_b32 s{S_OUT+1}, s{P_DBG+1}\ns_mov_b32 s{S_OUT+2}, 256\ns_mov_b32 s{S_OUT+3}, 0x20000")
                a(f"v_mov_b32 v254, s98\nv_mov_b32 v255, 60\ns_mov_b64 exec, 1")
                a(f"buffer_store_dword v254, v255, s[{S_OUT}:{S_OUT+3}], 0 offen\ns_mov_b64 exec, -1")
                srd(a, S_OUT, P_OUT, 2048 * 1280)
                a.label(lab)
            return
        if not self.ts or os.environ.get("TSMODE"): return
        a = self.a
        a(f"s_memrealtime s[94:95]\ns_waitcnt lgkmcnt(0)")
        a(f"s_lshl_b32 s96, s{sL}, 3\ns_add_u32 s96, s96, s{sW}\ns_lshl_b32 s96, s96, 7\ns_add_u32 s96, s96, {WS_TS + idx*4}")
        a(f"v_mov_b32 v254, s94\nv_mov_b32 v255, s96")
        a(f"s_mov_b64 s[100:101], exec\ns_mov_b64 exec, 1")
        a(f"buffer_store_dword v254, v255, {WSR}, 0 offen")
        a(f"s_mov_b64 exec, s[100:101]")

    def bail(self, err):
        a = self.a
        a(f"v_mov_b32 v254, {err}\nv_mov_b32 v255, 0")
        srd(a, S_C, P_DBG, 256)
        a(f"buffer_store_dword v254, v255, s[{S_C}:{S_C+3}], 0 offen")

    def poll(self, vaddr, vdat, n=1, tagpos=(0,), err=1, soff="0", depth=3):
        a = self.a
        L, D = a.new("Lpoll"), a.new("Lpdone")
        cnt = sT[20]
        op = {1: "buffer_load_dword", 2: "buffer_load_dwordx2", 4: "buffer_load_dwordx4"}[n]
        ld = lambda k: a(f"{op} {vr(vdat + k*n, n)}, v{vaddr}, {WSR}, {soff} offen sc1")
        a(f"s_mov_b32 s{cnt}, 0")
        for k in range(depth - 1): ld(k)
        a.label(L)
        for k in range(depth):
            ld((k + depth - 1) % depth)
            a(f"s_waitcnt vmcnt({depth-1})")
            b = vdat + k * n
            a(f"v_cmp_ne_u32 vcc, s{sNON}, v{b + tagpos[0]}")
            for t in tagpos[1:]:
                a(f"v_cmp_ne_u32 s[{sT[22]}:{sT[23]}], s{sNON}, v{b + t}")
                a(f"s_or_b64 vcc, vcc, s[{sT[22]}:{sT[23]}]")
            a(f"s_cbranch_vccz {D}")
        a(f"s_add_u32 s{cnt}, s{cnt}, 1\ns_cmp_lt_u32 s{cnt}, {SPIN_LIMIT}\ns_cbranch_scc1 {L}")
        self.bail(err)
        a.label(D)

    def one_lane_store(self, soff_s, vval):
        a = self.a
        a(f"s_mov_b64 exec, 1\nbuffer_store_dword v{vval}, v{vLANE}, {WSR}, s{soff_s} offen sc1\ns_mov_b64 exec, -1")

    def wave_flag(self, base):
        a = self.a
        a(f"s_lshl_b32 s{sT[0]}, s{sL}, 2\ns_add_u32 s{sT[0]}, s{sT[0]}, {base}")
        a(f"v_mov_b32 v255, s{sNON}")
        a("s_waitcnt vmcnt(0)\ns_barrier")
        E = a.new("Lwf")
        a(f"s_cmp_lg_u32 s{sW}, 0\ns_cbranch_scc1 {E}")
        self.one_lane_store(sT[0], 255)
        a.label(E)

    def wg_poll(self, base, first_s, nflags, vtmp, err, wave=7):
        a = self.a
        E = a.new("Lwp")
        a(f"s_cmp_lg_u32 s{sW}, {wave}\ns_cbranch_scc1 {E}")
        a(f"s_lshl_b32 s{sT[1]}, s{first_s}, 2\ns_add_u32 s{sT[1]}, s{sT[1]}, {base}\nv_lshlrev_b32 v{vtmp}, 2, v{vLANE}")
        a(f"s_mov_b32 exec_lo, {(1 << nflags) - 1}\ns_mov_b32 exec_hi, 0")
        self.poll(vtmp, vtmp + 1, n=1, err=err, soff=f"s{sT[1]}", depth=2)
        a("s_mov_b64 exec, -1")
        a.label(E)
        a("s_barrier")

    def bf16_round(self, dst, src):
        self.a(f"v_cvt_pk_bf16_f32 v{dst}, v{src}, v{src}\nv_and_b32 v{dst}, 0xffff0000, v{dst}")

    def dma_run(self, srd_s, voff, soff, lds, n, extra=""):
        a = self.a
        a(f"s_mov_b32 m0, {lds}")
        for k in range(n):
            a(f"buffer_load_dwordx4 v{voff}, s[{srd_s}:{srd_s+3}], s{soff} offen offset:{k*1024}{extra} lds")

    L1_H = 0; L1_WQ2 = 81920; L1_WKV = 128000; L1_GS = 153600; L1_NS = 158720; L1_SCR = 160000
    NQ1 = 22
    vX = 8; vXN = 48; vWQ = 128
    vWA, vC1 = 216, 228

    def prologue(self):
        a = self.a
        if os.environ.get("HTS"): a("s_memrealtime s[98:99]")
        a(f"s_cmp_ge_u32 s2, 256\ns_cbranch_scc1 L_END")
        a("s_load_dwordx16 s[32:47], s[0:1], 0\ns_load_dwordx8 s[48:55], s[0:1], 64\ns_load_dwordx4 s[56:59], s[0:1], 96")
        if not os.environ.get("X_NOCP"):
            E = a.new("Lcp"); GP = a.new("Lpc")
            a(f"s_getpc_b64 s[{sT[2]}:{sT[3]}]")
            a.label(GP)
            a(f"s_lshr_b32 s{sT[4]}, s2, 3\ns_lshl_b32 s{sT[4]}, s{sT[4]}, 13\ns_cmp_ge_u32 s{sT[4]}, L_END - {GP}\ns_cbranch_scc1 {E}")
            a(f"v_lshlrev_b32 v208, 4, v0\nv_add_u32 v208, s{sT[4]}, v208\nv_min_u32 v208, L_END - {GP} - 16, v208")
            a(f"global_load_dwordx4 v[208:211], v208, s[{sT[2]}:{sT[3]}]")
            a.label(E)
        a(f"v_and_b32 v{vLANE}, 63, v0\nv_lshrrev_b32 v8, 6, v0")
        a(f"s_and_b32 s{sXC}, s2, 7\ns_lshr_b32 s{sJ}, s2, 3")
        a(f"v_readfirstlane_b32 s{sW}, v8")
        a(f"s_lshl_b32 s{sL}, s{sXC}, 5\ns_add_u32 s{sL}, s{sL}, s{sJ}")
        a(f"v_lshlrev_b32 v{vL16}, 4, v{vLANE}")
        a(f"s_lshr_b32 s{sG}, s{sL}, 4\ns_and_b32 s{sM}, s{sL}, 15\ns_lshr_b32 s{sI}, s{sL}, 3\ns_and_b32 s{sHG}, s{sL}, 7")
        a(f"s_and_b32 s{sW4}, s{sW}, 3\ns_lshr_b32 s{sKH}, s{sW}, 2\ns_lshl_b32 s{sWK}, s{sW}, 10")
        a(f"s_lshl_b32 s{sRBG}, s{sI}, 2\ns_add_u32 s{sRBG}, s{sRBG}, s{sW4}")
        a(f"v_and_b32 v243, 31, v{vLANE}\ns_lshl_b32 s{sT[0]}, s{sW}, 5\nv_add_u32 v243, s{sT[0]}, v243")
        a(f"v_lshlrev_b32 v244, 1, v243")
        a(f"s_movk_i32 s{sT[0]}, 7680\nv_mul_u32_u24 v243, s{sT[0]}, v243\nv_lshrrev_b32 v245, 5, v{vLANE}\nv_lshl_add_u32 v243, v245, 4, v243")
        a(f"s_lshl_b32 s{sT[5]}, s{sL}, 5\ns_cmp_lt_u32 s{sL}, 240\ns_cselect_b32 s{sT[5]}, s{sT[5]}, 0x7000000")
        a(f"v_mov_b32 v246, 0")
        a("s_waitcnt lgkmcnt(0)")
        if os.environ.get("HTS") == "2": a("s_memrealtime s[86:87]")
        if os.environ.get("X_SCAT"):
            pages = [(P_WMOD, 0), (P_WMOD, 1 << 21), (P_WMOD, 2 << 21), (P_CC, 0), (P_WS, 0), (P_X, 0), (P_X, 1 << 21), (P_WQ, 0), (P_WK, 0), (P_WV, 0), (P_WS, 2 << 21), (P_WS, 8 << 21)]
            a(f"s_add_u32 s{sT[6]}, s{sJ}, s{sW}\ns_mul_hi_u32 s{sT[7]}, s{sT[6]}, {(1<<32)//12+1}\ns_mul_i32 s{sT[7]}, s{sT[7]}, 12\ns_sub_u32 s{sT[6]}, s{sT[6]}, s{sT[7]}")
            a(f"s_mov_b32 s{sT[2]}, s{P_WMOD}\ns_mov_b32 s{sT[3]}, s{P_WMOD+1}\ns_mov_b32 s{sT[7]}, 0")
            for k, (p, off) in enumerate(pages):
                if k == 0: continue
                a(f"s_cmp_eq_u32 s{sT[6]}, {k}\ns_cselect_b32 s{sT[2]}, s{p}, s{sT[2]}\ns_cselect_b32 s{sT[3]}, s{p+1}, s{sT[3]}\ns_cselect_b32 s{sT[7]}, {off}, s{sT[7]}")
            a(f"v_mov_b32 v214, s{sT[7]}\ns_mov_b64 exec, 1")
            a(f"global_load_dword v215, v214, s[{sT[2]}:{sT[3]}]")
            a("s_mov_b64 exec, -1")
        srd(a, S_B, P_WMOD, 640 * 7680)
        for it in range(3):
            a(f"buffer_load_dwordx4 {vr(self.vWA+4*it,4)}, v243, s[{S_B}:{S_B+3}], s{sT[5]} offen")
            if it < 2: a(f"v_add_u32 v243, {256*7680}, v243")
        srd(a, S_A, P_CC, 1280)
        for it in range(3):
            a(f"buffer_load_ushort v{self.vC1+it}, v244, s[{S_A}:{S_A+3}], 0 offen offset:{it*512}")
        srd(a, S_WS, P_WS, WS_USED)
        a(f"buffer_load_dword v242, v246, {WSR}, 0 offen sc1")
        if os.environ.get("HTS") == "2": a("s_memrealtime s[88:89]")
        a("s_barrier")
        if os.environ.get("HTS") == "2": a("s_memrealtime s[90:91]")

        srd(a, S_X, P_X, 2048 * 1280)
        a(f"v_lshrrev_b32 v245, 4, v{vLANE}\nv_and_b32 v246, 15, v{vLANE}")
        a(f"s_lshl_b32 s{sT[8]}, s{sI}, 3\ns_add_u32 s{sT[8]}, s{sT[8]}, s{sW}\ns_mul_i32 s{sT[8]}, s{sT[8]}, {8*1280}")
        a(f"v_mul_u32_u24 v245, 1280, v245\nv_lshl_add_u32 v245, v246, 4, v245\nv_add_u32 v246, {4*1280}, v245")
        for it in range(2):
            for c in range(5):
                a(f"buffer_load_dwordx4 {vr(self.vX + (it*5+c)*4, 4)}, v{245+it}, s[{S_X}:{S_X+3}], s{sT[8]} offen offset:{c*256}")
        a("s_barrier")
        if os.environ.get("HTS") == "2": a("s_memrealtime s[92:93]")
        a(f"s_cmp_lt_u32 s{sHG}, 4\ns_cselect_b32 s{S_C}, s{P_WK}, s{P_WV}\ns_cselect_b32 s{S_C+1}, s{P_WK+1}, s{P_WV+1}")
        a(f"s_mov_b32 s{S_C+2}, 25600\ns_mov_b32 s{S_C+3}, 0x20000")
        a(f"s_lshl_b32 s{sT[3]}, s{sW}, 12\ns_add_u32 s{sT[4]}, s{sT[3]}, {self.L1_WKV}")
        E1, E2 = a.new("Lkv"), a.new("Lkv")
        a(f"s_cmp_ge_u32 s{sW}, 6\ns_cbranch_scc1 {E1}")
        self.dma_run(S_C, vL16, sT[3], f"s{sT[4]}", 4)
        a(f"s_branch {E2}")
        a.label(E1)
        a(f"s_cmp_eq_u32 s{sW}, 7\ns_cbranch_scc1 {E2}")
        self.dma_run(S_C, vL16, sT[3], f"s{sT[4]}", 1)
        a.label(E2)
        a(f"s_mov_b32 s{sT[0]}, 0x1999999a")
        for ph in range(5):
            r = vO160[ph]
            a(f"v_add_u32 v248, {64*ph}, v{vLANE}\nv_mul_hi_u32 v249, v248, s{sT[0]}")
            a(f"v_mul_u32_u24 v250, {1280-160}, v249\nv_lshl_add_u32 v250, v248, 4, v250")
            a(f"v_add_u32 v{r}, {4096 - (1024*ph if ph < 4 else 0)}, v250")
        a(f"s_sub_u32 s{S_A}, s{P_WQ}, 4096\ns_subb_u32 s{S_A+1}, s{P_WQ+1}, 0\ns_mov_b32 s{S_A+2}, {640*1280+4096}\ns_mov_b32 s{S_A+3}, 0x20000")
        a(f"s_mul_i32 s{sT[3]}, s{sW}, 40960\ns_mul_i32 s{sT[4]}, s{sHG}, 160\ns_add_u32 s{sT[3]}, s{sT[3]}, s{sT[4]}")
        a(f"s_mul_i32 s{sT[4]}, s{sW}, 5120")
        for j in range(3):
            E = None
            if j == 1:
                a(f"s_add_u32 s{sT[3]}, s{sT[3]}, {8*40960}\ns_add_u32 s{sT[4]}, s{sT[4]}, {8*5120}")
                a(f"s_cmp_ge_u32 s{sW}, 3\ns_cselect_b32 s{sT[5]}, {self.L1_WQ2 - 11*5120}, 0\ns_add_u32 s{sT[4]}, s{sT[4]}, s{sT[5]}")
            if j == 2:
                E = a.new("Lq")
                a(f"s_cmp_ge_u32 s{sW}, 4\ns_cbranch_scc1 {E}")
                a(f"s_add_u32 s{sT[3]}, s{sT[3]}, {8*40960}\ns_mul_i32 s{sT[4]}, s{sW}, 5120\ns_add_u32 s{sT[4]}, s{sT[4]}, {self.L1_WQ2 + 5*5120}")
            a(f"s_mov_b32 m0, s{sT[4]}")
            for ph in range(4):
                a(f"buffer_load_dwordx4 v{vO160[ph]}, s[{S_A}:{S_A+3}], s{sT[3]} offen offset:{ph*1024} lds")
            a(f"s_add_u32 m0, s{sT[4]}, 4096")
            a(f"buffer_load_dwordx4 v{vO160[4]}, s[{S_A}:{S_A+3}], s{sT[3]} offen lds")
            if E: a.label(E)
        self.dma_min = 10
        srd(a, S_OUT, P_OUT, 2048 * 1280)

    def p0(self):
        a = self.a
        a.c("---- P0: modulation GEMV (16 columns per workgroup) ----")
        a(f"s_waitcnt vmcnt({10 + self.dma_min})")
        a(f"v_readfirstlane_b32 s{sNON}, v242")
        acc = 244
        for it in range(3):
            c = self.vC1 + it
            a(f"v_lshlrev_b32 v{c}, 16, v{c}\nv_mul_f32 v{232+it}, 0xbfb8aa3b, v{c}")
        for it in range(3): a(f"v_exp_f32 v{232+it}, v{232+it}")
        a(f"s_add_u32 s{sNON}, s{sNON}, 1\ns_cmp_eq_u32 s{sNON}, 0\ns_cselect_b32 s{sNON}, 1, s{sNON}")
        for it in range(3): a(f"v_add_f32 v{232+it}, 1.0, v{232+it}")
        for it in range(3): a(f"v_rcp_f32 v{232+it}, v{232+it}")
        for it in range(3): a(f"v_mul_f32 v{232+it}, v{self.vC1+it}, v{232+it}")
        for it in range(3):
            a(f"v_cvt_pk_bf16_f32 v{235+it}, v{232+it}, 0\nv_cvt_pk_bf16_f32 v{238+it}, 0, v{232+it}")
        for it in range(3):
            w = self.vWA + 4 * it
            for j in range(4):
                c0 = "0" if it == 0 else f"v{acc+2*j}"; c1 = "0" if it == 0 else f"v{acc+2*j+1}"
                a(f"v_dot2_f32_bf16 v{acc+2*j}, v{w+j}, v{235+it}, {c0}\nv_dot2_f32_bf16 v{acc+2*j+1}, v{w+j}, v{238+it}, {c1}")
        for sh in (1, 2, 4, 8):
            for j in range(8):
                a(f"v_add_f32_dpp v{acc+j}, v{acc+j}, v{acc+j} row_shr:{sh} row_mask:0xf bank_mask:0xf bound_ctrl:0")
        for j in range(8):
            a(f"v_add_f32_dpp v{acc+j}, v{acc+j}, v{acc+j} row_bcast:15 row_mask:0xa bank_mask:0xf")
        a(f"v_lshrrev_b32 v252, 5, v{vLANE}\ns_lshl_b32 s{sT[2]}, s{sW}, 2\ns_add_u32 s{sT[2]}, s{sT[2]}, {self.L1_SCR}\nv_lshl_add_u32 v252, v252, 8, s{sT[2]}")
        a("s_mov_b32 exec_lo, 0x80000000\ns_mov_b32 exec_hi, 0x80000000")
        for j in range(8):
            a(f"ds_write_b32 v252, v{acc+j} offset:{j*32}")
        a("s_mov_b64 exec, -1")
        a("s_waitcnt lgkmcnt(0)\ns_barrier")
        E = a.new("Lp0e")
        a(f"s_cmp_lg_u32 s{sW}, 0\ns_cbranch_scc1 {E}\ns_cmp_ge_u32 s{sL}, 240\ns_cbranch_scc1 {E}")
        a(f"v_and_b32 v246, 15, v{vLANE}\nv_lshlrev_b32 v246, 5, v246\nv_add_u32 v246, {self.L1_SCR}, v246")
        a("ds_read_b128 v[248:251], v246\nds_read_b128 v[244:247], v246 offset:16")
        a(f"s_mov_b32 s{sT[2]}, 0")
        a(f"s_cmp_ge_u32 s{sL}, 40\ns_cselect_b32 s{sT[2]}, 1.0, s{sT[2]}\ns_cmp_ge_u32 s{sL}, 80\ns_cselect_b32 s{sT[2]}, 0, s{sT[2]}")
        a(f"s_cmp_ge_u32 s{sL}, 160\ns_cselect_b32 s{sT[2]}, 1.0, s{sT[2]}\ns_cmp_ge_u32 s{sL}, 200\ns_cselect_b32 s{sT[2]}, 0, s{sT[2]}")
        a("s_waitcnt lgkmcnt(0)")
        a("v_add_f32 v244, v244, v248\nv_add_f32 v245, v245, v249\nv_add_f32 v246, v246, v250\nv_add_f32 v247, v247, v251")
        a("v_add_f32 v244, v244, v245\nv_add_f32 v246, v246, v247\nv_add_f32 v244, v244, v246")
        self.bf16_round(244, 244)
        a(f"v_add_f32 v244, s{sT[2]}, v244")
        self.bf16_round(244, 244)
        a(f"v_mov_b32_dpp v245, v244 quad_perm:[1,0,3,2] row_mask:0xf bank_mask:0xf")
        a(f"v_lshrrev_b32 v247, 16, v244\nv_or_b32 v248, v247, v245")
        R = a.new("Lp0r")
        a(f"v_lshlrev_b32 v246, 2, v{vLANE}\nv_mov_b32 v249, s{sNON}")
        a(f"s_cmp_ge_u32 s{sL}, 80\ns_cbranch_scc1 {R}")
        a(f"s_lshl_b32 s{sT[1]}, s{sL}, 6\ns_add_u32 s{sT[1]}, s{sT[1]}, {WS_MODG}")
        a("s_mov_b32 exec_lo, 0x5555\ns_mov_b32 exec_hi, 0")
        a(f"buffer_store_dwordx2 v[248:249], v246, {WSR}, s{sT[1]} offen sc1")
        a(f"s_mov_b64 exec, -1\ns_branch {E}")
        a.label(R)
        a(f"s_sub_u32 s{sT[1]}, s{sL}, 80\ns_lshl_b32 s{sT[2]}, s{sT[1]}, 6\ns_add_u32 s{sT[2]}, s{sT[2]}, {WS_MODR}")
        a("s_mov_b32 exec_lo, 0xffff\ns_mov_b32 exec_hi, 0")
        a(f"buffer_store_dword v244, v246, {WSR}, s{sT[2]} offen sc1")
        EB = a.new("Lmodb")
        a(f"s_cmp_lt_u32 s{sL}, 120\ns_cbranch_scc1 {EB}\ns_cmp_ge_u32 s{sL}, 200\ns_cbranch_scc1 {EB}")
        a(f"s_sub_u32 s{sT[2]}, s{sL}, 120\ns_lshl_b32 s{sT[2]}, s{sT[2]}, 5\ns_add_u32 s{sT[2]}, s{sT[2]}, {WS_MODB}")
        a(f"v_lshlrev_b32 v246, 1, v{vLANE}\ns_mov_b32 exec_lo, 0x5555")
        a(f"buffer_store_dword v248, v246, {WSR}, s{sT[2]} offen sc1")
        a.label(EB)
        a(f"s_lshl_b32 s{sT[2]}, s{sT[1]}, 2\ns_add_u32 s{sT[2]}, s{sT[2]}, {F_MODR}")
        a("s_waitcnt vmcnt(0)")
        self.one_lane_store(sT[2], 249)
        a.label(E)

    def row16_allreduce(self, regs, op="v_add_f32", steps=(8, 4, 2, 1)):
        for sh in steps:
            for r in regs:
                self.a(f"{op}_dpp v{r}, v{r}, v{r} row_ror:{sh} row_mask:0xf bank_mask:0xf")

    def ln_stats(self):
        a = self.a
        a.c("---- LN1 statistics ----")
        a(f"s_waitcnt vmcnt({self.dma_min})")
        X, N = self.vX, self.vXN
        ONE = 240
        a(f"v_mov_b32 v{ONE}, 0x3f803f80")
        for q in range(20):
            for it in range(2):
                sa_, sq_ = 232 + 2 * it + (q & 1), 236 + 2 * it + (q & 1)
                x = X + it * 20 + q
                a(f"v_dot2_f32_bf16 v{sa_}, v{x}, v{ONE}, {'0' if q < 2 else 'v%d' % sa_}")
                a(f"v_dot2_f32_bf16 v{sq_}, v{x}, v{x}, {'0' if q < 2 else 'v%d' % sq_}")
        a("v_add_f32 v232, v232, v233\nv_add_f32 v234, v234, v235\nv_add_f32 v236, v236, v237\nv_add_f32 v238, v238, v239")
        self.row16_allreduce([232, 234, 236, 238])
        a(f"s_mov_b32 s{sT[0]}, 0x3acccccd")
        for it in range(2):
            m, q, r = 232 + 2 * it, 236 + 2 * it, 242 + 4 * it
            a(f"v_mul_f32 v{m}, s{sT[0]}, v{m}\nv_mul_f32 v{q}, s{sT[0]}, v{q}")
            a(f"v_fma_f32 v{q}, -v{m}, v{m}, v{q}\nv_max_f32 v{q}, 0, v{q}\nv_add_f32 v{q}, 0x3727c5ac, v{q}\nv_rsq_f32 v{r}, v{q}")
        for it in range(2):
            m, r = 232 + 2 * it, 242 + 4 * it
            a(f"v_mov_b32 v{r+1}, v{r}\nv_mul_f32 v{r+2}, -v{m}, v{r}\nv_mul_f32 v{r+3}, -v{m}, v{r}")
        for it in range(2):
            r = 242 + 4 * it
            for q in range(20):
                d = N + it * 40 + 2 * q
                a(f"v_lshlrev_b32 v{d}, 16, v{X+it*20+q}\nv_and_b32 v{d+1}, 0xffff0000, v{X+it*20+q}")
            for q in range(20):
                d = N + it * 40 + 2 * q
                a(f"v_pk_fma_f32 {vr(d,2)}, {vr(d,2)}, {vr(r,2)}, {vr(r+2,2)}")

    def emit_wq_addr(self, d, base):
        a = self.a
        a(f"v_lshrrev_b32 v{d}, 5, v{vLANE}\nv_bfe_u32 v{d+1}, v{vLANE}, 2, 2\nv_lshl_add_u32 v{d}, v{d}, 3, v{d+1}")
        a(f"v_bfe_u32 v{d+1}, v{vLANE}, 4, 1\nv_lshlrev_b32 v{d+1}, 5, v{d+1}\nv_mad_u32_u24 v{d}, v{d}, s{sT[19]}, v{d+1}")
        a(f"v_and_b32 v{d+1}, 3, v{vLANE}\nv_lshl_add_u32 v{d}, v{d+1}, 3, v{d}")
        a(f"s_mul_i32 s{sT[0]}, s{sW4}, 40\ns_add_u32 s{sT[0]}, s{sT[0]}, {base}\nv_add_u32 v{d}, s{sT[0]}, v{d}")

    def wq_to_regs(self):
        a = self.a
        a.c("---- wq part 1 -> registers ----")
        a(f"s_movk_i32 s{sT[19]}, 160")
        self.emit_wq_addr(8, self.L1_H)
        a("s_waitcnt vmcnt(0)\ns_barrier")
        if not os.environ.get("X_NOTLB"):
            E = a.new("Ltlb")
            a(f"s_cmp_lg_u32 s{sW}, 7\ns_cbranch_scc1 {E}")
            a(f"v_lshlrev_b32 v250, 21, v{vLANE}\nv_add_u32 v250, 0x100, v250")
            a("s_mov_b32 exec_lo, 0xfff\ns_mov_b32 exec_hi, 0")
            a(f"buffer_load_dword v251, v250, {WSR}, 0 offen")
            a("s_mov_b64 exec, 1\nv_mov_b32 v250, 0")
            for k, (p, pages) in enumerate(((P_OUT, 2), (P_WO, 1), (P_W1, 2), (P_W3, 2), (P_W2, 2))):
                for pg in range(pages):
                    a(f"s_add_u32 s{sT[2]}, s{p}, {pg << 21}\ns_addc_u32 s{sT[3]}, s{p+1}, 0")
                    a(f"global_load_dword v251, v250, s[{sT[2]}:{sT[3]}]")
            a("s_mov_b64 exec, -1")
            a.label(E)
        for s in range(self.NQ1):
            a(f"ds_read_b64_tr_b16 {vr(self.vWQ+4*s,2)}, v8 offset:{s*16*160}")
            a(f"ds_read_b64_tr_b16 {vr(self.vWQ+4*s+2,2)}, v8 offset:{s*16*160 + 4*160}")

    def mod_poll_apply(self):
        a = self.a
        a.c("---- wait for sa/ca granules, LN apply ----")
        a(f"v_and_b32 v8, 15, v{vLANE}\nv_lshlrev_b32 v9, 5, v8\nv_add_u32 v9, {self.L1_GS}, v9")
        a(f"v_lshrrev_b32 v10, 4, v{vLANE}\ns_lshl_b32 s{sT[0]}, s{sW}, 3\nv_add_u32 v10, s{sT[0]}, v10")
        for it in range(2):
            if it: a("v_add_u32 v10, 4, v10")
            a(f"v_and_b32 v11, 15, v10\nv_xor_b32 v11, v11, v8\nv_lshlrev_b32 v11, 4, v11")
            a(f"v_mad_u32_u24 v{12+it}, v10, s{sT[18]}, v11".replace(f"s{sT[18]}", "v14") if False else f"v_mul_u32_u24 v{12+it}, 1280, v10\nv_add_u32 v{12+it}, v{12+it}, v11")
        self.kv_addr()
        self.q_addr()
        E = a.new("Lmp")
        a(f"s_cmp_ge_u32 s{sW}, 5\ns_cbranch_scc1 {E}")
        a(f"v_lshlrev_b32 v15, 4, v0")
        a(f"s_mov_b32 s{sT[1]}, {WS_MODG}")
        self.poll(15, 16, n=4, tagpos=(1, 3), err=1, soff=f"s{sT[1]}", depth=1)
        a("v_lshlrev_b32 v20, 16, v16\nv_and_b32 v21, 0xffff0000, v16\nv_lshlrev_b32 v22, 16, v18\nv_and_b32 v23, 0xffff0000, v18")
        a(f"v_add_u32 v24, {self.L1_GS}, v15\nds_write_b128 v24, v[20:23]")
        a("v_xor_b32 v16, 0x80008000, v16\nv_xor_b32 v17, 0x80008000, v18")
        a(f"v_lshrrev_b32 v24, 1, v15\nv_add_u32 v24, {self.L1_NS}, v24\nv_cmp_gt_u32 vcc, 160, v0")
        a(f"s_and_saveexec_b64 s[{sT[22]}:{sT[23]}], vcc\nds_write_b64 v24, v[16:17]\ns_mov_b64 exec, -1")
        a.label(E)
        a("s_waitcnt lgkmcnt(0)\ns_barrier")
        def rd(c, b):
            a(f"ds_read_b128 v[{b}:{b+3}], v9 offset:{c*512}\nds_read_b128 v[{b+4}:{b+7}], v9 offset:{c*512 + 16}")
            a(f"ds_read_b128 v[{b+8}:{b+11}], v9 offset:{2560 + c*512}\nds_read_b128 v[{b+12}:{b+15}], v9 offset:{2560 + c*512 + 16}")
        rd(0, 16)
        for c in range(5):
            b = 16 if c % 2 == 0 else 32
            if c + 1 < 5:
                rd(c + 1, 48 - b)
                a("s_waitcnt lgkmcnt(4)" if c == 0 else "s_waitcnt lgkmcnt(6)")
            else: a("s_waitcnt lgkmcnt(2)")
            for it in range(2):
                x = self.vXN + it * 40 + c * 8
                for j in range(4):
                    a(f"v_pk_fma_f32 {vr(x+2*j,2)}, {vr(x+2*j,2)}, {vr(b+8+2*j,2)}, {vr(b+2*j,2)}")
            for it in range(2):
                x = self.vXN + it * 40 + c * 8
                for j in range(4):
                    a(f"v_cvt_pk_bf16_f32 v{x+j}, v{x+2*j}, v{x+2*j+1}")
                a(f"ds_write_b128 v{12+it}, {vr(x,4)} offset:{self.L1_H + c*256}")
        a("s_waitcnt lgkmcnt(0)\ns_barrier")

    def sum_groups(self, r, t, op="v_add_f32"):
        a = self.a
        a(f"v_mov_b32 v{t}, v{r}\nv_permlane32_swap_b32 v{r}, v{t}\n{op} v{r}, v{r}, v{t}")
        a(f"v_mov_b32 v{t}, v{r}\nv_permlane16_swap_b32 v{r}, v{t}\n{op} v{r}, v{r}, v{t}")

    def kv_addr(self):
        a = self.a
        a(f"s_and_b32 s{sT[0]}, s{sHG}, 3\ns_lshl_b32 s{sT[0]}, s{sT[0]}, 4")
        a(f"v_and_b32 v232, 15, v{vLANE}\nv_lshrrev_b32 v233, 4, v{vLANE}")
        a(f"v_add_u32 v234, s{sT[0]}, v232\nv_mul_u32_u24 v234, 1280, v234")
        a(f"s_lshr_b32 s{sT[1]}, s{sW}, 1\ns_mul_i32 s{sT[2]}, s{sT[1]}, 5")
        a(f"s_lshl_b32 s{sT[3]}, s{sT[2]}, 2\nv_add_u32 v235, s{sT[3]}, v233")
        for j in range(5):
            a(f"v_add_u32 v236, {4*j}, v235\nv_xor_b32 v236, v236, v232\nv_lshl_add_u32 v{240+j}, v236, 4, v234")
        a(f"v_bfe_u32 v236, v{vLANE}, 2, 2\nv_lshl_add_u32 v236, v233, 3, v236\nv_mul_u32_u24 v236, 40, v236\nv_and_b32 v237, 3, v{vLANE}\nv_lshl_add_u32 v236, v237, 3, v236")
        a(f"s_and_b32 s{sT[3]}, s{sW}, 1\ns_lshl_b32 s{sT[3]}, s{sT[3]}, 5\ns_mul_i32 s{sT[4]}, s{sT[2]}, 1280\ns_add_u32 s{sT[3]}, s{sT[3]}, s{sT[4]}\ns_add_u32 s{sT[3]}, s{sT[3]}, {self.L1_WKV}\nv_add_u32 v236, s{sT[3]}, v236")
        a(f"s_lshl_b32 s{sT[3]}, s{sT[2]}, 6\ns_add_u32 s{sT[3]}, s{sT[3]}, {self.L1_NS}\nv_lshl_add_u32 v237, v233, 4, s{sT[3]}")

    def kv_proj(self):
        a = self.a
        a.c("---- K/V projection ----")
        for j in range(5):
            a(f"ds_read_b64_tr_b16 {vr(32+4*j,2)}, v236 offset:{j*1280}\nds_read_b64_tr_b16 {vr(34+4*j,2)}, v236 offset:{j*1280 + 160}")
            a(f"ds_read_b128 {vr(52+4*j,4)}, v{240+j} offset:{self.L1_H}")
        LV, LJ = a.new("Lvproj"), a.new("Lkvj")
        a(f"s_cmp_ge_u32 s{sHG}, 4\ns_cbranch_scc1 {LV}")
        a("s_waitcnt lgkmcnt(0)")
        for j in range(5): a(f"ds_read_b128 {vr(72+4*j,4)}, v237 offset:{j*64}")
        for j in range(5):
            a(f"v_mfma_f32_16x16x32_bf16 v[28:31], {vr(32+4*j,4)}, {vr(52+4*j,4)}, {'0' if j == 0 else 'v[28:31]'}")
        a("s_waitcnt lgkmcnt(0)")
        for j in range(5):
            a(f"v_mfma_f32_16x16x32_bf16 v[28:31], {vr(32+4*j,4)}, {vr(72+4*j,4)}, v[28:31]")
        a(f"s_branch {LJ}")
        a.label(LV)
        a("s_waitcnt lgkmcnt(0)")
        for j in range(5):
            a(f"v_mfma_f32_16x16x32_bf16 v[28:31], {vr(52+4*j,4)}, {vr(32+4*j,4)}, {'0' if j == 0 else 'v[28:31]'}")
        a.label(LJ)
        a(f"s_add_u32 s{sT[3]}, s{sWK}, {self.L1_WKV}\nv_add_u32 v18, s{sT[3]}, v{vL16}")
        a("s_barrier")
        a("ds_write_b128 v18, v[28:31]\ns_waitcnt lgkmcnt(0)\ns_barrier")
        E = a.new("Lkvend")
        a(f"s_cmp_ge_u32 s{sW}, 2\ns_cbranch_scc1 {E}")
        a("ds_read_b128 v[32:35], v18 offset:2048\nds_read_b128 v[36:39], v18 offset:4096\nds_read_b128 v[40:43], v18 offset:6144")
        a(f"s_and_b32 s{sT[2]}, s{sHG}, 3\ns_lshr_b32 s{sT[2]}, s{sT[2]}, 1\ns_lshl_b32 s{sT[3]}, s{sI}, 1\ns_add_u32 s{sT[2]}, s{sT[2]}, s{sT[3]}")
        a(f"s_mul_i32 s{sT[2]}, s{sT[2]}, {KV_TILE}\ns_add_u32 s{sT[2]}, s{sT[2]}, {WS_KV}\ns_and_b32 s{sT[3]}, s{sHG}, 1\ns_lshl_b32 s{sT[3]}, s{sT[3]}, 4")
        a("s_waitcnt lgkmcnt(0)")
        for r in range(4):
            a(f"v_add_f32 v{32+r}, v{32+r}, v{36+r}\nv_add_f32 v{28+r}, v{28+r}, v{40+r}")
        for r in range(4): a(f"v_add_f32 v{28+r}, v{28+r}, v{32+r}")
        a("v_cvt_pk_bf16_f32 v24, v28, v29\nv_cvt_pk_bf16_f32 v25, v30, v31")
        LV, LJ, W1 = a.new("Lv2"), a.new("Lj2"), a.new("Lw1")
        a(f"s_cmp_ge_u32 s{sHG}, 4\ns_cbranch_scc1 {LV}")
        a("v_dot2_f32_bf16 v26, v24, v24, 0\nv_dot2_f32_bf16 v26, v25, v25, v26")
        a(f"s_cmp_eq_u32 s{sW}, 1\ns_cbranch_scc1 {W1}")
        self.sum_groups(26, 27)
        a(f"v_add_u32 v30, s{sT[3]}, v232\nv_and_b32 v31, 1, v233\nv_lshl_add_u32 v30, v31, 5, v30\nv_lshlrev_b32 v30, 4, v30")
        a(f"v_lshrrev_b32 v31, 1, v233\nv_lshl_add_u32 v30, v31, 3, v30")
        a(f"buffer_store_dwordx2 v[24:25], v30, {WSR}, s{sT[2]} offen sc1")
        a(f"s_branch {LJ}")
        a.label(W1)
        a(f"v_cmp_gt_u32 vcc, 16, v{vLANE}\nv_cndmask_b32 v26, 0, v26, vcc")
        a(f"v_add_u32 v30, s{sT[3]}, v232\nv_lshlrev_b32 v30, 3, v30")
        a("s_mov_b32 exec_lo, 0xffff\ns_mov_b32 exec_hi, 0")
        a(f"buffer_store_dwordx2 v[24:25], v30, {WSR}, s{sT[2]} offen offset:3072 sc1")
        a(f"s_mov_b64 exec, -1\ns_branch {LJ}")
        a.label(LV)
        a("v_max_f32 v26, |v28|, |v29|\nv_max_f32 v27, |v30|, |v31|\nv_max_f32 v26, v26, v27")
        a(f"s_lshl_b32 s{sT[1]}, s{sW}, 4\nv_add_u32 v27, s{sT[1]}, v232")
        a("v_cmp_gt_u32 vcc, 20, v27\nv_cndmask_b32 v26, 0, v26, vcc")
        a("v_mov_b32 v28, 0x3f803f80\nv_and_b32 v29, 27, v27")
        a(f"v_cmp_eq_u32 vcc, 20, v27\nv_cmp_eq_u32 s[{sT[22]}:{sT[23]}], 24, v27\ns_or_b64 vcc, vcc, s[{sT[22]}:{sT[23]}]")
        a("v_cndmask_b32 v24, v24, v28, vcc\nv_cndmask_b32 v25, v25, v28, vcc")
        a(f"s_lshl_b32 s{sT[3]}, s{sT[3]}, 6\ns_add_u32 s{sT[2]}, s{sT[2]}, s{sT[3]}")
        a("v_and_b32 v31, 1, v233\nv_lshl_add_u32 v30, v31, 5, v27\nv_lshlrev_b32 v30, 4, v30\nv_lshrrev_b32 v31, 1, v233\nv_lshl_add_u32 v30, v31, 3, v30")
        a(f"buffer_store_dwordx2 v[24:25], v30, {WSR}, s{sT[2]} offen offset:1024 sc1")
        a.label(LJ)
        self.row16_allreduce([26], "v_max_f32")
        self.sum_groups(26, 27, "v_max_f32")
        a(f"s_lshl_b32 s{sT[2]}, s{sL}, 4\ns_lshl_b32 s{sT[3]}, s{sW}, 3\ns_add_u32 s{sT[2]}, s{sT[2]}, s{sT[3]}\ns_add_u32 s{sT[2]}, s{sT[2]}, {F_KV}")
        a(f"v_mov_b32 v28, s{sNON}\nv_mov_b32 v29, v26\nv_mov_b32 v30, 0")
        a("s_waitcnt vmcnt(0)\ns_mov_b64 exec, 1")
        a(f"buffer_store_dwordx2 v[28:29], v30, {WSR}, s{sT[2]} offen sc1")
        a("s_mov_b64 exec, -1")
        a.label(E)

    vQ1, vQ2 = 8, 12
    vO = 16
    vS = [32, 48]
    vP = 64
    vK1 = [72, 76]; vK2 = [80, 84]; vV1 = [88, 92]; vV2 = [96, 100]
    vAK = [104, 105]; vAK2 = [106, 107]
    vQN = 108; vK2L = 109
    L2_KV = 0; L2_WO = 53248; L2_UT = 0; L2_SCR = 0; L2_MISC = 162816
    CH = 4 * KV_TILE

    def q_addr(self):
        a = self.a
        a(f"s_lshl_b32 s{sT[0]}, s{sKH}, 5\nv_and_b32 v238, 31, v{vLANE}\nv_add_u32 v238, s{sT[0]}, v238")
        a(f"v_and_b32 v239, 15, v238\nv_mul_u32_u24 v238, 1280, v238\nv_lshrrev_b32 v226, 5, v{vLANE}\nv_xor_b32 v239, v239, v226")
        for q in range(8):
            a(f"v_xor_b32 v227, {2*q}, v239\nv_lshl_add_u32 v{216+q}, v227, 4, v238")
        self.emit_wq_addr(224, self.L1_WQ2)

    def q_proj(self):
        a = self.a
        a.c("---- Q projection: D[m=dim][n=row] ----")
        acc = 16
        def ldB(s): a(f"ds_read_b128 {vr(48+4*(s%3),4)}, v{216+s%8} offset:{self.L1_H + (s//8)*256}")
        def ldA(s):
            o = (s - self.NQ1) * 16 * 160
            a(f"ds_read_b64_tr_b16 {vr(64+4*(s%3),2)}, v224 offset:{o}\nds_read_b64_tr_b16 {vr(66+4*(s%3),2)}, v224 offset:{o+640}")
        def cnt(s): return 0 if s >= 40 else (1 + (2 if s >= self.NQ1 else 0))
        def ld(s):
            if s < 40:
                ldB(s)
                if s >= self.NQ1: ldA(s)
        ld(0); ld(1)
        for s in range(40):
            ld(s + 2)
            a(f"s_waitcnt lgkmcnt({cnt(s+1) + cnt(s+2)})")
            A = vr(self.vWQ + 4 * s, 4) if s < self.NQ1 else vr(64 + 4 * (s % 3), 4)
            a(f"v_mfma_f32_32x32x16_bf16 {vr(acc,16)}, {A}, {vr(48+4*(s%3),4)}, {'0' if s == 0 else vr(acc,16)}")
        a(f"s_mov_b32 s{sT[0]}, 0x3ea52b8e")
        for j in range(12): a(f"v_mul_f32 v{acc+j}, s{sT[0]}, v{acc+j}")
        for j in range(4): a(f"v_cvt_pk_bf16_f32 v{self.vQ1+j}, v{acc+2*j}, v{acc+2*j+1}")
        a(f"v_cvt_pk_bf16_f32 v{self.vQ2}, v{acc+8}, v{acc+9}\nv_cvt_pk_bf16_f32 v{self.vQ2+1}, v{acc+10}, v{acc+11}")
        a(f"v_cmp_gt_u32 vcc, 32, v{vLANE}")
        a(f"v_mov_b32 v{self.vQ2+2}, 0\nv_mov_b32 v{self.vQ2+3}, 0")
        a(f"v_cndmask_b32 v{self.vQ2}, 0, v{self.vQ2}, vcc\nv_cndmask_b32 v{self.vQ2+1}, 0, v{self.vQ2+1}, vcc")
        N = self.vQN
        regs = [self.vQ1 + j for j in range(4)] + [self.vQ2, self.vQ2 + 1]
        for i, r in enumerate(regs):
            a(f"v_dot2_f32_bf16 v{N}, v{r}, v{r}, {'0' if i == 0 else 'v%d' % N}")
        a(f"v_mov_b32 v40, v{N}\nv_permlane32_swap_b32 v{N}, v40\nv_add_f32 v{N}, v{N}, v40")
        a(f"v_sqrt_f32 v{N}, v{N}")

    def kv_piece(self, src_s, slot, half):
        L = [f"s_add_u32 m0, s{sT[18]}, {slot*self.CH}"]
        for k in (2 * half, 2 * half + 1):
            L.append(f"buffer_load_dwordx4 v{vL16}, {WSR}, s{src_s} offen offset:{k*1024} sc1 lds")
        if half == 1: L.append(f"s_add_u32 s{src_s}, s{src_s}, {self.CH}")
        return L

    def kv_dma(self, src_s, slot):
        for k in range(2):
            for x in self.kv_piece(src_s, slot, k): self.a(x)

    def ld_k(self, b, t):
        o = (t % 16) * KV_TILE
        self.a(f"ds_read_b128 {vr(self.vK1[b],4)}, v{vL16} offset:{o}\nds_read_b64 {vr(self.vK2[b],2)}, v{self.vK2L} offset:{o + 3072}")
    def ld_v1(self, b, t): self.a(f"ds_read_b128 {vr(self.vV1[b],4)}, v{vL16} offset:{(t % 16)*KV_TILE + 1024}")
    def ld_v2(self, b, t): self.a(f"ds_read_b128 {vr(self.vV2[b],4)}, v{vL16} offset:{(t % 16)*KV_TILE + 2048}")
    def qk(self, kb, sb, part):
        S = vr(self.vS[sb], 16)
        if part == 0: self.a(f"v_mfma_f32_32x32x16_bf16 {S}, {vr(self.vK1[kb],4)}, {vr(self.vQ1,4)}, 0")
        else: self.a(f"v_mfma_f32_32x32x16_bf16 {S}, {vr(self.vK2[kb],4)}, {vr(self.vQ2,4)}, {S}")

    def attn_setup(self):
        a = self.a
        a.c("---- attention: wait for K/V, bounds, stand-in for the row max ----")
        a("s_waitcnt lgkmcnt(0)\ns_barrier")
        a(f"s_lshl_b32 s{sT[18]}, s{sW4}, 12\ns_cmp_eq_u32 s{sW4}, 3\ns_cselect_b32 s{sT[18]}, 9216, s{sT[18]}")
        a(f"s_add_u32 s{sT[17]}, s{sT[18]}, {WS_KV}")
        PE = a.new("Lkvo")
        a(f"s_cmp_lg_u32 s{sW}, 3\ns_cbranch_scc1 {PE}")
        a(f"v_lshlrev_b32 v111, 6, v{vLANE}\ns_mov_b32 s{sT[1]}, {F_KV}")
        L, D = a.new("Lkvp"), a.new("Lkvd")
        cnt = sT[20]
        a(f"s_mov_b32 s{cnt}, 0")
        a.label(L)
        for j in range(4): a(f"buffer_load_dwordx4 {vr(112+4*j,4)}, v111, {WSR}, s{sT[1]} offen offset:{16*j} sc1")
        a("s_waitcnt vmcnt(0)")
        a(f"v_xor_b32 v128, s{sNON}, v112\nv_xor_b32 v129, s{sNON}, v114")
        for j in range(1, 4):
            a(f"v_xor_b32 v130, s{sNON}, v{112+4*j}\nv_xor_b32 v131, s{sNON}, v{114+4*j}\nv_or3_b32 v128, v128, v130, v131")
        a("v_or_b32 v128, v128, v129\nv_cmp_ne_u32 vcc, 0, v128")
        a(f"s_cbranch_vccz {D}")
        a(f"s_add_u32 s{cnt}, s{cnt}, 1\ns_cmp_lt_u32 s{cnt}, {SPIN_LIMIT}\ns_cbranch_scc1 {L}")
        self.bail(2)
        a.label(D)
        a("v_max3_f32 v113, v113, v117, v121\nv_max3_f32 v115, v115, v119, v123\nv_max_f32 v113, v113, v125\nv_max_f32 v115, v115, v127")
        self.row16_allreduce([113, 115], "v_max_f32", steps=(8, 4, 2))
        self.sum_groups(113, 114, "v_max_f32"); self.sum_groups(115, 116, "v_max_f32")
        a(f"v_lshlrev_b32 v114, 3, v{vLANE}\nv_add_u32 v114, {self.L2_MISC + 64}, v114\nv_mov_b32 v112, v113\nv_mov_b32 v113, v115")
        a("s_mov_b64 exec, 3\nds_write_b64 v114, v[112:113]\ns_mov_b64 exec, -1\ns_waitcnt lgkmcnt(0)")
        a.label(PE)
        if self.stop >= 3:
            import g3b
            g3b.bg_setup(self)
        a("s_barrier")
        self.stamp(31)
        E = a.new("Lfc")
        a(f"s_cmp_ge_u32 s{sW}, 4\ns_cbranch_scc1 {E}")
        for k in range(3):
            self.kv_dma(sT[17], k)
        a.label(E)
        a(f"v_mov_b32 v114, {self.L2_MISC + 64}\nds_read_b128 v[116:119], v114\ns_waitcnt lgkmcnt(0)")
        a("v_add_f32 v113, v116, v117\nv_sqrt_f32 v113, v113\nv_max_f32 v114, v118, v119")
        a(f"v_mul_f32 v113, 0x3f810000, v113\nv_mul_f32 v{self.vQN}, v{self.vQN}, v113")
        E = a.new("Lgen")
        a(f"s_or_b32 s{sT[0]}, s{sL}, s{sW}\ns_cmp_lg_u32 s{sT[0]}, 0\ns_cbranch_scc1 {E}")
        a(f"v_mov_b32 v112, s{sNON}\ns_mov_b32 s{sT[0]}, {WS_NONCE}")
        self.one_lane_store(sT[0], 112)
        a.label(E)
        for b in range(2):
            a(f"v_mov_b32 v{self.vK2[b]+2}, 0x3f803f80\nv_mov_b32 v{self.vK2[b]+3}, 0x00003f80")
        a(f"v_and_b32 v{self.vK2L}, 31, v{vLANE}\nv_lshlrev_b32 v{self.vK2L}, 3, v{self.vK2L}")
        a("s_waitcnt vmcnt(8)\ns_barrier")
        self.stamp(13) if os.environ.get("TSX") else None
        self.ld_k(0, 0)
        self.ld_k(1, 1)
        self.ld_v1(0, 0); self.ld_v2(0, 0)
        a("s_waitcnt lgkmcnt(4)")
        self.qk(0, 0, 0); self.qk(0, 0, 1)
        S = self.vS[0]
        U = self.vQN
        a(f"v_mov_b32 v115, 0x43480000\nv_mov_b32 v116, 0x47000000")
        a(f"v_cmp_nlt_f32 s[{sT[22]}:{sT[23]}], v114, v116")
        a(f"v_max3_f32 v112, v{S}, v{S+1}, v{S+2}")
        for j in range(3, 15, 2): a(f"v_max3_f32 v112, v112, v{S+j}, v{S+j+1}")
        a(f"v_max_f32 v112, v112, v{S+15}")
        a("v_mov_b32 v113, v112\nv_permlane32_swap_b32 v112, v113\nv_max_f32 v112, v112, v113")
        a(f"v_sub_f32 v113, v{U}, v112\nv_cmp_nle_f32 vcc, v113, v115")
        a(f"s_or_b64 vcc, vcc, s[{sT[22]}:{sT[23]}]")
        a(f"s_cmp_lg_u64 vcc, 0\ns_cselect_b32 s{sT[12]}, 1, 0")
        if self.force_fallback: a(f"s_mov_b32 s{sT[12]}, 1")
        a(f"s_lshl_b32 s{sT[0]}, s{sW}, 2\ns_add_u32 s{sT[0]}, s{sT[0]}, {self.L2_MISC}")
        a(f"v_mov_b32 v113, s{sT[0]}\nv_mov_b32 v114, s{sT[12]}\nds_write_b32 v113, v114")
        a(f"v_add_f32 v113, 0xc2c80000, v{U}\nv_max_f32 v112, v112, v113\nv_mov_b32 v113, {self.L2_MISC}")
        a("s_waitcnt lgkmcnt(0)\ns_barrier")
        a("ds_read_b128 v[116:119], v113\nds_read_b128 v[120:123], v113 offset:16\ns_waitcnt lgkmcnt(0)")
        a("v_or3_b32 v116, v116, v117, v118\nv_or3_b32 v119, v119, v120, v121\nv_or3_b32 v116, v116, v122, v123\nv_or_b32 v116, v116, v119")
        a(f"v_readfirstlane_b32 s{sT[12]}, v116")
        FB = a.new("Lnofb")
        a(f"s_cmp_eq_u32 s{sT[12]}, 0\ns_cbranch_scc1 {FB}")
        self.max_pass()
        a.label(FB)
        a("v_sub_f32 v112, 0, v112")
        a("v_cvt_pk_bf16_f32 v113, v112, v112\nv_and_b32 v114, 0xffff0000, v113\nv_sub_f32 v112, v112, v114")
        a("v_cvt_pk_bf16_f32 v115, v112, v112\nv_and_b32 v116, 0xffff0000, v115\nv_sub_f32 v112, v112, v116")
        a("v_cvt_pk_bf16_f32 v117, v112, 0")
        a("v_and_b32 v113, 0xffff, v113\nv_or_b32 v113, v113, v116")
        a(f"v_cmp_gt_u32 vcc, 32, v{vLANE}")
        a(f"v_cndmask_b32 v{self.vQ2+2}, 0, v113, vcc\nv_cndmask_b32 v{self.vQ2+3}, 0, v117, vcc")

    def max_pass(self):
        a = self.a
        a.c("fallback: exact row max")
        a("v_mov_b32 v112, 0xff7fffff")
        L = a.new("Lmx"); c = sT[13]
        a(f"s_add_u32 s{c}, s{sT[18]}, {WS_KV}\ns_mov_b32 s{sT[21]}, 0")
        a.label(L)
        E = a.new("Lmxd")
        a(f"s_cmp_ge_u32 s{sW}, 4\ns_cbranch_scc1 {E}")
        self.kv_dma(c, 3)
        a.label(E)
        a("s_waitcnt vmcnt(0)\ns_barrier")
        S = self.vS[1]
        for t in range(4):
            o = (12 + t) * KV_TILE
            a(f"ds_read_b128 v[120:123], v{vL16} offset:{o}\nds_read_b64 v[124:125], v{self.vK2L} offset:{o + 3072}")
            a(f"v_mov_b32 v126, 0\nv_mov_b32 v127, 0\ns_waitcnt lgkmcnt(0)")
            a(f"v_mfma_f32_32x32x16_bf16 {vr(S,16)}, v[120:123], {vr(self.vQ1,4)}, 0")
            a(f"v_mfma_f32_32x32x16_bf16 {vr(S,16)}, v[124:127], {vr(self.vQ2,4)}, {vr(S,16)}")
            for j in range(0, 16, 2): a(f"v_max3_f32 v112, v112, v{S+j}, v{S+j+1}")
        a("s_barrier")
        a(f"s_add_u32 s{sT[21]}, s{sT[21]}, 1\ns_cmp_lt_u32 s{sT[21]}, 16\ns_cbranch_scc1 {L}")
        a("v_mov_b32 v113, v112\nv_permlane32_swap_b32 v112, v113\nv_max_f32 v112, v112, v113")

    def attn_tile(self, t, h1=(), h2=()):
        a = self.a
        S = self.vS[t % 2]; Sp = self.vS[(t + 1) % 2]; P = self.vP
        def ex(j): a(f"v_exp_f32 v{S+j}, v{S+j}")
        def cv(j, b): a(f"v_cvt_pk_bf16_f32 v{P+j}, v{b+2*j}, v{b+2*j+1}")
        O = vr(self.vO, 16)
        ex(0); ex(1); cv(6, Sp); ex(2); cv(7, Sp); ex(3)
        a("s_waitcnt lgkmcnt(2)")
        self.qk((t + 1) % 2, (t + 1) % 2, 0)
        self.ld_k(t % 2, t + 2)
        ex(4); ex(5); cv(0, S); ex(6); cv(1, S); ex(7)
        self.qk((t + 1) % 2, (t + 1) % 2, 1)
        self.ld_v1((t + 1) % 2, t + 1)
        for x in h1: a(x)
        ex(8); ex(9); cv(2, S); ex(10); cv(3, S); ex(11)
        a(f"v_mfma_f32_32x32x16_bf16 {O}, {vr(self.vV2[(t+1)%2],4)}, {vr(P+4,4)}, {O}")
        self.ld_v2((t + 1) % 2, t + 1)
        for x in h2: a(x)
        ex(12); ex(13); cv(4, S); ex(14); cv(5, S); ex(15)
        a("s_waitcnt lgkmcnt(4)")
        a(f"v_mfma_f32_32x32x16_bf16 {O}, {vr(self.vV1[t%2],4)}, {vr(P,4)}, {O}")

    def attn_main(self):
        a = self.a
        a.c("---- attention main loop (unrolled, static background schedule) ----")
        src = sT[17]
        for j in range(16): a(f"v_mov_b32 v{self.vO+j}, 0")
        self.qk(0, 0, 0); self.qk(0, 0, 1)
        for j in range(12, 16): a(f"v_mov_b32 v{self.vS[1]+j}, 0")
        a(f"v_mov_b32 v{self.vP+4}, 0\nv_mov_b32 v{self.vP+5}, 0")
        for j in range(4): a(f"v_mov_b32 v{self.vV2[1]+j}, 0")
        a(f"s_cmp_ge_u32 s{sW}, 4\ns_cselect_b64 vcc, -1, 0")
        if not os.environ.get("X_NOAPRIO"):
            lab = a.new("Lpr"); a(f"s_cbranch_vccz {lab}\ns_setprio 1"); a.label(lab)
        bg = {}
        def put(T, tag, ins, n=1, need=None, role=None): bg.setdefault(T, []).append((tag, ins, n, need, role))
        for c in range(13):
            put(4 * c + 2, f"kv{c+3}", self.kv_piece(src, (c + 3) % 4, 0), n=2, role="A")
            put(4 * c + 3, f"kv{c+3}", self.kv_piece(src, (c + 3) % 4, 1), n=2, role="A")
        if self.stop >= 3 and not os.environ.get("X_NOEXTRA"):
            import g3b
            g3b.bg_schedule(self, put)
        pend = {"A": [("kv1", 4), ("kv2", 4)], "B": []}
        def wait_for(role, tag):
            p = pend[role]
            idx = [i for i, (k, n) in enumerate(p) if k == tag]
            if not idx: return None
            after = sum(n for (k, n) in p[idx[-1] + 1:])
            del p[:idx[-1] + 1]
            return after
        def guarded(role, body):
            lab = a.new("Lg")
            return [f"s_cbranch_vcc{'nz' if role == 'A' else 'z'} {lab}"] + body + [f"{lab}:"]
        for T in range(64):
            hooks = [[], []]
            ops = bg.get(T, [])
            for k, (tag, ins, n, need, role) in enumerate(ops):
                h = hooks[0] if k < (len(ops) + 1) // 2 else hooks[1]
                body = []
                if need:
                    assert role
                    w = wait_for(role, need)
                    if w is not None: body.append(f"s_waitcnt vmcnt({w})")
                body.extend(ins)
                if role: h.extend(guarded(role, body)); pend[role].append((tag, n)) if n else None
                else:
                    h.extend(body)
                    if n: pend["A"].append((tag, n)); pend["B"].append((tag, n))
            self.attn_tile(T, hooks[0], hooks[1])
            if T % 4 == 1 and T < 62:
                c = T // 4
                w = wait_for("A", f"kv{c+1}")
                if w is not None:
                    for x in guarded("A", [f"s_waitcnt vmcnt({w})"]): a(x)
                a("s_barrier")
        a("s_setprio 0")
        S = self.vS[1]; P = self.vP
        a(f"v_cvt_pk_bf16_f32 v{P+6}, v{S+12}, v{S+13}\nv_cvt_pk_bf16_f32 v{P+7}, v{S+14}, v{S+15}")
        a(f"s_waitcnt lgkmcnt(0)")
        a(f"v_mfma_f32_32x32x16_bf16 {vr(self.vO,16)}, {vr(self.vV2[1],4)}, {vr(P+4,4)}, {vr(self.vO,16)}")

    def attn_epilogue(self):
        a = self.a
        a.c("---- attention epilogue ----")
        O = self.vO
        a(f"s_lshl_b32 s{sT[0]}, s{sI}, 2\ns_lshl_b32 s{sT[1]}, s{sKH}, 1\ns_add_u32 s{sT[0]}, s{sT[0]}, s{sT[1]}\ns_mul_i32 s{sT[0]}, s{sT[0]}, {24*1024}\ns_add_u32 s{sT[0]}, s{sT[0]}, {WS_O}")
        a(f"s_lshl_b32 s{sT[1]}, s{sHG}, 2\ns_add_u32 s{sT[1]}, s{sT[1]}, s{sW4}\ns_mul_i32 s{sT[1]}, s{sT[1]}, 768\ns_add_u32 s{sT[0]}, s{sT[0]}, s{sT[1]}")
        a(f"v_bfe_u32 v32, v{vLANE}, 4, 1\nv_mul_u32_u24 v32, {24*1024}, v32\nv_and_b32 v33, 15, v{vLANE}\nv_lshl_add_u32 v32, v33, 4, v32")
        a(f"v_lshrrev_b32 v33, 5, v{vLANE}\nv_lshl_add_u32 v33, v33, 8, v32")
        a(f"v_cmp_gt_u32 vcc, 32, v{vLANE}\nv_mov_b32 v50, 0\nv_mov_b32 v51, 0")
        a(f"v_cndmask_b32 v40, v{O+8}, v{O+12}, vcc")
        a("v_rcp_f32 v40, v40")
        for j in range(12): a(f"v_mul_f32 v{O+j}, v{O+j}, v40")
        for j in range(6): a(f"v_cvt_pk_bf16_f32 v{44+j}, v{O+2*j}, v{O+2*j+1}")
        a(f"buffer_store_dwordx4 v[44:47], v33, {WSR}, s{sT[0]} offen sc1")
        a("s_mov_b32 exec_hi, 0")
        a(f"buffer_store_dwordx4 v[48:51], v32, {WSR}, s{sT[0]} offen offset:512 sc1")
        a("s_mov_b64 exec, -1")
        self.wave_flag(F_O)

    def build(self):
        a = self.a
        self.prologue(); self.stamp(0)
        self.p0(); self.stamp(1)
        self.ln_stats()
        self.wq_to_regs(); self.stamp(2)
        self.mod_poll_apply(); self.stamp(3)
        self.kv_proj(); self.stamp(16)
        self.q_proj(); self.stamp(4)
        if self.stop >= 2:
            self.attn_setup(); self.stamp(5); self.cstamp(27)
            self.attn_main(); self.stamp(6); self.cstamp(28)
            self.attn_epilogue(); self.stamp(7)
        if self.stop >= 3:
            import g3b
            g3b.rest(self)
        a("s_waitcnt vmcnt(0) lgkmcnt(0)")
        a.label("L_END")
        a("s_endpgm")
        return fix_hazards(a.l)

HEADER = open(os.path.join(os.path.dirname(os.path.abspath(__file__)), "header.txt")).read()

def make(stop=99, ts=False, force_fallback=False):
    g = Gen(stop, ts, force_fallback)
    lines, n = g.build()
    txt = HEADER + "; @launch grid=(256,1,1) block=(512,1,1) lds=163840\n"
    txt += f'.amdgcn_target "amdgcn-amd-amdhsa--gfx950"\n.text\n.globl {NAME}\n.p2align 8\n.type {NAME},@function\n{NAME}:\n'
    txt += "\n".join(lines) + "\n"
    txt += f""".section .rodata,"a"
.p2align 6
.amdhsa_kernel {NAME}
  .amdhsa_next_free_vgpr 256
  .amdhsa_next_free_sgpr 102
  .amdhsa_accum_offset 256
  .amdhsa_group_segment_fixed_size 0
  .amdhsa_kernarg_size 112
  .amdhsa_user_sgpr_count 2
  .amdhsa_user_sgpr_kernarg_segment_ptr 1
  .amdhsa_system_sgpr_workgroup_id_x 1
  .amdhsa_float_denorm_mode_32 3
.end_amdhsa_kernel
"""
    return txt, n

if __name__ == "__main__":
    import argparse
    ap = argparse.ArgumentParser()
    ap.add_argument("--stop", type=int, default=99)
    ap.add_argument("--ts", action="store_true")
    ap.add_argument("--fb", action="store_true")
    ap.add_argument("-o", default="out.s")
    args = ap.parse_args()
    sys.modules["g3"] = sys.modules["__main__"]
    txt, n = make(args.stop, args.ts, args.fb)
    open(args.o, "w").write(txt)
    print("nops inserted:", n, "lines:", txt.count("\n"))
```
